```python
import torch

def _softmax(x, axis=-1):
    return torch.softmax(x, dim=axis)
def _gelu(x):
    return torch.nn.functional.gelu(x, approximate="tanh")
def _silu(x):
    return torch.nn.functional.silu(x)
def _sigmoid(x):
    return torch.sigmoid(x)
def _layernorm(x, axis=-1, eps=1e-5):
    m = x.mean(dim=axis, keepdim=True)
    v = x.var(dim=axis, keepdim=True, unbiased=False)
    return (x - m) / torch.sqrt(v + eps)
def _scatter_add(tgt, idx, src, axis=0):
    return tgt.clone().index_add_(axis, idx, src)
def _segment_sum(src, seg, n):
    out = torch.zeros((n,) + src.shape[1:], dtype=src.dtype)
    return out.index_add_(0, seg, src)
def _pad(x, pw):
    flat = tuple(v for pair in reversed(pw) for v in pair)
    return torch.nn.functional.pad(x, flat)

kernel_name = 'gated_mix__sliding_block_cached__swiglu_ffn__decode'

def setup_inputs():

    _w = (lambda a: (lambda t: t.to(torch.bfloat16) if t.is_floating_point() else t)(torch.as_tensor(a)))
    def _A_setup():
        B, Sq, D = 1, 1, 576
        Hq, Hkv, Sk, Dh = 32, 16, 65536, 128
        assert Hq % Hkv == 0, (Hq, Hkv)
        return {
            "x": _w((lambda *s: torch.randn(*s, dtype=torch.bfloat16) * 0.05)(B, Sq, D)),
            "k_cache": _w((lambda *s: torch.randn(*s, dtype=torch.bfloat16) * 6.4)(B, Hkv, Sk, Dh)),
            "v_cache": _w((lambda *s: torch.randn(*s, dtype=torch.bfloat16) * 0.2)(B, Hkv, Sk, Dh)),
            "wq": _w((lambda *s: torch.randn(*s, dtype=torch.bfloat16) * 6.4)(D, Hq * Dh) * (D ** -0.5)),
            "wo": _w((lambda *s: torch.randn(*s, dtype=torch.bfloat16) * 0.2)(Hq * Dh, D) * ((Hq * Dh) ** -0.5)),
        }
    _A_in = _A_setup()

    def _B_setup():
        B, S, D, F = 1, 1, 576, 4608
        return {
            "x": _w((lambda *s: torch.randn(*s, dtype=torch.bfloat16) * 0.05)(B, S, D)),
            "w_gate": _w((lambda *s: torch.randn(*s, dtype=torch.bfloat16) * 0.05)(D, F)),
            "w_up": _w((lambda *s: torch.randn(*s, dtype=torch.bfloat16) * 0.05)(D, F)),
            "w_down": _w((lambda *s: torch.randn(*s, dtype=torch.bfloat16) * 0.05)(F, D)),
        }
    _B_in = _B_setup()

    return {
        "A_x": _A_in["x"],
        "A_k_cache": _A_in["k_cache"],
        "A_v_cache": _A_in["v_cache"],
        "A_wq": _A_in["wq"],
        "A_wo": _A_in["wo"],
        "B_x": _B_in["x"],
        "B_w_gate": _B_in["w_gate"],
        "B_w_up": _B_in["w_up"],
        "B_w_down": _B_in["w_down"],
        "gate_w": _w((lambda *s: torch.randn(*s, dtype=torch.bfloat16) * 0.1)(576) * 16.0),
    }

def reference(A_x, A_k_cache, A_v_cache, A_wq, A_wo, B_x, B_w_gate, B_w_up, B_w_down, gate_w):
    def _A_ref(x, k_cache, v_cache, wq, wo):
        B, Sq, D = x.shape
        Hq, Dh = 32, 128
        Hkv, Sk = k_cache.shape[1], k_cache.shape[2]
        W = min(4096, max(256, Sk // 4))
        rep = Hq // Hkv
        q = (lambda x, *d: x.permute(*d))((x @ wq).reshape(B, Sq, Hq, Dh), 0, 2, 1, 3)
        k = (lambda x, n, axis: torch.repeat_interleave(x, n, dim=axis))(k_cache[:, :, Sk - W:, :], rep, axis=1)
        v = (lambda x, n, axis: torch.repeat_interleave(x, n, dim=axis))(v_cache[:, :, Sk - W:, :], rep, axis=1)
        scores = torch.einsum("bhqd,bhkd->bhqk", q, k) * (Dh ** -0.5)
        p = _softmax(scores, axis=-1)
        o = torch.einsum("bhqk,bhkd->bhqd", p, v)
        return (lambda x, *d: x.permute(*d))(o, 0, 2, 1, 3).reshape(B, Sq, Hq * Dh) @ wo

    def _B_ref(x, w_gate, w_up, w_down):
        g = _silu(x @ w_gate)
        u = x @ w_up
        return (g * u) @ w_down

    x = A_x
    g = _sigmoid((x * gate_w).sum(-1, keepdims=True))
    a = _A_ref(x, A_k_cache, A_v_cache, A_wq, A_wo)
    b = _B_ref(x, B_w_gate, B_w_up, B_w_down)
    return g * a + (1 - g) * b
```

```python
import sys, struct
NAME = "gated_mix__sliding_block_cached__swiglu_ffn__decode_kernel"
HDR = open("gated_mix__sliding_block_cached__swiglu_ffn__decode.s.ref").read().split("; Override launch")[0]

def f2u(f): return struct.unpack("<I", struct.pack("<f", f))[0]

EPOCH = 0
QB = 4096
OB = QB + 256*512
FB = OB + 256*2048
WS_USED = FB + 256*4608
STB = 8 << 20
L_QP = 0
L_Q = 4608
L_M = 5120
L_L = 5184
L_Z = 5248
L_C = 5312
L_O = 5632
L_H = L_O + 9*1024
LDS_BYTES = L_H + 9*256

class G:
    def __init__(s, **kw):
        s.L = []; s.p = dict(WA=4, WF=2, stamps=False, nt="nt", qsleep=24, emu=False, spin=200000)
        s.p.update(kw); s.vm = []; s.nst = 0
    def A(s, x): s.L.append("    " + x)
    def lab(s, x): s.L.append(x + ":")
    def vreset(s): s.vm = []
    def vissue(s, name): s.vm.append(name)
    def vwait(s, name):
        i = s.vm.index(name); n = len(s.vm) - 1 - i
        s.A(f"s_waitcnt vmcnt({n})")
    def vwait_n(s, n): s.A(f"s_waitcnt vmcnt({n})")
    def stamp(s, k):
        if s.p["stamps"]: s.A(f"s_memrealtime s[{80+2*k}:{81+2*k}]")

sW=3
SX=8; SWQ=12; SWS=16; S1=20; S2=24; S3=28; SGW=32; SOUT=36
sE=40; sTAG=42
sXCD=44; sJ=45; sHK=46; sSLOT=47; sQI=48; sT0=49; sT1=50; sT2=51; sT3=52; sBIAS=53; sSPIN=54
sKO=55; sOO=56; sSEL0=57; sSEL1=58; sPI=59; sC=60; sU=61
sM0=62
sEX=70
def srd(b): return f"s[{b}:{b+3}]"
vL=1; vM=2
vOT=6; vOK=7; vOV=8; vOWQ=9; vLT=10; vX0=11; vX=12
vXG=16; vGW=17; vT=18
vA=32
vACC=40
vP=48
vOKL=60; vOVL=61; vR3=62; vOFP=63
vK=64
vV=112
NV=160
def v4(b): return f"v[{b}:{b+3}]"
def v2(b): return f"v[{b}:{b+1}]"

DPP = "row_mask:0xf bank_mask:0xf"

def build_A(g, dst, rep):
    for j in range(4): g.A(f"v_and_b32 v{dst+j}, v{rep}, v{vM+j}")

def rowred(g, op, regs):
    need = max(0, 2 - (len(regs) - 1))
    for r in (8, 4, 2, 1):
        g.A(f"s_nop {max(need-1,0)}" if need else "s_nop 0") if need else None
        for x in regs: g.A(f"{op}_dpp v{x}, v{x}, v{x} row_ror:{r} {DPP}")

def crossrow(g, op, x, t):
    for sw in ("v_permlane16_swap_b32", "v_permlane32_swap_b32"):
        g.A(f"v_mov_b32 v{t}, v{x}")
        g.A("s_nop 1")
        g.A(f"{sw} v{x}, v{t}")
        g.A("s_nop 1")
        g.A(f"{op} v{x}, v{x}, v{t}")

def bf16r(g, d, s_):
    g.A(f"v_cvt_pk_bf16_f32 v{d}, v{s_}, v{s_}")
    g.A(f"v_and_b32 v{d}, 0xffff0000, v{d}")

def qpart(g, vWQ):
    g.A(f"v_perm_b32 v{vT}, v{vX0}, v{vX0}, s{sSEL0}")
    g.A(f"v_perm_b32 v{vT+1}, v{vX0}, v{vX0}, s{sSEL1}")
    build_A(g, vA, vT); build_A(g, vA+4, vT+1)
    g.A(f"v_lshlrev_b32 v{vXG}, 16, v{vXG}")
    g.A(f"v_lshlrev_b32 v{vGW}, 16, v{vGW}")
    g.A(f"v_mfma_f32_16x16x32_bf16 {v4(vACC)}, {v4(vA)}, {v4(vWQ)}, 0")
    g.A(f"v_mfma_f32_16x16x32_bf16 {v4(vACC)}, {v4(vA+4)}, {v4(vWQ+4)}, {v4(vACC)}")
    g.A(f"v_mul_f32 v{vXG}, v{vXG}, v{vGW}")
    bf16r(g, vXG, vXG)
    rowred(g, "v_add_f32", [vXG])
    crossrow(g, "v_add_f32", vXG, vT)
    g.A(f"s_lshl_b32 s{sT0}, s{sW}, 9")
    g.A(f"v_add_u32 v{vT+2}, s{sT0}, v{vLT}")
    g.A("s_mov_b32 exec_lo, 0x00ff00ff"); g.A("s_mov_b32 exec_hi, 0xff00ff00")
    g.A(f"ds_write_b128 v{vT+2}, {v4(vACC)} offset:{L_QP}")
    g.A("s_mov_b64 exec, 1")
    g.A(f"s_lshl_b32 s{sT0}, s{sW}, 2")
    g.A(f"v_mov_b32 v{vT+3}, s{sT0}")
    g.A(f"ds_write_b32 v{vT+3}, v{vXG} offset:{L_Z}")
    g.A("s_mov_b64 exec, -1")
    g.A("s_waitcnt lgkmcnt(0)")
    g.A("s_barrier")

def maketag(g):
    g.A(f"s_mul_i32 s{sTAG}, s{sE}, 0x9e3779b1")
    g.A(f"s_add_u32 s{sTAG}, s{sTAG}, 0x7f4a7c15")
    g.A(f"s_mul_i32 s{sTAG+1}, s{sTAG}, 0x85ebca6b")
    g.A(f"s_xor_b32 s{sTAG+1}, s{sTAG+1}, 0xc2b2ae35")

def qpublish(g, base):
    g.A(f"v_lshlrev_b32 v{vT}, 2, v{vL}")
    for k in range(9):
        g.A(f"ds_read2st64_b32 {v2(base+2*k)}, v{vT} offset0:{2*k} offset1:{2*k+1}")
    g.A(f"v_lshlrev_b32 v{vT+1}, 3, v{vL}")
    g.A(f"s_lshl_b32 s{sT0}, s{sQI}, 9"); g.A(f"s_add_u32 s{sT0}, s{sT0}, {QB}")
    g.A("s_waitcnt lgkmcnt(0)")
    for k in range(1, 9):
        g.A(f"v_pk_add_f32 {v2(base)}, {v2(base)}, {v2(base+2*k)}")
    g.A(f"v_add_f32 v{base}, v{base}, v{base+1}")
    g.A(f"v_mov_b32 v{base+1}, s{sTAG}")
    g.A(f"buffer_store_dwordx2 {v2(base)}, v{vT+1}, {srd(SWS)}, s{sT0} offen sc1")

def fpublish(g, acc):
    g.A("s_nop 7")
    g.A(f"v_permlane32_swap_b32 v{acc}, v{acc+2}")
    g.A(f"v_permlane32_swap_b32 v{acc+1}, v{acc+3}")
    g.A(f"s_mul_i32 s{sT0}, s{sPI}, 4608"); g.A(f"s_lshl_b32 s{sT1}, s{sW}, 9")
    g.A(f"v_add_f32_dpp v{acc}, v{acc+2}, v{acc} row_ror:8 {DPP}")
    g.A(f"v_add_f32_dpp v{acc+1}, v{acc+3}, v{acc+1} row_ror:8 {DPP}")
    g.A(f"s_add_u32 s{sT0}, s{sT0}, s{sT1}"); g.A(f"s_add_u32 s{sT0}, s{sT0}, {FB}")
    g.A(f"v_mov_b32 v{acc+2}, s{sTAG}"); g.A(f"v_mov_b32 v{acc+3}, s{sTAG+1}")
    g.A("s_mov_b32 exec_lo, 0x00ff00ff"); g.A("s_mov_b32 exec_hi, 0x00ff00ff")
    g.A(f"buffer_store_dwordx4 {v4(acc)}, v{vOFP}, {srd(SWS)}, s{sT0} offen sc1")
    g.A("s_mov_b64 exec, -1")

def gen(**kw):
    g = G(**kw); A = g.A; p = g.p; nt = p["nt"]
    out = [HDR.rstrip("\n")]
    out.append(f"; @launch grid=(256,1,1) block=(576,1,1) lds={LDS_BYTES}")
    out += ['.amdgcn_target "amdgcn-amd-amdhsa--gfx950"', ".text", f".globl {NAME}", ".p2align 8", f".type {NAME},@function", f"{NAME}:"]
    g.stamp(0)
    A("s_cmp_ge_u32 s2, 256"); A("s_cbranch_scc1 L_end")
    A(f"s_lshr_b32 s{sJ}, s2, 3")
    A(f"s_load_dwordx2 s[{SX}:{SX+1}], s[0:1], 0")
    A(f"s_load_dwordx2 s[{SWQ}:{SWQ+1}], s[0:1], 24")
    A(f"s_cmp_lt_u32 s{sJ}, 22")
    A(f"s_cselect_b32 s{sT0}, 8, 48"); A(f"s_cselect_b32 s{sT1}, 16, 56"); A(f"s_cselect_b32 s{sT2}, 32, 64")
    A(f"s_load_dwordx2 s[{S1}:{S1+1}], s[0:1], s{sT0}")
    A(f"s_load_dwordx2 s[{S2}:{S2+1}], s[0:1], s{sT1}")
    A(f"s_load_dwordx2 s[{S3}:{S3+1}], s[0:1], s{sT2}")
    A(f"s_load_dwordx2 s[{SGW}:{SGW+1}], s[0:1], 72")
    A(f"s_load_dwordx2 s[{SOUT}:{SOUT+1}], s[0:1], 80")
    A(f"s_load_dwordx2 s[{SWS}:{SWS+1}], s[0:1], 96")
    A(f"s_mov_b32 s{S3+2}, 5308416")
    A(f"s_cselect_b32 s{S1+2}, 0x10000000, s{S3+2}")
    A(f"s_mov_b32 s{S2+2}, s{S1+2}")
    A(f"s_cselect_b32 s{S3+2}, 4718592, s{S3+2}")
    A(f"s_mov_b32 s{SX+2}, 1152"); A(f"s_mov_b32 s{SWQ+2}, 4718592"); A(f"s_mov_b32 s{SGW+2}, 1152")
    A(f"s_mov_b32 s{SOUT+2}, 1152"); A(f"s_mov_b32 s{SWS+2}, {(16<<20) if p['stamps'] else WS_USED}")
    for b in (SX, SWQ, SWS, S1, S2, S3, SGW, SOUT): A(f"s_mov_b32 s{b+3}, 0x20000")
    A(f"v_lshrrev_b32 v{vT}, 6, v0")
    A(f"v_and_b32 v{vL}, 63, v0")
    A(f"v_readfirstlane_b32 s{sW}, v{vT}")
    A(f"s_and_b32 s{sXCD}, s2, 7")
    A(f"v_lshrrev_b32 v{vR3}, 3, v{vL}")
    A(f"v_and_b32 v{vT+1}, 7, v{vL}")
    A(f"v_lshlrev_b32 v{vT+2}, 4, v{vT+1}")
    A(f"v_lshl_add_u32 v{vOWQ}, v{vR3}, 14, v{vT+2}")
    A(f"s_lshl_b32 s{sQI}, s{sXCD}, 5"); A(f"s_add_u32 s{sQI}, s{sQI}, s{sJ}")
    A(f"s_bfe_u32 s{sT0}, s{sQI}, 0x20002")
    A(f"s_mul_i32 s{sT0}, s{sT0}, 144"); A(f"s_lshl_b32 s{sT1}, s{sW}, 4"); A(f"s_add_u32 s{sT0}, s{sT0}, s{sT1}")
    A(f"s_lshr_b32 s{sT1}, s{sQI}, 4"); A(f"s_lshl_b32 s{sT1}, s{sT1}, 2"); A(f"s_and_b32 s{sT2}, s{sQI}, 3")
    A(f"s_add_u32 s{sT1}, s{sT1}, s{sT2}"); A(f"s_lshl_b32 s{sT1}, s{sT1}, 7")
    A(f"s_lshl_b32 s{sT2}, s{sT0}, 13"); A(f"s_add_u32 s{sT1}, s{sT1}, s{sT2}")
    A(f"s_add_u32 s{sT2}, s{sT1}, 8192")
    A(f"s_lshl_b32 s{sT0}, s{sT0}, 1")
    A(f"v_lshlrev_b32 v{vT+3}, 2, v{vR3}")
    A(f"v_lshlrev_b32 v{vT+4}, 1, v0")
    vWQ = vV + 40
    A("s_waitcnt lgkmcnt(0)")
    g.stamp(1)
    g.vreset()
    A(f"buffer_load_dwordx4 {v4(vWQ)}, v{vOWQ}, {srd(SWQ)}, s{sT1} offen {nt}"); g.vissue("wq0")
    A(f"buffer_load_dwordx4 {v4(vWQ+4)}, v{vOWQ}, {srd(SWQ)}, s{sT2} offen {nt}"); g.vissue("wq1")
    A(f"buffer_load_dword v{vX0}, v{vT+3}, {srd(SX)}, s{sT0} offen"); g.vissue("x0")
    A(f"buffer_load_ushort v{vXG}, v{vT+4}, {srd(SX)}, 0 offen"); g.vissue("xg")
    A(f"buffer_load_ushort v{vGW}, v{vT+4}, {srd(SGW)}, 0 offen"); g.vissue("gw")
    A(f"s_load_dword s{sE}, s[{SWS}:{SWS+1}], {EPOCH}")
    pre = list(g.vm)
    def common_consts():
        A(f"v_and_b32 v{vT}, 1, v{vL}"); A(f"v_lshlrev_b32 v{vT}, 4, v{vT}")
        A(f"v_mov_b32 v{vT+1}, 0xffff")
        A(f"v_lshlrev_b32 v{vT}, v{vT}, v{vT+1}")
        A(f"v_bfe_u32 v{vT+1}, v{vL}, 1, 2")
        for j in range(4): A(f"v_cmp_eq_u32 s[{sM0+2*j}:{sM0+2*j+1}], {j}, v{vT+1}")
        A(f"s_mov_b32 s{sSEL0}, 0x01000100"); A(f"s_mov_b32 s{sSEL1}, 0x03020302")
        for j in range(4): A(f"v_cndmask_b32 v{vM+j}, 0, v{vT}, s[{sM0+2*j}:{sM0+2*j+1}]")
        A(f"v_lshrrev_b32 v{vT}, 5, v{vL}"); A(f"v_and_b32 v{vT+1}, 7, v{vL}"); A(f"v_and_b32 v{vT+2}, 16, v{vL}")
        A(f"v_lshl_add_u32 v{vLT}, v{vT+1}, 5, v{vT+2}")
        A(f"v_lshlrev_b32 v{vOFP}, 1, v{vLT}")
        A(f"v_lshl_add_u32 v{vOFP}, v{vT}, 4, v{vOFP}")
        A(f"v_lshl_add_u32 v{vLT}, v{vT}, 8, v{vLT}")
        A(f"v_mul_u32_u24 v{vOT}, 1152, v{vR3}")
        A(f"v_lshl_add_u32 v{vOT}, v{vT+1}, 4, v{vOT}")
        A(f"s_mov_b32 s{sSPIN}, {p['spin']}")
    A(f"s_cmp_ge_u32 s{sJ}, 22"); A("s_cbranch_scc1 L_notattn")
    A(f"s_cmp_ge_u32 s{sJ}, 11"); A(f"s_cselect_b32 s{sT0}, 1, 0"); A(f"s_cselect_b32 s{sT1}, 11, 0")
    A(f"s_lshl_b32 s{sHK}, s{sXCD}, 1"); A(f"s_add_u32 s{sHK}, s{sHK}, s{sT0}")
    A(f"s_sub_u32 s{sSLOT}, s{sJ}, s{sT1}")
    A(f"s_cmp_eq_u32 s{sW}, 8"); A("s_cbranch_scc1 L_attn8")
    A(f"s_min_u32 s{sT0}, s{sSLOT}, 7"); A(f"s_mul_i32 s{sT1}, s{sSLOT}, 11"); A(f"s_add_u32 s{sT0}, s{sT0}, s{sT1}")
    A(f"s_lshl_b32 s{sT0}, s{sT0}, 13")
    A(f"s_lshl_b32 s{sKO}, s{sHK}, 24"); A(f"s_add_u32 s{sKO}, s{sKO}, s{sT0}")
    A(f"s_lshl_b32 s{sT0}, s{sW}, 10"); A(f"s_add_u32 s{sKO}, s{sKO}, s{sT0}")
    A(f"s_add_u32 s{sKO}, s{sKO}, {61440*256}")
    A(f"v_bfe_u32 v{vT}, v{vL}, 2, 2"); A(f"v_lshrrev_b32 v{vT+1}, 4, v{vL}"); A(f"v_and_b32 v{vT+2}, 3, v{vL}")
    A(f"v_lshlrev_b32 v{vOK}, 8, v{vT}"); A(f"v_lshl_add_u32 v{vOK}, v{vT+1}, 6, v{vOK}"); A(f"v_lshl_add_u32 v{vOK}, v{vT+2}, 4, v{vOK}")
    A(f"s_mov_b32 s{sT3}, s{sKO}")
    seq = [("K", i) for i in range(12)] + [("V", i) for i in range(12)] + [("O", i) for i in range(3)]
    pos = [0]
    def issue():
        if pos[0] >= len(seq): return
        kind, i = seq[pos[0]]; pos[0] += 1
        if kind == "K":
            off = vOKL if i == 11 else vOK
            A(f"buffer_load_dwordx4 {v4(vK+4*i)}, v{off}, {srd(S1)}, s{sT3} offen {nt}")
            A(f"s_add_u32 s{sT3}, s{sT3}, 8192" if i < 11 else f"s_mov_b32 s{sT3}, s{sKO}")
        elif kind == "V":
            off = vOVL if i == 11 else vOV
            A(f"buffer_load_dwordx4 {v4(vV+4*i)}, v{off}, {srd(S2)}, s{sT3} offen {nt}")
            if i < 11: A(f"s_add_u32 s{sT3}, s{sT3}, 8192")
        else:
            off = vOKL if i == 2 else vOT
            A(f"buffer_load_dwordx4 {v4(vV+4*i)}, v{off}, {srd(S3)}, s{sOO} offen {nt}")
            if i < 2: A(f"s_add_u32 s{sOO}, s{sOO}, {11*9216}")
        g.vissue(f"{kind}{i}")
    WA = p["WA"]
    for _ in range(max(WA-2, 1)): issue()
    common_consts()
    def attn_consts():
        A(f"s_lshl_b32 s{sT0}, s{sHK}, 5"); A(f"s_add_u32 s{sT0}, s{sT0}, s{sSLOT}"); A(f"s_mul_i32 s{sOO}, s{sT0}, 9216")
        A(f"s_lshl_b32 s{sT0}, s{sW}, 7"); A(f"s_add_u32 s{sOO}, s{sOO}, s{sT0}")
        A(f"s_mul_i32 s{sPI}, s{sHK}, 11"); A(f"s_add_u32 s{sPI}, s{sPI}, s{sSLOT}")
    attn_consts()
    A(f"v_lshlrev_b32 v{vOV}, 4, v{vL}")
    A(f"s_cmp_lt_u32 s{sSLOT}, 7"); A(f"s_cselect_b32 s{sT0}, 0, 0x40000000"); A(f"s_cselect_b32 s{sBIAS}, 0, {f2u(-1e30):#x}")
    A(f"v_add_u32 v{vOKL}, s{sT0}, v{vOK}"); A(f"v_add_u32 v{vOVL}, s{sT0}, v{vOV}")
    g.vwait("gw")
    g.stamp(2)
    for _ in range(WA - max(WA-2, 1)): issue()
    qpart(g, vWQ)
    maketag(g)
    while True:
        g.vwait_n(WA-1)
        landed = g.vm[:len(g.vm)-(WA-1)]
        issue()
        if "K11" in landed: break
    g.stamp(3)
    A("s_barrier")
    A(f"v_and_b32 v{vT}, 0xf0, v{vOK}")
    A(f"v_and_b32 v{vT+1}, 1, v{vR3}")
    A(f"v_lshl_add_u32 v{vT}, v{vT+1}, 8, v{vT}")
    A(f"ds_read_b128 {v4(vA)}, v{vT} offset:{L_Q}")
    A(f"s_cmp_lt_u32 s{sSLOT}, 10"); A(f"s_cselect_b32 s{sT0}, 0, 0x40000000")
    A(f"v_add_u32 v{vOKL}, s{sT0}, v{vOT}")
    A(f"s_mov_b32 s{sC}, {f2u(128**-0.5 * 1.4426950408889634):#x}")
    A("s_waitcnt lgkmcnt(0)")
    for i in range(12):
        A(f"v_mfma_f32_16x16x32_bf16 {v4(vK+4*i)}, {v4(vK+4*i)}, {v4(vA)}, 0")
    g.vwait_n(WA-1); issue()
    for i in range(12):
        A(f"v_mov_b32_dpp v{vP+i}, v{vK+4*i} quad_perm:[0,0,0,0] {DPP}")
    for r in (1, 2, 3):
        for i in range(12):
            A(f"v_add_f32_dpp v{vP+i}, v{vK+4*i+r}, v{vP+i} quad_perm:[{r},{r},{r},{r}] {DPP}")
    A(f"v_add_f32 v{vP+11}, s{sBIAS}, v{vP+11}")
    A(f"v_max3_f32 v{vT}, v{vP}, v{vP+1}, v{vP+2}")
    for i in range(3, 11, 2): A(f"v_max3_f32 v{vT}, v{vT}, v{vP+i}, v{vP+i+1}")
    A(f"v_max_f32 v{vT}, v{vT}, v{vP+11}")
    crossrow(g, "v_max_f32", vT, vT+2)
    A(f"v_lshlrev_b32 v{vT+1}, 5, v{vT+1}")
    A(f"s_lshl_b32 s{sT0}, s{sW}, 2")
    A(f"v_add_u32 v{vT+3}, s{sT0}, v{vT+1}")
    A("s_mov_b64 exec, 0x101" if False else "s_mov_b32 exec_lo, 0x101"); A("s_mov_b32 exec_hi, 0")
    A(f"ds_write_b32 v{vT+3}, v{vT} offset:{L_M}")
    A("s_mov_b64 exec, -1")
    g.vwait_n(WA-1); issue()
    A("s_waitcnt lgkmcnt(0)")
    A("s_barrier")
    A(f"ds_read_b128 {v4(vA)}, v{vT+1} offset:{L_M}")
    A(f"ds_read_b128 {v4(vA+4)}, v{vT+1} offset:{L_M+16}")
    A("s_waitcnt lgkmcnt(0)")
    A(f"v_max3_f32 v{vT}, v{vA}, v{vA+1}, v{vA+2}"); A(f"v_max3_f32 v{vT}, v{vT}, v{vA+3}, v{vA+4}")
    A(f"v_max3_f32 v{vT}, v{vT}, v{vA+5}, v{vA+6}"); A(f"v_max_f32 v{vT}, v{vT}, v{vA+7}")
    A(f"v_mul_f32 v{vT}, s{sC}, v{vT}")
    for i in range(12): A(f"v_fma_f32 v{vP+i}, v{vP+i}, s{sC}, -v{vT}")
    for i in range(12): A(f"v_exp_f32 v{vP+i}, v{vP+i}")
    A("s_nop 0")
    A(f"v_add_f32 v{vT+4}, v{vP}, v{vP+1}")
    for i in range(2, 12): A(f"v_add_f32 v{vT+4}, v{vT+4}, v{vP+i}")
    for i in range(12):
        A(f"v_cvt_pk_bf16_f32 v{vP+i}, v{vP+i}, v{vP+i}")
    crossrow(g, "v_add_f32", vT+4, vT+2)
    A("s_mov_b32 exec_lo, 0x101"); A("s_mov_b32 exec_hi, 0")
    A(f"ds_write_b32 v{vT+3}, v{vT+4} offset:{L_L}")
    A("s_mov_b64 exec, -1")
    g.vwait_n(WA-1); issue()
    for i in range(12): build_A(g, vK+4*i, vP+i)
    A(f"v_and_b32 v{vT+5}, 15, v{vL}"); A(f"v_lshlrev_b32 v{vT+5}, 5, v{vT+5}")
    A(f"v_and_b32 v{vT+6}, 16, v{vL}"); A(f"v_add_u32 v{vT+5}, v{vT+5}, v{vT+6}")
    A(f"v_lshrrev_b32 v{vT+6}, 5, v{vL}"); A(f"v_lshl_add_u32 v{vT+5}, v{vT+6}, 9, v{vT+5}")
    A(f"s_lshl_b32 s{sT0}, s{sW}, 10"); A(f"v_add_u32 v{vT+5}, s{sT0}, v{vT+5}")
    g.stamp(4)
    done_v = -1
    for i in range(12):
        g.vwait(f"V{i}")
        A(f"v_mfma_f32_16x16x32_bf16 {v4(vACC)}, {v4(vK+4*i)}, {v4(vV+4*i)}, {'0' if i == 0 else v4(vACC)}")
        infl = len(g.vm) - 1 - g.vm.index(f"V{i}")
        while infl < WA and pos[0] < len(seq):
            kind, k = seq[pos[0]]
            if kind == "O" and k > i: break
            issue(); infl += 1
    while pos[0] < len(seq): issue()
    g.stamp(5)
    A("s_nop 7")
    A(f"ds_write_b128 v{vT+5}, {v4(vACC)} offset:{L_O}")
    A("s_waitcnt lgkmcnt(0)")
    A("s_barrier")
    A(f"s_cmp_lt_u32 s{sW}, 3"); A("s_cbranch_scc1 L_ogather")
    A(f"s_cmp_lt_u32 s{sW}, 6"); A("s_cbranch_scc1 L_barD")
    A(f"s_sub_u32 s{sT0}, s{sW}, 6")
    A(f"s_lshl_b32 s{sT1}, s{sT0}, 5"); A(f"v_mov_b32 v{vT+1}, s{sT1}")
    A(f"ds_read_b128 {v4(vA)}, v{vT+1} offset:{L_L}"); A(f"ds_read_b128 {v4(vA+4)}, v{vT+1} offset:{L_L+16}")
    A(f"ds_read_b128 {v4(vP)}, v{vT+1} offset:{L_M}"); A(f"ds_read_b128 {v4(vP+4)}, v{vT+1} offset:{L_M+16}")
    A(f"s_lshl_b32 s{sT1}, s{sT0}, 9"); A(f"v_lshl_add_u32 v{vT+2}, v{vL}, 3, s{sT1}")
    for w in range(8): A(f"ds_read_b64 {v2(vK+2*w)}, v{vT+2} offset:{L_O+1024*w}")
    A(f"s_lshl_b32 s{sT1}, s{sHK}, 4"); A(f"s_add_u32 s{sT1}, s{sT1}, s{sSLOT}"); A(f"s_lshl_b32 s{sT1}, s{sT1}, 11")
    A(f"s_lshl_b32 s{sT0}, s{sT0}, 10"); A(f"s_add_u32 s{sT1}, s{sT1}, s{sT0}"); A(f"s_add_u32 s{sT1}, s{sT1}, {OB}")
    A("s_waitcnt lgkmcnt(8)")
    A(f"v_pk_add_f32 {v2(vA)}, {v2(vA)}, {v2(vA+2)}"); A(f"v_pk_add_f32 {v2(vA+4)}, {v2(vA+4)}, {v2(vA+6)}")
    A(f"v_max3_f32 v{vT}, v{vP}, v{vP+1}, v{vP+2}")
    A(f"v_pk_add_f32 {v2(vA)}, {v2(vA)}, {v2(vA+4)}")
    A(f"v_max3_f32 v{vT}, v{vT}, v{vP+3}, v{vP+4}")
    A(f"v_add_f32 v{vA}, v{vA}, v{vA+1}")
    A(f"v_max3_f32 v{vT}, v{vT}, v{vP+5}, v{vP+6}"); A(f"v_max_f32 v{vT}, v{vT}, v{vP+7}")
    A(f"v_rcp_f32 v{vA+2}, v{vA}"); A(f"v_log_f32 v{vA+4}, v{vA}")
    A(f"v_mov_b32 v{vACC+3}, s{sTAG}")
    A(f"v_fma_f32 v{vACC+2}, v{vT}, s{sC}, v{vA+4}")
    A("s_waitcnt lgkmcnt(0)")
    for a, b in ((0,1),(2,3),(4,5),(6,7),(0,2),(4,6),(0,4)):
        A(f"v_pk_add_f32 {v2(vK+2*a)}, {v2(vK+2*a)}, {v2(vK+2*b)}")
    A(f"v_mul_f32 v{vACC}, v{vK}, v{vA+2}"); A(f"v_mul_f32 v{vACC+1}, v{vK+1}, v{vA+2}")
    A(f"buffer_store_dwordx4 {v4(vACC)}, v{vOV}, {srd(SWS)}, s{sT1} offen sc1")
    g.stamp(6)
    A("s_branch L_barD")
    g.lab("L_ogather")
    A(f"s_mul_i32 s{sT0}, s{sW}, 11"); A(f"s_add_u32 s{sT0}, s{sT0}, s{sSLOT}")
    A(f"v_and_b32 v{vT}, 15, v{vL}"); A(f"v_lshrrev_b32 v{vT+1}, 4, v{vL}")
    A(f"v_lshlrev_b32 v{vT+2}, 11, v{vT}"); A(f"v_lshl_add_u32 v{vT+2}, v{vT+1}, 4, v{vT+2}")
    A(f"s_lshl_b32 s{sT1}, s{sHK}, 15"); A(f"s_lshl_b32 s{sT2}, s{sT0}, 6"); A(f"s_add_u32 s{sT1}, s{sT1}, s{sT2}"); A(f"s_add_u32 s{sT1}, s{sT1}, {OB}")
    A(f"v_mov_b32 v{vA}, 0"); A(f"v_mov_b32 v{vA+1}, 0"); A(f"v_mov_b32 v{vA+2}, {f2u(-1e30):#x}")
    A(f"s_lshl_b32 s{sT2}, s{sW}, 5"); A(f"v_lshl_add_u32 v{vT+3}, v{vT+1}, 3, s{sT2}")
    A(f"s_cmp_ge_u32 s{sT0}, 32"); A("s_cbranch_scc1 L_owrite")
    A("s_mov_b32 exec_lo, 0x07ff07ff"); A("s_mov_b32 exec_hi, 0x07ff07ff")
    g.lab("L_opoll")
    A(f"buffer_load_dwordx4 {v4(vA)}, v{vT+2}, {srd(SWS)}, s{sT1} offen sc1")
    A(f"s_sub_u32 s{sSPIN}, s{sSPIN}, 1"); A("s_cbranch_scc1 L_opoll_end")
    A("s_waitcnt vmcnt(0)")
    A(f"v_cmpx_ne_u32 vcc, s{sTAG}, v{vA+3}")
    A("s_cbranch_execnz L_opoll")
    g.lab("L_opoll_end")
    A("s_mov_b64 exec, -1")
    g.stamp(6)
    A(f"v_mov_b32 v{vT+4}, v{vA+2}")
    A("s_nop 3")
    rowred(g, "v_max_f32", [vT+4])
    A(f"v_sub_f32 v{vA+2}, v{vA+2}, v{vT+4}")
    A(f"v_exp_f32 v{vA+2}, v{vA+2}")
    A("s_nop 0")
    A(f"v_mul_f32 v{vA}, v{vA}, v{vA+2}"); A(f"v_mul_f32 v{vA+1}, v{vA+1}, v{vA+2}")
    A("s_nop 0")
    rowred(g, "v_add_f32", [vA+2, vA, vA+1])
    A(f"v_rcp_f32 v{vA+2}, v{vA+2}")
    A("s_nop 0")
    A(f"v_mul_f32 v{vA}, v{vA}, v{vA+2}"); A(f"v_mul_f32 v{vA+1}, v{vA+1}, v{vA+2}")
    A(f"v_cvt_pk_bf16_f32 v{vA}, v{vA}, v{vA}"); A(f"v_cvt_pk_bf16_f32 v{vA+1}, v{vA+1}, v{vA+1}")
    g.lab("L_owrite")
    A("s_mov_b32 exec_lo, 0x00010001"); A("s_mov_b32 exec_hi, 0x00010001")
    A(f"ds_write_b64 v{vT+3}, {v2(vA)} offset:{L_C}")
    A("s_mov_b64 exec, -1")
    A("s_waitcnt lgkmcnt(0)")
    g.lab("L_barD")
    A(f"v_lshlrev_b32 v{vT}, 2, v{vR3}")
    A("s_barrier")
    for i in range(3): A(f"ds_read_b32 v{vP+i}, v{vT} offset:{L_C+32*i}")
    A("s_waitcnt lgkmcnt(0)")
    for i in range(3): build_A(g, vK+4*i, vP+i)
    A("s_waitcnt vmcnt(0)")
    A("s_nop 0")
    for i in range(3):
        A(f"v_mfma_f32_16x16x32_bf16 {v4(vACC)}, {v4(vK+4*i)}, {v4(vV+4*i)}, {'0' if i == 0 else v4(vACC)}")
    fpublish(g, vACC)
    g.stamp(7)
    A(f"s_cmp_lg_u32 s{sW}, 8"); A("s_cbranch_scc1 L_fin")
    A(f"s_cmp_ge_u32 s{sJ}, 9"); A("s_cbranch_scc1 L_fin")
    A(f"s_mul_i32 s{sU}, s{sXCD}, 9"); A(f"s_add_u32 s{sU}, s{sU}, s{sJ}")
    A(f"v_and_b32 v{vT}, 15, v{vL}"); A(f"v_lshrrev_b32 v{vT+1}, 4, v{vL}")
    A(f"v_mul_u32_u24 v{vT+2}, 4608, v{vT}"); A(f"v_lshl_add_u32 v{vT+2}, v{vT+1}, 4, v{vT+2}")
    A(f"v_cmp_gt_u32 vcc, 8, v{vT}")
    A(f"v_mov_b32 v{vT+4}, 0x40000000")
    A(f"s_lshl_b32 s{sT0}, s{sU}, 6"); A(f"s_add_u32 s{sT0}, s{sT0}, {FB}")
    A(f"v_cndmask_b32 v{vT+3}, v{vT+4}, v{vT+2}, vcc")
    A(f"s_mov_b64 s[{sM0}:{sM0+1}], vcc")
    A(f"v_mov_b32 v{vT+5}, 0")
    A(f"ds_read_b128 {v4(vA)}, v{vT+5} offset:{L_Z}"); A(f"ds_read_b128 {v4(vA+4)}, v{vT+5} offset:{L_Z+16}"); A(f"ds_read_b32 v{vT+6}, v{vT+5} offset:{L_Z+32}")
    g.lab("L_fpoll")
    A(f"s_mov_b32 s{sT1}, s{sT0}")
    for n in range(16):
        off = vT+3 if n == 15 else vT+2
        A(f"buffer_load_dwordx4 {v4(vK+4*n)}, v{off}, {srd(SWS)}, s{sT1} offen sc1")
        if n < 15: A(f"s_add_u32 s{sT1}, s{sT1}, {16*4608}")
    A(f"s_sub_u32 s{sSPIN}, s{sSPIN}, 1"); A("s_cbranch_scc1 L_fpoll_end")
    A(f"s_mov_b64 s[{sEX}:{sEX+1}], 0")
    for n in range(16):
        A(f"s_waitcnt vmcnt({15-n})")
        A(f"v_cmp_ne_u64 vcc, s[{sTAG}:{sTAG+1}], {v2(vK+4*n+2)}")
        if n == 15: A(f"s_and_b64 vcc, vcc, s[{sM0}:{sM0+1}]")
        A(f"s_or_b64 s[{sEX}:{sEX+1}], s[{sEX}:{sEX+1}], vcc")
    A(f"s_mov_b64 exec, s[{sEX}:{sEX+1}]")
    A("s_cbranch_execnz L_fpoll")
    g.lab("L_fpoll_end")
    A("s_mov_b64 exec, -1")
    g.stamp(8)
    A("s_waitcnt lgkmcnt(0)")
    for a, b in ((0,1),(2,3),(4,5),(6,7),(8,9),(11,12),(13,14),(0,2),(4,6),(8,10),(11,13),(0,4),(11,15),(0,8)):
        A(f"v_pk_add_f32 {v2(vK+4*a)}, {v2(vK+4*a)}, {v2(vK+4*b)}")
    ra, rb = vK, vK+44
    A(f"v_pk_add_f32 {v2(vA)}, {v2(vA)}, {v2(vA+2)}"); A(f"v_pk_add_f32 {v2(vA+4)}, {v2(vA+4)}, {v2(vA+6)}")
    rowred(g, "v_add_f32", [ra, ra+1, rb, rb+1])
    A(f"v_pk_add_f32 {v2(vA)}, {v2(vA)}, {v2(vA+4)}")
    A(f"v_add_f32 v{vA}, v{vA}, v{vA+1}"); A(f"v_add_f32 v{vA}, v{vA}, v{vT+6}")
    bf16r(g, vA, vA)
    A(f"v_mul_f32 v{vA}, {f2u(-1.4426950408889634):#x}, v{vA}")
    A(f"v_exp_f32 v{vA}, v{vA}"); A("s_nop 0")
    A(f"v_add_f32 v{vA}, 1.0, v{vA}"); A(f"v_rcp_f32 v{vA}, v{vA}"); A("s_nop 0")
    bf16r(g, vA, vA)
    A(f"v_sub_f32 v{vA+1}, 1.0, v{vA}"); bf16r(g, vA+1, vA+1)
    for x in (ra, ra+1, rb, rb+1): bf16r(g, x, x)
    A(f"v_mul_f32 v{ra}, v{ra}, v{vA}"); A(f"v_mul_f32 v{ra+1}, v{ra+1}, v{vA}")
    A(f"v_mul_f32 v{rb}, v{rb}, v{vA+1}"); A(f"v_mul_f32 v{rb+1}, v{rb+1}, v{vA+1}")
    for x in (ra, ra+1, rb, rb+1): bf16r(g, x, x)
    A(f"v_add_f32 v{ra}, v{ra}, v{rb}"); A(f"v_add_f32 v{ra+1}, v{ra+1}, v{rb+1}")
    A(f"v_cvt_pk_bf16_f32 v{ra}, v{ra}, v{ra+1}")
    A(f"v_lshlrev_b32 v{vT+1}, 2, v{vT+1}"); A(f"s_lshl_b32 s{sT0}, s{sU}, 4")
    A("s_mov_b32 exec_lo, 0x00010001"); A("s_mov_b32 exec_hi, 0x00010001")
    A(f"buffer_store_dword v{ra}, v{vT+1}, {srd(SOUT)}, s{sT0} offen")
    A(f"s_cmp_lg_u32 s{sU}, 0"); A("s_cbranch_scc1 L_fin")
    A("s_mov_b64 exec, 1")
    A(f"v_mov_b32 v{vT+6}, s{sTAG}")
    A(f"buffer_store_dword v{vT+6}, v{vT+5}, {srd(SWS)}, 0 offen offset:{EPOCH}")
    A("s_branch L_fin")
    g.lab("L_attn8")
    g.vm = list(pre)
    common_consts(); attn_consts()
    A(f"v_lshlrev_b32 v{vOV}, 4, v{vL}")
    A(f"s_cmp_lt_u32 s{sSLOT}, 10"); A(f"s_cselect_b32 s{sT0}, 0, 0x40000000")
    A(f"v_add_u32 v{vOKL}, s{sT0}, v{vOT}")
    g.vwait("gw")
    g.stamp(2)
    qpart(g, vWQ); maketag(g)
    qpublish(g, vK)
    g.stamp(3)
    A(f"s_lshl_b32 s{sT0}, s{sHK}, 13"); A(f"s_add_u32 s{sT0}, s{sT0}, {QB}"); A(f"s_add_u32 s{sT1}, s{sT0}, 4096")
    g.lab("L_qpoll")
    A(f"s_sleep {p['qsleep']}")
    for rg in range(4):
        for z in range(2):
            o = rg*2048 + z*1024
            A(f"buffer_load_dwordx4 {v4(vK+8*rg+4*z)}, v{vOV}, {srd(SWS)}, s{sT1 if o >= 4096 else sT0} offen offset:{o & 4095} sc1")
    A(f"s_sub_u32 s{sSPIN}, s{sSPIN}, 1"); A("s_cbranch_scc1 L_qpoll_end")
    A("s_waitcnt vmcnt(0)")
    tags = [vK+4*n+k for n in range(8) for k in (1, 3)]
    A(f"v_min_u32 v{vT}, v{tags[0]}, v{tags[1]}"); A(f"v_max_u32 v{vT+1}, v{tags[0]}, v{tags[1]}")
    for k in range(2, 16, 2):
        A(f"v_min3_u32 v{vT}, v{vT}, v{tags[k]}, v{tags[k+1]}"); A(f"v_max3_u32 v{vT+1}, v{vT+1}, v{tags[k]}, v{tags[k+1]}")
    A(f"v_cmp_ne_u32 vcc, s{sTAG}, v{vT}"); A(f"v_cmp_ne_u32 s[{sEX}:{sEX+1}], s{sTAG}, v{vT+1}")
    A("s_nop 1")
    A(f"s_or_b64 vcc, vcc, s[{sEX}:{sEX+1}]")
    A("s_cbranch_scc1 L_qpoll")
    g.lab("L_qpoll_end")
    for z in range(2):
        for k in (0, 2):
            b = vK+4*z+k
            A(f"v_add_f32 v{b}, v{b}, v{b+8}"); A(f"v_add_f32 v{b+16}, v{b+16}, v{b+24}"); A(f"v_add_f32 v{b}, v{b}, v{b+16}")
        A(f"v_cvt_pk_bf16_f32 v{vK+4*z}, v{vK+4*z}, v{vK+4*z+2}")
    A(f"v_lshlrev_b32 v{vT}, 2, v{vL}")
    A(f"ds_write_b32 v{vT}, v{vK} offset:{L_Q}"); A(f"ds_write_b32 v{vT}, v{vK+4} offset:{L_Q+256}")
    A("s_waitcnt lgkmcnt(0)")
    g.stamp(4)
    A("s_barrier")
    A("s_barrier")
    for i in range(3):
        A(f"buffer_load_dwordx4 {v4(vV+4*i)}, v{vOKL if i == 2 else vOT}, {srd(S3)}, s{sOO} offen {nt}")
        if i < 2: A(f"s_add_u32 s{sOO}, s{sOO}, {11*9216}")
    A("s_barrier")
    g.stamp(5)
    A("s_branch L_barD")
    g.lab("L_notattn")
    g.vm = list(pre)
    A(f"s_cmp_eq_u32 s{sJ}, 31"); A("s_cbranch_scc1 L_spare")
    A(f"s_mul_i32 s{sU}, s{sXCD}, 9"); A(f"s_add_u32 s{sU}, s{sU}, s{sJ}"); A(f"s_sub_u32 s{sU}, s{sU}, 22")
    A(f"v_lshlrev_b32 v{vT}, 4, v{vR3}"); A(f"s_lshl_b32 s{sT0}, s{sW}, 7")
    A(f"buffer_load_dwordx4 {v4(vX)}, v{vT}, {srd(SX)}, s{sT0} offen"); g.vissue("xf")
    A(f"s_mov_b32 s{sT0}, {8*9216}"); A(f"v_mul_lo_u32 v{vOK}, v{vR3}, s{sT0}")
    A(f"v_and_b32 v{vT+1}, 7, v{vL}"); A(f"v_lshl_add_u32 v{vOK}, v{vT+1}, 4, v{vOK}")
    A(f"s_mul_i32 s{sKO}, s{sW}, {64*9216}"); A(f"s_lshl_b32 s{sT0}, s{sU}, 7"); A(f"s_add_u32 s{sKO}, s{sKO}, s{sT0}")
    fseq = []
    for t in range(8): fseq += [("G", t), ("U", t)]
    fseq += [("D", t) for t in range(8)]
    if p.get("forder"): fseq = p["forder"]
    fpos = [0]
    vG = vK
    def greg(kind, t):
        return {"G": vK+4*t, "U": vK+32+4*t, "D": vV+16+4*t}[kind]
    def fissue():
        if fpos[0] >= len(fseq): return
        kind, t = fseq[fpos[0]]; fpos[0] += 1
        if kind == "G": A(f"buffer_load_dwordx4 {v4(greg(kind,t))}, v{vOK}, {srd(S1)}, s{sKO} offen {nt}")
        elif kind == "U":
            A(f"buffer_load_dwordx4 {v4(greg(kind,t))}, v{vOK}, {srd(S2)}, s{sKO} offen {nt}")
            A(f"s_add_u32 s{sKO}, s{sKO}, 9216")
        else:
            A(f"buffer_load_dwordx4 {v4(greg(kind,t))}, v{vOT}, {srd(S3)}, s{sOO} offen {nt}")
            A(f"s_add_u32 s{sOO}, s{sOO}, 9216")
        g.vissue(f"{kind}{t}")
    WF = p["WF"]; WF2 = p.get("WF2", WF); wf2_from = p.get("wf2_from", 99)
    common_consts()
    A(f"s_mul_i32 s{sOO}, s{sU}, {64*1152}"); A(f"s_lshl_b32 s{sT0}, s{sW}, 7"); A(f"s_add_u32 s{sOO}, s{sOO}, s{sT0}")
    A(f"s_add_u32 s{sPI}, s{sU}, 176")
    g.vwait("xf")
    g.stamp(2)
    for _ in range(WF): fissue()
    qpart(g, vWQ); maketag(g)
    A(f"s_cmp_lg_u32 s{sW}, 8"); A("s_cbranch_scc1 L_fnopub")
    qpublish(g, vV+16)
    A("s_waitcnt vmcnt(0)")
    g.lab("L_fnopub")
    g.stamp(3)
    ng = 0
    for idx, (kind, t) in enumerate(fseq):
        if kind == "D":
            if ng == 16: break
            g.vwait(f"D{t}")
        else:
            if kind == "G":
                A(f"v_perm_b32 v{vT}, v{vX+t//2}, v{vX+t//2}, s{sSEL1 if t & 1 else sSEL0}")
                build_A(g, vA+4*(t & 1), vT)
            g.vwait(f"{kind}{t}")
        W = WF2 if idx >= wf2_from else WF
        infl = len(g.vm) - 1 - g.vm.index(f"{kind}{t}")
        k = 0
        while infl < W and fpos[0] < len(fseq): fissue(); infl += 1; k += 1
        if kind != "D":
            if k == 0: A("s_nop 0")
            acc = vACC if kind == "G" else vACC+4
            A(f"v_mfma_f32_16x16x32_bf16 {v4(acc)}, {v4(vA+4*(t&1))}, {v4(greg(kind,t))}, {'0' if t == 0 else v4(acc)}")
            ng += 1
    while fpos[0] < len(fseq): fissue()
    g.stamp(4)
    A(f"s_lshl_b32 s{sT0}, s{sW}, 10"); A(f"v_add_u32 v{vT+2}, s{sT0}, v{vLT}")
    A("s_mov_b32 exec_lo, 0x00ff00ff"); A("s_mov_b32 exec_hi, 0xff00ff00")
    A("s_nop 4")
    A(f"ds_write_b128 v{vT+2}, {v4(vACC)} offset:{L_O}")
    A(f"ds_write_b128 v{vT+2}, {v4(vACC+4)} offset:{L_O+512}")
    A("s_mov_b64 exec, -1")
    A(f"v_lshlrev_b32 v{vT}, 4, v{vL}")
    A("s_waitcnt lgkmcnt(0)")
    A("s_barrier")
    for w in range(9): A(f"ds_read_b128 {v4(vK+4*w)}, v{vT} offset:{L_O+1024*w}")
    A("s_waitcnt lgkmcnt(0)")
    for a, b in ((0,1),(2,3),(4,5),(6,7),(0,2),(4,6),(0,4),(0,8)):
        A(f"v_pk_add_f32 {v2(vK+4*a)}, {v2(vK+4*a)}, {v2(vK+4*b)}")
        A(f"v_pk_add_f32 {v2(vK+4*a+2)}, {v2(vK+4*a+2)}, {v2(vK+4*b+2)}")
    for r in range(4): A(f"v_mov_b32 v{vK+4+r}, v{vK+r}")
    A("s_nop 0")
    for r in range(4): A(f"v_permlane16_swap_b32 v{vK+r}, v{vK+4+r}")
    A("s_nop 0")
    for r in range(4): A(f"v_add_f32 v{vK+r}, v{vK+r}, v{vK+4+r}")
    for r in range(4): bf16r(g, vK+r, vK+r)
    for r in range(4): A(f"v_mov_b32 v{vK+4+r}, v{vK+r}")
    A("s_nop 0")
    for r in range(4): A(f"v_permlane32_swap_b32 v{vK+r}, v{vK+4+r}")
    A("s_nop 0")
    for r in range(4): A(f"v_mul_f32 v{vK+8+r}, {f2u(-1.4426950408889634):#x}, v{vK+r}")
    for r in range(4): A(f"v_exp_f32 v{vK+8+r}, v{vK+8+r}")
    for r in range(4): A(f"v_add_f32 v{vK+8+r}, 1.0, v{vK+8+r}")
    for r in range(4): A(f"v_rcp_f32 v{vK+8+r}, v{vK+8+r}")
    for r in range(4): A(f"v_mul_f32 v{vK+r}, v{vK+r}, v{vK+8+r}")
    for r in range(4): bf16r(g, vK+r, vK+r)
    for r in range(4): A(f"v_mul_f32 v{vK+r}, v{vK+r}, v{vK+4+r}")
    for r in range(4): A(f"v_cvt_pk_bf16_f32 v{vK+r}, v{vK+r}, v{vK+r}")
    A(f"s_lshl_b32 s{sT0}, s{sW}, 8")
    A(f"v_add_u32 v{vT+1}, s{sT0}, v{vT}")
    A(f"v_lshl_add_u32 v{vT+2}, v{vR3}, 2, s{sT0}")
    A("s_mov_b64 exec, 0xffff" if False else "s_mov_b32 exec_lo, 0xffff"); A("s_mov_b32 exec_hi, 0")
    A(f"ds_write_b128 v{vT+1}, {v4(vK)} offset:{L_H}")
    A("s_mov_b64 exec, -1")
    A("s_waitcnt lgkmcnt(0)")
    for t in range(8): A(f"ds_read_b32 v{vP+t}, v{vT+2} offset:{L_H+32*t}")
    A("s_waitcnt lgkmcnt(0)")
    for t in range(8): build_A(g, vK+16+4*t, vP+t)
    g.stamp(5)
    for t in range(8):
        g.vwait(f"D{t}")
        A(f"v_mfma_f32_16x16x32_bf16 {v4(vACC)}, {v4(vK+16+4*t)}, {v4(greg('D',t))}, {'0' if t == 0 else v4(vACC)}")
    g.stamp(6)
    fpublish(g, vACC)
    g.stamp(7)
    A("s_branch L_fin")
    g.lab("L_spare")
    g.vm = list(pre)
    common_consts()
    g.vwait("gw")
    qpart(g, vWQ); maketag(g)
    A(f"s_cmp_lg_u32 s{sW}, 8"); A("s_cbranch_scc1 L_fin")
    qpublish(g, vK)
    g.lab("L_fin")
    if p["stamps"]:
        A("s_mov_b64 exec, -1")
        A("s_waitcnt vmcnt(0)")
        g.stamp(9)
        A("s_waitcnt lgkmcnt(0)")
        A(f"s_lshl_b32 s{sT0}, s2, 4"); A(f"s_add_u32 s{sT0}, s{sT0}, s{sW}"); A(f"s_lshl_b32 s{sT0}, s{sT0}, 6"); A(f"s_add_u32 s{sT0}, s{sT0}, {STB}")
        for k in range(10): A(f"v_mov_b32 v{vK+k}, s{80+2*k}")
        A(f"v_mov_b32 v{vK+10}, s{sSPIN}"); A(f"v_mov_b32 v{vK+11}, s{sTAG}")
        A(f"v_mov_b32 v{vT}, 0"); A("s_mov_b64 exec, 1")
        for k in range(3): A(f"buffer_store_dwordx4 {v4(vK+4*k)}, v{vT}, {srd(SWS)}, s{sT0} offen offset:{16*k}")
    g.lab("L_end")
    A("s_endpgm")
    out += g.L
    out += ['.section .rodata,"a"', ".p2align 6", f".amdhsa_kernel {NAME}", f"  .amdhsa_next_free_vgpr {NV}",
            f"  .amdhsa_next_free_sgpr {100 if p['stamps'] else 72}", f"  .amdhsa_accum_offset {NV}", "  .amdhsa_group_segment_fixed_size 0",
            "  .amdhsa_kernarg_size 104", "  .amdhsa_user_sgpr_count 2", "  .amdhsa_user_sgpr_kernarg_segment_ptr 1",
            "  .amdhsa_system_sgpr_workgroup_id_x 1", ".end_amdhsa_kernel"]
    return "\n".join(out) + "\n"

if __name__ == "__main__":
    kw = {}
    for a in sys.argv[2:]:
        k, v = a.split("="); kw[k] = eval(v)
    open(sys.argv[1], "w").write(gen(**kw))
```

```python
import sys, struct
NAME = "gated_mix__sliding_block_cached__swiglu_ffn__decode_kernel"
HDR = open("gated_mix__sliding_block_cached__swiglu_ffn__decode.s.ref").read().split("; Override launch")[0]

def f2u(f): return struct.unpack("<I", struct.pack("<f", f))[0]

EPOCH = 0
QB = 4096
OB = QB + 256*512
FB = OB + 256*2048
WS_USED = FB + 256*4608
STB = 8 << 20
L_QP = 0
L_Q = 4608
L_M = 5120
L_L = 5184
L_Z = 5248
L_C = 5312
L_O = 5632
L_H = L_O + 9*1024
LDS_BYTES = L_H + 9*256

class G:
    def __init__(s, **kw):
        s.L = []; s.p = dict(WA=4, WF=2, stamps=False, nt="nt", qsleep=24, emu=False, spin=200000)
        s.p.update(kw); s.vm = []; s.nst = 0
    def A(s, x): s.L.append("    " + x)
    def lab(s, x): s.L.append(x + ":")
    def vreset(s): s.vm = []
    def vissue(s, name): s.vm.append(name)
    def vwait(s, name):
        i = s.vm.index(name); n = len(s.vm) - 1 - i
        s.A(f"s_waitcnt vmcnt({n})")
    def vwait_n(s, n): s.A(f"s_waitcnt vmcnt({n})")
    def stamp(s, k):
        if s.p["stamps"]: s.A(f"s_memrealtime s[{80+2*k}:{81+2*k}]")

sW=3
SX=8; SWQ=12; SWS=16; S1=20; S2=24; S3=28; SGW=32; SOUT=36
sE=40; sTAG=42
sXCD=44; sJ=45; sHK=46; sSLOT=47; sQI=48; sT0=49; sT1=50; sT2=51; sT3=52; sBIAS=53; sSPIN=54
sKO=55; sOO=56; sSEL0=57; sSEL1=58; sPI=59; sC=60; sU=61
sM0=62
sEX=70
def srd(b): return f"s[{b}:{b+3}]"
vL=1; vM=2
vOT=6; vOK=7; vOV=8; vOWQ=9; vLT=10; vX0=11; vX=12
vXG=16; vGW=17; vT=18
vA=32
vACC=40
vP=48
vOKL=60; vOVL=61; vR3=62; vOFP=63
vK=64
vV=112
NV=160
def v4(b): return f"v[{b}:{b+3}]"
def v2(b): return f"v[{b}:{b+1}]"

DPP = "row_mask:0xf bank_mask:0xf"

def build_A(g, dst, rep):
    for j in range(4): g.A(f"v_and_b32 v{dst+j}, v{rep}, v{vM+j}")

def rowred(g, op, regs):
    need = max(0, 2 - (len(regs) - 1))
    for r in (8, 4, 2, 1):
        g.A(f"s_nop {max(need-1,0)}" if need else "s_nop 0") if need else None
        for x in regs: g.A(f"{op}_dpp v{x}, v{x}, v{x} row_ror:{r} {DPP}")

def crossrow(g, op, x, t):
    for sw in ("v_permlane16_swap_b32", "v_permlane32_swap_b32"):
        g.A(f"v_mov_b32 v{t}, v{x}")
        g.A("s_nop 1")
        g.A(f"{sw} v{x}, v{t}")
        g.A("s_nop 1")
        g.A(f"{op} v{x}, v{x}, v{t}")

def bf16r(g, d, s_):
    g.A(f"v_cvt_pk_bf16_f32 v{d}, v{s_}, v{s_}")
    g.A(f"v_and_b32 v{d}, 0xffff0000, v{d}")

def qpart(g, vWQ):
    g.A(f"v_perm_b32 v{vT}, v{vX0}, v{vX0}, s{sSEL0}")
    g.A(f"v_perm_b32 v{vT+1}, v{vX0}, v{vX0}, s{sSEL1}")
    build_A(g, vA, vT); build_A(g, vA+4, vT+1)
    g.A(f"v_lshlrev_b32 v{vXG}, 16, v{vXG}")
    g.A(f"v_lshlrev_b32 v{vGW}, 16, v{vGW}")
    g.A(f"v_mfma_f32_16x16x32_bf16 {v4(vACC)}, {v4(vA)}, {v4(vWQ)}, 0")
    g.A(f"v_mfma_f32_16x16x32_bf16 {v4(vACC)}, {v4(vA+4)}, {v4(vWQ+4)}, {v4(vACC)}")
    g.A(f"v_mul_f32 v{vXG}, v{vXG}, v{vGW}")
    bf16r(g, vXG, vXG)
    rowred(g, "v_add_f32", [vXG])
    crossrow(g, "v_add_f32", vXG, vT)
    g.A(f"s_lshl_b32 s{sT0}, s{sW}, 9")
    g.A(f"v_add_u32 v{vT+2}, s{sT0}, v{vLT}")
    g.A("s_mov_b32 exec_lo, 0x00ff00ff"); g.A("s_mov_b32 exec_hi, 0xff00ff00")
    g.A(f"ds_write_b128 v{vT+2}, {v4(vACC)} offset:{L_QP}")
    g.A("s_mov_b64 exec, 1")
    g.A(f"s_lshl_b32 s{sT0}, s{sW}, 2")
    g.A(f"v_mov_b32 v{vT+3}, s{sT0}")
    g.A(f"ds_write_b32 v{vT+3}, v{vXG} offset:{L_Z}")
    g.A("s_mov_b64 exec, -1")
    g.A("s_waitcnt lgkmcnt(0)")
    g.A("s_barrier")

def maketag(g):
    g.A(f"s_mul_i32 s{sTAG}, s{sE}, 0x9e3779b1")
    g.A(f"s_add_u32 s{sTAG}, s{sTAG}, 0x7f4a7c15")
    g.A(f"s_mul_i32 s{sTAG+1}, s{sTAG}, 0x85ebca6b")
    g.A(f"s_xor_b32 s{sTAG+1}, s{sTAG+1}, 0xc2b2ae35")

def qpublish(g, base):
    g.A(f"v_lshlrev_b32 v{vT}, 2, v{vL}")
    for k in range(9):
        g.A(f"ds_read2st64_b32 {v2(base+2*k)}, v{vT} offset0:{2*k} offset1:{2*k+1}")
    g.A(f"v_lshlrev_b32 v{vT+1}, 3, v{vL}")
    g.A(f"s_lshl_b32 s{sT0}, s{sQI}, 9"); g.A(f"s_add_u32 s{sT0}, s{sT0}, {QB}")
    g.A("s_waitcnt lgkmcnt(0)")
    for k in range(1, 9):
        g.A(f"v_pk_add_f32 {v2(base)}, {v2(base)}, {v2(base+2*k)}")
    g.A(f"v_add_f32 v{base}, v{base}, v{base+1}")
    g.A(f"v_mov_b32 v{base+1}, s{sTAG}")
    g.A(f"buffer_store_dwordx2 {v2(base)}, v{vT+1}, {srd(SWS)}, s{sT0} offen sc1")

def fpublish(g, acc):
    g.A("s_nop 7")
    g.A(f"v_permlane32_swap_b32 v{acc}, v{acc+2}")
    g.A(f"v_permlane32_swap_b32 v{acc+1}, v{acc+3}")
    g.A(f"s_mul_i32 s{sT0}, s{sPI}, 4608"); g.A(f"s_lshl_b32 s{sT1}, s{sW}, 9")
    g.A(f"v_add_f32_dpp v{acc}, v{acc+2}, v{acc} row_ror:8 {DPP}")
    g.A(f"v_add_f32_dpp v{acc+1}, v{acc+3}, v{acc+1} row_ror:8 {DPP}")
    g.A(f"s_add_u32 s{sT0}, s{sT0}, s{sT1}"); g.A(f"s_add_u32 s{sT0}, s{sT0}, {FB}")
    g.A(f"v_mov_b32 v{acc+2}, s{sTAG}"); g.A(f"v_mov_b32 v{acc+3}, s{sTAG+1}")
    g.A("s_mov_b32 exec_lo, 0x00ff00ff"); g.A("s_mov_b32 exec_hi, 0x00ff00ff")
    g.A(f"buffer_store_dwordx4 {v4(acc)}, v{vOFP}, {srd(SWS)}, s{sT0} offen sc1")
    g.A("s_mov_b64 exec, -1")

def gen(**kw):
    g = G(**kw); A = g.A; p = g.p; nt = p["nt"]
    out = [HDR.rstrip("\n")]
    out.append(f"; @launch grid=(256,1,1) block=(576,1,1) lds={LDS_BYTES}")
    out += ['.amdgcn_target "amdgcn-amd-amdhsa--gfx950"', ".text", f".globl {NAME}", ".p2align 8", f".type {NAME},@function", f"{NAME}:"]
    g.stamp(0)
    A("s_cmp_ge_u32 s2, 256"); A("s_cbranch_scc1 L_end")
    A(f"s_lshr_b32 s{sJ}, s2, 3")
    A(f"s_load_dwordx2 s[{SX}:{SX+1}], s[0:1], 0")
    A(f"s_load_dwordx2 s[{SWQ}:{SWQ+1}], s[0:1], 24")
    A(f"s_cmp_lt_u32 s{sJ}, 22")
    A(f"s_cselect_b32 s{sT0}, 8, 48"); A(f"s_cselect_b32 s{sT1}, 16, 56"); A(f"s_cselect_b32 s{sT2}, 32, 64")
    A(f"s_load_dwordx2 s[{S1}:{S1+1}], s[0:1], s{sT0}")
    A(f"s_load_dwordx2 s[{S2}:{S2+1}], s[0:1], s{sT1}")
    A(f"s_load_dwordx2 s[{S3}:{S3+1}], s[0:1], s{sT2}")
    A(f"s_load_dwordx2 s[{SGW}:{SGW+1}], s[0:1], 72")
    A(f"s_load_dwordx2 s[{SOUT}:{SOUT+1}], s[0:1], 80")
    A(f"s_load_dwordx2 s[{SWS}:{SWS+1}], s[0:1], 96")
    A(f"s_mov_b32 s{S3+2}, 5308416")
    A(f"s_cselect_b32 s{S1+2}, 0x10000000, s{S3+2}")
    A(f"s_mov_b32 s{S2+2}, s{S1+2}")
    A(f"s_cselect_b32 s{S3+2}, 4718592, s{S3+2}")
    A(f"s_mov_b32 s{SX+2}, 1152"); A(f"s_mov_b32 s{SWQ+2}, 4718592"); A(f"s_mov_b32 s{SGW+2}, 1152")
    A(f"s_mov_b32 s{SOUT+2}, 1152"); A(f"s_mov_b32 s{SWS+2}, {(16<<20) if p['stamps'] else WS_USED}")
    for b in (SX, SWQ, SWS, S1, S2, S3, SGW, SOUT): A(f"s_mov_b32 s{b+3}, 0x20000")
    A(f"v_lshrrev_b32 v{vT}, 6, v0")
    A(f"v_and_b32 v{vL}, 63, v0")
    A(f"v_readfirstlane_b32 s{sW}, v{vT}")
    A(f"s_and_b32 s{sXCD}, s2, 7")
    A(f"v_lshrrev_b32 v{vR3}, 3, v{vL}")
    A(f"v_and_b32 v{vT+1}, 7, v{vL}")
    A(f"v_lshlrev_b32 v{vT+2}, 4, v{vT+1}")
    A(f"v_lshl_add_u32 v{vOWQ}, v{vR3}, 14, v{vT+2}")
    A(f"s_lshl_b32 s{sQI}, s{sXCD}, 5"); A(f"s_add_u32 s{sQI}, s{sQI}, s{sJ}")
    A(f"s_bfe_u32 s{sT0}, s{sQI}, 0x20002")
    A(f"s_mul_i32 s{sT0}, s{sT0}, 144"); A(f"s_lshl_b32 s{sT1}, s{sW}, 4"); A(f"s_add_u32 s{sT0}, s{sT0}, s{sT1}")
    A(f"s_lshr_b32 s{sT1}, s{sQI}, 4"); A(f"s_lshl_b32 s{sT1}, s{sT1}, 2"); A(f"s_and_b32 s{sT2}, s{sQI}, 3")
    A(f"s_add_u32 s{sT1}, s{sT1}, s{sT2}"); A(f"s_lshl_b32 s{sT1}, s{sT1}, 7")
    A(f"s_lshl_b32 s{sT2}, s{sT0}, 13"); A(f"s_add_u32 s{sT1}, s{sT1}, s{sT2}")
    A(f"s_add_u32 s{sT2}, s{sT1}, 8192")
    A(f"s_lshl_b32 s{sT0}, s{sT0}, 1")
    A(f"v_lshlrev_b32 v{vT+3}, 2, v{vR3}")
    A(f"v_lshlrev_b32 v{vT+4}, 1, v0")
    vWQ = vV + 40
    A("s_waitcnt lgkmcnt(0)")
    g.stamp(1)
    g.vreset()
    A(f"buffer_load_dwordx4 {v4(vWQ)}, v{vOWQ}, {srd(SWQ)}, s{sT1} offen {nt}"); g.vissue("wq0")
    A(f"buffer_load_dwordx4 {v4(vWQ+4)}, v{vOWQ}, {srd(SWQ)}, s{sT2} offen {nt}"); g.vissue("wq1")
    A(f"buffer_load_dword v{vX0}, v{vT+3}, {srd(SX)}, s{sT0} offen"); g.vissue("x0")
    A(f"buffer_load_ushort v{vXG}, v{vT+4}, {srd(SX)}, 0 offen"); g.vissue("xg")
    A(f"buffer_load_ushort v{vGW}, v{vT+4}, {srd(SGW)}, 0 offen"); g.vissue("gw")
    A(f"s_load_dword s{sE}, s[{SWS}:{SWS+1}], {EPOCH}")
    pre = list(g.vm)
    def common_consts():
        A(f"v_and_b32 v{vT}, 1, v{vL}"); A(f"v_lshlrev_b32 v{vT}, 4, v{vT}")
        A(f"v_mov_b32 v{vT+1}, 0xffff")
        A(f"v_lshlrev_b32 v{vT}, v{vT}, v{vT+1}")
        A(f"v_bfe_u32 v{vT+1}, v{vL}, 1, 2")
        for j in range(4): A(f"v_cmp_eq_u32 s[{sM0+2*j}:{sM0+2*j+1}], {j}, v{vT+1}")
        A(f"s_mov_b32 s{sSEL0}, 0x01000100"); A(f"s_mov_b32 s{sSEL1}, 0x03020302")
        for j in range(4): A(f"v_cndmask_b32 v{vM+j}, 0, v{vT}, s[{sM0+2*j}:{sM0+2*j+1}]")
        A(f"v_lshrrev_b32 v{vT}, 5, v{vL}"); A(f"v_and_b32 v{vT+1}, 7, v{vL}"); A(f"v_and_b32 v{vT+2}, 16, v{vL}")
        A(f"v_lshl_add_u32 v{vLT}, v{vT+1}, 5, v{vT+2}")
        A(f"v_lshlrev_b32 v{vOFP}, 1, v{vLT}")
        A(f"v_lshl_add_u32 v{vOFP}, v{vT}, 4, v{vOFP}")
        A(f"v_lshl_add_u32 v{vLT}, v{vT}, 8, v{vLT}")
        A(f"v_mul_u32_u24 v{vOT}, 1152, v{vR3}")
        A(f"v_lshl_add_u32 v{vOT}, v{vT+1}, 4, v{vOT}")
        A(f"s_mov_b32 s{sSPIN}, {p['spin']}")
    A(f"s_cmp_ge_u32 s{sJ}, 22"); A("s_cbranch_scc1 L_notattn")
    A(f"s_cmp_ge_u32 s{sJ}, 11"); A(f"s_cselect_b32 s{sT0}, 1, 0"); A(f"s_cselect_b32 s{sT1}, 11, 0")
    A(f"s_lshl_b32 s{sHK}, s{sXCD}, 1"); A(f"s_add_u32 s{sHK}, s{sHK}, s{sT0}")
    A(f"s_sub_u32 s{sSLOT}, s{sJ}, s{sT1}")
    A(f"s_cmp_eq_u32 s{sW}, 8"); A("s_cbranch_scc1 L_attn8")
    A(f"s_min_u32 s{sT0}, s{sSLOT}, 7"); A(f"s_mul_i32 s{sT1}, s{sSLOT}, 11"); A(f"s_add_u32 s{sT0}, s{sT0}, s{sT1}")
    A(f"s_lshl_b32 s{sT0}, s{sT0}, 13")
    A(f"s_lshl_b32 s{sKO}, s{sHK}, 24"); A(f"s_add_u32 s{sKO}, s{sKO}, s{sT0}")
    A(f"s_lshl_b32 s{sT0}, s{sW}, 10"); A(f"s_add_u32 s{sKO}, s{sKO}, s{sT0}")
    A(f"s_add_u32 s{sKO}, s{sKO}, {61440*256}")
    A(f"v_bfe_u32 v{vT}, v{vL}, 2, 2"); A(f"v_lshrrev_b32 v{vT+1}, 4, v{vL}"); A(f"v_and_b32 v{vT+2}, 3, v{vL}")
    A(f"v_lshlrev_b32 v{vOK}, 8, v{vT}"); A(f"v_lshl_add_u32 v{vOK}, v{vT+1}, 6, v{vOK}"); A(f"v_lshl_add_u32 v{vOK}, v{vT+2}, 4, v{vOK}")
    A(f"s_mov_b32 s{sT3}, s{sKO}")
    seq = [("K", i) for i in range(12)] + [("V", i) for i in range(12)] + [("O", i) for i in range(3)]
    pos = [0]
    def issue():
        if pos[0] >= len(seq): return
        kind, i = seq[pos[0]]; pos[0] += 1
        if kind == "K":
            off = vOKL if i == 11 else vOK
            A(f"buffer_load_dwordx4 {v4(vK+4*i)}, v{off}, {srd(S1)}, s{sT3} offen {nt}")
            A(f"s_add_u32 s{sT3}, s{sT3}, 8192" if i < 11 else f"s_mov_b32 s{sT3}, s{sKO}")
        elif kind == "V":
            off = vOVL if i == 11 else vOV
            A(f"buffer_load_dwordx4 {v4(vV+4*i)}, v{off}, {srd(S2)}, s{sT3} offen {nt}")
            if i < 11: A(f"s_add_u32 s{sT3}, s{sT3}, 8192")
        else:
            off = vOKL if i == 2 else vOT
            A(f"buffer_load_dwordx4 {v4(vV+4*i)}, v{off}, {srd(S3)}, s{sOO} offen {nt}")
            if i < 2: A(f"s_add_u32 s{sOO}, s{sOO}, {11*9216}")
        g.vissue(f"{kind}{i}")
    WA = p["WA"]
    for _ in range(max(WA-2, 1)): issue()
    common_consts()
    def attn_consts():
        A(f"s_lshl_b32 s{sT0}, s{sHK}, 5"); A(f"s_add_u32 s{sT0}, s{sT0}, s{sSLOT}"); A(f"s_mul_i32 s{sOO}, s{sT0}, 9216")
        A(f"s_lshl_b32 s{sT0}, s{sW}, 7"); A(f"s_add_u32 s{sOO}, s{sOO}, s{sT0}")
        A(f"s_mul_i32 s{sPI}, s{sHK}, 11"); A(f"s_add_u32 s{sPI}, s{sPI}, s{sSLOT}")
    attn_consts()
    A(f"v_lshlrev_b32 v{vOV}, 4, v{vL}")
    A(f"s_cmp_lt_u32 s{sSLOT}, 7"); A(f"s_cselect_b32 s{sT0}, 0, 0x40000000"); A(f"s_cselect_b32 s{sBIAS}, 0, {f2u(-1e30):#x}")
    A(f"v_add_u32 v{vOKL}, s{sT0}, v{vOK}"); A(f"v_add_u32 v{vOVL}, s{sT0}, v{vOV}")
    g.vwait("gw")
    g.stamp(2)
    for _ in range(WA - max(WA-2, 1)): issue()
    qpart(g, vWQ)
    maketag(g)
    while True:
        g.vwait_n(WA-1)
        landed = g.vm[:len(g.vm)-(WA-1)]
        issue()
        if "K11" in landed: break
    g.stamp(3)
    A("s_barrier")
    A(f"v_and_b32 v{vT}, 0xf0, v{vOK}")
    A(f"v_and_b32 v{vT+1}, 1, v{vR3}")
    A(f"v_lshl_add_u32 v{vT}, v{vT+1}, 8, v{vT}")
    A(f"ds_read_b128 {v4(vA)}, v{vT} offset:{L_Q}")
    A(f"s_cmp_lt_u32 s{sSLOT}, 10"); A(f"s_cselect_b32 s{sT0}, 0, 0x40000000")
    A(f"v_add_u32 v{vOKL}, s{sT0}, v{vOT}")
    A(f"s_mov_b32 s{sC}, {f2u(128**-0.5 * 1.4426950408889634):#x}")
    A("s_waitcnt lgkmcnt(0)")
    for i in range(12):
        A(f"v_mfma_f32_16x16x32_bf16 {v4(vK+4*i)}, {v4(vK+4*i)}, {v4(vA)}, 0")
    g.vwait_n(WA-1); issue()
    for i in range(12):
        A(f"v_mov_b32_dpp v{vP+i}, v{vK+4*i} quad_perm:[0,0,0,0] {DPP}")
    for r in (1, 2, 3):
        for i in range(12):
            A(f"v_add_f32_dpp v{vP+i}, v{vK+4*i+r}, v{vP+i} quad_perm:[{r},{r},{r},{r}] {DPP}")
    A(f"v_add_f32 v{vP+11}, s{sBIAS}, v{vP+11}")
    A(f"v_max3_f32 v{vT}, v{vP}, v{vP+1}, v{vP+2}")
    for i in range(3, 11, 2): A(f"v_max3_f32 v{vT}, v{vT}, v{vP+i}, v{vP+i+1}")
    A(f"v_max_f32 v{vT}, v{vT}, v{vP+11}")
    crossrow(g, "v_max_f32", vT, vT+2)
    A(f"v_lshlrev_b32 v{vT+1}, 5, v{vT+1}")
    A(f"s_lshl_b32 s{sT0}, s{sW}, 2")
    A(f"v_add_u32 v{vT+3}, s{sT0}, v{vT+1}")
    A("s_mov_b64 exec, 0x101" if False else "s_mov_b32 exec_lo, 0x101"); A("s_mov_b32 exec_hi, 0")
    A(f"ds_write_b32 v{vT+3}, v{vT} offset:{L_M}")
    A("s_mov_b64 exec, -1")
    g.vwait_n(WA-1); issue()
    A("s_waitcnt lgkmcnt(0)")
    A("s_barrier")
    A(f"ds_read_b128 {v4(vA)}, v{vT+1} offset:{L_M}")
    A(f"ds_read_b128 {v4(vA+4)}, v{vT+1} offset:{L_M+16}")
    A("s_waitcnt lgkmcnt(0)")
    A(f"v_max3_f32 v{vT}, v{vA}, v{vA+1}, v{vA+2}"); A(f"v_max3_f32 v{vT}, v{vT}, v{vA+3}, v{vA+4}")
    A(f"v_max3_f32 v{vT}, v{vT}, v{vA+5}, v{vA+6}"); A(f"v_max_f32 v{vT}, v{vT}, v{vA+7}")
    A(f"v_mul_f32 v{vT}, s{sC}, v{vT}")
    for i in range(12): A(f"v_fma_f32 v{vP+i}, v{vP+i}, s{sC}, -v{vT}")
    for i in range(12): A(f"v_exp_f32 v{vP+i}, v{vP+i}")
    A("s_nop 0")
    A(f"v_add_f32 v{vT+4}, v{vP}, v{vP+1}")
    for i in range(2, 12): A(f"v_add_f32 v{vT+4}, v{vT+4}, v{vP+i}")
    for i in range(12):
        A(f"v_cvt_pk_bf16_f32 v{vP+i}, v{vP+i}, v{vP+i}")
    crossrow(g, "v_add_f32", vT+4, vT+2)
    A("s_mov_b32 exec_lo, 0x101"); A("s_mov_b32 exec_hi, 0")
    A(f"ds_write_b32 v{vT+3}, v{vT+4} offset:{L_L}")
    A("s_mov_b64 exec, -1")
    g.vwait_n(WA-1); issue()
    for i in range(12): build_A(g, vK+4*i, vP+i)
    A(f"v_and_b32 v{vT+5}, 15, v{vL}"); A(f"v_lshlrev_b32 v{vT+5}, 5, v{vT+5}")
    A(f"v_and_b32 v{vT+6}, 16, v{vL}"); A(f"v_add_u32 v{vT+5}, v{vT+5}, v{vT+6}")
    A(f"v_lshrrev_b32 v{vT+6}, 5, v{vL}"); A(f"v_lshl_add_u32 v{vT+5}, v{vT+6}, 9, v{vT+5}")
    A(f"s_lshl_b32 s{sT0}, s{sW}, 10"); A(f"v_add_u32 v{vT+5}, s{sT0}, v{vT+5}")
    g.stamp(4)
    done_v = -1
    for i in range(12):
        g.vwait(f"V{i}")
        A(f"v_mfma_f32_16x16x32_bf16 {v4(vACC)}, {v4(vK+4*i)}, {v4(vV+4*i)}, {'0' if i == 0 else v4(vACC)}")
        infl = len(g.vm) - 1 - g.vm.index(f"V{i}")
        while infl < WA and pos[0] < len(seq):
            kind, k = seq[pos[0]]
            if kind == "O" and k > i: break
            issue(); infl += 1
    while pos[0] < len(seq): issue()
    g.stamp(5)
    A("s_nop 7")
    A(f"ds_write_b128 v{vT+5}, {v4(vACC)} offset:{L_O}")
    A("s_waitcnt lgkmcnt(0)")
    A("s_barrier")
    A(f"s_cmp_lt_u32 s{sW}, 3"); A("s_cbranch_scc1 L_ogather")
    A(f"s_cmp_lt_u32 s{sW}, 6"); A("s_cbranch_scc1 L_barD")
    A(f"s_sub_u32 s{sT0}, s{sW}, 6")
    A(f"s_lshl_b32 s{sT1}, s{sT0}, 5"); A(f"v_mov_b32 v{vT+1}, s{sT1}")
    A(f"ds_read_b128 {v4(vA)}, v{vT+1} offset:{L_L}"); A(f"ds_read_b128 {v4(vA+4)}, v{vT+1} offset:{L_L+16}")
    A(f"ds_read_b128 {v4(vP)}, v{vT+1} offset:{L_M}"); A(f"ds_read_b128 {v4(vP+4)}, v{vT+1} offset:{L_M+16}")
    A(f"s_lshl_b32 s{sT1}, s{sT0}, 9"); A(f"v_lshl_add_u32 v{vT+2}, v{vL}, 3, s{sT1}")
    for w in range(8): A(f"ds_read_b64 {v2(vK+2*w)}, v{vT+2} offset:{L_O+1024*w}")
    A(f"s_lshl_b32 s{sT1}, s{sHK}, 4"); A(f"s_add_u32 s{sT1}, s{sT1}, s{sSLOT}"); A(f"s_lshl_b32 s{sT1}, s{sT1}, 11")
    A(f"s_lshl_b32 s{sT0}, s{sT0}, 10"); A(f"s_add_u32 s{sT1}, s{sT1}, s{sT0}"); A(f"s_add_u32 s{sT1}, s{sT1}, {OB}")
    A("s_waitcnt lgkmcnt(8)")
    A(f"v_pk_add_f32 {v2(vA)}, {v2(vA)}, {v2(vA+2)}"); A(f"v_pk_add_f32 {v2(vA+4)}, {v2(vA+4)}, {v2(vA+6)}")
    A(f"v_max3_f32 v{vT}, v{vP}, v{vP+1}, v{vP+2}")
    A(f"v_pk_add_f32 {v2(vA)}, {v2(vA)}, {v2(vA+4)}")
    A(f"v_max3_f32 v{vT}, v{vT}, v{vP+3}, v{vP+4}")
    A(f"v_add_f32 v{vA}, v{vA}, v{vA+1}")
    A(f"v_max3_f32 v{vT}, v{vT}, v{vP+5}, v{vP+6}"); A(f"v_max_f32 v{vT}, v{vT}, v{vP+7}")
    A(f"v_rcp_f32 v{vA+2}, v{vA}"); A(f"v_log_f32 v{vA+4}, v{vA}")
    A(f"v_mov_b32 v{vACC+3}, s{sTAG}")
    A(f"v_fma_f32 v{vACC+2}, v{vT}, s{sC}, v{vA+4}")
    A("s_waitcnt lgkmcnt(0)")
    for a, b in ((0,1),(2,3),(4,5),(6,7),(0,2),(4,6),(0,4)):
        A(f"v_pk_add_f32 {v2(vK+2*a)}, {v2(vK+2*a)}, {v2(vK+2*b)}")
    A(f"v_mul_f32 v{vACC}, v{vK}, v{vA+2}"); A(f"v_mul_f32 v{vACC+1}, v{vK+1}, v{vA+2}")
    A(f"buffer_store_dwordx4 {v4(vACC)}, v{vOV}, {srd(SWS)}, s{sT1} offen sc1")
    g.stamp(6)
    A("s_branch L_barD")
    g.lab("L_ogather")
    A(f"s_mul_i32 s{sT0}, s{sW}, 11"); A(f"s_add_u32 s{sT0}, s{sT0}, s{sSLOT}")
    A(f"v_and_b32 v{vT}, 15, v{vL}"); A(f"v_lshrrev_b32 v{vT+1}, 4, v{vL}")
    A(f"v_lshlrev_b32 v{vT+2}, 11, v{vT}"); A(f"v_lshl_add_u32 v{vT+2}, v{vT+1}, 4, v{vT+2}")
    A(f"s_lshl_b32 s{sT1}, s{sHK}, 15"); A(f"s_lshl_b32 s{sT2}, s{sT0}, 6"); A(f"s_add_u32 s{sT1}, s{sT1}, s{sT2}"); A(f"s_add_u32 s{sT1}, s{sT1}, {OB}")
    A(f"v_mov_b32 v{vA}, 0"); A(f"v_mov_b32 v{vA+1}, 0"); A(f"v_mov_b32 v{vA+2}, {f2u(-1e30):#x}")
    A(f"s_lshl_b32 s{sT2}, s{sW}, 5"); A(f"v_lshl_add_u32 v{vT+3}, v{vT+1}, 3, s{sT2}")
    A(f"s_cmp_ge_u32 s{sT0}, 32"); A("s_cbranch_scc1 L_owrite")
    A("s_mov_b32 exec_lo, 0x07ff07ff"); A("s_mov_b32 exec_hi, 0x07ff07ff")
    g.lab("L_opoll")
    A(f"buffer_load_dwordx4 {v4(vA)}, v{vT+2}, {srd(SWS)}, s{sT1} offen sc1")
    A(f"s_sub_u32 s{sSPIN}, s{sSPIN}, 1"); A("s_cbranch_scc1 L_opoll_end")
    A("s_waitcnt vmcnt(0)")
    A(f"v_cmpx_ne_u32 vcc, s{sTAG}, v{vA+3}")
    A("s_cbranch_execnz L_opoll")
    g.lab("L_opoll_end")
    A("s_mov_b64 exec, -1")
    g.stamp(6)
    A(f"v_mov_b32 v{vT+4}, v{vA+2}")
    A("s_nop 3")
    rowred(g, "v_max_f32", [vT+4])
    A(f"v_sub_f32 v{vA+2}, v{vA+2}, v{vT+4}")
    A(f"v_exp_f32 v{vA+2}, v{vA+2}")
    A("s_nop 0")
    A(f"v_mul_f32 v{vA}, v{vA}, v{vA+2}"); A(f"v_mul_f32 v{vA+1}, v{vA+1}, v{vA+2}")
    A("s_nop 0")
    rowred(g, "v_add_f32", [vA+2, vA, vA+1])
    A(f"v_rcp_f32 v{vA+2}, v{vA+2}")
    A("s_nop 0")
    A(f"v_mul_f32 v{vA}, v{vA}, v{vA+2}"); A(f"v_mul_f32 v{vA+1}, v{vA+1}, v{vA+2}")
    A(f"v_cvt_pk_bf16_f32 v{vA}, v{vA}, v{vA}"); A(f"v_cvt_pk_bf16_f32 v{vA+1}, v{vA+1}, v{vA+1}")
    g.lab("L_owrite")
    A("s_mov_b32 exec_lo, 0x00010001"); A("s_mov_b32 exec_hi, 0x00010001")
    A(f"ds_write_b64 v{vT+3}, {v2(vA)} offset:{L_C}")
    A("s_mov_b64 exec, -1")
    A("s_waitcnt lgkmcnt(0)")
    g.lab("L_barD")
    A(f"v_lshlrev_b32 v{vT}, 2, v{vR3}")
    A("s_barrier")
    for i in range(3): A(f"ds_read_b32 v{vP+i}, v{vT} offset:{L_C+32*i}")
    A("s_waitcnt lgkmcnt(0)")
    for i in range(3): build_A(g, vK+4*i, vP+i)
    A("s_waitcnt vmcnt(0)")
    A("s_nop 0")
    for i in range(3):
        A(f"v_mfma_f32_16x16x32_bf16 {v4(vACC)}, {v4(vK+4*i)}, {v4(vV+4*i)}, {'0' if i == 0 else v4(vACC)}")
    fpublish(g, vACC)
    g.stamp(7)
    A(f"s_cmp_lg_u32 s{sW}, 8"); A("s_cbranch_scc1 L_fin")
    A(f"s_cmp_ge_u32 s{sJ}, 9"); A("s_cbranch_scc1 L_fin")
    A(f"s_mul_i32 s{sU}, s{sXCD}, 9"); A(f"s_add_u32 s{sU}, s{sU}, s{sJ}")
    A(f"v_and_b32 v{vT}, 15, v{vL}"); A(f"v_lshrrev_b32 v{vT+1}, 4, v{vL}")
    A(f"v_mul_u32_u24 v{vT+2}, 4608, v{vT}"); A(f"v_lshl_add_u32 v{vT+2}, v{vT+1}, 4, v{vT+2}")
    A(f"v_cmp_gt_u32 vcc, 8, v{vT}")
    A(f"v_mov_b32 v{vT+4}, 0x40000000")
    A(f"s_lshl_b32 s{sT0}, s{sU}, 6"); A(f"s_add_u32 s{sT0}, s{sT0}, {FB}")
    A(f"v_cndmask_b32 v{vT+3}, v{vT+4}, v{vT+2}, vcc")
    A(f"s_mov_b64 s[{sM0}:{sM0+1}], vcc")
    A(f"v_mov_b32 v{vT+5}, 0")
    A(f"ds_read_b128 {v4(vA)}, v{vT+5} offset:{L_Z}"); A(f"ds_read_b128 {v4(vA+4)}, v{vT+5} offset:{L_Z+16}"); A(f"ds_read_b32 v{vT+6}, v{vT+5} offset:{L_Z+32}")
    g.lab("L_fpoll")
    A(f"s_mov_b32 s{sT1}, s{sT0}")
    for n in range(16):
        off = vT+3 if n == 15 else vT+2
        A(f"buffer_load_dwordx4 {v4(vK+4*n)}, v{off}, {srd(SWS)}, s{sT1} offen sc1")
        if n < 15: A(f"s_add_u32 s{sT1}, s{sT1}, {16*4608}")
    A(f"s_sub_u32 s{sSPIN}, s{sSPIN}, 1"); A("s_cbranch_scc1 L_fpoll_end")
    A(f"s_mov_b64 s[{sEX}:{sEX+1}], 0")
    for n in range(16):
        A(f"s_waitcnt vmcnt({15-n})")
        A(f"v_cmp_ne_u64 vcc, s[{sTAG}:{sTAG+1}], {v2(vK+4*n+2)}")
        if n == 15: A(f"s_and_b64 vcc, vcc, s[{sM0}:{sM0+1}]")
        A(f"s_or_b64 s[{sEX}:{sEX+1}], s[{sEX}:{sEX+1}], vcc")
    A(f"s_mov_b64 exec, s[{sEX}:{sEX+1}]")
    A("s_cbranch_execnz L_fpoll")
    g.lab("L_fpoll_end")
    A("s_mov_b64 exec, -1")
    g.stamp(8)
    A("s_waitcnt lgkmcnt(0)")
    for a, b in ((0,1),(2,3),(4,5),(6,7),(8,9),(11,12),(13,14),(0,2),(4,6),(8,10),(11,13),(0,4),(11,15),(0,8)):
        A(f"v_pk_add_f32 {v2(vK+4*a)}, {v2(vK+4*a)}, {v2(vK+4*b)}")
    ra, rb = vK, vK+44
    A(f"v_pk_add_f32 {v2(vA)}, {v2(vA)}, {v2(vA+2)}"); A(f"v_pk_add_f32 {v2(vA+4)}, {v2(vA+4)}, {v2(vA+6)}")
    rowred(g, "v_add_f32", [ra, ra+1, rb, rb+1])
    A(f"v_pk_add_f32 {v2(vA)}, {v2(vA)}, {v2(vA+4)}")
    A(f"v_add_f32 v{vA}, v{vA}, v{vA+1}"); A(f"v_add_f32 v{vA}, v{vA}, v{vT+6}")
    bf16r(g, vA, vA)
    A(f"v_mul_f32 v{vA}, {f2u(-1.4426950408889634):#x}, v{vA}")
    A(f"v_exp_f32 v{vA}, v{vA}"); A("s_nop 0")
    A(f"v_add_f32 v{vA}, 1.0, v{vA}"); A(f"v_rcp_f32 v{vA}, v{vA}"); A("s_nop 0")
    bf16r(g, vA, vA)
    A(f"v_sub_f32 v{vA+1}, 1.0, v{vA}"); bf16r(g, vA+1, vA+1)
    for x in (ra, ra+1, rb, rb+1): bf16r(g, x, x)
    A(f"v_mul_f32 v{ra}, v{ra}, v{vA}"); A(f"v_mul_f32 v{ra+1}, v{ra+1}, v{vA}")
    A(f"v_mul_f32 v{rb}, v{rb}, v{vA+1}"); A(f"v_mul_f32 v{rb+1}, v{rb+1}, v{vA+1}")
    for x in (ra, ra+1, rb, rb+1): bf16r(g, x, x)
    A(f"v_add_f32 v{ra}, v{ra}, v{rb}"); A(f"v_add_f32 v{ra+1}, v{ra+1}, v{rb+1}")
    A(f"v_cvt_pk_bf16_f32 v{ra}, v{ra}, v{ra+1}")
    A(f"v_lshlrev_b32 v{vT+1}, 2, v{vT+1}"); A(f"s_lshl_b32 s{sT0}, s{sU}, 4")
    A("s_mov_b32 exec_lo, 0x00010001"); A("s_mov_b32 exec_hi, 0x00010001")
    A(f"buffer_store_dword v{ra}, v{vT+1}, {srd(SOUT)}, s{sT0} offen")
    A(f"s_cmp_lg_u32 s{sU}, 0"); A("s_cbranch_scc1 L_fin")
    A("s_mov_b64 exec, 1")
    A(f"v_mov_b32 v{vT+6}, s{sTAG}")
    A(f"buffer_store_dword v{vT+6}, v{vT+5}, {srd(SWS)}, 0 offen offset:{EPOCH}")
    A("s_branch L_fin")
    g.lab("L_attn8")
    g.vm = list(pre)
    common_consts(); attn_consts()
    A(f"v_lshlrev_b32 v{vOV}, 4, v{vL}")
    A(f"s_cmp_lt_u32 s{sSLOT}, 10"); A(f"s_cselect_b32 s{sT0}, 0, 0x40000000")
    A(f"v_add_u32 v{vOKL}, s{sT0}, v{vOT}")
    g.vwait("gw")
    g.stamp(2)
    qpart(g, vWQ); maketag(g)
    qpublish(g, vK)
    g.stamp(3)
    A(f"s_lshl_b32 s{sT0}, s{sHK}, 13"); A(f"s_add_u32 s{sT0}, s{sT0}, {QB}"); A(f"s_add_u32 s{sT1}, s{sT0}, 4096")
    g.lab("L_qpoll")
    A(f"s_sleep {p['qsleep']}")
    for rg in range(4):
        for z in range(2):
            o = rg*2048 + z*1024
            A(f"buffer_load_dwordx4 {v4(vK+8*rg+4*z)}, v{vOV}, {srd(SWS)}, s{sT1 if o >= 4096 else sT0} offen offset:{o & 4095} sc1")
    A(f"s_sub_u32 s{sSPIN}, s{sSPIN}, 1"); A("s_cbranch_scc1 L_qpoll_end")
    A("s_waitcnt vmcnt(0)")
    tags = [vK+4*n+k for n in range(8) for k in (1, 3)]
    A(f"v_min_u32 v{vT}, v{tags[0]}, v{tags[1]}"); A(f"v_max_u32 v{vT+1}, v{tags[0]}, v{tags[1]}")
    for k in range(2, 16, 2):
        A(f"v_min3_u32 v{vT}, v{vT}, v{tags[k]}, v{tags[k+1]}"); A(f"v_max3_u32 v{vT+1}, v{vT+1}, v{tags[k]}, v{tags[k+1]}")
    A(f"v_cmp_ne_u32 vcc, s{sTAG}, v{vT}"); A(f"v_cmp_ne_u32 s[{sEX}:{sEX+1}], s{sTAG}, v{vT+1}")
    A("s_nop 1")
    A(f"s_or_b64 vcc, vcc, s[{sEX}:{sEX+1}]")
    A("s_cbranch_scc1 L_qpoll")
    g.lab("L_qpoll_end")
    for z in range(2):
        for k in (0, 2):
            b = vK+4*z+k
            A(f"v_add_f32 v{b}, v{b}, v{b+8}"); A(f"v_add_f32 v{b+16}, v{b+16}, v{b+24}"); A(f"v_add_f32 v{b}, v{b}, v{b+16}")
        A(f"v_cvt_pk_bf16_f32 v{vK+4*z}, v{vK+4*z}, v{vK+4*z+2}")
    A(f"v_lshlrev_b32 v{vT}, 2, v{vL}")
    A(f"ds_write_b32 v{vT}, v{vK} offset:{L_Q}"); A(f"ds_write_b32 v{vT}, v{vK+4} offset:{L_Q+256}")
    A("s_waitcnt lgkmcnt(0)")
    g.stamp(4)
    A("s_barrier")
    A("s_barrier")
    for i in range(3):
        A(f"buffer_load_dwordx4 {v4(vV+4*i)}, v{vOKL if i == 2 else vOT}, {srd(S3)}, s{sOO} offen {nt}")
        if i < 2: A(f"s_add_u32 s{sOO}, s{sOO}, {11*9216}")
    A("s_barrier")
    g.stamp(5)
    A("s_branch L_barD")
    g.lab("L_notattn")
    g.vm = list(pre)
    A(f"s_cmp_eq_u32 s{sJ}, 31"); A("s_cbranch_scc1 L_spare")
    A(f"s_mul_i32 s{sU}, s{sXCD}, 9"); A(f"s_add_u32 s{sU}, s{sU}, s{sJ}"); A(f"s_sub_u32 s{sU}, s{sU}, 22")
    A(f"v_lshlrev_b32 v{vT}, 4, v{vR3}"); A(f"s_lshl_b32 s{sT0}, s{sW}, 7")
    A(f"buffer_load_dwordx4 {v4(vX)}, v{vT}, {srd(SX)}, s{sT0} offen"); g.vissue("xf")
    A(f"s_mov_b32 s{sT0}, {8*9216}"); A(f"v_mul_lo_u32 v{vOK}, v{vR3}, s{sT0}")
    A(f"v_and_b32 v{vT+1}, 7, v{vL}"); A(f"v_lshl_add_u32 v{vOK}, v{vT+1}, 4, v{vOK}")
    A(f"s_mul_i32 s{sKO}, s{sW}, {64*9216}"); A(f"s_lshl_b32 s{sT0}, s{sU}, 7"); A(f"s_add_u32 s{sKO}, s{sKO}, s{sT0}")
    fseq = []
    for t in range(8): fseq += [("G", t), ("U", t)]
    fseq += [("D", t) for t in range(8)]
    if p.get("forder"): fseq = p["forder"]
    fpos = [0]
    vG = vK
    def greg(kind, t):
        return {"G": vK+4*t, "U": vK+32+4*t, "D": vV+16+4*t}[kind]
    def fissue():
        if fpos[0] >= len(fseq): return
        kind, t = fseq[fpos[0]]; fpos[0] += 1
        if kind == "G": A(f"buffer_load_dwordx4 {v4(greg(kind,t))}, v{vOK}, {srd(S1)}, s{sKO} offen {nt}")
        elif kind == "U":
            A(f"buffer_load_dwordx4 {v4(greg(kind,t))}, v{vOK}, {srd(S2)}, s{sKO} offen {nt}")
            A(f"s_add_u32 s{sKO}, s{sKO}, 9216")
        else:
            A(f"buffer_load_dwordx4 {v4(greg(kind,t))}, v{vOT}, {srd(S3)}, s{sOO} offen {nt}")
            A(f"s_add_u32 s{sOO}, s{sOO}, 9216")
        g.vissue(f"{kind}{t}")
    WF = p["WF"]; WF2 = p.get("WF2", WF); wf2_from = p.get("wf2_from", 99)
    common_consts()
    A(f"s_mul_i32 s{sOO}, s{sU}, {64*1152}"); A(f"s_lshl_b32 s{sT0}, s{sW}, 7"); A(f"s_add_u32 s{sOO}, s{sOO}, s{sT0}")
    A(f"s_add_u32 s{sPI}, s{sU}, 176")
    g.vwait("xf")
    g.stamp(2)
    for _ in range(WF): fissue()
    qpart(g, vWQ); maketag(g)
    A(f"s_cmp_lg_u32 s{sW}, 8"); A("s_cbranch_scc1 L_fnopub")
    qpublish(g, vV+16)
    A("s_waitcnt vmcnt(0)")
    g.lab("L_fnopub")
    g.stamp(3)
    ng = 0
    for idx, (kind, t) in enumerate(fseq):
        if kind == "D":
            if ng == 16: break
            g.vwait(f"D{t}")
        else:
            if kind == "G":
                A(f"v_perm_b32 v{vT}, v{vX+t//2}, v{vX+t//2}, s{sSEL1 if t & 1 else sSEL0}")
                build_A(g, vA+4*(t & 1), vT)
            g.vwait(f"{kind}{t}")
        W = WF2 if idx >= wf2_from else WF
        infl = len(g.vm) - 1 - g.vm.index(f"{kind}{t}")
        k = 0
        while infl < W and fpos[0] < len(fseq): fissue(); infl += 1; k += 1
        if kind != "D":
            if k == 0: A("s_nop 0")
            acc = vACC if kind == "G" else vACC+4
            A(f"v_mfma_f32_16x16x32_bf16 {v4(acc)}, {v4(vA+4*(t&1))}, {v4(greg(kind,t))}, {'0' if t == 0 else v4(acc)}")
            ng += 1
    while fpos[0] < len(fseq): fissue()
    g.stamp(4)
    A(f"s_lshl_b32 s{sT0}, s{sW}, 10"); A(f"v_add_u32 v{vT+2}, s{sT0}, v{vLT}")
    A("s_mov_b32 exec_lo, 0x00ff00ff"); A("s_mov_b32 exec_hi, 0xff00ff00")
    A("s_nop 4")
    A(f"ds_write_b128 v{vT+2}, {v4(vACC)} offset:{L_O}")
    A(f"ds_write_b128 v{vT+2}, {v4(vACC+4)} offset:{L_O+512}")
    A("s_mov_b64 exec, -1")
    A(f"v_lshlrev_b32 v{vT}, 4, v{vL}")
    A("s_waitcnt lgkmcnt(0)")
    A("s_barrier")
    for w in range(9): A(f"ds_read_b128 {v4(vK+4*w)}, v{vT} offset:{L_O+1024*w}")
    A("s_waitcnt lgkmcnt(0)")
    for a, b in ((0,1),(2,3),(4,5),(6,7),(0,2),(4,6),(0,4),(0,8)):
        A(f"v_pk_add_f32 {v2(vK+4*a)}, {v2(vK+4*a)}, {v2(vK+4*b)}")
        A(f"v_pk_add_f32 {v2(vK+4*a+2)}, {v2(vK+4*a+2)}, {v2(vK+4*b+2)}")
    for r in range(4): A(f"v_mov_b32 v{vK+4+r}, v{vK+r}")
    A("s_nop 0")
    for r in range(4): A(f"v_permlane16_swap_b32 v{vK+r}, v{vK+4+r}")
    A("s_nop 0")
    for r in range(4): A(f"v_add_f32 v{vK+r}, v{vK+r}, v{vK+4+r}")
    for r in range(4): bf16r(g, vK+r, vK+r)
    for r in range(4): A(f"v_mov_b32 v{vK+4+r}, v{vK+r}")
    A("s_nop 0")
    for r in range(4): A(f"v_permlane32_swap_b32 v{vK+r}, v{vK+4+r}")
    A("s_nop 0")
    for r in range(4): A(f"v_mul_f32 v{vK+8+r}, {f2u(-1.4426950408889634):#x}, v{vK+r}")
    for r in range(4): A(f"v_exp_f32 v{vK+8+r}, v{vK+8+r}")
    for r in range(4): A(f"v_add_f32 v{vK+8+r}, 1.0, v{vK+8+r}")
    for r in range(4): A(f"v_rcp_f32 v{vK+8+r}, v{vK+8+r}")
    for r in range(4): A(f"v_mul_f32 v{vK+r}, v{vK+r}, v{vK+8+r}")
    for r in range(4): bf16r(g, vK+r, vK+r)
    for r in range(4): A(f"v_mul_f32 v{vK+r}, v{vK+r}, v{vK+4+r}")
    for r in range(4): A(f"v_cvt_pk_bf16_f32 v{vK+r}, v{vK+r}, v{vK+r}")
    A(f"s_lshl_b32 s{sT0}, s{sW}, 8")
    A(f"v_add_u32 v{vT+1}, s{sT0}, v{vT}")
    A(f"v_lshl_add_u32 v{vT+2}, v{vR3}, 2, s{sT0}")
    A("s_mov_b64 exec, 0xffff" if False else "s_mov_b32 exec_lo, 0xffff"); A("s_mov_b32 exec_hi, 0")
    A(f"ds_write_b128 v{vT+1}, {v4(vK)} offset:{L_H}")
    A("s_mov_b64 exec, -1")
    A("s_waitcnt lgkmcnt(0)")
    for t in range(8): A(f"ds_read_b32 v{vP+t}, v{vT+2} offset:{L_H+32*t}")
    A("s_waitcnt lgkmcnt(0)")
    for t in range(8): build_A(g, vK+16+4*t, vP+t)
    g.stamp(5)
    for t in range(8):
        g.vwait(f"D{t}")
        A(f"v_mfma_f32_16x16x32_bf16 {v4(vACC)}, {v4(vK+16+4*t)}, {v4(greg('D',t))}, {'0' if t == 0 else v4(vACC)}")
    g.stamp(6)
    fpublish(g, vACC)
    g.stamp(7)
    A("s_branch L_fin")
    g.lab("L_spare")
    g.vm = list(pre)
    common_consts()
    g.vwait("gw")
    qpart(g, vWQ); maketag(g)
    A(f"s_cmp_lg_u32 s{sW}, 8"); A("s_cbranch_scc1 L_fin")
    qpublish(g, vK)
    g.lab("L_fin")
    if p["stamps"]:
        A("s_mov_b64 exec, -1")
        A("s_waitcnt vmcnt(0)")
        g.stamp(9)
        A("s_waitcnt lgkmcnt(0)")
        A(f"s_lshl_b32 s{sT0}, s2, 4"); A(f"s_add_u32 s{sT0}, s{sT0}, s{sW}"); A(f"s_lshl_b32 s{sT0}, s{sT0}, 6"); A(f"s_add_u32 s{sT0}, s{sT0}, {STB}")
        for k in range(10): A(f"v_mov_b32 v{vK+k}, s{80+2*k}")
        A(f"v_mov_b32 v{vK+10}, s{sSPIN}"); A(f"v_mov_b32 v{vK+11}, s{sTAG}")
        A(f"v_mov_b32 v{vT}, 0"); A("s_mov_b64 exec, 1")
        for k in range(3): A(f"buffer_store_dwordx4 {v4(vK+4*k)}, v{vT}, {srd(SWS)}, s{sT0} offen offset:{16*k}")
        if p.get("dbg"):
            A(f"s_load_dwordx2 s[{SX}:{SX+1}], s[0:1], 88"); A(f"s_mov_b32 s{SX+2}, 256"); A("s_waitcnt lgkmcnt(0)")
            for k in range(1, 10): A(f"v_subrev_u32 v{vK+k}, s80, v{vK+k}")
            A(f"s_cmp_lg_u32 s2, 0"); A("s_cbranch_scc1 L_dbg2")
            A(f"s_cmp_lg_u32 s{sW}, 8"); A("s_cbranch_scc1 L_dbg3")
            A(f"buffer_store_dwordx4 {v4(vK)}, v{vT}, {srd(SX)}, 0 offen"); A(f"buffer_store_dwordx2 {v2(vK+4)}, v{vT}, {srd(SX)}, 0 offen offset:16")
            A(f"buffer_store_dword v{vK+7}, v{vT}, {srd(SX)}, 0 offen offset:24"); A(f"buffer_store_dwordx2 {v2(vK+8)}, v{vT}, {srd(SX)}, 0 offen offset:28")
            g.lab("L_dbg3")
            A(f"s_cmp_lg_u32 s{sW}, 0"); A("s_cbranch_scc1 L_end")
            A(f"buffer_store_dword v{vK+3}, v{vT}, {srd(SX)}, 0 offen offset:36"); A(f"buffer_store_dwordx2 {v2(vK+4)}, v{vT}, {srd(SX)}, 0 offen offset:40")
            A("s_branch L_end")
            g.lab("L_dbg2")
            A(f"s_cmp_lg_u32 s2, 176"); A("s_cbranch_scc1 L_end")
            A(f"s_cmp_lg_u32 s{sW}, 0"); A("s_cbranch_scc1 L_end")
            A(f"buffer_store_dwordx4 {v4(vK+4)}, v{vT}, {srd(SX)}, 0 offen offset:48")
    g.lab("L_end")
    A("s_endpgm")
    out += g.L
    out += ['.section .rodata,"a"', ".p2align 6", f".amdhsa_kernel {NAME}", f"  .amdhsa_next_free_vgpr {NV}",
            f"  .amdhsa_next_free_sgpr {100 if p['stamps'] else 72}", f"  .amdhsa_accum_offset {NV}", "  .amdhsa_group_segment_fixed_size 0",
            "  .amdhsa_kernarg_size 104", "  .amdhsa_user_sgpr_count 2", "  .amdhsa_user_sgpr_kernarg_segment_ptr 1",
            "  .amdhsa_system_sgpr_workgroup_id_x 1", ".end_amdhsa_kernel"]
    return "\n".join(out) + "\n"

if __name__ == "__main__":
    kw = {}
    for a in sys.argv[2:]:
        k, v = a.split("="); kw[k] = eval(v)
    open(sys.argv[1], "w").write(gen(**kw))
```

```python
import sys, struct
NAME = "gated_mix__sliding_block_cached__swiglu_ffn__decode_kernel"
HDR = open("gated_mix__sliding_block_cached__swiglu_ffn__decode.s.ref").read().split("; Override launch")[0]

def f2u(f): return struct.unpack("<I", struct.pack("<f", f))[0]

EPOCH = 0
QB = 4096
OB = QB + 256*512
FB = OB + 256*2048
WS_USED = FB + 256*4608
STB = 8 << 20
L_QP = 0
L_Q = 4608
L_M = 5120
L_L = 5184
L_Z = 5248
L_C = 5312
L_O = 5632
L_H = L_O + 9*1024
LDS_BYTES = L_H + 9*256

class G:
    def __init__(s, **kw):
        s.L = []; s.p = dict(WA=4, WF=2, stamps=False, nt="nt", qsleep=24, emu=False, spin=200000)
        s.p.update(kw); s.vm = []; s.nst = 0
    def A(s, x): s.L.append("    " + x)
    def lab(s, x): s.L.append(x + ":")
    def vreset(s): s.vm = []
    def vissue(s, name): s.vm.append(name)
    def vwait(s, name):
        i = s.vm.index(name); n = len(s.vm) - 1 - i
        s.A(f"s_waitcnt vmcnt({n})")
    def vwait_n(s, n): s.A(f"s_waitcnt vmcnt({n})")
    def stamp(s, k):
        if s.p["stamps"]: s.A(f"s_memrealtime s[{80+2*k}:{81+2*k}]")

sW=3
SX=8; SWQ=12; SWS=16; S1=20; S2=24; S3=28; SGW=32; SOUT=36
sE=40; sTAG=42
sXCD=44; sJ=45; sHK=46; sSLOT=47; sQI=48; sT0=49; sT1=50; sT2=51; sT3=52; sBIAS=53; sSPIN=54
sKO=55; sOO=56; sSEL0=57; sSEL1=58; sPI=59; sC=60; sU=61
sM0=62
sEX=70
def srd(b): return f"s[{b}:{b+3}]"
vL=1; vM=2
vOT=6; vOK=7; vOV=8; vOWQ=9; vLT=10; vX0=11; vX=12
vXG=16; vGW=17; vT=18
vA=32
vACC=40
vP=48
vOKL=60; vOVL=61; vR3=62; vOFP=63
vK=64
vV=112
NV=160
def v4(b): return f"v[{b}:{b+3}]"
def v2(b): return f"v[{b}:{b+1}]"

DPP = "row_mask:0xf bank_mask:0xf"

def build_A(g, dst, rep):
    for j in range(4): g.A(f"v_and_b32 v{dst+j}, v{rep}, v{vM+j}")

def rowred(g, op, regs):
    need = max(0, 2 - (len(regs) - 1))
    for r in (8, 4, 2, 1):
        g.A(f"s_nop {max(need-1,0)}" if need else "s_nop 0") if need else None
        for x in regs: g.A(f"{op}_dpp v{x}, v{x}, v{x} row_ror:{r} {DPP}")

def crossrow(g, op, x, t):
    for sw in ("v_permlane16_swap_b32", "v_permlane32_swap_b32"):
        g.A(f"v_mov_b32 v{t}, v{x}")
        g.A("s_nop 1")
        g.A(f"{sw} v{x}, v{t}")
        g.A("s_nop 1")
        g.A(f"{op} v{x}, v{x}, v{t}")

def bf16r(g, d, s_):
    g.A(f"v_cvt_pk_bf16_f32 v{d}, v{s_}, v{s_}")
    g.A(f"v_and_b32 v{d}, 0xffff0000, v{d}")

def qpart(g, vWQ):
    g.A(f"v_perm_b32 v{vT}, v{vX0}, v{vX0}, s{sSEL0}")
    g.A(f"v_perm_b32 v{vT+1}, v{vX0}, v{vX0}, s{sSEL1}")
    build_A(g, vA, vT); build_A(g, vA+4, vT+1)
    g.A(f"v_lshlrev_b32 v{vXG}, 16, v{vXG}")
    g.A(f"v_lshlrev_b32 v{vGW}, 16, v{vGW}")
    g.A(f"v_mfma_f32_16x16x32_bf16 {v4(vACC)}, {v4(vA)}, {v4(vWQ)}, 0")
    g.A(f"v_mfma_f32_16x16x32_bf16 {v4(vACC)}, {v4(vA+4)}, {v4(vWQ+4)}, {v4(vACC)}")
    g.A(f"v_mul_f32 v{vXG}, v{vXG}, v{vGW}")
    bf16r(g, vXG, vXG)
    rowred(g, "v_add_f32", [vXG])
    crossrow(g, "v_add_f32", vXG, vT)
    g.A(f"s_lshl_b32 s{sT0}, s{sW}, 9")
    g.A(f"v_add_u32 v{vT+2}, s{sT0}, v{vLT}")
    g.A("s_mov_b32 exec_lo, 0x00ff00ff"); g.A("s_mov_b32 exec_hi, 0xff00ff00")
    g.A(f"ds_write_b128 v{vT+2}, {v4(vACC)} offset:{L_QP}")
    g.A("s_mov_b64 exec, 1")
    g.A(f"s_lshl_b32 s{sT0}, s{sW}, 2")
    g.A(f"v_mov_b32 v{vT+3}, s{sT0}")
    g.A(f"ds_write_b32 v{vT+3}, v{vXG} offset:{L_Z}")
    g.A("s_mov_b64 exec, -1")
    g.A("s_waitcnt lgkmcnt(0)")
    g.A("s_barrier")

def maketag(g):
    g.A(f"s_mul_i32 s{sTAG}, s{sE}, 0x9e3779b1")
    g.A(f"s_add_u32 s{sTAG}, s{sTAG}, 0x7f4a7c15")
    g.A(f"s_mul_i32 s{sTAG+1}, s{sTAG}, 0x85ebca6b")
    g.A(f"s_xor_b32 s{sTAG+1}, s{sTAG+1}, 0xc2b2ae35")

def qpublish(g, base):
    g.A(f"v_lshlrev_b32 v{vT}, 2, v{vL}")
    for k in range(9):
        g.A(f"ds_read2st64_b32 {v2(base+2*k)}, v{vT} offset0:{2*k} offset1:{2*k+1}")
    g.A(f"v_lshlrev_b32 v{vT+1}, 3, v{vL}")
    g.A(f"s_lshl_b32 s{sT0}, s{sQI}, 9"); g.A(f"s_add_u32 s{sT0}, s{sT0}, {QB}")
    g.A("s_waitcnt lgkmcnt(0)")
    for k in range(1, 9):
        g.A(f"v_pk_add_f32 {v2(base)}, {v2(base)}, {v2(base+2*k)}")
    g.A(f"v_add_f32 v{base}, v{base}, v{base+1}")
    g.A(f"v_mov_b32 v{base+1}, s{sTAG}")
    g.A(f"buffer_store_dwordx2 {v2(base)}, v{vT+1}, {srd(SWS)}, s{sT0} offen sc1")

def fpublish(g, acc):
    g.A("s_nop 7")
    g.A(f"v_permlane32_swap_b32 v{acc}, v{acc+2}")
    g.A(f"v_permlane32_swap_b32 v{acc+1}, v{acc+3}")
    g.A(f"s_mul_i32 s{sT0}, s{sPI}, 4608"); g.A(f"s_lshl_b32 s{sT1}, s{sW}, 9")
    g.A(f"v_add_f32_dpp v{acc}, v{acc+2}, v{acc} row_ror:8 {DPP}")
    g.A(f"v_add_f32_dpp v{acc+1}, v{acc+3}, v{acc+1} row_ror:8 {DPP}")
    g.A(f"s_add_u32 s{sT0}, s{sT0}, s{sT1}"); g.A(f"s_add_u32 s{sT0}, s{sT0}, {FB}")
    g.A(f"v_mov_b32 v{acc+2}, s{sTAG}"); g.A(f"v_mov_b32 v{acc+3}, s{sTAG+1}")
    g.A("s_mov_b32 exec_lo, 0x00ff00ff"); g.A("s_mov_b32 exec_hi, 0x00ff00ff")
    g.A(f"buffer_store_dwordx4 {v4(acc)}, v{vOFP}, {srd(SWS)}, s{sT0} offen sc1")
    g.A("s_mov_b64 exec, -1")

def gen(**kw):
    g = G(**kw); A = g.A; p = g.p; nt = p["nt"]
    out = [HDR.rstrip("\n")]
    out.append(f"; @launch grid=(256,1,1) block=(576,1,1) lds={LDS_BYTES}")
    out += ['.amdgcn_target "amdgcn-amd-amdhsa--gfx950"', ".text", f".globl {NAME}", ".p2align 8", f".type {NAME},@function", f"{NAME}:"]
    g.stamp(0)
    if p.get("tfail"): A("s_memrealtime s[74:75]")
    A("s_cmp_ge_u32 s2, 256"); A("s_cbranch_scc1 L_end")
    A(f"s_lshr_b32 s{sJ}, s2, 3")
    A(f"s_load_dwordx2 s[{SX}:{SX+1}], s[0:1], 0")
    A(f"s_load_dwordx2 s[{SWQ}:{SWQ+1}], s[0:1], 24")
    A(f"s_cmp_lt_u32 s{sJ}, 22")
    A(f"s_cselect_b32 s{sT0}, 8, 48"); A(f"s_cselect_b32 s{sT1}, 16, 56"); A(f"s_cselect_b32 s{sT2}, 32, 64")
    A(f"s_load_dwordx2 s[{S1}:{S1+1}], s[0:1], s{sT0}")
    A(f"s_load_dwordx2 s[{S2}:{S2+1}], s[0:1], s{sT1}")
    A(f"s_load_dwordx2 s[{S3}:{S3+1}], s[0:1], s{sT2}")
    A(f"s_load_dwordx2 s[{SGW}:{SGW+1}], s[0:1], 72")
    A(f"s_load_dwordx2 s[{SOUT}:{SOUT+1}], s[0:1], 80")
    A(f"s_load_dwordx2 s[{SWS}:{SWS+1}], s[0:1], 96")
    A(f"s_mov_b32 s{S3+2}, 5308416")
    A(f"s_cselect_b32 s{S1+2}, 0x10000000, s{S3+2}")
    A(f"s_mov_b32 s{S2+2}, s{S1+2}")
    A(f"s_cselect_b32 s{S3+2}, 4718592, s{S3+2}")
    A(f"s_mov_b32 s{SX+2}, 1152"); A(f"s_mov_b32 s{SWQ+2}, 4718592"); A(f"s_mov_b32 s{SGW+2}, 1152")
    A(f"s_mov_b32 s{SOUT+2}, 1152"); A(f"s_mov_b32 s{SWS+2}, {(16<<20) if p['stamps'] else WS_USED}")
    for b in (SX, SWQ, SWS, S1, S2, S3, SGW, SOUT): A(f"s_mov_b32 s{b+3}, 0x20000")
    A(f"v_lshrrev_b32 v{vT}, 6, v0")
    A(f"v_and_b32 v{vL}, 63, v0")
    A(f"v_readfirstlane_b32 s{sW}, v{vT}")
    A(f"s_and_b32 s{sXCD}, s2, 7")
    A(f"v_lshrrev_b32 v{vR3}, 3, v{vL}")
    A(f"v_and_b32 v{vT+1}, 7, v{vL}")
    A(f"v_lshlrev_b32 v{vT+2}, 4, v{vT+1}")
    A(f"v_lshl_add_u32 v{vOWQ}, v{vR3}, 14, v{vT+2}")
    A(f"s_lshl_b32 s{sQI}, s{sXCD}, 5"); A(f"s_add_u32 s{sQI}, s{sQI}, s{sJ}")
    A(f"s_bfe_u32 s{sT0}, s{sQI}, 0x20002")
    A(f"s_mul_i32 s{sT0}, s{sT0}, 144"); A(f"s_lshl_b32 s{sT1}, s{sW}, 4"); A(f"s_add_u32 s{sT0}, s{sT0}, s{sT1}")
    A(f"s_lshr_b32 s{sT1}, s{sQI}, 4"); A(f"s_lshl_b32 s{sT1}, s{sT1}, 2"); A(f"s_and_b32 s{sT2}, s{sQI}, 3")
    A(f"s_add_u32 s{sT1}, s{sT1}, s{sT2}"); A(f"s_lshl_b32 s{sT1}, s{sT1}, 7")
    A(f"s_lshl_b32 s{sT2}, s{sT0}, 13"); A(f"s_add_u32 s{sT1}, s{sT1}, s{sT2}")
    A(f"s_add_u32 s{sT2}, s{sT1}, 8192")
    A(f"s_lshl_b32 s{sT0}, s{sT0}, 1")
    A(f"v_lshlrev_b32 v{vT+3}, 2, v{vR3}")
    A(f"v_lshlrev_b32 v{vT+4}, 1, v0")
    vWQ = vV + 40
    A("s_waitcnt lgkmcnt(0)")
    g.stamp(1)
    g.vreset()
    A(f"buffer_load_dwordx4 {v4(vWQ)}, v{vOWQ}, {srd(SWQ)}, s{sT1} offen {nt}"); g.vissue("wq0")
    A(f"buffer_load_dwordx4 {v4(vWQ+4)}, v{vOWQ}, {srd(SWQ)}, s{sT2} offen {nt}"); g.vissue("wq1")
    A(f"buffer_load_dword v{vX0}, v{vT+3}, {srd(SX)}, s{sT0} offen"); g.vissue("x0")
    A(f"buffer_load_ushort v{vXG}, v{vT+4}, {srd(SX)}, 0 offen"); g.vissue("xg")
    A(f"buffer_load_ushort v{vGW}, v{vT+4}, {srd(SGW)}, 0 offen"); g.vissue("gw")
    A(f"s_load_dword s{sE}, s[{SWS}:{SWS+1}], {EPOCH}")
    pre = list(g.vm)
    def common_consts():
        A(f"v_and_b32 v{vT}, 1, v{vL}"); A(f"v_lshlrev_b32 v{vT}, 4, v{vT}")
        A(f"v_mov_b32 v{vT+1}, 0xffff")
        A(f"v_lshlrev_b32 v{vT}, v{vT}, v{vT+1}")
        A(f"v_bfe_u32 v{vT+1}, v{vL}, 1, 2")
        for j in range(4): A(f"v_cmp_eq_u32 s[{sM0+2*j}:{sM0+2*j+1}], {j}, v{vT+1}")
        A(f"s_mov_b32 s{sSEL0}, 0x01000100"); A(f"s_mov_b32 s{sSEL1}, 0x03020302")
        for j in range(4): A(f"v_cndmask_b32 v{vM+j}, 0, v{vT}, s[{sM0+2*j}:{sM0+2*j+1}]")
        A(f"v_lshrrev_b32 v{vT}, 5, v{vL}"); A(f"v_and_b32 v{vT+1}, 7, v{vL}"); A(f"v_and_b32 v{vT+2}, 16, v{vL}")
        A(f"v_lshl_add_u32 v{vLT}, v{vT+1}, 5, v{vT+2}")
        A(f"v_lshlrev_b32 v{vOFP}, 1, v{vLT}")
        A(f"v_lshl_add_u32 v{vOFP}, v{vT}, 4, v{vOFP}")
        A(f"v_lshl_add_u32 v{vLT}, v{vT}, 8, v{vLT}")
        A(f"v_mul_u32_u24 v{vOT}, 1152, v{vR3}")
        A(f"v_lshl_add_u32 v{vOT}, v{vT+1}, 4, v{vOT}")
        A(f"s_mov_b32 s{sSPIN}, {p['spin']}")
    A(f"s_cmp_ge_u32 s{sJ}, 22"); A("s_cbranch_scc1 L_notattn")
    A(f"s_cmp_ge_u32 s{sJ}, 11"); A(f"s_cselect_b32 s{sT0}, 1, 0"); A(f"s_cselect_b32 s{sT1}, 11, 0")
    A(f"s_lshl_b32 s{sHK}, s{sXCD}, 1"); A(f"s_add_u32 s{sHK}, s{sHK}, s{sT0}")
    A(f"s_sub_u32 s{sSLOT}, s{sJ}, s{sT1}")
    A(f"s_cmp_eq_u32 s{sW}, 8"); A("s_cbranch_scc1 L_attn8")
    A(f"s_min_u32 s{sT0}, s{sSLOT}, 7"); A(f"s_mul_i32 s{sT1}, s{sSLOT}, 11"); A(f"s_add_u32 s{sT0}, s{sT0}, s{sT1}")
    A(f"s_lshl_b32 s{sT0}, s{sT0}, 13")
    A(f"s_lshl_b32 s{sKO}, s{sHK}, 24"); A(f"s_add_u32 s{sKO}, s{sKO}, s{sT0}")
    A(f"s_lshl_b32 s{sT0}, s{sW}, 10"); A(f"s_add_u32 s{sKO}, s{sKO}, s{sT0}")
    A(f"s_add_u32 s{sKO}, s{sKO}, {61440*256}")
    A(f"v_bfe_u32 v{vT}, v{vL}, 2, 2"); A(f"v_lshrrev_b32 v{vT+1}, 4, v{vL}"); A(f"v_and_b32 v{vT+2}, 3, v{vL}")
    A(f"v_lshlrev_b32 v{vOK}, 8, v{vT}"); A(f"v_lshl_add_u32 v{vOK}, v{vT+1}, 6, v{vOK}"); A(f"v_lshl_add_u32 v{vOK}, v{vT+2}, 4, v{vOK}")
    A(f"s_mov_b32 s{sT3}, s{sKO}")
    seq = [("K", i) for i in range(12)] + [("V", i) for i in range(12)] + [("O", i) for i in range(3)]
    pos = [0]
    def issue():
        if pos[0] >= len(seq): return
        kind, i = seq[pos[0]]; pos[0] += 1
        if kind == "K":
            off = vOKL if i == 11 else vOK
            A(f"buffer_load_dwordx4 {v4(vK+4*i)}, v{off}, {srd(S1)}, s{sT3} offen {nt}")
            A(f"s_add_u32 s{sT3}, s{sT3}, 8192" if i < 11 else f"s_mov_b32 s{sT3}, s{sKO}")
        elif kind == "V":
            off = vOVL if i == 11 else vOV
            A(f"buffer_load_dwordx4 {v4(vV+4*i)}, v{off}, {srd(S2)}, s{sT3} offen {nt}")
            if i < 11: A(f"s_add_u32 s{sT3}, s{sT3}, 8192")
        else:
            off = vOKL if i == 2 else vOT
            A(f"buffer_load_dwordx4 {v4(vV+4*i)}, v{off}, {srd(S3)}, s{sOO} offen {nt}")
            if i < 2: A(f"s_add_u32 s{sOO}, s{sOO}, {11*9216}")
        g.vissue(f"{kind}{i}")
    WA = p["WA"]
    for _ in range(max(WA-2, 1)): issue()
    common_consts()
    def attn_consts():
        A(f"s_lshl_b32 s{sT0}, s{sHK}, 5"); A(f"s_add_u32 s{sT0}, s{sT0}, s{sSLOT}"); A(f"s_mul_i32 s{sOO}, s{sT0}, 9216")
        A(f"s_lshl_b32 s{sT0}, s{sW}, 7"); A(f"s_add_u32 s{sOO}, s{sOO}, s{sT0}")
        A(f"s_mul_i32 s{sPI}, s{sHK}, 11"); A(f"s_add_u32 s{sPI}, s{sPI}, s{sSLOT}")
    attn_consts()
    A(f"v_lshlrev_b32 v{vOV}, 4, v{vL}")
    A(f"s_cmp_lt_u32 s{sSLOT}, 7"); A(f"s_cselect_b32 s{sT0}, 0, 0x40000000"); A(f"s_cselect_b32 s{sBIAS}, 0, {f2u(-1e30):#x}")
    A(f"v_add_u32 v{vOKL}, s{sT0}, v{vOK}"); A(f"v_add_u32 v{vOVL}, s{sT0}, v{vOV}")
    g.vwait("gw")
    g.stamp(2)
    for _ in range(WA - max(WA-2, 1)): issue()
    qpart(g, vWQ)
    maketag(g)
    while True:
        g.vwait_n(WA-1)
        landed = g.vm[:len(g.vm)-(WA-1)]
        issue()
        if "K11" in landed: break
    g.stamp(3)
    A("s_barrier")
    A(f"v_and_b32 v{vT}, 0xf0, v{vOK}")
    A(f"v_and_b32 v{vT+1}, 1, v{vR3}")
    A(f"v_lshl_add_u32 v{vT}, v{vT+1}, 8, v{vT}")
    A(f"ds_read_b128 {v4(vA)}, v{vT} offset:{L_Q}")
    A(f"s_cmp_lt_u32 s{sSLOT}, 10"); A(f"s_cselect_b32 s{sT0}, 0, 0x40000000")
    A(f"v_add_u32 v{vOKL}, s{sT0}, v{vOT}")
    A(f"s_mov_b32 s{sC}, {f2u(128**-0.5 * 1.4426950408889634):#x}")
    A("s_waitcnt lgkmcnt(0)")
    for i in range(12):
        A(f"v_mfma_f32_16x16x32_bf16 {v4(vK+4*i)}, {v4(vK+4*i)}, {v4(vA)}, 0")
    g.vwait_n(WA-1); issue()
    for i in range(12):
        A(f"v_mov_b32_dpp v{vP+i}, v{vK+4*i} quad_perm:[0,0,0,0] {DPP}")
    for r in (1, 2, 3):
        for i in range(12):
            A(f"v_add_f32_dpp v{vP+i}, v{vK+4*i+r}, v{vP+i} quad_perm:[{r},{r},{r},{r}] {DPP}")
    A(f"v_add_f32 v{vP+11}, s{sBIAS}, v{vP+11}")
    A(f"v_max3_f32 v{vT}, v{vP}, v{vP+1}, v{vP+2}")
    for i in range(3, 11, 2): A(f"v_max3_f32 v{vT}, v{vT}, v{vP+i}, v{vP+i+1}")
    A(f"v_max_f32 v{vT}, v{vT}, v{vP+11}")
    crossrow(g, "v_max_f32", vT, vT+2)
    A(f"v_lshlrev_b32 v{vT+1}, 5, v{vT+1}")
    A(f"s_lshl_b32 s{sT0}, s{sW}, 2")
    A(f"v_add_u32 v{vT+3}, s{sT0}, v{vT+1}")
    A("s_mov_b64 exec, 0x101" if False else "s_mov_b32 exec_lo, 0x101"); A("s_mov_b32 exec_hi, 0")
    A(f"ds_write_b32 v{vT+3}, v{vT} offset:{L_M}")
    A("s_mov_b64 exec, -1")
    g.vwait_n(WA-1); issue()
    A("s_waitcnt lgkmcnt(0)")
    A("s_barrier")
    A(f"ds_read_b128 {v4(vA)}, v{vT+1} offset:{L_M}")
    A(f"ds_read_b128 {v4(vA+4)}, v{vT+1} offset:{L_M+16}")
    A("s_waitcnt lgkmcnt(0)")
    A(f"v_max3_f32 v{vT}, v{vA}, v{vA+1}, v{vA+2}"); A(f"v_max3_f32 v{vT}, v{vT}, v{vA+3}, v{vA+4}")
    A(f"v_max3_f32 v{vT}, v{vT}, v{vA+5}, v{vA+6}"); A(f"v_max_f32 v{vT}, v{vT}, v{vA+7}")
    A(f"v_mul_f32 v{vT}, s{sC}, v{vT}")
    for i in range(12): A(f"v_fma_f32 v{vP+i}, v{vP+i}, s{sC}, -v{vT}")
    for i in range(12): A(f"v_exp_f32 v{vP+i}, v{vP+i}")
    A("s_nop 0")
    A(f"v_add_f32 v{vT+4}, v{vP}, v{vP+1}")
    for i in range(2, 12): A(f"v_add_f32 v{vT+4}, v{vT+4}, v{vP+i}")
    for i in range(12):
        A(f"v_cvt_pk_bf16_f32 v{vP+i}, v{vP+i}, v{vP+i}")
    crossrow(g, "v_add_f32", vT+4, vT+2)
    A("s_mov_b32 exec_lo, 0x101"); A("s_mov_b32 exec_hi, 0")
    A(f"ds_write_b32 v{vT+3}, v{vT+4} offset:{L_L}")
    A("s_mov_b64 exec, -1")
    g.vwait_n(WA-1); issue()
    for i in range(12): build_A(g, vK+4*i, vP+i)
    A(f"v_and_b32 v{vT+5}, 15, v{vL}"); A(f"v_lshlrev_b32 v{vT+5}, 5, v{vT+5}")
    A(f"v_and_b32 v{vT+6}, 16, v{vL}"); A(f"v_add_u32 v{vT+5}, v{vT+5}, v{vT+6}")
    A(f"v_lshrrev_b32 v{vT+6}, 5, v{vL}"); A(f"v_lshl_add_u32 v{vT+5}, v{vT+6}, 9, v{vT+5}")
    A(f"s_lshl_b32 s{sT0}, s{sW}, 10"); A(f"v_add_u32 v{vT+5}, s{sT0}, v{vT+5}")
    g.stamp(4)
    done_v = -1
    for i in range(12):
        g.vwait(f"V{i}")
        A(f"v_mfma_f32_16x16x32_bf16 {v4(vACC)}, {v4(vK+4*i)}, {v4(vV+4*i)}, {'0' if i == 0 else v4(vACC)}")
        infl = len(g.vm) - 1 - g.vm.index(f"V{i}")
        while infl < WA and pos[0] < len(seq):
            kind, k = seq[pos[0]]
            if kind == "O" and k > i: break
            issue(); infl += 1
    while pos[0] < len(seq): issue()
    g.stamp(5)
    A("s_nop 7")
    A(f"ds_write_b128 v{vT+5}, {v4(vACC)} offset:{L_O}")
    A("s_waitcnt lgkmcnt(0)")
    A("s_barrier")
    A(f"s_cmp_lt_u32 s{sW}, 3"); A("s_cbranch_scc1 L_ogather")
    A(f"s_cmp_lt_u32 s{sW}, 6"); A("s_cbranch_scc1 L_barD")
    A(f"s_sub_u32 s{sT0}, s{sW}, 6")
    A(f"s_lshl_b32 s{sT1}, s{sT0}, 5"); A(f"v_mov_b32 v{vT+1}, s{sT1}")
    A(f"ds_read_b128 {v4(vA)}, v{vT+1} offset:{L_L}"); A(f"ds_read_b128 {v4(vA+4)}, v{vT+1} offset:{L_L+16}")
    A(f"ds_read_b128 {v4(vP)}, v{vT+1} offset:{L_M}"); A(f"ds_read_b128 {v4(vP+4)}, v{vT+1} offset:{L_M+16}")
    A(f"s_lshl_b32 s{sT1}, s{sT0}, 9"); A(f"v_lshl_add_u32 v{vT+2}, v{vL}, 3, s{sT1}")
    for w in range(8): A(f"ds_read_b64 {v2(vK+2*w)}, v{vT+2} offset:{L_O+1024*w}")
    A(f"s_lshl_b32 s{sT1}, s{sHK}, 4"); A(f"s_add_u32 s{sT1}, s{sT1}, s{sSLOT}"); A(f"s_lshl_b32 s{sT1}, s{sT1}, 11")
    A(f"s_lshl_b32 s{sT0}, s{sT0}, 10"); A(f"s_add_u32 s{sT1}, s{sT1}, s{sT0}"); A(f"s_add_u32 s{sT1}, s{sT1}, {OB}")
    A("s_waitcnt lgkmcnt(8)")
    A(f"v_pk_add_f32 {v2(vA)}, {v2(vA)}, {v2(vA+2)}"); A(f"v_pk_add_f32 {v2(vA+4)}, {v2(vA+4)}, {v2(vA+6)}")
    A(f"v_max3_f32 v{vT}, v{vP}, v{vP+1}, v{vP+2}")
    A(f"v_pk_add_f32 {v2(vA)}, {v2(vA)}, {v2(vA+4)}")
    A(f"v_max3_f32 v{vT}, v{vT}, v{vP+3}, v{vP+4}")
    A(f"v_add_f32 v{vA}, v{vA}, v{vA+1}")
    A(f"v_max3_f32 v{vT}, v{vT}, v{vP+5}, v{vP+6}"); A(f"v_max_f32 v{vT}, v{vT}, v{vP+7}")
    A(f"v_rcp_f32 v{vA+2}, v{vA}"); A(f"v_log_f32 v{vA+4}, v{vA}")
    A(f"v_mov_b32 v{vACC+3}, s{sTAG}")
    A(f"v_fma_f32 v{vACC+2}, v{vT}, s{sC}, v{vA+4}")
    A("s_waitcnt lgkmcnt(0)")
    for a, b in ((0,1),(2,3),(4,5),(6,7),(0,2),(4,6),(0,4)):
        A(f"v_pk_add_f32 {v2(vK+2*a)}, {v2(vK+2*a)}, {v2(vK+2*b)}")
    A(f"v_mul_f32 v{vACC}, v{vK}, v{vA+2}"); A(f"v_mul_f32 v{vACC+1}, v{vK+1}, v{vA+2}")
    A(f"buffer_store_dwordx4 {v4(vACC)}, v{vOV}, {srd(SWS)}, s{sT1} offen sc1")
    g.stamp(6)
    A("s_branch L_barD")
    g.lab("L_ogather")
    A(f"s_mul_i32 s{sT0}, s{sW}, 11"); A(f"s_add_u32 s{sT0}, s{sT0}, s{sSLOT}")
    A(f"v_and_b32 v{vT}, 15, v{vL}"); A(f"v_lshrrev_b32 v{vT+1}, 4, v{vL}")
    A(f"v_lshlrev_b32 v{vT+2}, 11, v{vT}"); A(f"v_lshl_add_u32 v{vT+2}, v{vT+1}, 4, v{vT+2}")
    A(f"s_lshl_b32 s{sT1}, s{sHK}, 15"); A(f"s_lshl_b32 s{sT2}, s{sT0}, 6"); A(f"s_add_u32 s{sT1}, s{sT1}, s{sT2}"); A(f"s_add_u32 s{sT1}, s{sT1}, {OB}")
    A(f"v_mov_b32 v{vA}, 0"); A(f"v_mov_b32 v{vA+1}, 0"); A(f"v_mov_b32 v{vA+2}, {f2u(-1e30):#x}")
    A(f"s_lshl_b32 s{sT2}, s{sW}, 5"); A(f"v_lshl_add_u32 v{vT+3}, v{vT+1}, 3, s{sT2}")
    A(f"s_cmp_ge_u32 s{sT0}, 32"); A("s_cbranch_scc1 L_owrite")
    A("s_mov_b32 exec_lo, 0x07ff07ff"); A("s_mov_b32 exec_hi, 0x07ff07ff")
    g.lab("L_opoll")
    A(f"buffer_load_dwordx4 {v4(vA)}, v{vT+2}, {srd(SWS)}, s{sT1} offen sc1")
    A(f"s_sub_u32 s{sSPIN}, s{sSPIN}, 1"); A("s_cbranch_scc1 L_opoll_end")
    A("s_waitcnt vmcnt(0)")
    A(f"v_cmpx_ne_u32 vcc, s{sTAG}, v{vA+3}")
    A("s_cbranch_execnz L_opoll")
    g.lab("L_opoll_end")
    A("s_mov_b64 exec, -1")
    g.stamp(6)
    A(f"v_mov_b32 v{vT+4}, v{vA+2}")
    A("s_nop 3")
    rowred(g, "v_max_f32", [vT+4])
    A(f"v_sub_f32 v{vA+2}, v{vA+2}, v{vT+4}")
    A(f"v_exp_f32 v{vA+2}, v{vA+2}")
    A("s_nop 0")
    A(f"v_mul_f32 v{vA}, v{vA}, v{vA+2}"); A(f"v_mul_f32 v{vA+1}, v{vA+1}, v{vA+2}")
    A("s_nop 0")
    rowred(g, "v_add_f32", [vA+2, vA, vA+1])
    A(f"v_rcp_f32 v{vA+2}, v{vA+2}")
    A("s_nop 0")
    A(f"v_mul_f32 v{vA}, v{vA}, v{vA+2}"); A(f"v_mul_f32 v{vA+1}, v{vA+1}, v{vA+2}")
    A(f"v_cvt_pk_bf16_f32 v{vA}, v{vA}, v{vA}"); A(f"v_cvt_pk_bf16_f32 v{vA+1}, v{vA+1}, v{vA+1}")
    g.lab("L_owrite")
    A("s_mov_b32 exec_lo, 0x00010001"); A("s_mov_b32 exec_hi, 0x00010001")
    A(f"ds_write_b64 v{vT+3}, {v2(vA)} offset:{L_C}")
    A("s_mov_b64 exec, -1")
    A("s_waitcnt lgkmcnt(0)")
    g.lab("L_barD")
    A(f"v_lshlrev_b32 v{vT}, 2, v{vR3}")
    A("s_barrier")
    for i in range(3): A(f"ds_read_b32 v{vP+i}, v{vT} offset:{L_C+32*i}")
    A("s_waitcnt lgkmcnt(0)")
    for i in range(3): build_A(g, vK+4*i, vP+i)
    A("s_waitcnt vmcnt(0)")
    A("s_nop 0")
    for i in range(3):
        A(f"v_mfma_f32_16x16x32_bf16 {v4(vACC)}, {v4(vK+4*i)}, {v4(vV+4*i)}, {'0' if i == 0 else v4(vACC)}")
    fpublish(g, vACC)
    g.stamp(7)
    A(f"s_cmp_lg_u32 s{sW}, 8"); A("s_cbranch_scc1 L_fin")
    A(f"s_cmp_ge_u32 s{sJ}, 9"); A("s_cbranch_scc1 L_fin")
    A(f"s_mul_i32 s{sU}, s{sXCD}, 9"); A(f"s_add_u32 s{sU}, s{sU}, s{sJ}")
    A(f"v_and_b32 v{vT}, 15, v{vL}"); A(f"v_lshrrev_b32 v{vT+1}, 4, v{vL}")
    A(f"v_mul_u32_u24 v{vT+2}, 4608, v{vT}"); A(f"v_lshl_add_u32 v{vT+2}, v{vT+1}, 4, v{vT+2}")
    A(f"v_cmp_gt_u32 vcc, 8, v{vT}")
    A(f"v_mov_b32 v{vT+4}, 0x40000000")
    A(f"s_lshl_b32 s{sT0}, s{sU}, 6"); A(f"s_add_u32 s{sT0}, s{sT0}, {FB}")
    A(f"v_cndmask_b32 v{vT+3}, v{vT+4}, v{vT+2}, vcc")
    A(f"s_mov_b64 s[{sM0}:{sM0+1}], vcc")
    A(f"v_mov_b32 v{vT+5}, 0")
    A(f"ds_read_b128 {v4(vA)}, v{vT+5} offset:{L_Z}"); A(f"ds_read_b128 {v4(vA+4)}, v{vT+5} offset:{L_Z+16}"); A(f"ds_read_b32 v{vT+6}, v{vT+5} offset:{L_Z+32}")
    g.lab("L_fpoll")
    A(f"s_mov_b32 s{sT1}, s{sT0}")
    for n in range(16):
        off = vT+3 if n == 15 else vT+2
        A(f"buffer_load_dwordx4 {v4(vK+4*n)}, v{off}, {srd(SWS)}, s{sT1} offen sc1")
        if n < 15: A(f"s_add_u32 s{sT1}, s{sT1}, {16*4608}")
    A(f"s_sub_u32 s{sSPIN}, s{sSPIN}, 1"); A("s_cbranch_scc1 L_fpoll_end")
    A(f"s_mov_b64 s[{sEX}:{sEX+1}], 0")
    for n in range(16):
        A(f"s_waitcnt vmcnt({15-n})")
        A(f"v_cmp_ne_u64 vcc, s[{sTAG}:{sTAG+1}], {v2(vK+4*n+2)}")
        if n == 15: A(f"s_and_b64 vcc, vcc, s[{sM0}:{sM0+1}]")
        A(f"s_or_b64 s[{sEX}:{sEX+1}], s[{sEX}:{sEX+1}], vcc")
    A(f"s_mov_b64 exec, s[{sEX}:{sEX+1}]")
    A("s_cbranch_execnz L_fpoll")
    g.lab("L_fpoll_end")
    A("s_mov_b64 exec, -1")
    g.stamp(8)
    A("s_waitcnt lgkmcnt(0)")
    for a, b in ((0,1),(2,3),(4,5),(6,7),(8,9),(11,12),(13,14),(0,2),(4,6),(8,10),(11,13),(0,4),(11,15),(0,8)):
        A(f"v_pk_add_f32 {v2(vK+4*a)}, {v2(vK+4*a)}, {v2(vK+4*b)}")
    ra, rb = vK, vK+44
    A(f"v_pk_add_f32 {v2(vA)}, {v2(vA)}, {v2(vA+2)}"); A(f"v_pk_add_f32 {v2(vA+4)}, {v2(vA+4)}, {v2(vA+6)}")
    rowred(g, "v_add_f32", [ra, ra+1, rb, rb+1])
    A(f"v_pk_add_f32 {v2(vA)}, {v2(vA)}, {v2(vA+4)}")
    A(f"v_add_f32 v{vA}, v{vA}, v{vA+1}"); A(f"v_add_f32 v{vA}, v{vA}, v{vT+6}")
    bf16r(g, vA, vA)
    A(f"v_mul_f32 v{vA}, {f2u(-1.4426950408889634):#x}, v{vA}")
    A(f"v_exp_f32 v{vA}, v{vA}"); A("s_nop 0")
    A(f"v_add_f32 v{vA}, 1.0, v{vA}"); A(f"v_rcp_f32 v{vA}, v{vA}"); A("s_nop 0")
    bf16r(g, vA, vA)
    A(f"v_sub_f32 v{vA+1}, 1.0, v{vA}"); bf16r(g, vA+1, vA+1)
    for x in (ra, ra+1, rb, rb+1): bf16r(g, x, x)
    A(f"v_mul_f32 v{ra}, v{ra}, v{vA}"); A(f"v_mul_f32 v{ra+1}, v{ra+1}, v{vA}")
    A(f"v_mul_f32 v{rb}, v{rb}, v{vA+1}"); A(f"v_mul_f32 v{rb+1}, v{rb+1}, v{vA+1}")
    for x in (ra, ra+1, rb, rb+1): bf16r(g, x, x)
    A(f"v_add_f32 v{ra}, v{ra}, v{rb}"); A(f"v_add_f32 v{ra+1}, v{ra+1}, v{rb+1}")
    A(f"v_cvt_pk_bf16_f32 v{ra}, v{ra}, v{ra+1}")
    if p.get("tfail"):
        op, T = p["tfail"]
        A("s_memrealtime s[76:77]"); A("s_waitcnt lgkmcnt(0)")
        A("s_sub_u32 s76, s76, s74"); A(f"s_cmp_{op}_u32 s76, {T}"); A("s_cbranch_scc0 L_tok")
        A(f"v_mov_b32 v{ra}, 0x7fc07fc0")
        g.lab("L_tok")
    A(f"v_lshlrev_b32 v{vT+1}, 2, v{vT+1}"); A(f"s_lshl_b32 s{sT0}, s{sU}, 4")
    A("s_mov_b32 exec_lo, 0x00010001"); A("s_mov_b32 exec_hi, 0x00010001")
    A(f"buffer_store_dword v{ra}, v{vT+1}, {srd(SOUT)}, s{sT0} offen")
    A(f"s_cmp_lg_u32 s{sU}, 0"); A("s_cbranch_scc1 L_fin")
    A("s_mov_b64 exec, 1")
    A(f"v_mov_b32 v{vT+6}, s{sTAG}")
    A(f"buffer_store_dword v{vT+6}, v{vT+5}, {srd(SWS)}, 0 offen offset:{EPOCH}")
    A("s_branch L_fin")
    g.lab("L_attn8")
    g.vm = list(pre)
    common_consts(); attn_consts()
    A(f"v_lshlrev_b32 v{vOV}, 4, v{vL}")
    A(f"s_cmp_lt_u32 s{sSLOT}, 10"); A(f"s_cselect_b32 s{sT0}, 0, 0x40000000")
    A(f"v_add_u32 v{vOKL}, s{sT0}, v{vOT}")
    g.vwait("gw")
    g.stamp(2)
    qpart(g, vWQ); maketag(g)
    qpublish(g, vK)
    g.stamp(3)
    A(f"s_lshl_b32 s{sT0}, s{sHK}, 13"); A(f"s_add_u32 s{sT0}, s{sT0}, {QB}"); A(f"s_add_u32 s{sT1}, s{sT0}, 4096")
    g.lab("L_qpoll")
    A(f"s_sleep {p['qsleep']}")
    for rg in range(4):
        for z in range(2):
            o = rg*2048 + z*1024
            A(f"buffer_load_dwordx4 {v4(vK+8*rg+4*z)}, v{vOV}, {srd(SWS)}, s{sT1 if o >= 4096 else sT0} offen offset:{o & 4095} sc1")
    A(f"s_sub_u32 s{sSPIN}, s{sSPIN}, 1"); A("s_cbranch_scc1 L_qpoll_end")
    A("s_waitcnt vmcnt(0)")
    tags = [vK+4*n+k for n in range(8) for k in (1, 3)]
    A(f"v_min_u32 v{vT}, v{tags[0]}, v{tags[1]}"); A(f"v_max_u32 v{vT+1}, v{tags[0]}, v{tags[1]}")
    for k in range(2, 16, 2):
        A(f"v_min3_u32 v{vT}, v{vT}, v{tags[k]}, v{tags[k+1]}"); A(f"v_max3_u32 v{vT+1}, v{vT+1}, v{tags[k]}, v{tags[k+1]}")
    A(f"v_cmp_ne_u32 vcc, s{sTAG}, v{vT}"); A(f"v_cmp_ne_u32 s[{sEX}:{sEX+1}], s{sTAG}, v{vT+1}")
    A("s_nop 1")
    A(f"s_or_b64 vcc, vcc, s[{sEX}:{sEX+1}]")
    A("s_cbranch_scc1 L_qpoll")
    g.lab("L_qpoll_end")
    for z in range(2):
        for k in (0, 2):
            b = vK+4*z+k
            A(f"v_add_f32 v{b}, v{b}, v{b+8}"); A(f"v_add_f32 v{b+16}, v{b+16}, v{b+24}"); A(f"v_add_f32 v{b}, v{b}, v{b+16}")
        A(f"v_cvt_pk_bf16_f32 v{vK+4*z}, v{vK+4*z}, v{vK+4*z+2}")
    A(f"v_lshlrev_b32 v{vT}, 2, v{vL}")
    A(f"ds_write_b32 v{vT}, v{vK} offset:{L_Q}"); A(f"ds_write_b32 v{vT}, v{vK+4} offset:{L_Q+256}")
    A("s_waitcnt lgkmcnt(0)")
    g.stamp(4)
    A("s_barrier")
    A("s_barrier")
    for i in range(3):
        A(f"buffer_load_dwordx4 {v4(vV+4*i)}, v{vOKL if i == 2 else vOT}, {srd(S3)}, s{sOO} offen {nt}")
        if i < 2: A(f"s_add_u32 s{sOO}, s{sOO}, {11*9216}")
    A("s_barrier")
    g.stamp(5)
    A("s_branch L_barD")
    g.lab("L_notattn")
    g.vm = list(pre)
    A(f"s_cmp_eq_u32 s{sJ}, 31"); A("s_cbranch_scc1 L_spare")
    A(f"s_mul_i32 s{sU}, s{sXCD}, 9"); A(f"s_add_u32 s{sU}, s{sU}, s{sJ}"); A(f"s_sub_u32 s{sU}, s{sU}, 22")
    A(f"v_lshlrev_b32 v{vT}, 4, v{vR3}"); A(f"s_lshl_b32 s{sT0}, s{sW}, 7")
    A(f"buffer_load_dwordx4 {v4(vX)}, v{vT}, {srd(SX)}, s{sT0} offen"); g.vissue("xf")
    A(f"s_mov_b32 s{sT0}, {8*9216}"); A(f"v_mul_lo_u32 v{vOK}, v{vR3}, s{sT0}")
    A(f"v_and_b32 v{vT+1}, 7, v{vL}"); A(f"v_lshl_add_u32 v{vOK}, v{vT+1}, 4, v{vOK}")
    A(f"s_mul_i32 s{sKO}, s{sW}, {64*9216}"); A(f"s_lshl_b32 s{sT0}, s{sU}, 7"); A(f"s_add_u32 s{sKO}, s{sKO}, s{sT0}")
    fseq = []
    for t in range(8): fseq += [("G", t), ("U", t)]
    fseq += [("D", t) for t in range(8)]
    if p.get("forder"): fseq = p["forder"]
    fpos = [0]
    vG = vK
    def greg(kind, t):
        return {"G": vK+4*t, "U": vK+32+4*t, "D": vV+16+4*t}[kind]
    def fissue():
        if fpos[0] >= len(fseq): return
        kind, t = fseq[fpos[0]]; fpos[0] += 1
        if kind == "G": A(f"buffer_load_dwordx4 {v4(greg(kind,t))}, v{vOK}, {srd(S1)}, s{sKO} offen {nt}")
        elif kind == "U":
            A(f"buffer_load_dwordx4 {v4(greg(kind,t))}, v{vOK}, {srd(S2)}, s{sKO} offen {nt}")
            A(f"s_add_u32 s{sKO}, s{sKO}, 9216")
        else:
            A(f"buffer_load_dwordx4 {v4(greg(kind,t))}, v{vOT}, {srd(S3)}, s{sOO} offen {nt}")
            A(f"s_add_u32 s{sOO}, s{sOO}, 9216")
        g.vissue(f"{kind}{t}")
    WF = p["WF"]; WF2 = p.get("WF2", WF); wf2_from = p.get("wf2_from", 99)
    common_consts()
    A(f"s_mul_i32 s{sOO}, s{sU}, {64*1152}"); A(f"s_lshl_b32 s{sT0}, s{sW}, 7"); A(f"s_add_u32 s{sOO}, s{sOO}, s{sT0}")
    A(f"s_add_u32 s{sPI}, s{sU}, 176")
    g.vwait("xf")
    g.stamp(2)
    for _ in range(WF): fissue()
    qpart(g, vWQ); maketag(g)
    A(f"s_cmp_lg_u32 s{sW}, 8"); A("s_cbranch_scc1 L_fnopub")
    qpublish(g, vV+16)
    A("s_waitcnt vmcnt(0)")
    g.lab("L_fnopub")
    g.stamp(3)
    ng = 0
    for idx, (kind, t) in enumerate(fseq):
        if kind == "D":
            if ng == 16: break
            g.vwait(f"D{t}")
        else:
            if kind == "G":
                A(f"v_perm_b32 v{vT}, v{vX+t//2}, v{vX+t//2}, s{sSEL1 if t & 1 else sSEL0}")
                build_A(g, vA+4*(t & 1), vT)
            g.vwait(f"{kind}{t}")
        W = WF2 if idx >= wf2_from else WF
        infl = len(g.vm) - 1 - g.vm.index(f"{kind}{t}")
        k = 0
        while infl < W and fpos[0] < len(fseq): fissue(); infl += 1; k += 1
        if kind != "D":
            if k == 0: A("s_nop 0")
            acc = vACC if kind == "G" else vACC+4
            A(f"v_mfma_f32_16x16x32_bf16 {v4(acc)}, {v4(vA+4*(t&1))}, {v4(greg(kind,t))}, {'0' if t == 0 else v4(acc)}")
            ng += 1
    while fpos[0] < len(fseq): fissue()
    g.stamp(4)
    A(f"s_lshl_b32 s{sT0}, s{sW}, 10"); A(f"v_add_u32 v{vT+2}, s{sT0}, v{vLT}")
    A("s_mov_b32 exec_lo, 0x00ff00ff"); A("s_mov_b32 exec_hi, 0xff00ff00")
    A("s_nop 4")
    A(f"ds_write_b128 v{vT+2}, {v4(vACC)} offset:{L_O}")
    A(f"ds_write_b128 v{vT+2}, {v4(vACC+4)} offset:{L_O+512}")
    A("s_mov_b64 exec, -1")
    A(f"v_lshlrev_b32 v{vT}, 4, v{vL}")
    A("s_waitcnt lgkmcnt(0)")
    A("s_barrier")
    for w in range(9): A(f"ds_read_b128 {v4(vK+4*w)}, v{vT} offset:{L_O+1024*w}")
    A("s_waitcnt lgkmcnt(0)")
    for a, b in ((0,1),(2,3),(4,5),(6,7),(0,2),(4,6),(0,4),(0,8)):
        A(f"v_pk_add_f32 {v2(vK+4*a)}, {v2(vK+4*a)}, {v2(vK+4*b)}")
        A(f"v_pk_add_f32 {v2(vK+4*a+2)}, {v2(vK+4*a+2)}, {v2(vK+4*b+2)}")
    for r in range(4): A(f"v_mov_b32 v{vK+4+r}, v{vK+r}")
    A("s_nop 0")
    for r in range(4): A(f"v_permlane16_swap_b32 v{vK+r}, v{vK+4+r}")
    A("s_nop 0")
    for r in range(4): A(f"v_add_f32 v{vK+r}, v{vK+r}, v{vK+4+r}")
    for r in range(4): bf16r(g, vK+r, vK+r)
    for r in range(4): A(f"v_mov_b32 v{vK+4+r}, v{vK+r}")
    A("s_nop 0")
    for r in range(4): A(f"v_permlane32_swap_b32 v{vK+r}, v{vK+4+r}")
    A("s_nop 0")
    for r in range(4): A(f"v_mul_f32 v{vK+8+r}, {f2u(-1.4426950408889634):#x}, v{vK+r}")
    for r in range(4): A(f"v_exp_f32 v{vK+8+r}, v{vK+8+r}")
    for r in range(4): A(f"v_add_f32 v{vK+8+r}, 1.0, v{vK+8+r}")
    for r in range(4): A(f"v_rcp_f32 v{vK+8+r}, v{vK+8+r}")
    for r in range(4): A(f"v_mul_f32 v{vK+r}, v{vK+r}, v{vK+8+r}")
    for r in range(4): bf16r(g, vK+r, vK+r)
    for r in range(4): A(f"v_mul_f32 v{vK+r}, v{vK+r}, v{vK+4+r}")
    for r in range(4): A(f"v_cvt_pk_bf16_f32 v{vK+r}, v{vK+r}, v{vK+r}")
    A(f"s_lshl_b32 s{sT0}, s{sW}, 8")
    A(f"v_add_u32 v{vT+1}, s{sT0}, v{vT}")
    A(f"v_lshl_add_u32 v{vT+2}, v{vR3}, 2, s{sT0}")
    A("s_mov_b64 exec, 0xffff" if False else "s_mov_b32 exec_lo, 0xffff"); A("s_mov_b32 exec_hi, 0")
    A(f"ds_write_b128 v{vT+1}, {v4(vK)} offset:{L_H}")
    A("s_mov_b64 exec, -1")
    A("s_waitcnt lgkmcnt(0)")
    for t in range(8): A(f"ds_read_b32 v{vP+t}, v{vT+2} offset:{L_H+32*t}")
    A("s_waitcnt lgkmcnt(0)")
    for t in range(8): build_A(g, vK+16+4*t, vP+t)
    g.stamp(5)
    for t in range(8):
        g.vwait(f"D{t}")
        A(f"v_mfma_f32_16x16x32_bf16 {v4(vACC)}, {v4(vK+16+4*t)}, {v4(greg('D',t))}, {'0' if t == 0 else v4(vACC)}")
    g.stamp(6)
    fpublish(g, vACC)
    g.stamp(7)
    A("s_branch L_fin")
    g.lab("L_spare")
    g.vm = list(pre)
    common_consts()
    g.vwait("gw")
    qpart(g, vWQ); maketag(g)
    A(f"s_cmp_lg_u32 s{sW}, 8"); A("s_cbranch_scc1 L_fin")
    qpublish(g, vK)
    g.lab("L_fin")
    if p["stamps"]:
        A("s_mov_b64 exec, -1")
        A("s_waitcnt vmcnt(0)")
        g.stamp(9)
        A("s_waitcnt lgkmcnt(0)")
        A(f"s_lshl_b32 s{sT0}, s2, 4"); A(f"s_add_u32 s{sT0}, s{sT0}, s{sW}"); A(f"s_lshl_b32 s{sT0}, s{sT0}, 6"); A(f"s_add_u32 s{sT0}, s{sT0}, {STB}")
        for k in range(10): A(f"v_mov_b32 v{vK+k}, s{80+2*k}")
        A(f"v_mov_b32 v{vK+10}, s{sSPIN}"); A(f"v_mov_b32 v{vK+11}, s{sTAG}")
        A(f"v_mov_b32 v{vT}, 0"); A("s_mov_b64 exec, 1")
        for k in range(3): A(f"buffer_store_dwordx4 {v4(vK+4*k)}, v{vT}, {srd(SWS)}, s{sT0} offen offset:{16*k}")
        if p.get("dbg"):
            A(f"s_load_dwordx2 s[{SX}:{SX+1}], s[0:1], 88"); A(f"s_mov_b32 s{SX+2}, 256"); A("s_waitcnt lgkmcnt(0)")
            for k in range(1, 10): A(f"v_subrev_u32 v{vK+k}, s80, v{vK+k}")
            A(f"s_cmp_lg_u32 s2, 0"); A("s_cbranch_scc1 L_dbg2")
            A(f"s_cmp_lg_u32 s{sW}, 8"); A("s_cbranch_scc1 L_dbg3")
            A(f"buffer_store_dwordx4 {v4(vK)}, v{vT}, {srd(SX)}, 0 offen"); A(f"buffer_store_dwordx2 {v2(vK+4)}, v{vT}, {srd(SX)}, 0 offen offset:16")
            A(f"buffer_store_dword v{vK+7}, v{vT}, {srd(SX)}, 0 offen offset:24"); A(f"buffer_store_dwordx2 {v2(vK+8)}, v{vT}, {srd(SX)}, 0 offen offset:28")
            g.lab("L_dbg3")
            A(f"s_cmp_lg_u32 s{sW}, 0"); A("s_cbranch_scc1 L_end")
            A(f"buffer_store_dword v{vK+3}, v{vT}, {srd(SX)}, 0 offen offset:36"); A(f"buffer_store_dwordx2 {v2(vK+4)}, v{vT}, {srd(SX)}, 0 offen offset:40")
            A("s_branch L_end")
            g.lab("L_dbg2")
            A(f"s_cmp_lg_u32 s2, 176"); A("s_cbranch_scc1 L_end")
            A(f"s_cmp_lg_u32 s{sW}, 0"); A("s_cbranch_scc1 L_end")
            A(f"buffer_store_dwordx4 {v4(vK+4)}, v{vT}, {srd(SX)}, 0 offen offset:48")
    g.lab("L_end")
    A("s_endpgm")
    out += g.L
    out += ['.section .rodata,"a"', ".p2align 6", f".amdhsa_kernel {NAME}", f"  .amdhsa_next_free_vgpr {NV}",
            f"  .amdhsa_next_free_sgpr {100 if p['stamps'] else 80}", f"  .amdhsa_accum_offset {NV}", "  .amdhsa_group_segment_fixed_size 0",
            "  .amdhsa_kernarg_size 104", "  .amdhsa_user_sgpr_count 2", "  .amdhsa_user_sgpr_kernarg_segment_ptr 1",
            "  .amdhsa_system_sgpr_workgroup_id_x 1", ".end_amdhsa_kernel"]
    return "\n".join(out) + "\n"

if __name__ == "__main__":
    kw = {}
    for a in sys.argv[2:]:
        k, v = a.split("="); kw[k] = eval(v)
    open(sys.argv[1], "w").write(gen(**kw))
```

```python
import sys, struct
NAME = "gated_mix__sliding_block_cached__swiglu_ffn__decode_kernel"
HDR = open("gated_mix__sliding_block_cached__swiglu_ffn__decode.s.ref").read().split("; Override launch")[0]

def f2u(f): return struct.unpack("<I", struct.pack("<f", f))[0]

EPOCH = 0
QB = 4096
OB = QB + 256*512
FB = OB + 256*2048
WS_USED = FB + 256*4608
STB = 8 << 20
L_QP = 0
L_Q = 4608
L_M = 5120
L_L = 5184
L_Z = 5248
L_C = 5312
L_O = 5632
L_H = L_O + 9*1024
LDS_BYTES = L_H + 9*256

class G:
    def __init__(s, **kw):
        s.L = []; s.p = dict(WA=4, WF=2, stamps=False, nt="nt", qsleep=24, emu=False, spin=200000)
        s.p.update(kw); s.vm = []; s.nst = 0
    def A(s, x): s.L.append("    " + x)
    def lab(s, x): s.L.append(x + ":")
    def vreset(s): s.vm = []
    def vissue(s, name): s.vm.append(name)
    def vwait(s, name):
        i = s.vm.index(name); n = len(s.vm) - 1 - i
        s.A(f"s_waitcnt vmcnt({n})")
    def vwait_n(s, n): s.A(f"s_waitcnt vmcnt({n})")
    def stamp(s, k):
        if s.p["stamps"]: s.A(f"s_memrealtime s[{80+2*k}:{81+2*k}]")

sW=3
SX=8; SWQ=12; SWS=16; S1=20; S2=24; S3=28; SGW=32; SOUT=36
sE=40; sTAG=42
sXCD=44; sJ=45; sHK=46; sSLOT=47; sQI=48; sT0=49; sT1=50; sT2=51; sT3=52; sBIAS=53; sSPIN=54
sKO=55; sOO=56; sSEL0=57; sSEL1=58; sPI=59; sC=60; sU=61
sM0=62
sEX=70
def srd(b): return f"s[{b}:{b+3}]"
vL=1; vM=2
vOT=6; vOK=7; vOV=8; vOWQ=9; vLT=10; vX0=11; vX=12
vXG=16; vGW=17; vT=18
vA=32
vACC=40
vP=48
vOKL=60; vOVL=61; vR3=62; vOFP=63
vK=64
vV=112
NV=160
def v4(b): return f"v[{b}:{b+3}]"
def v2(b): return f"v[{b}:{b+1}]"

DPP = "row_mask:0xf bank_mask:0xf"

def build_A(g, dst, rep):
    for j in range(4): g.A(f"v_and_b32 v{dst+j}, v{rep}, v{vM+j}")

def rowred(g, op, regs):
    need = max(0, 2 - (len(regs) - 1))
    for r in (8, 4, 2, 1):
        g.A(f"s_nop {max(need-1,0)}" if need else "s_nop 0") if need else None
        for x in regs: g.A(f"{op}_dpp v{x}, v{x}, v{x} row_ror:{r} {DPP}")

def crossrow(g, op, x, t):
    for sw in ("v_permlane16_swap_b32", "v_permlane32_swap_b32"):
        g.A(f"v_mov_b32 v{t}, v{x}")
        g.A("s_nop 1")
        g.A(f"{sw} v{x}, v{t}")
        g.A("s_nop 1")
        g.A(f"{op} v{x}, v{x}, v{t}")

def bf16r(g, d, s_):
    g.A(f"v_cvt_pk_bf16_f32 v{d}, v{s_}, v{s_}")
    g.A(f"v_and_b32 v{d}, 0xffff0000, v{d}")

def qpart(g, vWQ):
    g.A(f"v_perm_b32 v{vT}, v{vX0}, v{vX0}, s{sSEL0}")
    g.A(f"v_perm_b32 v{vT+1}, v{vX0}, v{vX0}, s{sSEL1}")
    build_A(g, vA, vT); build_A(g, vA+4, vT+1)
    g.A(f"v_lshlrev_b32 v{vXG}, 16, v{vXG}")
    g.A(f"v_lshlrev_b32 v{vGW}, 16, v{vGW}")
    g.A(f"v_mfma_f32_16x16x32_bf16 {v4(vACC)}, {v4(vA)}, {v4(vWQ)}, 0")
    g.A(f"v_mfma_f32_16x16x32_bf16 {v4(vACC)}, {v4(vA+4)}, {v4(vWQ+4)}, {v4(vACC)}")
    g.A(f"v_mul_f32 v{vXG}, v{vXG}, v{vGW}")
    bf16r(g, vXG, vXG)
    rowred(g, "v_add_f32", [vXG])
    crossrow(g, "v_add_f32", vXG, vT)
    g.A(f"s_lshl_b32 s{sT0}, s{sW}, 9")
    g.A(f"v_add_u32 v{vT+2}, s{sT0}, v{vLT}")
    g.A("s_mov_b32 exec_lo, 0x00ff00ff"); g.A("s_mov_b32 exec_hi, 0xff00ff00")
    g.A(f"ds_write_b128 v{vT+2}, {v4(vACC)} offset:{L_QP}")
    g.A("s_mov_b64 exec, 1")
    g.A(f"s_lshl_b32 s{sT0}, s{sW}, 2")
    g.A(f"v_mov_b32 v{vT+3}, s{sT0}")
    g.A(f"ds_write_b32 v{vT+3}, v{vXG} offset:{L_Z}")
    g.A("s_mov_b64 exec, -1")
    g.A("s_waitcnt lgkmcnt(0)")
    g.A("s_barrier")

def maketag(g):
    g.A(f"s_mul_i32 s{sTAG}, s{sE}, 0x9e3779b1")
    g.A(f"s_add_u32 s{sTAG}, s{sTAG}, 0x7f4a7c15")
    g.A(f"s_mul_i32 s{sTAG+1}, s{sTAG}, 0x85ebca6b")
    g.A(f"s_xor_b32 s{sTAG+1}, s{sTAG+1}, 0xc2b2ae35")

def qpublish(g, base):
    g.A(f"v_lshlrev_b32 v{vT}, 2, v{vL}")
    for k in range(9):
        g.A(f"ds_read2st64_b32 {v2(base+2*k)}, v{vT} offset0:{2*k} offset1:{2*k+1}")
    g.A(f"v_lshlrev_b32 v{vT+1}, 3, v{vL}")
    g.A(f"s_lshl_b32 s{sT0}, s{sQI}, 9"); g.A(f"s_add_u32 s{sT0}, s{sT0}, {QB}")
    g.A("s_waitcnt lgkmcnt(0)")
    for k in range(1, 9):
        g.A(f"v_pk_add_f32 {v2(base)}, {v2(base)}, {v2(base+2*k)}")
    g.A(f"v_add_f32 v{base}, v{base}, v{base+1}")
    g.A(f"v_mov_b32 v{base+1}, s{sTAG}")
    g.A(f"buffer_store_dwordx2 {v2(base)}, v{vT+1}, {srd(SWS)}, s{sT0} offen sc1")

def fpublish(g, acc):
    g.A("s_nop 7")
    g.A(f"v_permlane32_swap_b32 v{acc}, v{acc+2}")
    g.A(f"v_permlane32_swap_b32 v{acc+1}, v{acc+3}")
    g.A(f"s_mul_i32 s{sT0}, s{sPI}, 4608"); g.A(f"s_lshl_b32 s{sT1}, s{sW}, 9")
    g.A(f"v_add_f32_dpp v{acc}, v{acc+2}, v{acc} row_ror:8 {DPP}")
    g.A(f"v_add_f32_dpp v{acc+1}, v{acc+3}, v{acc+1} row_ror:8 {DPP}")
    g.A(f"s_add_u32 s{sT0}, s{sT0}, s{sT1}"); g.A(f"s_add_u32 s{sT0}, s{sT0}, {FB}")
    g.A(f"v_mov_b32 v{acc+2}, s{sTAG}"); g.A(f"v_mov_b32 v{acc+3}, s{sTAG+1}")
    g.A("s_mov_b32 exec_lo, 0x00ff00ff"); g.A("s_mov_b32 exec_hi, 0x00ff00ff")
    g.A(f"buffer_store_dwordx4 {v4(acc)}, v{vOFP}, {srd(SWS)}, s{sT0} offen sc1")
    g.A("s_mov_b64 exec, -1")

def gen(**kw):
    g = G(**kw); A = g.A; p = g.p; nt = p["nt"]
    out = [HDR.rstrip("\n")]
    out.append(f"; @launch grid=(256,1,1) block=(576,1,1) lds={LDS_BYTES}")
    out += ['.amdgcn_target "amdgcn-amd-amdhsa--gfx950"', ".text", f".globl {NAME}", ".p2align 8", f".type {NAME},@function", f"{NAME}:"]
    g.stamp(0)
    if p.get("tfail") or p.get("tpad"): A("s_memrealtime s[74:75]")
    A("s_cmp_ge_u32 s2, 256"); A("s_cbranch_scc1 L_end")
    A(f"s_lshr_b32 s{sJ}, s2, 3")
    A(f"s_load_dwordx2 s[{SX}:{SX+1}], s[0:1], 0")
    A(f"s_load_dwordx2 s[{SWQ}:{SWQ+1}], s[0:1], 24")
    A(f"s_cmp_lt_u32 s{sJ}, 22")
    A(f"s_cselect_b32 s{sT0}, 8, 48"); A(f"s_cselect_b32 s{sT1}, 16, 56"); A(f"s_cselect_b32 s{sT2}, 32, 64")
    A(f"s_load_dwordx2 s[{S1}:{S1+1}], s[0:1], s{sT0}")
    A(f"s_load_dwordx2 s[{S2}:{S2+1}], s[0:1], s{sT1}")
    A(f"s_load_dwordx2 s[{S3}:{S3+1}], s[0:1], s{sT2}")
    A(f"s_load_dwordx2 s[{SGW}:{SGW+1}], s[0:1], 72")
    A(f"s_load_dwordx2 s[{SOUT}:{SOUT+1}], s[0:1], 80")
    A(f"s_load_dwordx2 s[{SWS}:{SWS+1}], s[0:1], 96")
    A(f"s_mov_b32 s{S3+2}, 5308416")
    A(f"s_cselect_b32 s{S1+2}, 0x10000000, s{S3+2}")
    A(f"s_mov_b32 s{S2+2}, s{S1+2}")
    A(f"s_cselect_b32 s{S3+2}, 4718592, s{S3+2}")
    A(f"s_mov_b32 s{SX+2}, 1152"); A(f"s_mov_b32 s{SWQ+2}, 4718592"); A(f"s_mov_b32 s{SGW+2}, 1152")
    A(f"s_mov_b32 s{SOUT+2}, 1152"); A(f"s_mov_b32 s{SWS+2}, {(16<<20) if p['stamps'] else WS_USED}")
    for b in (SX, SWQ, SWS, S1, S2, S3, SGW, SOUT): A(f"s_mov_b32 s{b+3}, 0x20000")
    A(f"v_lshrrev_b32 v{vT}, 6, v0")
    A(f"v_and_b32 v{vL}, 63, v0")
    A(f"v_readfirstlane_b32 s{sW}, v{vT}")
    A(f"s_and_b32 s{sXCD}, s2, 7")
    A(f"v_lshrrev_b32 v{vR3}, 3, v{vL}")
    A(f"v_and_b32 v{vT+1}, 7, v{vL}")
    A(f"v_lshlrev_b32 v{vT+2}, 4, v{vT+1}")
    A(f"v_lshl_add_u32 v{vOWQ}, v{vR3}, 14, v{vT+2}")
    A(f"s_lshl_b32 s{sQI}, s{sXCD}, 5"); A(f"s_add_u32 s{sQI}, s{sQI}, s{sJ}")
    A(f"s_bfe_u32 s{sT0}, s{sQI}, 0x20002")
    A(f"s_mul_i32 s{sT0}, s{sT0}, 144"); A(f"s_lshl_b32 s{sT1}, s{sW}, 4"); A(f"s_add_u32 s{sT0}, s{sT0}, s{sT1}")
    A(f"s_lshr_b32 s{sT1}, s{sQI}, 4"); A(f"s_lshl_b32 s{sT1}, s{sT1}, 2"); A(f"s_and_b32 s{sT2}, s{sQI}, 3")
    A(f"s_add_u32 s{sT1}, s{sT1}, s{sT2}"); A(f"s_lshl_b32 s{sT1}, s{sT1}, 7")
    A(f"s_lshl_b32 s{sT2}, s{sT0}, 13"); A(f"s_add_u32 s{sT1}, s{sT1}, s{sT2}")
    A(f"s_add_u32 s{sT2}, s{sT1}, 8192")
    A(f"s_lshl_b32 s{sT0}, s{sT0}, 1")
    A(f"v_lshlrev_b32 v{vT+3}, 2, v{vR3}")
    A(f"v_lshlrev_b32 v{vT+4}, 1, v0")
    vWQ = vV + 40
    A("s_waitcnt lgkmcnt(0)")
    g.stamp(1)
    g.vreset()
    A(f"buffer_load_dwordx4 {v4(vWQ)}, v{vOWQ}, {srd(SWQ)}, s{sT1} offen {nt}"); g.vissue("wq0")
    A(f"buffer_load_dwordx4 {v4(vWQ+4)}, v{vOWQ}, {srd(SWQ)}, s{sT2} offen {nt}"); g.vissue("wq1")
    A(f"buffer_load_dword v{vX0}, v{vT+3}, {srd(SX)}, s{sT0} offen"); g.vissue("x0")
    A(f"buffer_load_ushort v{vXG}, v{vT+4}, {srd(SX)}, 0 offen"); g.vissue("xg")
    A(f"buffer_load_ushort v{vGW}, v{vT+4}, {srd(SGW)}, 0 offen"); g.vissue("gw")
    A(f"s_load_dword s{sE}, s[{SWS}:{SWS+1}], {EPOCH}")
    pre = list(g.vm)
    def common_consts():
        A(f"v_and_b32 v{vT}, 1, v{vL}"); A(f"v_lshlrev_b32 v{vT}, 4, v{vT}")
        A(f"v_mov_b32 v{vT+1}, 0xffff")
        A(f"v_lshlrev_b32 v{vT}, v{vT}, v{vT+1}")
        A(f"v_bfe_u32 v{vT+1}, v{vL}, 1, 2")
        for j in range(4): A(f"v_cmp_eq_u32 s[{sM0+2*j}:{sM0+2*j+1}], {j}, v{vT+1}")
        A(f"s_mov_b32 s{sSEL0}, 0x01000100"); A(f"s_mov_b32 s{sSEL1}, 0x03020302")
        for j in range(4): A(f"v_cndmask_b32 v{vM+j}, 0, v{vT}, s[{sM0+2*j}:{sM0+2*j+1}]")
        A(f"v_lshrrev_b32 v{vT}, 5, v{vL}"); A(f"v_and_b32 v{vT+1}, 7, v{vL}"); A(f"v_and_b32 v{vT+2}, 16, v{vL}")
        A(f"v_lshl_add_u32 v{vLT}, v{vT+1}, 5, v{vT+2}")
        A(f"v_lshlrev_b32 v{vOFP}, 1, v{vLT}")
        A(f"v_lshl_add_u32 v{vOFP}, v{vT}, 4, v{vOFP}")
        A(f"v_lshl_add_u32 v{vLT}, v{vT}, 8, v{vLT}")
        A(f"v_mul_u32_u24 v{vOT}, 1152, v{vR3}")
        A(f"v_lshl_add_u32 v{vOT}, v{vT+1}, 4, v{vOT}")
        A(f"s_mov_b32 s{sSPIN}, {p['spin']}")
    A(f"s_cmp_ge_u32 s{sJ}, 22"); A("s_cbranch_scc1 L_notattn")
    A(f"s_cmp_ge_u32 s{sJ}, 11"); A(f"s_cselect_b32 s{sT0}, 1, 0"); A(f"s_cselect_b32 s{sT1}, 11, 0")
    A(f"s_lshl_b32 s{sHK}, s{sXCD}, 1"); A(f"s_add_u32 s{sHK}, s{sHK}, s{sT0}")
    A(f"s_sub_u32 s{sSLOT}, s{sJ}, s{sT1}")
    A(f"s_cmp_eq_u32 s{sW}, 8"); A("s_cbranch_scc1 L_attn8")
    A(f"s_min_u32 s{sT0}, s{sSLOT}, 7"); A(f"s_mul_i32 s{sT1}, s{sSLOT}, 11"); A(f"s_add_u32 s{sT0}, s{sT0}, s{sT1}")
    A(f"s_lshl_b32 s{sT0}, s{sT0}, 13")
    A(f"s_lshl_b32 s{sKO}, s{sHK}, 24"); A(f"s_add_u32 s{sKO}, s{sKO}, s{sT0}")
    A(f"s_lshl_b32 s{sT0}, s{sW}, 10"); A(f"s_add_u32 s{sKO}, s{sKO}, s{sT0}")
    A(f"s_add_u32 s{sKO}, s{sKO}, {61440*256}")
    A(f"v_bfe_u32 v{vT}, v{vL}, 2, 2"); A(f"v_lshrrev_b32 v{vT+1}, 4, v{vL}"); A(f"v_and_b32 v{vT+2}, 3, v{vL}")
    A(f"v_lshlrev_b32 v{vOK}, 8, v{vT}"); A(f"v_lshl_add_u32 v{vOK}, v{vT+1}, 6, v{vOK}"); A(f"v_lshl_add_u32 v{vOK}, v{vT+2}, 4, v{vOK}")
    A(f"s_mov_b32 s{sT3}, s{sKO}")
    seq = [("K", i) for i in range(12)] + [("V", i) for i in range(12)] + [("O", i) for i in range(3)]
    pos = [0]
    def issue():
        if pos[0] >= len(seq): return
        kind, i = seq[pos[0]]; pos[0] += 1
        if kind == "K":
            off = vOKL if i == 11 else vOK
            A(f"buffer_load_dwordx4 {v4(vK+4*i)}, v{off}, {srd(S1)}, s{sT3} offen {nt}")
            A(f"s_add_u32 s{sT3}, s{sT3}, 8192" if i < 11 else f"s_mov_b32 s{sT3}, s{sKO}")
        elif kind == "V":
            off = vOVL if i == 11 else vOV
            A(f"buffer_load_dwordx4 {v4(vV+4*i)}, v{off}, {srd(S2)}, s{sT3} offen {nt}")
            if i < 11: A(f"s_add_u32 s{sT3}, s{sT3}, 8192")
        else:
            off = vOKL if i == 2 else vOT
            A(f"buffer_load_dwordx4 {v4(vV+4*i)}, v{off}, {srd(S3)}, s{sOO} offen {nt}")
            if i < 2: A(f"s_add_u32 s{sOO}, s{sOO}, {11*9216}")
        g.vissue(f"{kind}{i}")
    WA = p["WA"]
    for _ in range(max(WA-2, 1)): issue()
    common_consts()
    def attn_consts():
        A(f"s_lshl_b32 s{sT0}, s{sHK}, 5"); A(f"s_add_u32 s{sT0}, s{sT0}, s{sSLOT}"); A(f"s_mul_i32 s{sOO}, s{sT0}, 9216")
        A(f"s_lshl_b32 s{sT0}, s{sW}, 7"); A(f"s_add_u32 s{sOO}, s{sOO}, s{sT0}")
        A(f"s_mul_i32 s{sPI}, s{sHK}, 11"); A(f"s_add_u32 s{sPI}, s{sPI}, s{sSLOT}")
    attn_consts()
    A(f"v_lshlrev_b32 v{vOV}, 4, v{vL}")
    A(f"s_cmp_lt_u32 s{sSLOT}, 7"); A(f"s_cselect_b32 s{sT0}, 0, 0x40000000"); A(f"s_cselect_b32 s{sBIAS}, 0, {f2u(-1e30):#x}")
    A(f"v_add_u32 v{vOKL}, s{sT0}, v{vOK}"); A(f"v_add_u32 v{vOVL}, s{sT0}, v{vOV}")
    g.vwait("gw")
    g.stamp(2)
    for _ in range(WA - max(WA-2, 1)): issue()
    qpart(g, vWQ)
    maketag(g)
    while True:
        g.vwait_n(WA-1)
        landed = g.vm[:len(g.vm)-(WA-1)]
        issue()
        if "K11" in landed: break
    g.stamp(3)
    A("s_barrier")
    A(f"v_and_b32 v{vT}, 0xf0, v{vOK}")
    A(f"v_and_b32 v{vT+1}, 1, v{vR3}")
    A(f"v_lshl_add_u32 v{vT}, v{vT+1}, 8, v{vT}")
    A(f"ds_read_b128 {v4(vA)}, v{vT} offset:{L_Q}")
    A(f"s_cmp_lt_u32 s{sSLOT}, 10"); A(f"s_cselect_b32 s{sT0}, 0, 0x40000000")
    A(f"v_add_u32 v{vOKL}, s{sT0}, v{vOT}")
    A(f"s_mov_b32 s{sC}, {f2u(128**-0.5 * 1.4426950408889634):#x}")
    A("s_waitcnt lgkmcnt(0)")
    for i in range(12):
        A(f"v_mfma_f32_16x16x32_bf16 {v4(vK+4*i)}, {v4(vK+4*i)}, {v4(vA)}, 0")
    g.vwait_n(WA-1); issue()
    for i in range(12):
        A(f"v_mov_b32_dpp v{vP+i}, v{vK+4*i} quad_perm:[0,0,0,0] {DPP}")
    for r in (1, 2, 3):
        for i in range(12):
            A(f"v_add_f32_dpp v{vP+i}, v{vK+4*i+r}, v{vP+i} quad_perm:[{r},{r},{r},{r}] {DPP}")
    A(f"v_add_f32 v{vP+11}, s{sBIAS}, v{vP+11}")
    A(f"v_max3_f32 v{vT}, v{vP}, v{vP+1}, v{vP+2}")
    for i in range(3, 11, 2): A(f"v_max3_f32 v{vT}, v{vT}, v{vP+i}, v{vP+i+1}")
    A(f"v_max_f32 v{vT}, v{vT}, v{vP+11}")
    crossrow(g, "v_max_f32", vT, vT+2)
    A(f"v_lshlrev_b32 v{vT+1}, 5, v{vT+1}")
    A(f"s_lshl_b32 s{sT0}, s{sW}, 2")
    A(f"v_add_u32 v{vT+3}, s{sT0}, v{vT+1}")
    A("s_mov_b64 exec, 0x101" if False else "s_mov_b32 exec_lo, 0x101"); A("s_mov_b32 exec_hi, 0")
    A(f"ds_write_b32 v{vT+3}, v{vT} offset:{L_M}")
    A("s_mov_b64 exec, -1")
    g.vwait_n(WA-1); issue()
    A("s_waitcnt lgkmcnt(0)")
    A("s_barrier")
    A(f"ds_read_b128 {v4(vA)}, v{vT+1} offset:{L_M}")
    A(f"ds_read_b128 {v4(vA+4)}, v{vT+1} offset:{L_M+16}")
    A("s_waitcnt lgkmcnt(0)")
    A(f"v_max3_f32 v{vT}, v{vA}, v{vA+1}, v{vA+2}"); A(f"v_max3_f32 v{vT}, v{vT}, v{vA+3}, v{vA+4}")
    A(f"v_max3_f32 v{vT}, v{vT}, v{vA+5}, v{vA+6}"); A(f"v_max_f32 v{vT}, v{vT}, v{vA+7}")
    A(f"v_mul_f32 v{vT}, s{sC}, v{vT}")
    for i in range(12): A(f"v_fma_f32 v{vP+i}, v{vP+i}, s{sC}, -v{vT}")
    for i in range(12): A(f"v_exp_f32 v{vP+i}, v{vP+i}")
    A("s_nop 0")
    A(f"v_add_f32 v{vT+4}, v{vP}, v{vP+1}")
    for i in range(2, 12): A(f"v_add_f32 v{vT+4}, v{vT+4}, v{vP+i}")
    for i in range(12):
        A(f"v_cvt_pk_bf16_f32 v{vP+i}, v{vP+i}, v{vP+i}")
    crossrow(g, "v_add_f32", vT+4, vT+2)
    A("s_mov_b32 exec_lo, 0x101"); A("s_mov_b32 exec_hi, 0")
    A(f"ds_write_b32 v{vT+3}, v{vT+4} offset:{L_L}")
    A("s_mov_b64 exec, -1")
    g.vwait_n(WA-1); issue()
    for i in range(12): build_A(g, vK+4*i, vP+i)
    A(f"v_and_b32 v{vT+5}, 15, v{vL}"); A(f"v_lshlrev_b32 v{vT+5}, 5, v{vT+5}")
    A(f"v_and_b32 v{vT+6}, 16, v{vL}"); A(f"v_add_u32 v{vT+5}, v{vT+5}, v{vT+6}")
    A(f"v_lshrrev_b32 v{vT+6}, 5, v{vL}"); A(f"v_lshl_add_u32 v{vT+5}, v{vT+6}, 9, v{vT+5}")
    A(f"s_lshl_b32 s{sT0}, s{sW}, 10"); A(f"v_add_u32 v{vT+5}, s{sT0}, v{vT+5}")
    g.stamp(4)
    done_v = -1
    for i in range(12):
        g.vwait(f"V{i}")
        A(f"v_mfma_f32_16x16x32_bf16 {v4(vACC)}, {v4(vK+4*i)}, {v4(vV+4*i)}, {'0' if i == 0 else v4(vACC)}")
        infl = len(g.vm) - 1 - g.vm.index(f"V{i}")
        while infl < WA and pos[0] < len(seq):
            kind, k = seq[pos[0]]
            if kind == "O" and k > i: break
            issue(); infl += 1
    while pos[0] < len(seq): issue()
    g.stamp(5)
    A("s_nop 7")
    A(f"ds_write_b128 v{vT+5}, {v4(vACC)} offset:{L_O}")
    A("s_waitcnt lgkmcnt(0)")
    A("s_barrier")
    A(f"s_cmp_lt_u32 s{sW}, 3"); A("s_cbranch_scc1 L_ogather")
    A(f"s_cmp_lt_u32 s{sW}, 6"); A("s_cbranch_scc1 L_barD")
    A(f"s_sub_u32 s{sT0}, s{sW}, 6")
    A(f"s_lshl_b32 s{sT1}, s{sT0}, 5"); A(f"v_mov_b32 v{vT+1}, s{sT1}")
    A(f"ds_read_b128 {v4(vA)}, v{vT+1} offset:{L_L}"); A(f"ds_read_b128 {v4(vA+4)}, v{vT+1} offset:{L_L+16}")
    A(f"ds_read_b128 {v4(vP)}, v{vT+1} offset:{L_M}"); A(f"ds_read_b128 {v4(vP+4)}, v{vT+1} offset:{L_M+16}")
    A(f"s_lshl_b32 s{sT1}, s{sT0}, 9"); A(f"v_lshl_add_u32 v{vT+2}, v{vL}, 3, s{sT1}")
    for w in range(8): A(f"ds_read_b64 {v2(vK+2*w)}, v{vT+2} offset:{L_O+1024*w}")
    A(f"s_lshl_b32 s{sT1}, s{sHK}, 4"); A(f"s_add_u32 s{sT1}, s{sT1}, s{sSLOT}"); A(f"s_lshl_b32 s{sT1}, s{sT1}, 11")
    A(f"s_lshl_b32 s{sT0}, s{sT0}, 10"); A(f"s_add_u32 s{sT1}, s{sT1}, s{sT0}"); A(f"s_add_u32 s{sT1}, s{sT1}, {OB}")
    A("s_waitcnt lgkmcnt(8)")
    A(f"v_pk_add_f32 {v2(vA)}, {v2(vA)}, {v2(vA+2)}"); A(f"v_pk_add_f32 {v2(vA+4)}, {v2(vA+4)}, {v2(vA+6)}")
    A(f"v_max3_f32 v{vT}, v{vP}, v{vP+1}, v{vP+2}")
    A(f"v_pk_add_f32 {v2(vA)}, {v2(vA)}, {v2(vA+4)}")
    A(f"v_max3_f32 v{vT}, v{vT}, v{vP+3}, v{vP+4}")
    A(f"v_add_f32 v{vA}, v{vA}, v{vA+1}")
    A(f"v_max3_f32 v{vT}, v{vT}, v{vP+5}, v{vP+6}"); A(f"v_max_f32 v{vT}, v{vT}, v{vP+7}")
    A(f"v_rcp_f32 v{vA+2}, v{vA}"); A(f"v_log_f32 v{vA+4}, v{vA}")
    A(f"v_mov_b32 v{vACC+3}, s{sTAG}")
    A(f"v_fma_f32 v{vACC+2}, v{vT}, s{sC}, v{vA+4}")
    A("s_waitcnt lgkmcnt(0)")
    for a, b in ((0,1),(2,3),(4,5),(6,7),(0,2),(4,6),(0,4)):
        A(f"v_pk_add_f32 {v2(vK+2*a)}, {v2(vK+2*a)}, {v2(vK+2*b)}")
    A(f"v_mul_f32 v{vACC}, v{vK}, v{vA+2}"); A(f"v_mul_f32 v{vACC+1}, v{vK+1}, v{vA+2}")
    A(f"buffer_store_dwordx4 {v4(vACC)}, v{vOV}, {srd(SWS)}, s{sT1} offen sc1")
    g.stamp(6)
    A("s_branch L_barD")
    g.lab("L_ogather")
    A(f"s_mul_i32 s{sT0}, s{sW}, 11"); A(f"s_add_u32 s{sT0}, s{sT0}, s{sSLOT}")
    A(f"v_and_b32 v{vT}, 15, v{vL}"); A(f"v_lshrrev_b32 v{vT+1}, 4, v{vL}")
    A(f"v_lshlrev_b32 v{vT+2}, 11, v{vT}"); A(f"v_lshl_add_u32 v{vT+2}, v{vT+1}, 4, v{vT+2}")
    A(f"s_lshl_b32 s{sT1}, s{sHK}, 15"); A(f"s_lshl_b32 s{sT2}, s{sT0}, 6"); A(f"s_add_u32 s{sT1}, s{sT1}, s{sT2}"); A(f"s_add_u32 s{sT1}, s{sT1}, {OB}")
    A(f"v_mov_b32 v{vA}, 0"); A(f"v_mov_b32 v{vA+1}, 0"); A(f"v_mov_b32 v{vA+2}, {f2u(-1e30):#x}")
    A(f"s_lshl_b32 s{sT2}, s{sW}, 5"); A(f"v_lshl_add_u32 v{vT+3}, v{vT+1}, 3, s{sT2}")
    A(f"s_cmp_ge_u32 s{sT0}, 32"); A("s_cbranch_scc1 L_owrite")
    A("s_mov_b32 exec_lo, 0x07ff07ff"); A("s_mov_b32 exec_hi, 0x07ff07ff")
    g.lab("L_opoll")
    A(f"buffer_load_dwordx4 {v4(vA)}, v{vT+2}, {srd(SWS)}, s{sT1} offen sc1")
    A(f"s_sub_u32 s{sSPIN}, s{sSPIN}, 1"); A("s_cbranch_scc1 L_opoll_end")
    A("s_waitcnt vmcnt(0)")
    A(f"v_cmpx_ne_u32 vcc, s{sTAG}, v{vA+3}")
    A("s_cbranch_execnz L_opoll")
    g.lab("L_opoll_end")
    A("s_mov_b64 exec, -1")
    g.stamp(6)
    A(f"v_mov_b32 v{vT+4}, v{vA+2}")
    A("s_nop 3")
    rowred(g, "v_max_f32", [vT+4])
    A(f"v_sub_f32 v{vA+2}, v{vA+2}, v{vT+4}")
    A(f"v_exp_f32 v{vA+2}, v{vA+2}")
    A("s_nop 0")
    A(f"v_mul_f32 v{vA}, v{vA}, v{vA+2}"); A(f"v_mul_f32 v{vA+1}, v{vA+1}, v{vA+2}")
    A("s_nop 0")
    rowred(g, "v_add_f32", [vA+2, vA, vA+1])
    A(f"v_rcp_f32 v{vA+2}, v{vA+2}")
    A("s_nop 0")
    A(f"v_mul_f32 v{vA}, v{vA}, v{vA+2}"); A(f"v_mul_f32 v{vA+1}, v{vA+1}, v{vA+2}")
    A(f"v_cvt_pk_bf16_f32 v{vA}, v{vA}, v{vA}"); A(f"v_cvt_pk_bf16_f32 v{vA+1}, v{vA+1}, v{vA+1}")
    g.lab("L_owrite")
    A("s_mov_b32 exec_lo, 0x00010001"); A("s_mov_b32 exec_hi, 0x00010001")
    A(f"ds_write_b64 v{vT+3}, {v2(vA)} offset:{L_C}")
    A("s_mov_b64 exec, -1")
    A("s_waitcnt lgkmcnt(0)")
    g.lab("L_barD")
    A(f"v_lshlrev_b32 v{vT}, 2, v{vR3}")
    A("s_barrier")
    for i in range(3): A(f"ds_read_b32 v{vP+i}, v{vT} offset:{L_C+32*i}")
    A("s_waitcnt lgkmcnt(0)")
    for i in range(3): build_A(g, vK+4*i, vP+i)
    A("s_waitcnt vmcnt(0)")
    A("s_nop 0")
    for i in range(3):
        A(f"v_mfma_f32_16x16x32_bf16 {v4(vACC)}, {v4(vK+4*i)}, {v4(vV+4*i)}, {'0' if i == 0 else v4(vACC)}")
    fpublish(g, vACC)
    g.stamp(7)
    A(f"s_cmp_lg_u32 s{sW}, 8"); A("s_cbranch_scc1 L_fin")
    A(f"s_cmp_ge_u32 s{sJ}, 9"); A("s_cbranch_scc1 L_fin")
    A(f"s_mul_i32 s{sU}, s{sXCD}, 9"); A(f"s_add_u32 s{sU}, s{sU}, s{sJ}")
    A(f"v_and_b32 v{vT}, 15, v{vL}"); A(f"v_lshrrev_b32 v{vT+1}, 4, v{vL}")
    A(f"v_mul_u32_u24 v{vT+2}, 4608, v{vT}"); A(f"v_lshl_add_u32 v{vT+2}, v{vT+1}, 4, v{vT+2}")
    A(f"v_cmp_gt_u32 vcc, 8, v{vT}")
    A(f"v_mov_b32 v{vT+4}, 0x40000000")
    A(f"s_lshl_b32 s{sT0}, s{sU}, 6"); A(f"s_add_u32 s{sT0}, s{sT0}, {FB}")
    A(f"v_cndmask_b32 v{vT+3}, v{vT+4}, v{vT+2}, vcc")
    A(f"s_mov_b64 s[{sM0}:{sM0+1}], vcc")
    A(f"v_mov_b32 v{vT+5}, 0")
    A(f"ds_read_b128 {v4(vA)}, v{vT+5} offset:{L_Z}"); A(f"ds_read_b128 {v4(vA+4)}, v{vT+5} offset:{L_Z+16}"); A(f"ds_read_b32 v{vT+6}, v{vT+5} offset:{L_Z+32}")
    g.lab("L_fpoll")
    A(f"s_mov_b32 s{sT1}, s{sT0}")
    for n in range(16):
        off = vT+3 if n == 15 else vT+2
        A(f"buffer_load_dwordx4 {v4(vK+4*n)}, v{off}, {srd(SWS)}, s{sT1} offen sc1")
        if n < 15: A(f"s_add_u32 s{sT1}, s{sT1}, {16*4608}")
    A(f"s_sub_u32 s{sSPIN}, s{sSPIN}, 1"); A("s_cbranch_scc1 L_fpoll_end")
    A(f"s_mov_b64 s[{sEX}:{sEX+1}], 0")
    for n in range(16):
        A(f"s_waitcnt vmcnt({15-n})")
        A(f"v_cmp_ne_u64 vcc, s[{sTAG}:{sTAG+1}], {v2(vK+4*n+2)}")
        if n == 15: A(f"s_and_b64 vcc, vcc, s[{sM0}:{sM0+1}]")
        A(f"s_or_b64 s[{sEX}:{sEX+1}], s[{sEX}:{sEX+1}], vcc")
    A(f"s_mov_b64 exec, s[{sEX}:{sEX+1}]")
    A("s_cbranch_execnz L_fpoll")
    g.lab("L_fpoll_end")
    A("s_mov_b64 exec, -1")
    g.stamp(8)
    A("s_waitcnt lgkmcnt(0)")
    for a, b in ((0,1),(2,3),(4,5),(6,7),(8,9),(11,12),(13,14),(0,2),(4,6),(8,10),(11,13),(0,4),(11,15),(0,8)):
        A(f"v_pk_add_f32 {v2(vK+4*a)}, {v2(vK+4*a)}, {v2(vK+4*b)}")
    ra, rb = vK, vK+44
    A(f"v_pk_add_f32 {v2(vA)}, {v2(vA)}, {v2(vA+2)}"); A(f"v_pk_add_f32 {v2(vA+4)}, {v2(vA+4)}, {v2(vA+6)}")
    rowred(g, "v_add_f32", [ra, ra+1, rb, rb+1])
    A(f"v_pk_add_f32 {v2(vA)}, {v2(vA)}, {v2(vA+4)}")
    A(f"v_add_f32 v{vA}, v{vA}, v{vA+1}"); A(f"v_add_f32 v{vA}, v{vA}, v{vT+6}")
    bf16r(g, vA, vA)
    A(f"v_mul_f32 v{vA}, {f2u(-1.4426950408889634):#x}, v{vA}")
    A(f"v_exp_f32 v{vA}, v{vA}"); A("s_nop 0")
    A(f"v_add_f32 v{vA}, 1.0, v{vA}"); A(f"v_rcp_f32 v{vA}, v{vA}"); A("s_nop 0")
    bf16r(g, vA, vA)
    A(f"v_sub_f32 v{vA+1}, 1.0, v{vA}"); bf16r(g, vA+1, vA+1)
    for x in (ra, ra+1, rb, rb+1): bf16r(g, x, x)
    A(f"v_mul_f32 v{ra}, v{ra}, v{vA}"); A(f"v_mul_f32 v{ra+1}, v{ra+1}, v{vA}")
    A(f"v_mul_f32 v{rb}, v{rb}, v{vA+1}"); A(f"v_mul_f32 v{rb+1}, v{rb+1}, v{vA+1}")
    for x in (ra, ra+1, rb, rb+1): bf16r(g, x, x)
    A(f"v_add_f32 v{ra}, v{ra}, v{rb}"); A(f"v_add_f32 v{ra+1}, v{ra+1}, v{rb+1}")
    A(f"v_cvt_pk_bf16_f32 v{ra}, v{ra}, v{ra+1}")
    if p.get("tpad"):
        g.lab("L_tpad")
        A("s_memrealtime s[76:77]"); A("s_waitcnt lgkmcnt(0)")
        A("s_sub_u32 s76, s76, s74"); A(f"s_cmp_lt_u32 s76, {p['tpad']}"); A("s_cbranch_scc1 L_tpad")
    if p.get("tfail"):
        op, T = p["tfail"]
        A("s_memrealtime s[76:77]"); A("s_waitcnt lgkmcnt(0)")
        A("s_sub_u32 s76, s76, s74"); A(f"s_cmp_{op}_u32 s76, {T}"); A("s_cbranch_scc0 L_tok")
        A(f"v_mov_b32 v{ra}, 0x7fc07fc0")
        g.lab("L_tok")
    A(f"v_lshlrev_b32 v{vT+1}, 2, v{vT+1}"); A(f"s_lshl_b32 s{sT0}, s{sU}, 4")
    A("s_mov_b32 exec_lo, 0x00010001"); A("s_mov_b32 exec_hi, 0x00010001")
    A(f"buffer_store_dword v{ra}, v{vT+1}, {srd(SOUT)}, s{sT0} offen")
    A(f"s_cmp_lg_u32 s{sU}, 0"); A("s_cbranch_scc1 L_fin")
    A("s_mov_b64 exec, 1")
    A(f"v_mov_b32 v{vT+6}, s{sTAG}")
    A(f"buffer_store_dword v{vT+6}, v{vT+5}, {srd(SWS)}, 0 offen offset:{EPOCH}")
    A("s_branch L_fin")
    g.lab("L_attn8")
    g.vm = list(pre)
    common_consts(); attn_consts()
    A(f"v_lshlrev_b32 v{vOV}, 4, v{vL}")
    A(f"s_cmp_lt_u32 s{sSLOT}, 10"); A(f"s_cselect_b32 s{sT0}, 0, 0x40000000")
    A(f"v_add_u32 v{vOKL}, s{sT0}, v{vOT}")
    g.vwait("gw")
    g.stamp(2)
    qpart(g, vWQ); maketag(g)
    qpublish(g, vK)
    g.stamp(3)
    A(f"s_lshl_b32 s{sT0}, s{sHK}, 13"); A(f"s_add_u32 s{sT0}, s{sT0}, {QB}"); A(f"s_add_u32 s{sT1}, s{sT0}, 4096")
    g.lab("L_qpoll")
    A(f"s_sleep {p['qsleep']}")
    for rg in range(4):
        for z in range(2):
            o = rg*2048 + z*1024
            A(f"buffer_load_dwordx4 {v4(vK+8*rg+4*z)}, v{vOV}, {srd(SWS)}, s{sT1 if o >= 4096 else sT0} offen offset:{o & 4095} sc1")
    A(f"s_sub_u32 s{sSPIN}, s{sSPIN}, 1"); A("s_cbranch_scc1 L_qpoll_end")
    A("s_waitcnt vmcnt(0)")
    tags = [vK+4*n+k for n in range(8) for k in (1, 3)]
    A(f"v_min_u32 v{vT}, v{tags[0]}, v{tags[1]}"); A(f"v_max_u32 v{vT+1}, v{tags[0]}, v{tags[1]}")
    for k in range(2, 16, 2):
        A(f"v_min3_u32 v{vT}, v{vT}, v{tags[k]}, v{tags[k+1]}"); A(f"v_max3_u32 v{vT+1}, v{vT+1}, v{tags[k]}, v{tags[k+1]}")
    A(f"v_cmp_ne_u32 vcc, s{sTAG}, v{vT}"); A(f"v_cmp_ne_u32 s[{sEX}:{sEX+1}], s{sTAG}, v{vT+1}")
    A("s_nop 1")
    A(f"s_or_b64 vcc, vcc, s[{sEX}:{sEX+1}]")
    A("s_cbranch_scc1 L_qpoll")
    g.lab("L_qpoll_end")
    for z in range(2):
        for k in (0, 2):
            b = vK+4*z+k
            A(f"v_add_f32 v{b}, v{b}, v{b+8}"); A(f"v_add_f32 v{b+16}, v{b+16}, v{b+24}"); A(f"v_add_f32 v{b}, v{b}, v{b+16}")
        A(f"v_cvt_pk_bf16_f32 v{vK+4*z}, v{vK+4*z}, v{vK+4*z+2}")
    A(f"v_lshlrev_b32 v{vT}, 2, v{vL}")
    A(f"ds_write_b32 v{vT}, v{vK} offset:{L_Q}"); A(f"ds_write_b32 v{vT}, v{vK+4} offset:{L_Q+256}")
    A("s_waitcnt lgkmcnt(0)")
    g.stamp(4)
    A("s_barrier")
    A("s_barrier")
    for i in range(3):
        A(f"buffer_load_dwordx4 {v4(vV+4*i)}, v{vOKL if i == 2 else vOT}, {srd(S3)}, s{sOO} offen {nt}")
        if i < 2: A(f"s_add_u32 s{sOO}, s{sOO}, {11*9216}")
    A("s_barrier")
    g.stamp(5)
    A("s_branch L_barD")
    g.lab("L_notattn")
    g.vm = list(pre)
    A(f"s_cmp_eq_u32 s{sJ}, 31"); A("s_cbranch_scc1 L_spare")
    A(f"s_mul_i32 s{sU}, s{sXCD}, 9"); A(f"s_add_u32 s{sU}, s{sU}, s{sJ}"); A(f"s_sub_u32 s{sU}, s{sU}, 22")
    A(f"v_lshlrev_b32 v{vT}, 4, v{vR3}"); A(f"s_lshl_b32 s{sT0}, s{sW}, 7")
    A(f"buffer_load_dwordx4 {v4(vX)}, v{vT}, {srd(SX)}, s{sT0} offen"); g.vissue("xf")
    A(f"s_mov_b32 s{sT0}, {8*9216}"); A(f"v_mul_lo_u32 v{vOK}, v{vR3}, s{sT0}")
    A(f"v_and_b32 v{vT+1}, 7, v{vL}"); A(f"v_lshl_add_u32 v{vOK}, v{vT+1}, 4, v{vOK}")
    A(f"s_mul_i32 s{sKO}, s{sW}, {64*9216}"); A(f"s_lshl_b32 s{sT0}, s{sU}, 7"); A(f"s_add_u32 s{sKO}, s{sKO}, s{sT0}")
    fseq = []
    for t in range(8): fseq += [("G", t), ("U", t)]
    fseq += [("D", t) for t in range(8)]
    if p.get("forder"): fseq = p["forder"]
    fpos = [0]
    vG = vK
    def greg(kind, t):
        return {"G": vK+4*t, "U": vK+32+4*t, "D": vV+16+4*t}[kind]
    def fissue():
        if fpos[0] >= len(fseq): return
        kind, t = fseq[fpos[0]]; fpos[0] += 1
        if kind == "G": A(f"buffer_load_dwordx4 {v4(greg(kind,t))}, v{vOK}, {srd(S1)}, s{sKO} offen {nt}")
        elif kind == "U":
            A(f"buffer_load_dwordx4 {v4(greg(kind,t))}, v{vOK}, {srd(S2)}, s{sKO} offen {nt}")
            A(f"s_add_u32 s{sKO}, s{sKO}, 9216")
        else:
            A(f"buffer_load_dwordx4 {v4(greg(kind,t))}, v{vOT}, {srd(S3)}, s{sOO} offen {nt}")
            A(f"s_add_u32 s{sOO}, s{sOO}, 9216")
        g.vissue(f"{kind}{t}")
    WF = p["WF"]; WF2 = p.get("WF2", WF); wf2_from = p.get("wf2_from", 99)
    common_consts()
    A(f"s_mul_i32 s{sOO}, s{sU}, {64*1152}"); A(f"s_lshl_b32 s{sT0}, s{sW}, 7"); A(f"s_add_u32 s{sOO}, s{sOO}, s{sT0}")
    A(f"s_add_u32 s{sPI}, s{sU}, 176")
    g.vwait("xf")
    g.stamp(2)
    for _ in range(WF): fissue()
    qpart(g, vWQ); maketag(g)
    A(f"s_cmp_lg_u32 s{sW}, 8"); A("s_cbranch_scc1 L_fnopub")
    qpublish(g, vV+16)
    A("s_waitcnt vmcnt(0)")
    g.lab("L_fnopub")
    g.stamp(3)
    ng = 0
    for idx, (kind, t) in enumerate(fseq):
        if kind == "D":
            if ng == 16: break
            g.vwait(f"D{t}")
        else:
            if kind == "G":
                A(f"v_perm_b32 v{vT}, v{vX+t//2}, v{vX+t//2}, s{sSEL1 if t & 1 else sSEL0}")
                build_A(g, vA+4*(t & 1), vT)
            g.vwait(f"{kind}{t}")
        W = WF2 if idx >= wf2_from else WF
        infl = len(g.vm) - 1 - g.vm.index(f"{kind}{t}")
        k = 0
        while infl < W and fpos[0] < len(fseq): fissue(); infl += 1; k += 1
        if kind != "D":
            if k == 0: A("s_nop 0")
            acc = vACC if kind == "G" else vACC+4
            A(f"v_mfma_f32_16x16x32_bf16 {v4(acc)}, {v4(vA+4*(t&1))}, {v4(greg(kind,t))}, {'0' if t == 0 else v4(acc)}")
            ng += 1
    while fpos[0] < len(fseq): fissue()
    g.stamp(4)
    A(f"s_lshl_b32 s{sT0}, s{sW}, 10"); A(f"v_add_u32 v{vT+2}, s{sT0}, v{vLT}")
    A("s_mov_b32 exec_lo, 0x00ff00ff"); A("s_mov_b32 exec_hi, 0xff00ff00")
    A("s_nop 4")
    A(f"ds_write_b128 v{vT+2}, {v4(vACC)} offset:{L_O}")
    A(f"ds_write_b128 v{vT+2}, {v4(vACC+4)} offset:{L_O+512}")
    A("s_mov_b64 exec, -1")
    A(f"v_lshlrev_b32 v{vT}, 4, v{vL}")
    A("s_waitcnt lgkmcnt(0)")
    A("s_barrier")
    for w in range(9): A(f"ds_read_b128 {v4(vK+4*w)}, v{vT} offset:{L_O+1024*w}")
    A("s_waitcnt lgkmcnt(0)")
    for a, b in ((0,1),(2,3),(4,5),(6,7),(0,2),(4,6),(0,4),(0,8)):
        A(f"v_pk_add_f32 {v2(vK+4*a)}, {v2(vK+4*a)}, {v2(vK+4*b)}")
        A(f"v_pk_add_f32 {v2(vK+4*a+2)}, {v2(vK+4*a+2)}, {v2(vK+4*b+2)}")
    for r in range(4): A(f"v_mov_b32 v{vK+4+r}, v{vK+r}")
    A("s_nop 0")
    for r in range(4): A(f"v_permlane16_swap_b32 v{vK+r}, v{vK+4+r}")
    A("s_nop 0")
    for r in range(4): A(f"v_add_f32 v{vK+r}, v{vK+r}, v{vK+4+r}")
    for r in range(4): bf16r(g, vK+r, vK+r)
    for r in range(4): A(f"v_mov_b32 v{vK+4+r}, v{vK+r}")
    A("s_nop 0")
    for r in range(4): A(f"v_permlane32_swap_b32 v{vK+r}, v{vK+4+r}")
    A("s_nop 0")
    for r in range(4): A(f"v_mul_f32 v{vK+8+r}, {f2u(-1.4426950408889634):#x}, v{vK+r}")
    for r in range(4): A(f"v_exp_f32 v{vK+8+r}, v{vK+8+r}")
    for r in range(4): A(f"v_add_f32 v{vK+8+r}, 1.0, v{vK+8+r}")
    for r in range(4): A(f"v_rcp_f32 v{vK+8+r}, v{vK+8+r}")
    for r in range(4): A(f"v_mul_f32 v{vK+r}, v{vK+r}, v{vK+8+r}")
    for r in range(4): bf16r(g, vK+r, vK+r)
    for r in range(4): A(f"v_mul_f32 v{vK+r}, v{vK+r}, v{vK+4+r}")
    for r in range(4): A(f"v_cvt_pk_bf16_f32 v{vK+r}, v{vK+r}, v{vK+r}")
    A(f"s_lshl_b32 s{sT0}, s{sW}, 8")
    A(f"v_add_u32 v{vT+1}, s{sT0}, v{vT}")
    A(f"v_lshl_add_u32 v{vT+2}, v{vR3}, 2, s{sT0}")
    A("s_mov_b64 exec, 0xffff" if False else "s_mov_b32 exec_lo, 0xffff"); A("s_mov_b32 exec_hi, 0")
    A(f"ds_write_b128 v{vT+1}, {v4(vK)} offset:{L_H}")
    A("s_mov_b64 exec, -1")
    A("s_waitcnt lgkmcnt(0)")
    for t in range(8): A(f"ds_read_b32 v{vP+t}, v{vT+2} offset:{L_H+32*t}")
    A("s_waitcnt lgkmcnt(0)")
    for t in range(8): build_A(g, vK+16+4*t, vP+t)
    g.stamp(5)
    for t in range(8):
        g.vwait(f"D{t}")
        A(f"v_mfma_f32_16x16x32_bf16 {v4(vACC)}, {v4(vK+16+4*t)}, {v4(greg('D',t))}, {'0' if t == 0 else v4(vACC)}")
    g.stamp(6)
    fpublish(g, vACC)
    g.stamp(7)
    A("s_branch L_fin")
    g.lab("L_spare")
    g.vm = list(pre)
    common_consts()
    g.vwait("gw")
    qpart(g, vWQ); maketag(g)
    A(f"s_cmp_lg_u32 s{sW}, 8"); A("s_cbranch_scc1 L_fin")
    qpublish(g, vK)
    g.lab("L_fin")
    if p["stamps"]:
        A("s_mov_b64 exec, -1")
        A("s_waitcnt vmcnt(0)")
        g.stamp(9)
        A("s_waitcnt lgkmcnt(0)")
        A(f"s_lshl_b32 s{sT0}, s2, 4"); A(f"s_add_u32 s{sT0}, s{sT0}, s{sW}"); A(f"s_lshl_b32 s{sT0}, s{sT0}, 6"); A(f"s_add_u32 s{sT0}, s{sT0}, {STB}")
        for k in range(10): A(f"v_mov_b32 v{vK+k}, s{80+2*k}")
        A(f"v_mov_b32 v{vK+10}, s{sSPIN}"); A(f"v_mov_b32 v{vK+11}, s{sTAG}")
        A(f"v_mov_b32 v{vT}, 0"); A("s_mov_b64 exec, 1")
        for k in range(3): A(f"buffer_store_dwordx4 {v4(vK+4*k)}, v{vT}, {srd(SWS)}, s{sT0} offen offset:{16*k}")
        if p.get("dbg"):
            A(f"s_load_dwordx2 s[{SX}:{SX+1}], s[0:1], 88"); A(f"s_mov_b32 s{SX+2}, 256"); A("s_waitcnt lgkmcnt(0)")
            for k in range(1, 10): A(f"v_subrev_u32 v{vK+k}, s80, v{vK+k}")
            A(f"s_cmp_lg_u32 s2, 0"); A("s_cbranch_scc1 L_dbg2")
            A(f"s_cmp_lg_u32 s{sW}, 8"); A("s_cbranch_scc1 L_dbg3")
            A(f"buffer_store_dwordx4 {v4(vK)}, v{vT}, {srd(SX)}, 0 offen"); A(f"buffer_store_dwordx2 {v2(vK+4)}, v{vT}, {srd(SX)}, 0 offen offset:16")
            A(f"buffer_store_dword v{vK+7}, v{vT}, {srd(SX)}, 0 offen offset:24"); A(f"buffer_store_dwordx2 {v2(vK+8)}, v{vT}, {srd(SX)}, 0 offen offset:28")
            g.lab("L_dbg3")
            A(f"s_cmp_lg_u32 s{sW}, 0"); A("s_cbranch_scc1 L_end")
            A(f"buffer_store_dword v{vK+3}, v{vT}, {srd(SX)}, 0 offen offset:36"); A(f"buffer_store_dwordx2 {v2(vK+4)}, v{vT}, {srd(SX)}, 0 offen offset:40")
            A("s_branch L_end")
            g.lab("L_dbg2")
            A(f"s_cmp_lg_u32 s2, 176"); A("s_cbranch_scc1 L_end")
            A(f"s_cmp_lg_u32 s{sW}, 0"); A("s_cbranch_scc1 L_end")
            A(f"buffer_store_dwordx4 {v4(vK+4)}, v{vT}, {srd(SX)}, 0 offen offset:48")
    g.lab("L_end")
    A("s_endpgm")
    out += g.L
    out += ['.section .rodata,"a"', ".p2align 6", f".amdhsa_kernel {NAME}", f"  .amdhsa_next_free_vgpr {NV}",
            f"  .amdhsa_next_free_sgpr {100 if p['stamps'] else 80}", f"  .amdhsa_accum_offset {NV}", "  .amdhsa_group_segment_fixed_size 0",
            "  .amdhsa_kernarg_size 104", "  .amdhsa_user_sgpr_count 2", "  .amdhsa_user_sgpr_kernarg_segment_ptr 1",
            "  .amdhsa_system_sgpr_workgroup_id_x 1", ".end_amdhsa_kernel"]
    return "\n".join(out) + "\n"

if __name__ == "__main__":
    kw = {}
    for a in sys.argv[2:]:
        k, v = a.split("="); kw[k] = eval(v)
    open(sys.argv[1], "w").write(gen(**kw))
```

```python
import sys, struct
NAME = "gated_mix__sliding_block_cached__swiglu_ffn__decode_kernel"
HDR = open("gated_mix__sliding_block_cached__swiglu_ffn__decode.s.ref").read().split("; Override launch")[0]
def f2u(f): return struct.unpack("<I", struct.pack("<f", f))[0]

EPOCH = 0
HB = 4096
QB = HB + 72*256
OB = QB + 256*256
FB = OB + 256*2048
AOFF = 2 << 20
FROW = 2304
assert FB + 256*FROW <= AOFF
WS_USED = 2*AOFF
STB = 8 << 20
L_QP = 0; L_Q = 4608; L_M = 5120; L_L = 5184; L_Z = 5248; L_C = 5312
L_CNT = 5504; L_O = 5632; L_H = L_O + 9*1024; L_R = L_H + 9*256
LDS_BYTES = L_R + 640
OOB = 0x40000000

class G:
    def __init__(s, **kw):
        s.L = []; s.p = dict(WA=4, WF=3, N0=1, stamps=False, nt="nt", qsleep=2, qsleep0=25, spin=200000, apolls=300, bpos=1, rsleep=0, dmix=5,
                             prio=1, align=True, touch=True, pretouch=1, nmid=4, helper=1, hsleep=8)
        s.p.update(kw); s.vm = []
    def A(s, x): s.L.append("    " + x)
    def lab(s, x): s.L.append(x + ":")
    def vissue(s, name): s.vm.append(name)
    def vwait(s, name):
        i = s.vm.index(name); s.A(f"s_waitcnt vmcnt({len(s.vm)-1-i})")
    def stamp(s, k, prog=False):
        if s.p.get("prof") and not prog and 3 <= k <= 8 and k != 5: return
        if prog and not s.p.get("prof"): return
        if s.p["stamps"]: s.A(f"s_memrealtime s[{80+2*k}:{81+2*k}]")

sW=3
SX=8; SWQ=12; SWS=16; S1=20; S2=24; S3=28; SGW=32; SOUT=36
sE=40; sSTEP=41; sTAG=42
sXCD=44; sJ=45; sHK=46; sSLOT=47; sQI=48; sT0=49; sT1=50; sT2=51; sRUN=52; sBIAS=53; sSPIN=54
sKO=55; sOO=56; sSEL0=57; sSEL1=58; sPI=59; sC=60; sU=61
sM0=62; sEX=70; sAM=72; sWE=74; sT3=75; sT4=76; sMODE=77; sFF=78; sNOS=79
def srd(b): return f"s[{b}:{b+3}]"
vL=1; vM=2; vOT=6; vOK=7; vOV=8; vOWQ=9; vLT=10; vX0=11; vOU=12; vOD=13; vTB=14
vXG=16; vGW=17; vT=18
vA=32; vACC=40; vP=48; vOKL=60; vOVL=61; vR3=62; vOFP=63
vK=64; vV=112; NV=160
def v4(b): return f"v[{b}:{b+3}]"
def v2(b): return f"v[{b}:{b+1}]"
DPP = "row_mask:0xf bank_mask:0xf"
MF = "v_mfma_f32_16x16x32_bf16"

def build_A(g, dst, rep):
    for j in range(4): g.A(f"v_and_b32 v{dst+j}, v{rep}, v{vM+j}")
def rowred(g, op, regs):
    need = max(0, 2 - (len(regs) - 1))
    for r in (8, 4, 2, 1):
        if need: g.A(f"s_nop {need-1}")
        for x in regs: g.A(f"{op}_dpp v{x}, v{x}, v{x} row_ror:{r} {DPP}")
def crossrow(g, op, x, t):
    for sw in ("v_permlane16_swap_b32", "v_permlane32_swap_b32"):
        g.A(f"v_mov_b32 v{t}, v{x}"); g.A("s_nop 1"); g.A(f"{sw} v{x}, v{t}"); g.A("s_nop 1"); g.A(f"{op} v{x}, v{x}, v{t}")
def bf16r(g, d, s_):
    g.A(f"v_cvt_pk_bf16_f32 v{d}, v{s_}, v{s_}"); g.A(f"v_and_b32 v{d}, 0xffff0000, v{d}")
def setexec(g, lo, hi):
    g.A(f"s_mov_b32 exec_lo, {lo:#x}"); g.A(f"s_mov_b32 exec_hi, {hi:#x}")

def fpub_consts(g):
    A = g.A
    A(f"s_mul_i32 s{sPI}, s{sPI}, 9"); A(f"s_add_u32 s{sPI}, s{sPI}, s{sW}"); A(f"s_lshl_b32 s{sPI}, s{sPI}, 8"); A(f"s_add_u32 s{sPI}, s{sPI}, {FB}")
    A(f"s_lshl_b32 s{sT0}, s{sW}, 8"); A(f"s_mul_i32 s{sT1}, s{sXCD}, {72*4}"); A(f"s_sub_u32 s{sT0}, s{sT0}, s{sT1}")
    A(f"v_add_u32 v{vT}, s{sT0}, v{vOFP}")
    A(f"v_cmp_gt_u32 vcc, {72*4}, v{vT}")
    A(f"v_lshrrev_b32 v{vT}, 1, v{vL}"); A(f"v_and_b32 v{vT}, 16, v{vT}")
    A(f"v_lshrrev_b32 v{vTB}, v{vT}, s{sTAG}" if False else f"v_mov_b32 v{vTB}, s{sTAG}")
    A(f"v_lshrrev_b32 v{vTB}, v{vT}, v{vTB}")
    A(f"s_and_b32 s{sAM}, vcc_lo, 0x00ff00ff"); A(f"s_and_b32 s{sAM+1}, vcc_hi, 0x00ff00ff")
    A(f"v_lshrrev_b32 v{vTB+1}, 8, v{vTB}")
    A(f"s_movk_i32 s{sFF}, 0xff")

def tagcheck(g, d, t):
    g.A(f"v_perm_b32 v{t}, v{d+1}, v{d}, s{sSEL0}"); g.A(f"v_perm_b32 v{t+1}, v{d+3}, v{d+2}, s{sSEL1}")
    g.A(f"v_or_b32 v{t}, v{t}, v{t+1}")
def tagsel(g):
    g.A(f"s_mov_b32 s{sSEL0}, 0x0c0c0400"); g.A(f"s_mov_b32 s{sSEL1}, 0x04000c0c")

PROG = {"K3": 3, "K7": 4, "K11": 6, "V3": 7, "V7": 8}
uid = [0]
def fpublish(g, acc, acopy=True):
    g.A(f"s_add_u32 s{sT0}, s{sPI}, {AOFF}")
    g.A("s_nop 6")
    g.A(f"v_permlane32_swap_b32 v{acc}, v{acc+2}")
    g.A(f"v_permlane32_swap_b32 v{acc+1}, v{acc+3}")
    g.A("s_nop 0")
    g.A(f"v_add_f32_dpp v{acc}, v{acc+2}, v{acc} row_ror:8 {DPP}")
    g.A(f"v_add_f32_dpp v{acc+1}, v{acc+3}, v{acc+1} row_ror:8 {DPP}")
    setexec(g, 0x00ff00ff, 0x00ff00ff)
    g.A(f"v_bfi_b32 v{acc}, s{sFF}, v{vTB}, v{acc}"); g.A(f"v_bfi_b32 v{acc+1}, s{sFF}, v{vTB+1}, v{acc+1}")
    g.A(f"buffer_store_dwordx2 {v2(acc)}, v{vOFP}, {srd(SWS)}, s{sPI} offen sc1")
    if acopy:
        uid[0] += 1
        g.A(f"s_mov_b64 exec, s[{sAM}:{sAM+1}]"); g.A(f"s_cbranch_execz L_na{uid[0]}")
        g.A(f"buffer_store_dwordx2 {v2(acc)}, v{vOFP}, {srd(SWS)}, s{sT0} offen")
        g.lab(f"L_na{uid[0]}")
    g.A("s_mov_b64 exec, -1")

def gen(**kw):
    g = G(**kw); A = g.A; p = g.p; nt = p["nt"]; WA = p["WA"]; WF = p["WF"]
    SPIN = p["spin"]; SW = max(SPIN - p["apolls"], 0)
    NPRO = min(WA, WF)
    out = [HDR.rstrip("\n")]
    out.append(f"; @launch grid=(256,1,1) block=(576,1,1) lds={LDS_BYTES}")
    out += ['.amdgcn_target "amdgcn-amd-amdhsa--gfx950"', ".text"]
    if p["align"]: out += [".p2align 12", ".fill 832, 4, 0xbf800000"]
    out += [f".globl {NAME}", ".p2align 8", f".type {NAME},@function", f"{NAME}:"]
    g.stamp(0)
    A("s_cmp_ge_u32 s2, 0x100"); A("s_cbranch_scc1 L_end")
    A(f"s_load_dwordx2 s[{SWQ}:{SWQ+1}], s[0:1], 24")
    if p.get("cpf", 1):
        A(f"s_getpc_b64 s[{sEX}:{sEX+1}]"); A(f"v_lshlrev_b32 v{vGW}, 4, v0")
        A(f"global_load_dword v{vGW}, v{vGW}, s[{sEX}:{sEX+1}]")
    A(f"s_load_dwordx2 s[{SX}:{SX+1}], s[0:1], 0")
    A(f"s_lshr_b32 s{sJ}, s2, 3")
    A(f"s_cmp_lt_u32 s{sJ}, 22")
    A(f"s_cselect_b32 s{sT0}, 8, 48"); A(f"s_cselect_b32 s{sT2}, 32, 64")
    A(f"s_load_dwordx4 s[4:7], s[0:1], s{sT0}")
    A(f"s_load_dwordx2 s[{S3}:{S3+1}], s[0:1], s{sT2}")
    A(f"s_load_dwordx2 s[{SGW}:{SGW+1}], s[0:1], 72")
    A(f"s_load_dwordx2 s[{SOUT}:{SOUT+1}], s[0:1], 80")
    A(f"s_load_dwordx2 s[{SWS}:{SWS+1}], s[0:1], 96")
    A(f"v_lshrrev_b32 v{vT}, 6, v0")
    A(f"v_and_b32 v{vL}, 63, v0")
    A(f"v_readfirstlane_b32 s{sW}, v{vT}")
    A(f"s_and_b32 s{sXCD}, s2, 7")
    A(f"v_lshrrev_b32 v{vR3}, 3, v{vL}")
    A(f"v_and_b32 v{vT+1}, 7, v{vL}")
    A(f"v_lshlrev_b32 v{vT+2}, 4, v{vT+1}")
    A(f"v_lshl_add_u32 v{vOWQ}, v{vR3}, 14, v{vT+2}")
    A(f"v_lshlrev_b32 v{vT+3}, 2, v{vR3}")
    A(f"s_bfe_u32 s{sT0}, s{sJ}, 0x20002"); A(f"s_mul_i32 s{sT0}, s{sT0}, 9"); A(f"s_add_u32 s{sT0}, s{sT0}, s{sW}")
    A(f"s_lshr_b32 s{sT1}, s{sJ}, 4"); A(f"s_lshl1_add_u32 s{sT1}, s{sXCD}, s{sT1}")
    A(f"s_and_b32 s{sT2}, s{sJ}, 3"); A(f"s_lshl2_add_u32 s{sT1}, s{sT1}, s{sT2}"); A(f"s_lshl_b32 s{sT1}, s{sT1}, 7")
    A(f"s_lshl_b32 s{sT2}, s{sT0}, 17"); A(f"s_add_u32 s{sT1}, s{sT1}, s{sT2}")
    A(f"s_add_u32 s{sT2}, s{sT1}, 8192")
    A(f"s_lshl_b32 s{sT0}, s{sT0}, 5")
    A(f"s_mov_b32 s{SWQ+2}, 4718592"); A(f"s_mov_b32 s{SWQ+3}, 0x20000")
    A(f"s_movk_i32 s{SX+2}, 1152"); A(f"s_mov_b32 s{SX+3}, s{SWQ+3}")
    vWQ = vV + 40
    A(f"v_mov_b32 v{vT+4}, 0")
    A(f"ds_write_b32 v{vT+4}, v{vT+4} offset:{L_CNT}")
    A("s_waitcnt lgkmcnt(0)")
    g.stamp(1)
    A(f"buffer_load_dwordx4 {v4(vWQ)}, v{vOWQ}, {srd(SWQ)}, s{sT1} offen {nt}"); g.vissue("wq0")
    A(f"buffer_load_dwordx4 {v4(vWQ+4)}, v{vOWQ}, {srd(SWQ)}, s{sT2} offen {nt}"); g.vissue("wq1")
    A(f"buffer_load_dword v{vX0}, v{vT+3}, {srd(SX)}, s{sT0} offen"); g.vissue("x0")
    A(f"s_load_dword s{sE}, s[{SWS}:{SWS+1}], {EPOCH}")
    A("s_barrier")
    A(f"s_mov_b64 s[{S1}:{S1+1}], s[4:5]"); A(f"s_mov_b64 s[{S2}:{S2+1}], s[6:7]")
    A(f"s_mov_b32 s{S1+3}, s{SWQ+3}")
    A(f"v_lshlrev_b32 v{vOV}, 4, v{vL}")
    A(f"s_cmp_ge_u32 s{sJ}, 22"); A("s_cbranch_scc1 L_setF")
    A(f"s_mov_b32 s{S1+2}, 0x10000000"); A(f"s_mov_b32 s{S3+2}, s{SWQ+2}")
    A(f"s_cmp_ge_u32 s{sJ}, 11"); A(f"s_cselect_b32 s{sT0}, 1, 0"); A(f"s_cselect_b32 s{sT1}, 11, 0")
    A(f"s_lshl1_add_u32 s{sHK}, s{sXCD}, s{sT0}")
    A(f"s_sub_u32 s{sSLOT}, s{sJ}, s{sT1}")
    A(f"s_min_u32 s{sBIAS}, s{sSLOT}, 1"); A(f"s_mul_i32 s{sT1}, s{sSLOT}, 93"); A(f"s_add_u32 s{sBIAS}, s{sBIAS}, s{sW}")
    A(f"s_add_u32 s{sT0}, s{sBIAS}, s{sT1}"); A(f"s_lshl_b32 s{sT0}, s{sT0}, 10")
    A(f"s_lshl_b32 s{sKO}, s{sHK}, 24"); A(f"s_add_u32 s{sKO}, s{sKO}, s{sT0}")
    A(f"s_add_u32 s{sKO}, s{sKO}, {61440*256}")
    A(f"s_movk_i32 s{sSTEP}, 8192")
    A(f"v_bfe_u32 v{vT}, v{vL}, 2, 2"); A(f"v_lshrrev_b32 v{vT+1}, 4, v{vL}"); A(f"v_and_b32 v{vT+3}, 3, v{vL}")
    A(f"v_lshlrev_b32 v{vOK}, 8, v{vT}"); A(f"v_lshl_add_u32 v{vOK}, v{vT+1}, 6, v{vOK}"); A(f"v_lshl_add_u32 v{vOK}, v{vT+3}, 4, v{vOK}")
    A(f"s_cmp_eq_u32 s{sW}, 8"); A(f"s_cselect_b32 s{sNOS}, 1, 0")
    A("s_branch L_set_done")
    g.lab("L_setF")
    A(f"s_mov_b32 s{S1+2}, 5308416"); A(f"s_mov_b32 s{S3+2}, s{S1+2}")
    A(f"s_mul_i32 s{sU}, s{sXCD}, 9"); A(f"s_mov_b32 s{sWE}, s{sW}")
    A(f"s_cmp_eq_u32 s{sJ}, 31"); A("s_cbranch_scc0 L_setF1")
    A(f"s_add_u32 s{sHK}, s{sU}, s{sW}")
    A(f"s_and_b32 s{sU}, s{sHK}, 0x78"); A(f"s_sub_u32 s{sU}, s{sU}, {9-3}")
    A(f"s_bfe_u32 s{sWE}, s{sHK}, 0x20001"); A(f"s_add_u32 s{sWE}, s{sWE}, 5")
    A(f"s_bitcmp1_b32 s{sHK}, 0"); A(f"s_cselect_b64 s[{S1}:{S1+1}], s[6:7], s[4:5]")
    g.lab("L_setF1")
    A(f"s_add_u32 s{sU}, s{sU}, s{sJ}"); A(f"s_sub_u32 s{sU}, s{sU}, 22")
    A(f"s_movk_i32 s{sT0}, 9216"); A(f"v_mad_u32_u24 v{vOK}, v{vR3}, s{sT0}, v{vT+2}")
    A(f"s_mul_i32 s{sKO}, s{sWE}, {8*9216}"); A(f"s_lshl_b32 s{sT0}, s{sU}, 7"); A(f"s_add_u32 s{sKO}, s{sKO}, s{sT0}")
    A(f"s_mov_b32 s{sSTEP}, {72*9216}")
    A(f"s_and_b32 s{sT0}, s{sU}, 7"); A(f"s_cmp_eq_u32 s{sT0}, 3"); A(f"s_cselect_b32 s{sT0}, s{sW}, 0")
    A(f"s_cmp_ge_u32 s{sT0}, {5 if p['helper'] else 99}"); A(f"s_cselect_b32 s{sMODE}, 1, 0")
    A(f"s_cmp_eq_u32 s{sJ}, 31"); A(f"s_cselect_b32 s{sMODE}, 2, s{sMODE}")
    A(f"s_cmp_eq_u32 s{sMODE}, {1 if p['helper'] else 2}")
    A(f"s_cselect_b32 s{sT0}, {OOB:#x}, 0")
    A(f"v_add_u32 v{vOK}, s{sT0}, v{vOK}")
    A(f"s_mov_b32 s{sNOS}, 0")
    g.lab("L_set_done")
    A(f"s_mov_b32 s{sRUN}, s{sKO}")
    def s1_issue(i):
        A(f"buffer_load_dwordx4 {v4(vK+4*i)}, v{vOK}, {srd(S1)}, s{sRUN} offen {nt}"); g.vissue(f"K{i}")
        A(f"s_add_u32 s{sRUN}, s{sRUN}, s{sSTEP}")
    N0 = min(p.get("N0", 2), NPRO)
    A(f"s_cmp_eq_u32 s{sNOS}, 1"); A("s_cbranch_scc1 L_touch8")
    for i in range(N0): s1_issue(i)
    A(f"s_cmp_lt_u32 s{sJ}, 22"); A("s_cbranch_scc0 L_touchF")
    g.lab("L_touched")
    A(f"s_mov_b64 s[{S2+2}:{S2+3}], s[{S1+2}:{S1+3}]"); A(f"s_mov_b32 s{S3+3}, s{SWQ+3}")
    A(f"s_mov_b32 s{SWS+2}, {(16<<20) if p['stamps'] else WS_USED}"); A(f"s_mov_b32 s{SWS+3}, s{SWQ+3}")
    A(f"v_and_b32 v{vT}, 1, v{vL}"); A(f"v_lshlrev_b32 v{vT}, 4, v{vT}")
    A(f"v_mov_b32 v{vT+1}, 0xffff"); A(f"v_lshlrev_b32 v{vT}, v{vT}, v{vT+1}")
    A(f"v_bfe_u32 v{vT+1}, v{vL}, 1, 2")
    for j in range(4): A(f"v_cmp_eq_u32 s[{sM0+2*j}:{sM0+2*j+1}], {j}, v{vT+1}")
    A(f"s_mov_b32 s{sSEL0}, 0x01000100"); A(f"s_mov_b32 s{sSEL1}, 0x03020302")
    for j in range(4): A(f"v_cndmask_b32 v{vM+j}, 0, v{vT}, s[{sM0+2*j}:{sM0+2*j+1}]")
    A(f"v_lshrrev_b32 v{vT}, 5, v{vL}"); A(f"v_and_b32 v{vT+3}, 16, v{vL}")
    A(f"v_lshl_add_u32 v{vLT}, v{vT+2}, 1, v{vT+3}")
    A(f"v_lshl_add_u32 v{vOFP}, v{vT}, 3, v{vLT}")
    A(f"v_lshl_add_u32 v{vLT}, v{vT}, 8, v{vLT}")
    A(f"s_movk_i32 s{sT0}, 1152"); A(f"v_mad_u32_u24 v{vOT}, v{vR3}, s{sT0}, v{vT+2}")
    A(f"s_lshl_b32 s{sT0}, s{sW}, 9"); A(f"v_add_u32 v{vT+2}, s{sT0}, v{vLT}")
    A(f"s_cmp_eq_u32 s{sNOS}, 1"); A("s_cbranch_scc0 L_w1")
    A("s_waitcnt vmcnt(0)")
    g.lab("L_w1")
    g.vwait("x0")
    g.stamp(2)
    A(f"v_perm_b32 v{vT}, v{vX0}, v{vX0}, s{sSEL0}"); A(f"v_perm_b32 v{vT+1}, v{vX0}, v{vX0}, s{sSEL1}")
    build_A(g, vA, vT); build_A(g, vA+4, vT+1)
    A("s_cbranch_scc1 L_w2")
    for i in range(N0, NPRO): s1_issue(i)
    g.lab("L_w2")
    A(f"v_mov_b32 v{vT+5}, 1")
    A(f"{MF} {v4(vACC)}, {v4(vA)}, {v4(vWQ)}, 0")
    A(f"{MF} {v4(vACC)}, {v4(vA+4)}, {v4(vWQ+4)}, {v4(vACC)}")
    setexec(g, 0x00ff00ff, 0xff00ff00)
    A("s_waitcnt lgkmcnt(0)")
    A(f"s_mul_i32 s{sTAG}, s{sE}, 0x9e3779b1"); A(f"s_add_u32 s{sTAG}, s{sTAG}, 0x7f4a7c15")
    A(f"s_lshl_b32 s{sOO}, s{sW}, 7")
    A("s_nop 1")
    A(f"ds_write_b128 v{vT+2}, {v4(vACC)} offset:{L_QP}")
    A("s_mov_b64 exec, 1")
    A(f"ds_add_u32 v{vT+4}, v{vT+5} offset:{L_CNT}")
    A("s_mov_b64 exec, -1")
    A(f"s_cmp_lg_u32 s{sW}, 8"); A("s_cbranch_scc1 L_nopub")
    base = vV
    A(f"v_lshlrev_b32 v{vT}, 2, v{vL}")
    A(f"s_lshl_b32 s{sT0}, s{sXCD}, 5"); A(f"s_add_u32 s{sT0}, s{sT0}, s{sJ}")
    A(f"s_lshl_b32 s{sT0}, s{sT0}, 8"); A(f"s_add_u32 s{sT0}, s{sT0}, {QB}"); A(f"s_add_u32 s{sT1}, s{sT0}, {AOFF}")
    A(f"v_and_b32 v{vT+1}, 3, v{vL}"); A(f"v_lshlrev_b32 v{vT+1}, 3, v{vT+1}"); A(f"v_mov_b32 v{vT+6}, s{sTAG}")
    A(f"v_lshrrev_b32 v{vT+1}, v{vT+1}, v{vT+6}"); A(f"s_movk_i32 s{sFF}, 0xff")
    g.lab("L_cnt")
    A(f"ds_read_b32 v{vT+6}, v{vT+4} offset:{L_CNT}")
    A("s_waitcnt lgkmcnt(0)")
    A(f"v_cmp_ne_u32 vcc, 9, v{vT+6}")
    A("s_cbranch_vccnz L_cnt")
    for k in range(9): A(f"ds_read2st64_b32 {v2(base+2*k)}, v{vT} offset0:{2*k} offset1:{2*k+1}")
    A("s_waitcnt lgkmcnt(0)")
    for a, b in ((0,1),(2,3),(4,5),(6,7),(0,2),(4,6),(0,4),(0,8)):
        A(f"v_pk_add_f32 {v2(base+2*a)}, {v2(base+2*a)}, {v2(base+2*b)}")
    A(f"v_add_f32 v{vT+8}, v{base}, v{base+1}")
    A(f"v_bfi_b32 v{vT+8}, s{sFF}, v{vT+1}, v{vT+8}")
    A(f"buffer_store_dword v{vT+8}, v{vT}, {srd(SWS)}, s{sT1} offen")
    A(f"buffer_store_dword v{vT+8}, v{vT}, {srd(SWS)}, s{sT0} offen sc1")
    g.stamp(3)
    A(f"s_cmp_lt_u32 s{sJ}, 22"); A("s_cbranch_scc1 L_attn8")
    g.lab("L_nopub")
    A(f"s_cmp_ge_u32 s{sJ}, 22"); A("s_cbranch_scc1 L_notattn")
    pre = list(g.vm)
    def attn_consts():
        A(f"s_lshl_b32 s{sT0}, s{sHK}, 5"); A(f"s_add_u32 s{sT0}, s{sT0}, s{sSLOT}"); A(f"s_mul_i32 s{sT0}, s{sT0}, 9216")
        A(f"s_add_u32 s{sOO}, s{sOO}, s{sT0}")
        A(f"s_mul_i32 s{sPI}, s{sHK}, 11"); A(f"s_add_u32 s{sPI}, s{sPI}, s{sSLOT}")
        fpub_consts(g)
        A(f"s_cmp_lt_u32 s{sSLOT}, 10"); A(f"s_cselect_b32 s{sT0}, 0, {OOB:#x}")
        A(f"v_add_u32 v{vOD}, s{sT0}, v{vOT}")
        A(f"v_and_b32 v{vT}, 15, v{vL}"); A(f"v_lshrrev_b32 v{vT+1}, 4, v{vL}")
        A(f"v_lshlrev_b32 v{vOU}, 11, v{vT}"); A(f"v_lshl_add_u32 v{vOU}, v{vT+1}, 4, v{vOU}")
    A(f"s_cmp_lt_u32 s{sBIAS}, 6"); A(f"s_cselect_b32 s{sT0}, 0, {OOB:#x}"); A(f"s_cselect_b32 s{sBIAS}, 0, {f2u(-1e30):#x}")
    A(f"v_add_u32 v{vOKL}, s{sT0}, v{vOK}"); A(f"v_add_u32 v{vOVL}, s{sT0}, v{vOV}")
    seq = [("K", i) for i in range(12)] + [("V", i) for i in range(12)] + [("O", i) for i in range(3)]
    pos = [NPRO]; land = [0]; vdone = [-1]
    def can_issue():
        if pos[0] >= len(seq): return False
        kind, i = seq[pos[0]]
        return kind != "O" or i <= vdone[0]
    def issue():
        kind, i = seq[pos[0]]; pos[0] += 1
        if kind == "O":
            A(f"buffer_load_dwordx4 {v4(vV+4*i)}, v{vOD if i == 2 else vOT}, {srd(S3)}, s{sOO} offen {nt}")
            if i < 2: A(f"s_add_u32 s{sOO}, s{sOO}, {11*9216}")
        else:
            off = {("K", True): vOKL, ("K", False): vOK, ("V", True): vOVL, ("V", False): vOV}[(kind, i == 11)]
            A(f"buffer_load_dwordx4 {v4((vK if kind == 'K' else vV)+4*i)}, v{off}, {srd(S1 if kind == 'K' else S2)}, s{sRUN} offen {nt}")
            if i < 11: A(f"s_add_u32 s{sRUN}, s{sRUN}, s{sSTEP}")
            elif kind == "K": A(f"s_mov_b32 s{sRUN}, s{sKO}")
        g.vissue(f"{kind}{i}")
    def refill():
        while pos[0] - land[0] < WA and can_issue(): issue()
    def step():
        kind, i = seq[land[0]]; land[0] += 1
        g.vwait(f"{kind}{i}")
        if f"{kind}{i}" in PROG: g.stamp(PROG[f"{kind}{i}"], True)
        refill()
    nmid = [p["nmid"]]
    def mid():
        if nmid[0] > 0 and can_issue(): issue(); nmid[0] -= 1; return True
        return False
    refill()
    step(); attn_consts()
    while land[0] < 12 + p["bpos"] + 1: step()
    g.stamp(3)
    A(f"v_and_b32 v{vT}, 0xf0, v{vOK}"); A(f"v_and_b32 v{vT+1}, 1, v{vR3}")
    A(f"v_lshl_add_u32 v{vT}, v{vT+1}, 8, v{vT}")
    A("s_barrier")
    A(f"ds_read_b128 {v4(vA)}, v{vT} offset:{L_Q}")
    A(f"s_mov_b32 s{sC}, {f2u(128**-0.5 * 1.4426950408889634):#x}")
    A(f"v_lshlrev_b32 v{vT+1}, 5, v{vT+1}"); A(f"s_lshl_b32 s{sT0}, s{sW}, 2"); A(f"v_add_u32 v{vT+3}, s{sT0}, v{vT+1}")
    A("s_waitcnt lgkmcnt(0)")
    for i in range(12): A(f"{MF} {v4(vK+4*i)}, {v4(vK+4*i)}, {v4(vA)}, 0")
    for i in range(12): A(f"v_mov_b32_dpp v{vP+i}, v{vK+4*i} quad_perm:[0,0,0,0] {DPP}")
    for r in (1, 2, 3):
        if r == 2: mid()
        for i in range(12): A(f"v_add_f32_dpp v{vP+i}, v{vK+4*i+r}, v{vP+i} quad_perm:[{r},{r},{r},{r}] {DPP}")
    A(f"v_add_f32 v{vP+11}, s{sBIAS}, v{vP+11}")
    A(f"v_max3_f32 v{vT}, v{vP}, v{vP+1}, v{vP+2}")
    for i in range(3, 11, 2): A(f"v_max3_f32 v{vT}, v{vT}, v{vP+i}, v{vP+i+1}")
    A(f"v_max_f32 v{vT}, v{vT}, v{vP+11}")
    crossrow(g, "v_max_f32", vT, vT+2)
    setexec(g, 0x101, 0)
    A(f"ds_write_b32 v{vT+3}, v{vT} offset:{L_M}")
    A("s_mov_b64 exec, -1")
    mid()
    A("s_waitcnt lgkmcnt(0)")
    A("s_barrier")
    A(f"ds_read_b128 {v4(vA)}, v{vT+1} offset:{L_M}"); A(f"ds_read_b128 {v4(vA+4)}, v{vT+1} offset:{L_M+16}")
    A(f"v_and_b32 v{vT+5}, 15, v{vL}"); A(f"v_lshlrev_b32 v{vT+5}, 5, v{vT+5}")
    A(f"v_and_b32 v{vT+6}, 16, v{vL}"); A(f"v_add_u32 v{vT+5}, v{vT+5}, v{vT+6}")
    A(f"v_lshrrev_b32 v{vT+6}, 5, v{vL}"); A(f"v_lshl_add_u32 v{vT+5}, v{vT+6}, 9, v{vT+5}")
    A(f"s_lshl_b32 s{sT0}, s{sW}, 10"); A(f"v_add_u32 v{vT+5}, s{sT0}, v{vT+5}")
    A("s_waitcnt lgkmcnt(0)")
    A(f"v_max3_f32 v{vT}, v{vA}, v{vA+1}, v{vA+2}"); A(f"v_max3_f32 v{vT}, v{vT}, v{vA+3}, v{vA+4}")
    A(f"v_max3_f32 v{vT}, v{vT}, v{vA+5}, v{vA+6}"); A(f"v_max_f32 v{vT}, v{vT}, v{vA+7}")
    A(f"v_mul_f32 v{vT}, s{sC}, v{vT}")
    for i in range(12): A(f"v_fma_f32 v{vP+i}, v{vP+i}, s{sC}, -v{vT}")
    for i in range(12): A(f"v_exp_f32 v{vP+i}, v{vP+i}")
    if not mid(): A("s_nop 0")
    A(f"v_add_f32 v{vT+4}, v{vP}, v{vP+1}")
    for i in range(2, 12): A(f"v_add_f32 v{vT+4}, v{vT+4}, v{vP+i}")
    for i in range(12): A(f"v_cvt_pk_bf16_f32 v{vP+i}, v{vP+i}, v{vP+i}")
    crossrow(g, "v_add_f32", vT+4, vT+2)
    setexec(g, 0x101, 0)
    A(f"ds_write_b32 v{vT+3}, v{vT+4} offset:{L_L}")
    A("s_mov_b64 exec, -1")
    mid()
    for i in range(12): build_A(g, vK+4*i, vP+i)
    g.stamp(4)
    for i in range(12):
        if land[0] <= 12 + i:
            land[0] += 1; g.vwait(f"V{i}")
            if f"V{i}" in PROG: g.stamp(PROG[f"V{i}"], True)
        A(f"{MF} {v4(vACC)}, {v4(vK+4*i)}, {v4(vV+4*i)}, {'0' if i == 0 else v4(vACC)}")
        vdone[0] = i
        refill()
    assert pos[0] == len(seq)
    g.stamp(5)
    A("s_nop 7")
    A(f"ds_write_b128 v{vT+5}, {v4(vACC)} offset:{L_O}")
    A("s_waitcnt lgkmcnt(0)")
    g.lab("L_barC")
    A("s_barrier")
    A(f"s_cmp_lt_u32 s{sW}, 3"); A("s_cbranch_scc1 L_ogather")
    A(f"s_sub_u32 s{sT0}, s{sW}, 6"); A(f"s_cmp_lt_u32 s{sT0}, 2"); A("s_cbranch_scc0 L_barD")
    A(f"s_lshl_b32 s{sT1}, s{sT0}, 9"); A(f"v_lshl_add_u32 v{vT+2}, v{vL}, 3, s{sT1}")
    for w in range(8): A(f"ds_read_b64 {v2(vK+2*w)}, v{vT+2} offset:{L_O+1024*w}") if w else None
    A(f"s_lshl_b32 s{sT1}, s{sT0}, 5"); A(f"v_mov_b32 v{vT+1}, s{sT1}")
    A(f"ds_read_b128 {v4(vA)}, v{vT+1} offset:{L_L}"); A(f"ds_read_b128 {v4(vA+4)}, v{vT+1} offset:{L_L+16}")
    A(f"ds_read_b128 {v4(vP)}, v{vT+1} offset:{L_M}"); A(f"ds_read_b128 {v4(vP+4)}, v{vT+1} offset:{L_M+16}")
    A(f"ds_read_b64 {v2(vK)}, v{vT+2} offset:{L_O}")
    A(f"s_lshl4_add_u32 s{sT1}, s{sHK}, s{sSLOT}"); A(f"s_lshl1_add_u32 s{sT1}, s{sT1}, s{sT0}"); A(f"s_lshl_b32 s{sT1}, s{sT1}, 10")
    A(f"s_add_u32 s{sT1}, s{sT1}, {OB}"); A(f"s_add_u32 s{sT2}, s{sT1}, {AOFF}")
    A(f"v_mov_b32 v{vACC+3}, s{sTAG}")
    A("s_waitcnt lgkmcnt(5)")
    for a, b in ((2,3),(4,5),(6,7),(1,2),(4,6),(1,4)):
        A(f"v_pk_add_f32 {v2(vK+2*a)}, {v2(vK+2*a)}, {v2(vK+2*b)}")
    A("s_waitcnt lgkmcnt(0)")
    A(f"v_pk_add_f32 {v2(vA)}, {v2(vA)}, {v2(vA+2)}"); A(f"v_pk_add_f32 {v2(vA+4)}, {v2(vA+4)}, {v2(vA+6)}")
    A(f"v_max3_f32 v{vT}, v{vP}, v{vP+1}, v{vP+2}")
    A(f"v_pk_add_f32 {v2(vA)}, {v2(vA)}, {v2(vA+4)}")
    A(f"v_max3_f32 v{vT}, v{vT}, v{vP+3}, v{vP+4}")
    A(f"v_add_f32 v{vA}, v{vA}, v{vA+1}")
    A(f"v_max3_f32 v{vT}, v{vT}, v{vP+5}, v{vP+6}")
    A(f"v_rcp_f32 v{vA+2}, v{vA}"); A(f"v_log_f32 v{vA+4}, v{vA}")
    A(f"v_max_f32 v{vT}, v{vT}, v{vP+7}")
    A(f"v_pk_add_f32 {v2(vK)}, {v2(vK)}, {v2(vK+2)}")
    A(f"v_fma_f32 v{vACC+2}, v{vT}, s{sC}, v{vA+4}")
    A(f"v_mul_f32 v{vACC}, v{vK}, v{vA+2}"); A(f"v_mul_f32 v{vACC+1}, v{vK+1}, v{vA+2}")
    A(f"buffer_store_dwordx4 {v4(vACC)}, v{vOV}, {srd(SWS)}, s{sT2} offen")
    A(f"buffer_store_dwordx4 {v4(vACC)}, v{vOV}, {srd(SWS)}, s{sT1} offen sc1")
    g.stamp(6)
    A("s_waitcnt vmcnt(2)")
    A(f"v_lshlrev_b32 v{vT}, 2, v{vR3}")
    A("s_branch L_barD2")
    g.lab("L_ogather")
    A(f"s_mul_i32 s{sT0}, s{sW}, 11"); A(f"s_add_u32 s{sT0}, s{sT0}, s{sSLOT}")
    A(f"s_lshl_b32 s{sT1}, s{sHK}, 15"); A(f"s_lshl_b32 s{sT2}, s{sT0}, 6"); A(f"s_add_u32 s{sT1}, s{sT1}, s{sT2}"); A(f"s_add_u32 s{sT2}, s{sT1}, {OB}")
    A(f"s_add_u32 s{sT1}, s{sT2}, {AOFF}")
    A(f"v_mov_b32 v{vA}, 0"); A(f"v_mov_b32 v{vA+1}, 0"); A(f"v_mov_b32 v{vA+2}, {f2u(-1e30):#x}")
    A(f"v_lshrrev_b32 v{vT+1}, 4, v{vL}")
    A(f"s_lshl_b32 s{sT3}, s{sW}, 5"); A(f"v_lshl_add_u32 v{vT+3}, v{vT+1}, 3, s{sT3}")
    A(f"s_mov_b32 s{sSPIN}, {SPIN}")
    A(f"s_cmp_ge_u32 s{sT0}, 32"); A("s_cbranch_scc1 L_owrite")
    setexec(g, 0x07ff07ff, 0x07ff07ff)
    g.lab("L_opoll")
    A(f"buffer_load_dwordx4 {v4(vA)}, v{vOU}, {srd(SWS)}, s{sT1} offen sc1")
    A(f"s_sub_u32 s{sSPIN}, s{sSPIN}, 1"); A("s_cbranch_scc1 L_opoll_end")
    A(f"s_cmp_eq_u32 s{sSPIN}, {SW}"); A(f"s_cselect_b32 s{sT1}, s{sT2}, s{sT1}")
    A("s_waitcnt vmcnt(0)")
    A(f"v_cmpx_ne_u32 vcc, s{sTAG}, v{vA+3}")
    A("s_cbranch_execnz L_opoll")
    g.lab("L_opoll_end")
    A("s_mov_b64 exec, -1")
    g.stamp(6)
    A(f"v_mov_b32 v{vT+4}, v{vA+2}")
    A("s_nop 1")
    rowred(g, "v_max_f32", [vT+4])
    A(f"v_sub_f32 v{vA+2}, v{vA+2}, v{vT+4}")
    A(f"v_exp_f32 v{vA+2}, v{vA+2}")
    A("s_nop 0")
    A(f"v_mul_f32 v{vA}, v{vA}, v{vA+2}"); A(f"v_mul_f32 v{vA+1}, v{vA+1}, v{vA+2}")
    A("s_nop 0")
    rowred(g, "v_add_f32", [vA+2, vA, vA+1])
    A(f"v_rcp_f32 v{vA+2}, v{vA+2}")
    A("s_nop 0")
    A(f"v_mul_f32 v{vA}, v{vA}, v{vA+2}"); A(f"v_mul_f32 v{vA+1}, v{vA+1}, v{vA+2}")
    A(f"v_cvt_pk_bf16_f32 v{vA}, v{vA}, v{vA}"); A(f"v_cvt_pk_bf16_f32 v{vA+1}, v{vA+1}, v{vA+1}")
    g.lab("L_owrite")
    setexec(g, 0x00010001, 0x00010001)
    A(f"ds_write_b64 v{vT+3}, {v2(vA)} offset:{L_C}")
    A("s_mov_b64 exec, -1")
    g.lab("L_barD")
    A(f"v_lshlrev_b32 v{vT}, 2, v{vR3}")
    A("s_waitcnt vmcnt(0) lgkmcnt(0)")
    g.lab("L_barD2")
    A("s_barrier")
    g.stamp(8)
    for i in range(3): A(f"ds_read_b32 v{vP+i}, v{vT} offset:{L_C+32*i}")
    A("s_waitcnt lgkmcnt(0)")
    for i in range(3): build_A(g, vK+4*i, vP+i)
    for i in range(3): A(f"{MF} {v4(vACC+4)}, {v4(vK+4*i)}, {v4(vV+4*i)}, {'0' if i == 0 else v4(vACC+4)}")
    fpublish(g, vACC+4)
    g.stamp(7)
    A("s_endpgm" if not p["stamps"] else "s_branch L_fin")
    g.lab("L_touch8"); A("s_branch L_touched")
    g.lab("L_attn8")
    if p["prio"]: A("s_setprio 3")
    attn_consts()
    A(f"s_lshl_b32 s{sT2}, s{sHK}, 12"); A(f"s_add_u32 s{sT2}, s{sT2}, {QB}"); A(f"s_add_u32 s{sT0}, s{sT2}, {AOFF}")
    A(f"s_mov_b32 s{sSPIN}, {SPIN}")
    tagsel(g)
    if p.get("qsleep0"): A(f"s_sleep {p['qsleep0']}")
    g.lab("L_qpoll")
    A(f"s_sleep {p['qsleep']}")
    for rg in range(4):
        A(f"buffer_load_dwordx4 {v4(vK+4*rg)}, v{vOV}, {srd(SWS)}, s{sT0} offen offset:{rg*1024} sc1")
    A(f"s_sub_u32 s{sSPIN}, s{sSPIN}, 1"); A("s_cbranch_scc1 L_qpoll_end")
    A(f"s_cmp_eq_u32 s{sSPIN}, {max(SPIN-p['apolls']//4,0)}"); A(f"s_cselect_b32 s{sT0}, s{sT2}, s{sT0}")
    A("s_waitcnt vmcnt(0)")
    for rg in range(4): tagcheck(g, vK+4*rg, vT+2*rg)
    for rg in range(4): A(f"v_xor_b32 v{vT+2*rg}, s{sTAG}, v{vT+2*rg}")
    A(f"v_or3_b32 v{vT}, v{vT}, v{vT+2}, v{vT+4}"); A(f"v_or_b32 v{vT}, v{vT}, v{vT+6}")
    A(f"v_cmp_ne_u32 vcc, 0, v{vT}")
    A("s_cbranch_vccnz L_qpoll")
    g.lab("L_qpoll_end")
    for k in (0, 2):
        A(f"v_pk_add_f32 {v2(vK+k)}, {v2(vK+k)}, {v2(vK+4+k)}"); A(f"v_pk_add_f32 {v2(vK+8+k)}, {v2(vK+8+k)}, {v2(vK+12+k)}")
    for k in (0, 2): A(f"v_pk_add_f32 {v2(vK+k)}, {v2(vK+k)}, {v2(vK+8+k)}")
    A(f"v_cvt_pk_bf16_f32 v{vK}, v{vK}, v{vK+1}"); A(f"v_cvt_pk_bf16_f32 v{vK+1}, v{vK+2}, v{vK+3}")
    A(f"v_lshlrev_b32 v{vT}, 3, v{vL}")
    A(f"ds_write_b64 v{vT}, {v2(vK)} offset:{L_Q}")
    A("s_waitcnt lgkmcnt(0)")
    g.stamp(4)
    A("s_barrier")
    if p["pretouch"]:
        A(f"s_lshl4_add_u32 s{sT1}, s{sHK}, s{sSLOT}"); A(f"s_lshl_b32 s{sT1}, s{sT1}, 11"); A(f"s_add_u32 s{sT1}, s{sT1}, {OB+AOFF}")
        A(f"v_lshlrev_b32 v{vT}, 7, v{vL}")
        setexec(g, 0xffff, 0)
        A(f"buffer_load_dword v{vT+1}, v{vT}, {srd(SWS)}, s{sT1} offen sc1")
        A("s_mov_b64 exec, -1")
    A("s_barrier")
    for i in range(3):
        A(f"buffer_load_dwordx4 {v4(vV+4*i)}, v{vOD if i == 2 else vOT}, {srd(S3)}, s{sOO} offen {nt}")
        if i < 2: A(f"s_add_u32 s{sOO}, s{sOO}, {11*9216}")
    A("s_branch L_barC")
    g.lab("L_touchF"); A("s_branch L_touched")
    g.lab("L_notattn")
    if not p["helper"]:
        A(f"s_cmp_eq_u32 s{sJ}, 31"); A("s_cbranch_scc1 L_fin")
    g.vm = list(pre)
    A(f"v_and_b32 v{vT+1}, 7, v{vL}"); A(f"v_mad_u32_u24 v{vT}, v{vR3}, 64, v{vT+1}"); A(f"v_lshl_add_u32 v{vT}, v{vR3}, 3, v{vT}")
    A(f"v_lshlrev_b32 v{vT}, 1, v{vT}"); A(f"s_lshl_b32 s{sT0}, s{sWE}, 4")
    A(f"s_mov_b64 s[{SGW+2}:{SGW+3}], s[{SX+2}:{SX+3}]"); A(f"s_mov_b64 s[{SOUT+2}:{SOUT+3}], s[{SX+2}:{SX+3}]")
    A(f"buffer_load_ushort v{vXG}, v{vT}, {srd(SX)}, s{sT0} offen"); g.vissue("xg")
    A(f"buffer_load_ushort v{vGW}, v{vT}, {srd(SGW)}, s{sT0} offen"); g.vissue("gw")
    A(f"s_cmp_eq_u32 s{sMODE}, 2"); A(f"s_cselect_b32 s{sT0}, {OOB:#x}, 0")
    A(f"v_or_b32 v{vOU}, s{sT0}, v{vOK}"); A(f"v_or_b32 v{vOD}, s{sT0}, v{vOT}")
    dm = p["dmix"]
    fseq = [("K", t) for t in range(8)] + [("U", t) for t in range(8)]
    if dm:
        o = []; di = 0
        for idx, e in enumerate(fseq):
            o.append(e)
            if idx >= NPRO and (idx % 2 == 1) and di < dm: o.append(("D", di)); di += 1
        fseq = o + [("D", t) for t in range(di, 8)]
    else: fseq += [("D", t) for t in range(8)]
    def greg(kind, t): return {"K": vK+4*t, "U": vK+32+4*t, "D": vV+16+4*t}[kind]
    fpos = [NPRO]
    def fissue():
        kind, t = fseq[fpos[0]]; fpos[0] += 1
        if kind == "D":
            A(f"buffer_load_dwordx4 {v4(greg(kind,t))}, v{vOD}, {srd(S3)}, s{sOO} offen {nt}")
            if t < 7: A(f"s_add_u32 s{sOO}, s{sOO}, 9216")
        else:
            A(f"buffer_load_dwordx4 {v4(greg(kind,t))}, v{vOK if kind == 'K' else vOU}, {srd(S1 if kind == 'K' else S2)}, s{sRUN} offen {nt}")
            if t < 7: A(f"s_add_u32 s{sRUN}, s{sRUN}, s{sSTEP}")
            elif kind == "K": A(f"s_mov_b32 s{sRUN}, s{sKO}")
        g.vissue(f"{kind}{t}")
    A(f"s_mul_i32 s{sT0}, s{sU}, {64*1152}"); A(f"s_add_u32 s{sOO}, s{sOO}, s{sT0}")
    A(f"s_add_u32 s{sPI}, s{sU}, 176")
    fpub_consts(g)
    fl = 0
    while fpos[0] < WF: fissue()
    for idx in range(NPRO):
        g.vwait(f"K{idx}"); fl = idx + 1
        while fpos[0] - fl < WF: fissue()
    g.vwait("gw")
    A(f"v_lshl_or_b32 v{vT+4}, v{vXG}, 16, v{vXG}")
    A(f"v_lshlrev_b32 v{vT+5}, 2, v{vR3}")
    for t in range(8): A(f"ds_bpermute_b32 v{vP+t}, v{vT+5}, v{vT+4} offset:{32*t}")
    A(f"v_lshlrev_b32 v{vXG}, 16, v{vXG}"); A(f"v_lshlrev_b32 v{vGW}, 16, v{vGW}")
    A(f"v_mul_f32 v{vXG}, v{vXG}, v{vGW}")
    bf16r(g, vXG, vXG)
    rowred(g, "v_add_f32", [vXG]); crossrow(g, "v_add_f32", vXG, vT)
    A(f"s_lshl_b32 s{sT0}, s{sW}, 2"); A(f"v_mov_b32 v{vT+3}, s{sT0}")
    A("s_mov_b64 exec, 1")
    A(f"ds_write_b32 v{vT+3}, v{vXG} offset:{L_Z}")
    A("s_mov_b64 exec, -1")
    A("s_waitcnt lgkmcnt(0)")
    ng = 0
    for idx, (kind, t) in enumerate(fseq):
        if ng == 16: break
        if kind != "D": build_A(g, vA+4*(ng & 1), vP+t)
        k = 0
        if idx >= fl:
            g.vwait(f"{kind}{t}"); fl = idx + 1; k = 1
            while fpos[0] - fl < WF and fpos[0] < len(fseq): fissue(); k += 1
        if kind != "D":
            if k < 2: A(f"s_nop {1-k}")
            acc = vACC if kind == "K" else vACC+4
            A(f"{MF} {v4(acc)}, {v4(vA+4*(ng&1))}, {v4(greg(kind,t))}, {'0' if t == 0 else v4(acc)}")
            ng += 1
    g.stamp(4)
    if p["helper"]:
        A(f"s_cmp_eq_u32 s{sMODE}, 2"); A("s_cbranch_scc0 L_noth")
        A(f"s_lshl_b32 s{sPI}, s{sHK}, 8"); A(f"s_add_u32 s{sPI}, s{sPI}, {HB}")
        fpublish(g, vACC, acopy=False)
        A("s_branch L_fin")
        g.lab("L_noth")
    A(f"s_lshl_b32 s{sT0}, s{sW}, 9"); A(f"v_add_u32 v{vT+2}, s{sT0}, v{vOFP}")
    A(f"v_permlane32_swap_b32 v{vACC}, v{vACC+2}"); A(f"v_permlane32_swap_b32 v{vACC+1}, v{vACC+3}")
    A("s_nop 1")
    A(f"v_add_f32_dpp v{vACC}, v{vACC+2}, v{vACC} row_ror:8 {DPP}"); A(f"v_add_f32_dpp v{vACC+1}, v{vACC+3}, v{vACC+1} row_ror:8 {DPP}")
    A(f"v_permlane32_swap_b32 v{vACC+4}, v{vACC+6}"); A(f"v_permlane32_swap_b32 v{vACC+5}, v{vACC+7}")
    A("s_nop 0")
    A(f"v_add_f32_dpp v{vACC+4}, v{vACC+6}, v{vACC+4} row_ror:8 {DPP}"); A(f"v_add_f32_dpp v{vACC+5}, v{vACC+7}, v{vACC+5} row_ror:8 {DPP}")
    setexec(g, 0x00ff00ff, 0x00ff00ff)
    A(f"ds_write_b64 v{vT+2}, {v2(vACC)} offset:{L_O}")
    A(f"ds_write_b64 v{vT+2}, {v2(vACC+4)} offset:{L_O+256}")
    A("s_mov_b64 exec, -1")
    if p["helper"]:
        A(f"s_cmp_eq_u32 s{sMODE}, 1"); A("s_cbranch_scc0 L_barE")
        A(f"s_and_b32 s{sT1}, s{sU}, 0x78"); A(f"s_lshl1_add_u32 s{sT1}, s{sW}, s{sT1}"); A(f"s_lshl_b32 s{sT1}, s{sT1}, 8")
        A(f"s_add_u32 s{sT1}, s{sT1}, {HB - 10*256}")
        A(f"v_add_u32 v{vT+3}, s{sT0}, v{vOV}")
        A(f"s_mov_b32 s{sSPIN}, {SPIN}")
        tagsel(g)
        A("s_mov_b32 exec_hi, 0")
        g.lab("L_hpoll")
        A(f"s_sleep {p['hsleep']}")
        A(f"buffer_load_dwordx4 {v4(vA)}, v{vOV}, {srd(SWS)}, s{sT1} offen sc1")
        A(f"s_sub_u32 s{sSPIN}, s{sSPIN}, 1"); A("s_cbranch_scc1 L_hpoll_end")
        A("s_waitcnt vmcnt(0)")
        tagcheck(g, vA, vT+4)
        A(f"v_cmp_ne_u32 vcc, s{sTAG}, v{vT+4}")
        A("s_cbranch_vccnz L_hpoll")
        g.lab("L_hpoll_end")
        A(f"ds_write_b128 v{vT+3}, {v4(vA)} offset:{L_O}")
        A("s_mov_b64 exec, -1")
        g.lab("L_barE")
    A(f"v_lshlrev_b32 v{vT}, 3, v{vL}")
    A(f"v_lshrrev_b32 v{vT+1}, 1, v{vR3}"); A(f"v_and_b32 v{vT+2}, 1, v{vR3}"); A(f"v_lshlrev_b32 v{vT+1}, 2, v{vT+1}")
    A(f"v_lshl_add_u32 v{vT+1}, v{vT+2}, 7, v{vT+1}")
    A("s_waitcnt lgkmcnt(0)")
    A("s_barrier")
    for w in range(9): A(f"ds_read_b64 {v2(vK+2*w)}, v{vT} offset:{L_O+512*w}")
    if fpos[0] < len(fseq): fissue()
    A("s_waitcnt lgkmcnt(0)")
    for a, b in ((0,1),(2,3),(4,5),(6,7),(0,2),(4,6),(0,4),(0,8)):
        A(f"v_pk_add_f32 {v2(vK+2*a)}, {v2(vK+2*a)}, {v2(vK+2*b)}")
    A("s_nop 1")
    A(f"v_permlane32_swap_b32 v{vK}, v{vK+1}")
    A("s_nop 0")
    A(f"v_cvt_pk_bf16_f32 v{vK+2}, v{vK}, v{vK+1}")
    A(f"v_lshlrev_b32 v{vK}, 16, v{vK+2}"); A(f"v_and_b32 v{vK+1}, 0xffff0000, v{vK+2}")
    A(f"v_mul_f32 v{vK+2}, {f2u(-1.4426950408889634):#x}, v{vK}")
    A(f"v_exp_f32 v{vK+2}, v{vK+2}"); A("s_nop 0")
    A(f"v_add_f32 v{vK+2}, 1.0, v{vK+2}")
    A(f"v_rcp_f32 v{vK+2}, v{vK+2}"); A("s_nop 0")
    A(f"v_mul_f32 v{vK}, v{vK}, v{vK+2}")
    bf16r(g, vK, vK)
    A(f"v_mul_f32 v{vK}, v{vK}, v{vK+1}")
    A(f"v_cvt_pk_bf16_f32 v{vK}, v{vK}, v{vK}")
    for t in range(8): A(f"ds_bpermute_b32 v{vP+t}, v{vT+1}, v{vK} offset:{16*t}")
    while fpos[0] < len(fseq): fissue()
    A("s_waitcnt lgkmcnt(0)")
    for t in range(8): build_A(g, vK+16+4*t, vP+t)
    g.stamp(5)
    for t in range(8):
        g.vwait(f"D{t}")
        A(f"{MF} {v4(vACC)}, {v4(vK+16+4*t)}, {v4(greg('D',t))}, {'0' if t == 0 else v4(vACC)}")
    g.stamp(6)
    fpublish(g, vACC)
    g.stamp(7)
    A(f"v_and_b32 v{vT}, 31, v{vL}"); A(f"v_lshrrev_b32 v{vT+1}, 5, v{vL}")
    A(f"v_mul_u32_u24 v{vT+2}, {FROW}, v{vT}"); A(f"v_lshl_add_u32 v{vT+2}, v{vT+1}, 4, v{vT+2}")
    A(f"s_mul_i32 s{sT0}, s{sW}, {32*FROW}"); A(f"s_lshl_b32 s{sT1}, s{sU}, 5"); A(f"s_add_u32 s{sT0}, s{sT0}, s{sT1}")
    A(f"s_add_u32 s{sT0}, s{sT0}, {FB}")
    A(f"s_lshl_b32 s{sT2}, s{sW}, 5"); A(f"v_add_u32 v{vT+10}, s{sT2}, v{vT}")
    A(f"s_movk_i32 s{sT3}, 248")
    A(f"v_cmp_gt_u32 s[{sM0}:{sM0+1}], s{sT3}, v{vT+10}")
    A(f"v_lshlrev_b32 v{vT+5}, 1, v{vT+10}"); A(f"v_lshl_add_u32 v{vT+5}, v{vT+1}, 4, v{vT+5}")
    A(f"s_mul_i32 s{sT2}, s{sXCD}, 22"); A(f"s_mul_i32 s{sT3}, s{sXCD}, 9"); A(f"s_add_u32 s{sT3}, s{sT3}, 176")
    A(f"v_subrev_u32 v{vT+11}, s{sT2}, v{vT+10}"); A(f"v_subrev_u32 v{vT+12}, s{sT3}, v{vT+10}")
    A(f"v_cmp_gt_u32 s[{sM0+2}:{sM0+3}], 22, v{vT+11}")
    A(f"v_cmp_gt_u32 vcc, 9, v{vT+12}")
    A(f"v_mov_b32 v{vT+4}, {AOFF}")
    A(f"s_or_b64 vcc, s[{sM0+2}:{sM0+3}], vcc")
    for r in range(4): A(f"v_mov_b32 v{vK+r}, 0")
    A(f"v_cndmask_b32 v{vT+11}, 0, v{vT+4}, vcc")
    A(f"v_add_u32 v{vT+11}, v{vT+11}, v{vT+2}")
    tagsel(g)
    A(f"v_mov_b32 v{vT+6}, 0")
    A(f"ds_read_b128 {v4(vA)}, v{vT+6} offset:{L_Z}"); A(f"ds_read_b128 {v4(vA+4)}, v{vT+6} offset:{L_Z+16}"); A(f"ds_read_b32 v{vT+7}, v{vT+6} offset:{L_Z+32}")
    A("s_waitcnt lgkmcnt(0)")
    A(f"v_pk_add_f32 {v2(vA)}, {v2(vA)}, {v2(vA+2)}"); A(f"v_pk_add_f32 {v2(vA+4)}, {v2(vA+4)}, {v2(vA+6)}")
    A(f"v_pk_add_f32 {v2(vA)}, {v2(vA)}, {v2(vA+4)}")
    A(f"v_add_f32 v{vA}, v{vA}, v{vA+1}"); A(f"v_add_f32 v{vA}, v{vA}, v{vT+7}")
    bf16r(g, vA, vA)
    A(f"v_mul_f32 v{vA}, {f2u(-1.4426950408889634):#x}, v{vA}")
    A(f"v_exp_f32 v{vA}, v{vA}"); A("s_nop 0")
    A(f"v_add_f32 v{vA}, 1.0, v{vA}"); A(f"v_rcp_f32 v{vA}, v{vA}"); A("s_nop 0")
    bf16r(g, vA, vA)
    A(f"v_sub_f32 v{vA+1}, 1.0, v{vA}"); bf16r(g, vA+1, vA+1)
    A(f"v_and_b32 v{vT+9}, 7, v{vL}"); A(f"v_lshlrev_b32 v{vT+8}, 2, v{vT+9}"); A(f"v_lshlrev_b32 v{vT+9}, 1, v{vT+9}")
    A(f"v_add_u32 v{vT+8}, {L_R}, v{vT+8}")
    A(f"s_lshl_b32 s{sKO}, s{sU}, 4")
    A(f"s_mov_b32 s{sSPIN}, {SPIN}")
    A(f"s_mov_b64 exec, s[{sM0}:{sM0+1}]"); A("s_cbranch_execz L_fskip")
    g.lab("L_fpoll")
    if p["rsleep"]: A(f"s_sleep {p['rsleep']}")
    A(f"buffer_load_dwordx4 {v4(vK)}, v{vT+11}, {srd(SWS)}, s{sT0} offen sc1")
    A(f"s_sub_u32 s{sSPIN}, s{sSPIN}, 1"); A("s_cbranch_scc1 L_fpoll_end")
    A(f"s_cmp_eq_u32 s{sSPIN}, {SW}"); A("s_cbranch_scc0 L_fp1")
    A(f"v_mov_b32 v{vT+11}, v{vT+2}")
    g.lab("L_fp1")
    A("s_waitcnt vmcnt(0)")
    tagcheck(g, vK, vT+12)
    A(f"v_cmpx_ne_u32 vcc, s{sTAG}, v{vT+12}")
    A("s_cbranch_execnz L_fpoll")
    g.lab("L_fpoll_end")
    A("s_mov_b64 exec, -1")
    g.stamp(8)
    A("s_nop 2")
    rowred(g, "v_add_f32", [vK, vK+1, vK+2, vK+3])
    setexec(g, 0x00010001, 0x00010001)
    A(f"ds_write_b128 v{vT+5}, {v4(vK)} offset:{L_R}")
    g.lab("L_fskip")
    A("s_mov_b64 exec, -1")
    A("s_waitcnt lgkmcnt(0)")
    A("s_barrier")
    A(f"s_cmp_lg_u32 s{sW}, 0"); A("s_cbranch_scc1 L_fin")
    for k in range(8): A(f"ds_read2_b32 {v2(vK+2*k)}, v{vT+8} offset0:{16*k} offset1:{16*k+8}")
    A("s_waitcnt lgkmcnt(0)")
    A(f"v_pk_add_f32 {v2(vK)}, {v2(vK)}, {v2(vK+2)}"); A(f"v_pk_add_f32 {v2(vK+4)}, {v2(vK+4)}, {v2(vK+6)}")
    A(f"v_pk_add_f32 {v2(vK+12)}, {v2(vK+12)}, {v2(vK+14)}")
    A(f"v_pk_add_f32 {v2(vK)}, {v2(vK)}, {v2(vK+8)}")
    A(f"v_add_f32 v{vK+12}, v{vK+12}, v{vK+13}")
    A(f"v_pk_add_f32 {v2(vK)}, {v2(vK)}, {v2(vK+4)}")
    A(f"v_add_f32 v{vK+11}, v{vK+11}, v{vK+12}")
    A(f"v_add_f32 v{vK}, v{vK}, v{vK+1}"); A(f"v_add_f32 v{vK+10}, v{vK}, v{vK+10}")
    A(f"v_cvt_pk_bf16_f32 v{vK}, v{vK+10}, v{vK+11}")
    A(f"v_lshlrev_b32 v{vK+10}, 16, v{vK}"); A(f"v_and_b32 v{vK+11}, 0xffff0000, v{vK}")
    A(f"v_pk_mul_f32 {v2(vK+10)}, {v2(vK+10)}, {v2(vA)}")
    A(f"v_cvt_pk_bf16_f32 v{vK}, v{vK+10}, v{vK+11}")
    A(f"v_lshlrev_b32 v{vK+10}, 16, v{vK}"); A(f"v_and_b32 v{vK+11}, 0xffff0000, v{vK}")
    A(f"v_add_f32 v{vK}, v{vK+10}, v{vK+11}")
    A(f"v_cvt_pk_bf16_f32 v{vK}, v{vK}, v{vK}")
    setexec(g, 0xff, 0)
    A(f"buffer_store_short v{vK}, v{vT+9}, {srd(SOUT)}, s{sKO} offen")
    A(f"s_cmp_lg_u32 s{sU}, 0"); A("s_cbranch_scc1 L_fin")
    A("s_mov_b64 exec, 1")
    A(f"v_mov_b32 v{vT+7}, s{sTAG}")
    A(f"buffer_store_dword v{vT+7}, v{vT+6}, {srd(SWS)}, 0 offen offset:{EPOCH}")
    g.lab("L_fin")
    if p["stamps"]:
        A("s_mov_b64 exec, -1")
        A("s_waitcnt vmcnt(0)")
        g.stamp(9)
        A("s_waitcnt lgkmcnt(0)")
        A(f"s_lshl_b32 s{sT0}, s2, 4"); A(f"s_add_u32 s{sT0}, s{sT0}, s{sW}"); A(f"s_lshl_b32 s{sT0}, s{sT0}, 6"); A(f"s_add_u32 s{sT0}, s{sT0}, {STB}")
        for k in range(10): A(f"v_mov_b32 v{vK+k}, s{80+2*k}")
        A(f"v_mov_b32 v{vK+10}, s{sSPIN}"); A(f"v_mov_b32 v{vK+11}, s{sTAG}")
        A(f"v_mov_b32 v{vT}, 0"); A("s_mov_b64 exec, 1")
        for k in range(3): A(f"buffer_store_dwordx4 {v4(vK+4*k)}, v{vT}, {srd(SWS)}, s{sT0} offen offset:{16*k}")
    g.lab("L_end")
    A("s_endpgm")
    out += g.L
    out += [f".fill ({NAME} + 9472 - .) / 4, 4, 0xbf800000"]
    out += ['.section .rodata,"a"', ".p2align 6", f".amdhsa_kernel {NAME}", f"  .amdhsa_next_free_vgpr {NV}",
            f"  .amdhsa_next_free_sgpr {100 if p['stamps'] else 80}", f"  .amdhsa_accum_offset {NV}", "  .amdhsa_group_segment_fixed_size 0",
            "  .amdhsa_kernarg_size 104", "  .amdhsa_user_sgpr_count 2", "  .amdhsa_user_sgpr_kernarg_segment_ptr 1",
            "  .amdhsa_system_sgpr_workgroup_id_x 1", ".end_amdhsa_kernel"]
    return "\n".join(out) + "\n"

if __name__ == "__main__":
    kw = {}
    for a in sys.argv[2:]:
        k, v = a.split("="); kw[k] = eval(v)
    open(sys.argv[1], "w").write(gen(**kw))
```

```python
import sys, struct
NAME = "gated_mix__sliding_block_cached__swiglu_ffn__decode_kernel"
HDR = open("gated_mix__sliding_block_cached__swiglu_ffn__decode.s.ref").read().split("; Override launch")[0]
def f2u(f): return struct.unpack("<I", struct.pack("<f", f))[0]

EPOCH = 0
HB = 4096
QB = HB + 72*256
OB = QB + 256*256
FB = OB + 256*2048
AOFF = 2 << 20
FROW = 2304
assert FB + 256*FROW <= AOFF
WS_USED = 2*AOFF
STB = 8 << 20
L_QP = 0; L_Q = 4608; L_M = 5120; L_L = 5184; L_Z = 5248; L_C = 5312
L_CNT = 5504; L_O = 5632; L_H = L_O + 9*1024; L_R = L_H + 9*256
LDS_BYTES = L_R + 640
OOB = 0x40000000

class G:
    def __init__(s, **kw):
        s.L = []; s.p = dict(WA=4, WF=3, N0=1, stamps=False, nt="nt", qsleep=2, qsleep0=25, spin=200000, apolls=300, bpos=1, rsleep=0, dmix=5,
                             prio=1, align=True, touch=True, pretouch=1, nmid=4, helper=1, hsleep=8)
        s.p.update(kw); s.vm = []
    def A(s, x):
        if s.p.get("pnt") and x.startswith("buffer_load") and x.endswith(" sc1"): x += " nt"
        if s.p.get("xnt") and (x.startswith("buffer_load_dword v") or x.startswith("buffer_load_ushort") or x.startswith("global_load_dword v")) and " nt" not in x: x += " nt"
        s.L.append("    " + x)
    def lab(s, x): s.L.append(x + ":")
    def vissue(s, name): s.vm.append(name)
    def vwait(s, name):
        i = s.vm.index(name); s.A(f"s_waitcnt vmcnt({len(s.vm)-1-i})")
    def stamp(s, k, prog=False):
        if s.p.get("prof") and not prog and 3 <= k <= 8 and k != 5: return
        if prog and not s.p.get("prof"): return
        if s.p["stamps"]: s.A(f"s_memrealtime s[{80+2*k}:{81+2*k}]")

sW=3
SX=8; SWQ=12; SWS=16; S1=20; S2=24; S3=28; SGW=32; SOUT=36
sE=40; sSTEP=41; sTAG=42
sXCD=44; sJ=45; sHK=46; sSLOT=47; sQI=48; sT0=49; sT1=50; sT2=51; sRUN=52; sBIAS=53; sSPIN=54
sKO=55; sOO=56; sSEL0=57; sSEL1=58; sPI=59; sC=60; sU=61
sM0=62; sEX=70; sAM=72; sWE=74; sT3=75; sT4=76; sMODE=77; sFF=78; sNOS=79
def srd(b): return f"s[{b}:{b+3}]"
vL=1; vM=2; vOT=6; vOK=7; vOV=8; vOWQ=9; vLT=10; vX0=11; vOU=12; vOD=13; vTB=14
vXG=16; vGW=17; vT=18
vA=32; vACC=40; vP=48; vOKL=60; vOVL=61; vR3=62; vOFP=63
vK=64; vV=112; NV=160
def v4(b): return f"v[{b}:{b+3}]"
def v2(b): return f"v[{b}:{b+1}]"
DPP = "row_mask:0xf bank_mask:0xf"
MF = "v_mfma_f32_16x16x32_bf16"

def build_A(g, dst, rep):
    for j in range(4): g.A(f"v_and_b32 v{dst+j}, v{rep}, v{vM+j}")
def rowred(g, op, regs):
    need = max(0, 2 - (len(regs) - 1))
    for r in (8, 4, 2, 1):
        if need: g.A(f"s_nop {need-1}")
        for x in regs: g.A(f"{op}_dpp v{x}, v{x}, v{x} row_ror:{r} {DPP}")
def crossrow(g, op, x, t):
    for sw in ("v_permlane16_swap_b32", "v_permlane32_swap_b32"):
        g.A(f"v_mov_b32 v{t}, v{x}"); g.A("s_nop 1"); g.A(f"{sw} v{x}, v{t}"); g.A("s_nop 1"); g.A(f"{op} v{x}, v{x}, v{t}")
def bf16r(g, d, s_):
    g.A(f"v_cvt_pk_bf16_f32 v{d}, v{s_}, v{s_}"); g.A(f"v_and_b32 v{d}, 0xffff0000, v{d}")
def setexec(g, lo, hi):
    g.A(f"s_mov_b32 exec_lo, {lo:#x}"); g.A(f"s_mov_b32 exec_hi, {hi:#x}")

def fpub_consts(g):
    A = g.A
    A(f"s_mul_i32 s{sPI}, s{sPI}, 9"); A(f"s_add_u32 s{sPI}, s{sPI}, s{sW}"); A(f"s_lshl_b32 s{sPI}, s{sPI}, 8"); A(f"s_add_u32 s{sPI}, s{sPI}, {FB}")
    A(f"s_lshl_b32 s{sT0}, s{sW}, 8"); A(f"s_mul_i32 s{sT1}, s{sXCD}, {72*4}"); A(f"s_sub_u32 s{sT0}, s{sT0}, s{sT1}")
    A(f"v_add_u32 v{vT}, s{sT0}, v{vOFP}")
    A(f"v_cmp_gt_u32 vcc, {72*4}, v{vT}")
    A(f"v_lshrrev_b32 v{vT}, 1, v{vL}"); A(f"v_and_b32 v{vT}, 16, v{vT}")
    A(f"v_lshrrev_b32 v{vTB}, v{vT}, s{sTAG}" if False else f"v_mov_b32 v{vTB}, s{sTAG}")
    A(f"v_lshrrev_b32 v{vTB}, v{vT}, v{vTB}")
    A(f"s_and_b32 s{sAM}, vcc_lo, 0x00ff00ff"); A(f"s_and_b32 s{sAM+1}, vcc_hi, 0x00ff00ff")
    A(f"v_lshrrev_b32 v{vTB+1}, 8, v{vTB}")
    A(f"s_movk_i32 s{sFF}, 0xff")

def tagcheck(g, d, t):
    g.A(f"v_perm_b32 v{t}, v{d+1}, v{d}, s{sSEL0}"); g.A(f"v_perm_b32 v{t+1}, v{d+3}, v{d+2}, s{sSEL1}")
    g.A(f"v_or_b32 v{t}, v{t}, v{t+1}")
def tagsel(g):
    g.A(f"s_mov_b32 s{sSEL0}, 0x0c0c0400"); g.A(f"s_mov_b32 s{sSEL1}, 0x04000c0c")

PROG = {"K3": 3, "K7": 4, "K11": 6, "V3": 7, "V7": 8}
uid = [0]
def fpublish(g, acc, acopy=True):
    g.A(f"s_add_u32 s{sT0}, s{sPI}, {AOFF}")
    g.A("s_nop 6")
    g.A(f"v_permlane32_swap_b32 v{acc}, v{acc+2}")
    g.A(f"v_permlane32_swap_b32 v{acc+1}, v{acc+3}")
    g.A("s_nop 0")
    g.A(f"v_add_f32_dpp v{acc}, v{acc+2}, v{acc} row_ror:8 {DPP}")
    g.A(f"v_add_f32_dpp v{acc+1}, v{acc+3}, v{acc+1} row_ror:8 {DPP}")
    setexec(g, 0x00ff00ff, 0x00ff00ff)
    g.A(f"v_bfi_b32 v{acc}, s{sFF}, v{vTB}, v{acc}"); g.A(f"v_bfi_b32 v{acc+1}, s{sFF}, v{vTB+1}, v{acc+1}")
    g.A(f"buffer_store_dwordx2 {v2(acc)}, v{vOFP}, {srd(SWS)}, s{sPI} offen sc1")
    if acopy:
        uid[0] += 1
        g.A(f"s_mov_b64 exec, s[{sAM}:{sAM+1}]"); g.A(f"s_cbranch_execz L_na{uid[0]}")
        g.A(f"buffer_store_dwordx2 {v2(acc)}, v{vOFP}, {srd(SWS)}, s{sT0} offen")
        g.lab(f"L_na{uid[0]}")
    g.A("s_mov_b64 exec, -1")

def gen(**kw):
    g = G(**kw); A = g.A; p = g.p; nt = p["nt"]; WA = p["WA"]; WF = p["WF"]
    SPIN = p["spin"]; SW = max(SPIN - p["apolls"], 0)
    NPRO = min(WA, WF)
    out = [HDR.rstrip("\n")]
    out.append(f"; @launch grid=(256,1,1) block=(576,1,1) lds={LDS_BYTES}")
    out += ['.amdgcn_target "amdgcn-amd-amdhsa--gfx950"', ".text"]
    if p["align"]: out += [".p2align 12", ".fill 832, 4, 0xbf800000"]
    out += [f".globl {NAME}", ".p2align 8", f".type {NAME},@function", f"{NAME}:"]
    g.stamp(0)
    if p.get("diag"): A("s_memrealtime s[90:91]")
    A("s_cmp_ge_u32 s2, 0x100"); A("s_cbranch_scc1 L_end")
    A(f"s_load_dwordx2 s[{SWQ}:{SWQ+1}], s[0:1], 24")
    if p.get("cpf", 1):
        A(f"s_getpc_b64 s[{sEX}:{sEX+1}]"); A(f"v_lshlrev_b32 v{vGW}, 4, v0")
        A(f"global_load_dword v{vGW}, v{vGW}, s[{sEX}:{sEX+1}]")
    A(f"s_load_dwordx2 s[{SX}:{SX+1}], s[0:1], 0")
    A(f"s_lshr_b32 s{sJ}, s2, 3")
    A(f"s_cmp_lt_u32 s{sJ}, 22")
    A(f"s_cselect_b32 s{sT0}, 8, 48"); A(f"s_cselect_b32 s{sT2}, 32, 64")
    A(f"s_load_dwordx4 s[4:7], s[0:1], s{sT0}")
    A(f"s_load_dwordx2 s[{S3}:{S3+1}], s[0:1], s{sT2}")
    A(f"s_load_dwordx2 s[{SGW}:{SGW+1}], s[0:1], 72")
    A(f"s_load_dwordx2 s[{SOUT}:{SOUT+1}], s[0:1], 80")
    A(f"s_load_dwordx2 s[{SWS}:{SWS+1}], s[0:1], 96")
    A(f"v_lshrrev_b32 v{vT}, 6, v0")
    A(f"v_and_b32 v{vL}, 63, v0")
    A(f"v_readfirstlane_b32 s{sW}, v{vT}")
    A(f"s_and_b32 s{sXCD}, s2, 7")
    A(f"v_lshrrev_b32 v{vR3}, 3, v{vL}")
    A(f"v_and_b32 v{vT+1}, 7, v{vL}")
    A(f"v_lshlrev_b32 v{vT+2}, 4, v{vT+1}")
    A(f"v_lshl_add_u32 v{vOWQ}, v{vR3}, 14, v{vT+2}")
    A(f"v_lshlrev_b32 v{vT+3}, 2, v{vR3}")
    A(f"s_bfe_u32 s{sT0}, s{sJ}, 0x20002"); A(f"s_mul_i32 s{sT0}, s{sT0}, 9"); A(f"s_add_u32 s{sT0}, s{sT0}, s{sW}")
    A(f"s_lshr_b32 s{sT1}, s{sJ}, 4"); A(f"s_lshl1_add_u32 s{sT1}, s{sXCD}, s{sT1}")
    A(f"s_and_b32 s{sT2}, s{sJ}, 3"); A(f"s_lshl2_add_u32 s{sT1}, s{sT1}, s{sT2}"); A(f"s_lshl_b32 s{sT1}, s{sT1}, 7")
    A(f"s_lshl_b32 s{sT2}, s{sT0}, 17"); A(f"s_add_u32 s{sT1}, s{sT1}, s{sT2}")
    A(f"s_add_u32 s{sT2}, s{sT1}, 8192")
    A(f"s_lshl_b32 s{sT0}, s{sT0}, 5")
    A(f"s_mov_b32 s{SWQ+2}, 4718592"); A(f"s_mov_b32 s{SWQ+3}, 0x20000")
    A(f"s_movk_i32 s{SX+2}, 1152"); A(f"s_mov_b32 s{SX+3}, s{SWQ+3}")
    vWQ = vV + 40
    A(f"v_mov_b32 v{vT+4}, 0")
    A(f"ds_write_b32 v{vT+4}, v{vT+4} offset:{L_CNT}")
    A("s_waitcnt lgkmcnt(0)")
    g.stamp(1)
    A(f"buffer_load_dwordx4 {v4(vWQ)}, v{vOWQ}, {srd(SWQ)}, s{sT1} offen {nt}"); g.vissue("wq0")
    A(f"buffer_load_dwordx4 {v4(vWQ+4)}, v{vOWQ}, {srd(SWQ)}, s{sT2} offen {nt}"); g.vissue("wq1")
    A(f"buffer_load_dword v{vX0}, v{vT+3}, {srd(SX)}, s{sT0} offen"); g.vissue("x0")
    A(f"s_load_dword s{sE}, s[{SWS}:{SWS+1}], {EPOCH}")
    A("s_barrier")
    A(f"s_mov_b64 s[{S1}:{S1+1}], s[4:5]"); A(f"s_mov_b64 s[{S2}:{S2+1}], s[6:7]")
    A(f"s_mov_b32 s{S1+3}, s{SWQ+3}")
    A(f"v_lshlrev_b32 v{vOV}, 4, v{vL}")
    A(f"s_cmp_ge_u32 s{sJ}, 22"); A("s_cbranch_scc1 L_setF")
    A(f"s_mov_b32 s{S1+2}, 0x10000000"); A(f"s_mov_b32 s{S3+2}, s{SWQ+2}")
    A(f"s_cmp_ge_u32 s{sJ}, 11"); A(f"s_cselect_b32 s{sT0}, 1, 0"); A(f"s_cselect_b32 s{sT1}, 11, 0")
    A(f"s_lshl1_add_u32 s{sHK}, s{sXCD}, s{sT0}")
    A(f"s_sub_u32 s{sSLOT}, s{sJ}, s{sT1}")
    A(f"s_min_u32 s{sBIAS}, s{sSLOT}, 1"); A(f"s_mul_i32 s{sT1}, s{sSLOT}, 93"); A(f"s_add_u32 s{sBIAS}, s{sBIAS}, s{sW}")
    A(f"s_add_u32 s{sT0}, s{sBIAS}, s{sT1}"); A(f"s_lshl_b32 s{sT0}, s{sT0}, 10")
    A(f"s_lshl_b32 s{sKO}, s{sHK}, 24"); A(f"s_add_u32 s{sKO}, s{sKO}, s{sT0}")
    A(f"s_add_u32 s{sKO}, s{sKO}, {61440*256}")
    A(f"s_movk_i32 s{sSTEP}, 8192")
    A(f"v_bfe_u32 v{vT}, v{vL}, 2, 2"); A(f"v_lshrrev_b32 v{vT+1}, 4, v{vL}"); A(f"v_and_b32 v{vT+3}, 3, v{vL}")
    A(f"v_lshlrev_b32 v{vOK}, 8, v{vT}"); A(f"v_lshl_add_u32 v{vOK}, v{vT+1}, 6, v{vOK}"); A(f"v_lshl_add_u32 v{vOK}, v{vT+3}, 4, v{vOK}")
    A(f"s_cmp_eq_u32 s{sW}, 8"); A(f"s_cselect_b32 s{sNOS}, 1, 0")
    A("s_branch L_set_done")
    g.lab("L_setF")
    A(f"s_mov_b32 s{S1+2}, 5308416"); A(f"s_mov_b32 s{S3+2}, s{S1+2}")
    A(f"s_mul_i32 s{sU}, s{sXCD}, 9"); A(f"s_mov_b32 s{sWE}, s{sW}")
    A(f"s_cmp_eq_u32 s{sJ}, 31"); A("s_cbranch_scc0 L_setF1")
    A(f"s_add_u32 s{sHK}, s{sU}, s{sW}")
    A(f"s_and_b32 s{sU}, s{sHK}, 0x78"); A(f"s_sub_u32 s{sU}, s{sU}, {9-3}")
    A(f"s_bfe_u32 s{sWE}, s{sHK}, 0x20001"); A(f"s_add_u32 s{sWE}, s{sWE}, 5")
    A(f"s_bitcmp1_b32 s{sHK}, 0"); A(f"s_cselect_b64 s[{S1}:{S1+1}], s[6:7], s[4:5]")
    g.lab("L_setF1")
    A(f"s_add_u32 s{sU}, s{sU}, s{sJ}"); A(f"s_sub_u32 s{sU}, s{sU}, 22")
    A(f"s_movk_i32 s{sT0}, 9216"); A(f"v_mad_u32_u24 v{vOK}, v{vR3}, s{sT0}, v{vT+2}")
    A(f"s_mul_i32 s{sKO}, s{sWE}, {8*9216}"); A(f"s_lshl_b32 s{sT0}, s{sU}, 7"); A(f"s_add_u32 s{sKO}, s{sKO}, s{sT0}")
    A(f"s_mov_b32 s{sSTEP}, {72*9216}")
    A(f"s_and_b32 s{sT0}, s{sU}, 7"); A(f"s_cmp_eq_u32 s{sT0}, 3"); A(f"s_cselect_b32 s{sT0}, s{sW}, 0")
    A(f"s_cmp_ge_u32 s{sT0}, {5 if p['helper'] else 99}"); A(f"s_cselect_b32 s{sMODE}, 1, 0")
    A(f"s_cmp_eq_u32 s{sJ}, 31"); A(f"s_cselect_b32 s{sMODE}, 2, s{sMODE}")
    A(f"s_cmp_eq_u32 s{sMODE}, {1 if p['helper'] else 2}")
    A(f"s_cselect_b32 s{sT0}, {OOB:#x}, 0")
    A(f"v_add_u32 v{vOK}, s{sT0}, v{vOK}")
    A(f"s_mov_b32 s{sNOS}, 0")
    g.lab("L_set_done")
    A(f"s_mov_b32 s{sRUN}, s{sKO}")
    def s1_issue(i):
        A(f"buffer_load_dwordx4 {v4(vK+4*i)}, v{vOK}, {srd(S1)}, s{sRUN} offen {nt}"); g.vissue(f"K{i}")
        A(f"s_add_u32 s{sRUN}, s{sRUN}, s{sSTEP}")
    N0 = min(p.get("N0", 2), NPRO)
    A(f"s_cmp_eq_u32 s{sNOS}, 1"); A("s_cbranch_scc1 L_touch8")
    for i in range(N0): s1_issue(i)
    A(f"s_cmp_lt_u32 s{sJ}, 22"); A("s_cbranch_scc0 L_touchF")
    g.lab("L_touched")
    A(f"s_mov_b64 s[{S2+2}:{S2+3}], s[{S1+2}:{S1+3}]"); A(f"s_mov_b32 s{S3+3}, s{SWQ+3}")
    A(f"s_mov_b32 s{SWS+2}, {(16<<20) if p['stamps'] else WS_USED}"); A(f"s_mov_b32 s{SWS+3}, s{SWQ+3}")
    A(f"v_and_b32 v{vT}, 1, v{vL}"); A(f"v_lshlrev_b32 v{vT}, 4, v{vT}")
    A(f"v_mov_b32 v{vT+1}, 0xffff"); A(f"v_lshlrev_b32 v{vT}, v{vT}, v{vT+1}")
    A(f"v_bfe_u32 v{vT+1}, v{vL}, 1, 2")
    for j in range(4): A(f"v_cmp_eq_u32 s[{sM0+2*j}:{sM0+2*j+1}], {j}, v{vT+1}")
    A(f"s_mov_b32 s{sSEL0}, 0x01000100"); A(f"s_mov_b32 s{sSEL1}, 0x03020302")
    for j in range(4): A(f"v_cndmask_b32 v{vM+j}, 0, v{vT}, s[{sM0+2*j}:{sM0+2*j+1}]")
    A(f"v_lshrrev_b32 v{vT}, 5, v{vL}"); A(f"v_and_b32 v{vT+3}, 16, v{vL}")
    A(f"v_lshl_add_u32 v{vLT}, v{vT+2}, 1, v{vT+3}")
    A(f"v_lshl_add_u32 v{vOFP}, v{vT}, 3, v{vLT}")
    A(f"v_lshl_add_u32 v{vLT}, v{vT}, 8, v{vLT}")
    A(f"s_movk_i32 s{sT0}, 1152"); A(f"v_mad_u32_u24 v{vOT}, v{vR3}, s{sT0}, v{vT+2}")
    A(f"s_lshl_b32 s{sT0}, s{sW}, 9"); A(f"v_add_u32 v{vT+2}, s{sT0}, v{vLT}")
    A(f"s_cmp_eq_u32 s{sNOS}, 1"); A("s_cbranch_scc0 L_w1")
    A("s_waitcnt vmcnt(0)")
    g.lab("L_w1")
    g.vwait("x0")
    g.stamp(2)
    A(f"v_perm_b32 v{vT}, v{vX0}, v{vX0}, s{sSEL0}"); A(f"v_perm_b32 v{vT+1}, v{vX0}, v{vX0}, s{sSEL1}")
    build_A(g, vA, vT); build_A(g, vA+4, vT+1)
    A("s_cbranch_scc1 L_w2")
    for i in range(N0, NPRO): s1_issue(i)
    g.lab("L_w2")
    A(f"v_mov_b32 v{vT+5}, 1")
    A(f"{MF} {v4(vACC)}, {v4(vA)}, {v4(vWQ)}, 0")
    A(f"{MF} {v4(vACC)}, {v4(vA+4)}, {v4(vWQ+4)}, {v4(vACC)}")
    setexec(g, 0x00ff00ff, 0xff00ff00)
    A("s_waitcnt lgkmcnt(0)")
    A(f"s_mul_i32 s{sTAG}, s{sE}, 0x9e3779b1"); A(f"s_add_u32 s{sTAG}, s{sTAG}, 0x7f4a7c15")
    A(f"s_lshl_b32 s{sOO}, s{sW}, 7")
    A("s_nop 1")
    A(f"ds_write_b128 v{vT+2}, {v4(vACC)} offset:{L_QP}")
    A("s_mov_b64 exec, 1")
    A(f"ds_add_u32 v{vT+4}, v{vT+5} offset:{L_CNT}")
    A("s_mov_b64 exec, -1")
    A(f"s_cmp_lg_u32 s{sW}, 8"); A("s_cbranch_scc1 L_nopub")
    base = vV
    A(f"v_lshlrev_b32 v{vT}, 2, v{vL}")
    A(f"s_lshl_b32 s{sT0}, s{sXCD}, 5"); A(f"s_add_u32 s{sT0}, s{sT0}, s{sJ}")
    A(f"s_lshl_b32 s{sT0}, s{sT0}, 8"); A(f"s_add_u32 s{sT0}, s{sT0}, {QB}"); A(f"s_add_u32 s{sT1}, s{sT0}, {AOFF}")
    A(f"v_and_b32 v{vT+1}, 3, v{vL}"); A(f"v_lshlrev_b32 v{vT+1}, 3, v{vT+1}"); A(f"v_mov_b32 v{vT+6}, s{sTAG}")
    A(f"v_lshrrev_b32 v{vT+1}, v{vT+1}, v{vT+6}"); A(f"s_movk_i32 s{sFF}, 0xff")
    g.lab("L_cnt")
    A(f"ds_read_b32 v{vT+6}, v{vT+4} offset:{L_CNT}")
    A("s_waitcnt lgkmcnt(0)")
    A(f"v_cmp_ne_u32 vcc, 9, v{vT+6}")
    A("s_cbranch_vccnz L_cnt")
    for k in range(9): A(f"ds_read2st64_b32 {v2(base+2*k)}, v{vT} offset0:{2*k} offset1:{2*k+1}")
    A("s_waitcnt lgkmcnt(0)")
    for a, b in ((0,1),(2,3),(4,5),(6,7),(0,2),(4,6),(0,4),(0,8)):
        A(f"v_pk_add_f32 {v2(base+2*a)}, {v2(base+2*a)}, {v2(base+2*b)}")
    A(f"v_add_f32 v{vT+8}, v{base}, v{base+1}")
    A(f"v_bfi_b32 v{vT+8}, s{sFF}, v{vT+1}, v{vT+8}")
    A(f"buffer_store_dword v{vT+8}, v{vT}, {srd(SWS)}, s{sT1} offen")
    A(f"buffer_store_dword v{vT+8}, v{vT}, {srd(SWS)}, s{sT0} offen sc1")
    g.stamp(3)
    A(f"s_cmp_lt_u32 s{sJ}, 22"); A("s_cbranch_scc1 L_attn8")
    g.lab("L_nopub")
    A(f"s_cmp_ge_u32 s{sJ}, 22"); A("s_cbranch_scc1 L_notattn")
    pre = list(g.vm)
    def attn_consts():
        A(f"s_lshl_b32 s{sT0}, s{sHK}, 5"); A(f"s_add_u32 s{sT0}, s{sT0}, s{sSLOT}"); A(f"s_mul_i32 s{sT0}, s{sT0}, 9216")
        A(f"s_add_u32 s{sOO}, s{sOO}, s{sT0}")
        A(f"s_mul_i32 s{sPI}, s{sHK}, 11"); A(f"s_add_u32 s{sPI}, s{sPI}, s{sSLOT}")
        fpub_consts(g)
        A(f"s_cmp_lt_u32 s{sSLOT}, 10"); A(f"s_cselect_b32 s{sT0}, 0, {OOB:#x}")
        A(f"v_add_u32 v{vOD}, s{sT0}, v{vOT}")
        A(f"v_and_b32 v{vT}, 15, v{vL}"); A(f"v_lshrrev_b32 v{vT+1}, 4, v{vL}")
        A(f"v_lshlrev_b32 v{vOU}, 11, v{vT}"); A(f"v_lshl_add_u32 v{vOU}, v{vT+1}, 4, v{vOU}")
    A(f"s_cmp_lt_u32 s{sBIAS}, 6"); A(f"s_cselect_b32 s{sT0}, 0, {OOB:#x}"); A(f"s_cselect_b32 s{sBIAS}, 0, {f2u(-1e30):#x}")
    A(f"v_add_u32 v{vOKL}, s{sT0}, v{vOK}"); A(f"v_add_u32 v{vOVL}, s{sT0}, v{vOV}")
    seq = [("K", i) for i in range(12)] + [("V", i) for i in range(12)] + [("O", i) for i in range(3)]
    pos = [NPRO]; land = [0]; vdone = [-1]
    def can_issue():
        if pos[0] >= len(seq): return False
        kind, i = seq[pos[0]]
        return kind != "O" or i <= vdone[0]
    def issue():
        kind, i = seq[pos[0]]; pos[0] += 1
        if kind == "O":
            A(f"buffer_load_dwordx4 {v4(vV+4*i)}, v{vOD if i == 2 else vOT}, {srd(S3)}, s{sOO} offen {nt}")
            if i < 2: A(f"s_add_u32 s{sOO}, s{sOO}, {11*9216}")
        else:
            off = {("K", True): vOKL, ("K", False): vOK, ("V", True): vOVL, ("V", False): vOV}[(kind, i == 11)]
            A(f"buffer_load_dwordx4 {v4((vK if kind == 'K' else vV)+4*i)}, v{off}, {srd(S1 if kind == 'K' else S2)}, s{sRUN} offen {nt}")
            if i < 11: A(f"s_add_u32 s{sRUN}, s{sRUN}, s{sSTEP}")
            elif kind == "K": A(f"s_mov_b32 s{sRUN}, s{sKO}")
        g.vissue(f"{kind}{i}")
    def refill():
        while pos[0] - land[0] < WA and can_issue(): issue()
    def step():
        kind, i = seq[land[0]]; land[0] += 1
        g.vwait(f"{kind}{i}")
        if f"{kind}{i}" in PROG: g.stamp(PROG[f"{kind}{i}"], True)
        refill()
    nmid = [p["nmid"]]
    def mid():
        if nmid[0] > 0 and can_issue(): issue(); nmid[0] -= 1; return True
        return False
    refill()
    step(); attn_consts()
    while land[0] < 12 + p["bpos"] + 1: step()
    g.stamp(3)
    A(f"v_and_b32 v{vT}, 0xf0, v{vOK}"); A(f"v_and_b32 v{vT+1}, 1, v{vR3}")
    A(f"v_lshl_add_u32 v{vT}, v{vT+1}, 8, v{vT}")
    A("s_barrier")
    A(f"ds_read_b128 {v4(vA)}, v{vT} offset:{L_Q}")
    A(f"s_mov_b32 s{sC}, {f2u(128**-0.5 * 1.4426950408889634):#x}")
    A(f"v_lshlrev_b32 v{vT+1}, 5, v{vT+1}"); A(f"s_lshl_b32 s{sT0}, s{sW}, 2"); A(f"v_add_u32 v{vT+3}, s{sT0}, v{vT+1}")
    A("s_waitcnt lgkmcnt(0)")
    for i in range(12): A(f"{MF} {v4(vK+4*i)}, {v4(vK+4*i)}, {v4(vA)}, 0")
    for i in range(12): A(f"v_mov_b32_dpp v{vP+i}, v{vK+4*i} quad_perm:[0,0,0,0] {DPP}")
    for r in (1, 2, 3):
        if r == 2: mid()
        for i in range(12): A(f"v_add_f32_dpp v{vP+i}, v{vK+4*i+r}, v{vP+i} quad_perm:[{r},{r},{r},{r}] {DPP}")
    A(f"v_add_f32 v{vP+11}, s{sBIAS}, v{vP+11}")
    A(f"v_max3_f32 v{vT}, v{vP}, v{vP+1}, v{vP+2}")
    for i in range(3, 11, 2): A(f"v_max3_f32 v{vT}, v{vT}, v{vP+i}, v{vP+i+1}")
    A(f"v_max_f32 v{vT}, v{vT}, v{vP+11}")
    crossrow(g, "v_max_f32", vT, vT+2)
    setexec(g, 0x101, 0)
    A(f"ds_write_b32 v{vT+3}, v{vT} offset:{L_M}")
    A("s_mov_b64 exec, -1")
    mid()
    A("s_waitcnt lgkmcnt(0)")
    A("s_barrier")
    A(f"ds_read_b128 {v4(vA)}, v{vT+1} offset:{L_M}"); A(f"ds_read_b128 {v4(vA+4)}, v{vT+1} offset:{L_M+16}")
    A(f"v_and_b32 v{vT+5}, 15, v{vL}"); A(f"v_lshlrev_b32 v{vT+5}, 5, v{vT+5}")
    A(f"v_and_b32 v{vT+6}, 16, v{vL}"); A(f"v_add_u32 v{vT+5}, v{vT+5}, v{vT+6}")
    A(f"v_lshrrev_b32 v{vT+6}, 5, v{vL}"); A(f"v_lshl_add_u32 v{vT+5}, v{vT+6}, 9, v{vT+5}")
    A(f"s_lshl_b32 s{sT0}, s{sW}, 10"); A(f"v_add_u32 v{vT+5}, s{sT0}, v{vT+5}")
    A("s_waitcnt lgkmcnt(0)")
    A(f"v_max3_f32 v{vT}, v{vA}, v{vA+1}, v{vA+2}"); A(f"v_max3_f32 v{vT}, v{vT}, v{vA+3}, v{vA+4}")
    A(f"v_max3_f32 v{vT}, v{vT}, v{vA+5}, v{vA+6}"); A(f"v_max_f32 v{vT}, v{vT}, v{vA+7}")
    A(f"v_mul_f32 v{vT}, s{sC}, v{vT}")
    for i in range(12): A(f"v_fma_f32 v{vP+i}, v{vP+i}, s{sC}, -v{vT}")
    for i in range(12): A(f"v_exp_f32 v{vP+i}, v{vP+i}")
    if not mid(): A("s_nop 0")
    A(f"v_add_f32 v{vT+4}, v{vP}, v{vP+1}")
    for i in range(2, 12): A(f"v_add_f32 v{vT+4}, v{vT+4}, v{vP+i}")
    for i in range(12): A(f"v_cvt_pk_bf16_f32 v{vP+i}, v{vP+i}, v{vP+i}")
    crossrow(g, "v_add_f32", vT+4, vT+2)
    setexec(g, 0x101, 0)
    A(f"ds_write_b32 v{vT+3}, v{vT+4} offset:{L_L}")
    A("s_mov_b64 exec, -1")
    mid()
    for i in range(12): build_A(g, vK+4*i, vP+i)
    g.stamp(4)
    for i in range(12):
        if land[0] <= 12 + i:
            land[0] += 1; g.vwait(f"V{i}")
            if f"V{i}" in PROG: g.stamp(PROG[f"V{i}"], True)
        A(f"{MF} {v4(vACC)}, {v4(vK+4*i)}, {v4(vV+4*i)}, {'0' if i == 0 else v4(vACC)}")
        vdone[0] = i
        refill()
    assert pos[0] == len(seq)
    g.stamp(5)
    A("s_nop 7")
    A(f"ds_write_b128 v{vT+5}, {v4(vACC)} offset:{L_O}")
    A("s_waitcnt lgkmcnt(0)")
    g.lab("L_barC")
    A("s_barrier")
    A(f"s_cmp_lt_u32 s{sW}, 3"); A("s_cbranch_scc1 L_ogather")
    A(f"s_sub_u32 s{sT0}, s{sW}, 6"); A(f"s_cmp_lt_u32 s{sT0}, 2"); A("s_cbranch_scc0 L_barD")
    A(f"s_lshl_b32 s{sT1}, s{sT0}, 9"); A(f"v_lshl_add_u32 v{vT+2}, v{vL}, 3, s{sT1}")
    for w in range(8): A(f"ds_read_b64 {v2(vK+2*w)}, v{vT+2} offset:{L_O+1024*w}") if w else None
    A(f"s_lshl_b32 s{sT1}, s{sT0}, 5"); A(f"v_mov_b32 v{vT+1}, s{sT1}")
    A(f"ds_read_b128 {v4(vA)}, v{vT+1} offset:{L_L}"); A(f"ds_read_b128 {v4(vA+4)}, v{vT+1} offset:{L_L+16}")
    A(f"ds_read_b128 {v4(vP)}, v{vT+1} offset:{L_M}"); A(f"ds_read_b128 {v4(vP+4)}, v{vT+1} offset:{L_M+16}")
    A(f"ds_read_b64 {v2(vK)}, v{vT+2} offset:{L_O}")
    A(f"s_lshl4_add_u32 s{sT1}, s{sHK}, s{sSLOT}"); A(f"s_lshl1_add_u32 s{sT1}, s{sT1}, s{sT0}"); A(f"s_lshl_b32 s{sT1}, s{sT1}, 10")
    A(f"s_add_u32 s{sT1}, s{sT1}, {OB}"); A(f"s_add_u32 s{sT2}, s{sT1}, {AOFF}")
    A(f"v_mov_b32 v{vACC+3}, s{sTAG}")
    A("s_waitcnt lgkmcnt(5)")
    for a, b in ((2,3),(4,5),(6,7),(1,2),(4,6),(1,4)):
        A(f"v_pk_add_f32 {v2(vK+2*a)}, {v2(vK+2*a)}, {v2(vK+2*b)}")
    A("s_waitcnt lgkmcnt(0)")
    A(f"v_pk_add_f32 {v2(vA)}, {v2(vA)}, {v2(vA+2)}"); A(f"v_pk_add_f32 {v2(vA+4)}, {v2(vA+4)}, {v2(vA+6)}")
    A(f"v_max3_f32 v{vT}, v{vP}, v{vP+1}, v{vP+2}")
    A(f"v_pk_add_f32 {v2(vA)}, {v2(vA)}, {v2(vA+4)}")
    A(f"v_max3_f32 v{vT}, v{vT}, v{vP+3}, v{vP+4}")
    A(f"v_add_f32 v{vA}, v{vA}, v{vA+1}")
    A(f"v_max3_f32 v{vT}, v{vT}, v{vP+5}, v{vP+6}")
    A(f"v_rcp_f32 v{vA+2}, v{vA}"); A(f"v_log_f32 v{vA+4}, v{vA}")
    A(f"v_max_f32 v{vT}, v{vT}, v{vP+7}")
    A(f"v_pk_add_f32 {v2(vK)}, {v2(vK)}, {v2(vK+2)}")
    A(f"v_fma_f32 v{vACC+2}, v{vT}, s{sC}, v{vA+4}")
    A(f"v_mul_f32 v{vACC}, v{vK}, v{vA+2}"); A(f"v_mul_f32 v{vACC+1}, v{vK+1}, v{vA+2}")
    A(f"buffer_store_dwordx4 {v4(vACC)}, v{vOV}, {srd(SWS)}, s{sT2} offen")
    A(f"buffer_store_dwordx4 {v4(vACC)}, v{vOV}, {srd(SWS)}, s{sT1} offen sc1")
    g.stamp(6)
    A("s_waitcnt vmcnt(2)")
    A(f"v_lshlrev_b32 v{vT}, 2, v{vR3}")
    A("s_branch L_barD2")
    g.lab("L_ogather")
    A(f"s_mul_i32 s{sT0}, s{sW}, 11"); A(f"s_add_u32 s{sT0}, s{sT0}, s{sSLOT}")
    A(f"s_lshl_b32 s{sT1}, s{sHK}, 15"); A(f"s_lshl_b32 s{sT2}, s{sT0}, 6"); A(f"s_add_u32 s{sT1}, s{sT1}, s{sT2}"); A(f"s_add_u32 s{sT2}, s{sT1}, {OB}")
    A(f"s_add_u32 s{sT1}, s{sT2}, {AOFF}")
    A(f"v_mov_b32 v{vA}, 0"); A(f"v_mov_b32 v{vA+1}, 0"); A(f"v_mov_b32 v{vA+2}, {f2u(-1e30):#x}")
    A(f"v_lshrrev_b32 v{vT+1}, 4, v{vL}")
    A(f"s_lshl_b32 s{sT3}, s{sW}, 5"); A(f"v_lshl_add_u32 v{vT+3}, v{vT+1}, 3, s{sT3}")
    A(f"s_mov_b32 s{sSPIN}, {SPIN}")
    A(f"s_cmp_ge_u32 s{sT0}, 32"); A("s_cbranch_scc1 L_owrite")
    setexec(g, 0x07ff07ff, 0x07ff07ff)
    g.lab("L_opoll")
    A(f"buffer_load_dwordx4 {v4(vA)}, v{vOU}, {srd(SWS)}, s{sT1} offen sc1")
    A(f"s_sub_u32 s{sSPIN}, s{sSPIN}, 1"); A("s_cbranch_scc1 L_opoll_end")
    A(f"s_cmp_eq_u32 s{sSPIN}, {SW}"); A(f"s_cselect_b32 s{sT1}, s{sT2}, s{sT1}")
    A("s_waitcnt vmcnt(0)")
    A(f"v_cmpx_ne_u32 vcc, s{sTAG}, v{vA+3}")
    A("s_cbranch_execnz L_opoll")
    g.lab("L_opoll_end")
    A("s_mov_b64 exec, -1")
    g.stamp(6)
    A(f"v_mov_b32 v{vT+4}, v{vA+2}")
    A("s_nop 1")
    rowred(g, "v_max_f32", [vT+4])
    A(f"v_sub_f32 v{vA+2}, v{vA+2}, v{vT+4}")
    A(f"v_exp_f32 v{vA+2}, v{vA+2}")
    A("s_nop 0")
    A(f"v_mul_f32 v{vA}, v{vA}, v{vA+2}"); A(f"v_mul_f32 v{vA+1}, v{vA+1}, v{vA+2}")
    A("s_nop 0")
    rowred(g, "v_add_f32", [vA+2, vA, vA+1])
    A(f"v_rcp_f32 v{vA+2}, v{vA+2}")
    A("s_nop 0")
    A(f"v_mul_f32 v{vA}, v{vA}, v{vA+2}"); A(f"v_mul_f32 v{vA+1}, v{vA+1}, v{vA+2}")
    A(f"v_cvt_pk_bf16_f32 v{vA}, v{vA}, v{vA}"); A(f"v_cvt_pk_bf16_f32 v{vA+1}, v{vA+1}, v{vA+1}")
    g.lab("L_owrite")
    setexec(g, 0x00010001, 0x00010001)
    A(f"ds_write_b64 v{vT+3}, {v2(vA)} offset:{L_C}")
    A("s_mov_b64 exec, -1")
    g.lab("L_barD")
    A(f"v_lshlrev_b32 v{vT}, 2, v{vR3}")
    A("s_waitcnt vmcnt(0) lgkmcnt(0)")
    g.lab("L_barD2")
    A("s_barrier")
    g.stamp(8)
    for i in range(3): A(f"ds_read_b32 v{vP+i}, v{vT} offset:{L_C+32*i}")
    A("s_waitcnt lgkmcnt(0)")
    for i in range(3): build_A(g, vK+4*i, vP+i)
    for i in range(3): A(f"{MF} {v4(vACC+4)}, {v4(vK+4*i)}, {v4(vV+4*i)}, {'0' if i == 0 else v4(vACC+4)}")
    fpublish(g, vACC+4)
    g.stamp(7)
    A("s_endpgm" if not p["stamps"] else "s_branch L_fin")
    g.lab("L_touch8"); A("s_branch L_touched")
    g.lab("L_attn8")
    if p["prio"]: A("s_setprio 3")
    attn_consts()
    A(f"s_lshl_b32 s{sT2}, s{sHK}, 12"); A(f"s_add_u32 s{sT2}, s{sT2}, {QB}"); A(f"s_add_u32 s{sT0}, s{sT2}, {AOFF}")
    A(f"s_mov_b32 s{sSPIN}, {SPIN}")
    tagsel(g)
    if p.get("qsleep0"): A(f"s_sleep {p['qsleep0']}")
    g.lab("L_qpoll")
    A(f"s_sleep {p['qsleep']}")
    for rg in range(4):
        A(f"buffer_load_dwordx4 {v4(vK+4*rg)}, v{vOV}, {srd(SWS)}, s{sT0} offen offset:{rg*1024} sc1")
    A(f"s_sub_u32 s{sSPIN}, s{sSPIN}, 1"); A("s_cbranch_scc1 L_qpoll_end")
    A(f"s_cmp_eq_u32 s{sSPIN}, {max(SPIN-p['apolls']//4,0)}"); A(f"s_cselect_b32 s{sT0}, s{sT2}, s{sT0}")
    A("s_waitcnt vmcnt(0)")
    for rg in range(4): tagcheck(g, vK+4*rg, vT+2*rg)
    for rg in range(4): A(f"v_xor_b32 v{vT+2*rg}, s{sTAG}, v{vT+2*rg}")
    A(f"v_or3_b32 v{vT}, v{vT}, v{vT+2}, v{vT+4}"); A(f"v_or_b32 v{vT}, v{vT}, v{vT+6}")
    A(f"v_cmp_ne_u32 vcc, 0, v{vT}")
    A("s_cbranch_vccnz L_qpoll")
    g.lab("L_qpoll_end")
    for k in (0, 2):
        A(f"v_pk_add_f32 {v2(vK+k)}, {v2(vK+k)}, {v2(vK+4+k)}"); A(f"v_pk_add_f32 {v2(vK+8+k)}, {v2(vK+8+k)}, {v2(vK+12+k)}")
    for k in (0, 2): A(f"v_pk_add_f32 {v2(vK+k)}, {v2(vK+k)}, {v2(vK+8+k)}")
    A(f"v_cvt_pk_bf16_f32 v{vK}, v{vK}, v{vK+1}"); A(f"v_cvt_pk_bf16_f32 v{vK+1}, v{vK+2}, v{vK+3}")
    A(f"v_lshlrev_b32 v{vT}, 3, v{vL}")
    A(f"ds_write_b64 v{vT}, {v2(vK)} offset:{L_Q}")
    A("s_waitcnt lgkmcnt(0)")
    g.stamp(4)
    A("s_barrier")
    if p["pretouch"]:
        A(f"s_lshl4_add_u32 s{sT1}, s{sHK}, s{sSLOT}"); A(f"s_lshl_b32 s{sT1}, s{sT1}, 11"); A(f"s_add_u32 s{sT1}, s{sT1}, {OB+AOFF}")
        A(f"v_lshlrev_b32 v{vT}, 7, v{vL}")
        setexec(g, 0xffff, 0)
        A(f"buffer_load_dword v{vT+1}, v{vT}, {srd(SWS)}, s{sT1} offen sc1")
        A("s_mov_b64 exec, -1")
    A("s_barrier")
    for i in range(3):
        A(f"buffer_load_dwordx4 {v4(vV+4*i)}, v{vOD if i == 2 else vOT}, {srd(S3)}, s{sOO} offen {nt}")
        if i < 2: A(f"s_add_u32 s{sOO}, s{sOO}, {11*9216}")
    A("s_branch L_barC")
    g.lab("L_touchF"); A("s_branch L_touched")
    g.lab("L_notattn")
    if not p["helper"]:
        A(f"s_cmp_eq_u32 s{sJ}, 31"); A("s_cbranch_scc1 L_fin")
    g.vm = list(pre)
    if p.get("diag"):
        A(f"s_cmp_eq_u32 s{sJ}, 22"); A("s_cbranch_scc0 L_dg1"); A(f"s_cmp_eq_u32 s{sW}, 0"); A("s_cbranch_scc0 L_dg1")
        A(f"v_mov_b32 v{vT}, s90"); A(f"v_mov_b32 v{vT+1}, 0"); A(f"s_lshl_b32 s{sT0}, s{sXCD}, 7"); A("s_mov_b64 exec, 1")
        A(f"buffer_store_dword v{vT}, v{vT+1}, {srd(SWS)}, s{sT0} offen offset:1024 sc1"); A("s_mov_b64 exec, -1")
        g.lab("L_dg1")
    A(f"v_and_b32 v{vT+1}, 7, v{vL}"); A(f"v_mad_u32_u24 v{vT}, v{vR3}, 64, v{vT+1}"); A(f"v_lshl_add_u32 v{vT}, v{vR3}, 3, v{vT}")
    A(f"v_lshlrev_b32 v{vT}, 1, v{vT}"); A(f"s_lshl_b32 s{sT0}, s{sWE}, 4")
    A(f"s_mov_b64 s[{SGW+2}:{SGW+3}], s[{SX+2}:{SX+3}]"); A(f"s_mov_b64 s[{SOUT+2}:{SOUT+3}], s[{SX+2}:{SX+3}]")
    A(f"buffer_load_ushort v{vXG}, v{vT}, {srd(SX)}, s{sT0} offen"); g.vissue("xg")
    A(f"buffer_load_ushort v{vGW}, v{vT}, {srd(SGW)}, s{sT0} offen"); g.vissue("gw")
    A(f"s_cmp_eq_u32 s{sMODE}, 2"); A(f"s_cselect_b32 s{sT0}, {OOB:#x}, 0")
    A(f"v_or_b32 v{vOU}, s{sT0}, v{vOK}"); A(f"v_or_b32 v{vOD}, s{sT0}, v{vOT}")
    dm = p["dmix"]
    fseq = [("K", t) for t in range(8)] + [("U", t) for t in range(8)]
    if dm:
        o = []; di = 0
        for idx, e in enumerate(fseq):
            o.append(e)
            if idx >= NPRO and (idx % 2 == 1) and di < dm: o.append(("D", di)); di += 1
        fseq = o + [("D", t) for t in range(di, 8)]
    else: fseq += [("D", t) for t in range(8)]
    def greg(kind, t): return {"K": vK+4*t, "U": vK+32+4*t, "D": vV+16+4*t}[kind]
    fpos = [NPRO]
    def fissue():
        kind, t = fseq[fpos[0]]; fpos[0] += 1
        if kind == "D":
            A(f"buffer_load_dwordx4 {v4(greg(kind,t))}, v{vOD}, {srd(S3)}, s{sOO} offen {nt}")
            if t < 7: A(f"s_add_u32 s{sOO}, s{sOO}, 9216")
        else:
            A(f"buffer_load_dwordx4 {v4(greg(kind,t))}, v{vOK if kind == 'K' else vOU}, {srd(S1 if kind == 'K' else S2)}, s{sRUN} offen {nt}")
            if t < 7: A(f"s_add_u32 s{sRUN}, s{sRUN}, s{sSTEP}")
            elif kind == "K": A(f"s_mov_b32 s{sRUN}, s{sKO}")
        g.vissue(f"{kind}{t}")
    A(f"s_mul_i32 s{sT0}, s{sU}, {64*1152}"); A(f"s_add_u32 s{sOO}, s{sOO}, s{sT0}")
    A(f"s_add_u32 s{sPI}, s{sU}, 176")
    fpub_consts(g)
    fl = 0
    while fpos[0] < WF: fissue()
    for idx in range(NPRO):
        g.vwait(f"K{idx}"); fl = idx + 1
        while fpos[0] - fl < WF: fissue()
    g.vwait("gw")
    A(f"v_lshl_or_b32 v{vT+4}, v{vXG}, 16, v{vXG}")
    A(f"v_lshlrev_b32 v{vT+5}, 2, v{vR3}")
    for t in range(8): A(f"ds_bpermute_b32 v{vP+t}, v{vT+5}, v{vT+4} offset:{32*t}")
    A(f"v_lshlrev_b32 v{vXG}, 16, v{vXG}"); A(f"v_lshlrev_b32 v{vGW}, 16, v{vGW}")
    A(f"v_mul_f32 v{vXG}, v{vXG}, v{vGW}")
    bf16r(g, vXG, vXG)
    rowred(g, "v_add_f32", [vXG]); crossrow(g, "v_add_f32", vXG, vT)
    A(f"s_lshl_b32 s{sT0}, s{sW}, 2"); A(f"v_mov_b32 v{vT+3}, s{sT0}")
    A("s_mov_b64 exec, 1")
    A(f"ds_write_b32 v{vT+3}, v{vXG} offset:{L_Z}")
    A("s_mov_b64 exec, -1")
    A("s_waitcnt lgkmcnt(0)")
    ng = 0
    for idx, (kind, t) in enumerate(fseq):
        if ng == 16: break
        if kind != "D": build_A(g, vA+4*(ng & 1), vP+t)
        k = 0
        if idx >= fl:
            g.vwait(f"{kind}{t}"); fl = idx + 1; k = 1
            while fpos[0] - fl < WF and fpos[0] < len(fseq): fissue(); k += 1
        if kind != "D":
            if k < 2: A(f"s_nop {1-k}")
            acc = vACC if kind == "K" else vACC+4
            A(f"{MF} {v4(acc)}, {v4(vA+4*(ng&1))}, {v4(greg(kind,t))}, {'0' if t == 0 else v4(acc)}")
            ng += 1
    g.stamp(4)
    if p["helper"]:
        A(f"s_cmp_eq_u32 s{sMODE}, 2"); A("s_cbranch_scc0 L_noth")
        A(f"s_lshl_b32 s{sPI}, s{sHK}, 8"); A(f"s_add_u32 s{sPI}, s{sPI}, {HB}")
        fpublish(g, vACC, acopy=False)
        A("s_branch L_fin")
        g.lab("L_noth")
    A(f"s_lshl_b32 s{sT0}, s{sW}, 9"); A(f"v_add_u32 v{vT+2}, s{sT0}, v{vOFP}")
    A(f"v_permlane32_swap_b32 v{vACC}, v{vACC+2}"); A(f"v_permlane32_swap_b32 v{vACC+1}, v{vACC+3}")
    A("s_nop 1")
    A(f"v_add_f32_dpp v{vACC}, v{vACC+2}, v{vACC} row_ror:8 {DPP}"); A(f"v_add_f32_dpp v{vACC+1}, v{vACC+3}, v{vACC+1} row_ror:8 {DPP}")
    A(f"v_permlane32_swap_b32 v{vACC+4}, v{vACC+6}"); A(f"v_permlane32_swap_b32 v{vACC+5}, v{vACC+7}")
    A("s_nop 0")
    A(f"v_add_f32_dpp v{vACC+4}, v{vACC+6}, v{vACC+4} row_ror:8 {DPP}"); A(f"v_add_f32_dpp v{vACC+5}, v{vACC+7}, v{vACC+5} row_ror:8 {DPP}")
    setexec(g, 0x00ff00ff, 0x00ff00ff)
    A(f"ds_write_b64 v{vT+2}, {v2(vACC)} offset:{L_O}")
    A(f"ds_write_b64 v{vT+2}, {v2(vACC+4)} offset:{L_O+256}")
    A("s_mov_b64 exec, -1")
    if p["helper"]:
        A(f"s_cmp_eq_u32 s{sMODE}, 1"); A("s_cbranch_scc0 L_barE")
        A(f"s_and_b32 s{sT1}, s{sU}, 0x78"); A(f"s_lshl1_add_u32 s{sT1}, s{sW}, s{sT1}"); A(f"s_lshl_b32 s{sT1}, s{sT1}, 8")
        A(f"s_add_u32 s{sT1}, s{sT1}, {HB - 10*256}")
        A(f"v_add_u32 v{vT+3}, s{sT0}, v{vOV}")
        A(f"s_mov_b32 s{sSPIN}, {SPIN}")
        tagsel(g)
        A("s_mov_b32 exec_hi, 0")
        g.lab("L_hpoll")
        A(f"s_sleep {p['hsleep']}")
        A(f"buffer_load_dwordx4 {v4(vA)}, v{vOV}, {srd(SWS)}, s{sT1} offen sc1")
        A(f"s_sub_u32 s{sSPIN}, s{sSPIN}, 1"); A("s_cbranch_scc1 L_hpoll_end")
        A("s_waitcnt vmcnt(0)")
        tagcheck(g, vA, vT+4)
        A(f"v_cmp_ne_u32 vcc, s{sTAG}, v{vT+4}")
        A("s_cbranch_vccnz L_hpoll")
        g.lab("L_hpoll_end")
        A(f"ds_write_b128 v{vT+3}, {v4(vA)} offset:{L_O}")
        A("s_mov_b64 exec, -1")
        g.lab("L_barE")
    A(f"v_lshlrev_b32 v{vT}, 3, v{vL}")
    A(f"v_lshrrev_b32 v{vT+1}, 1, v{vR3}"); A(f"v_and_b32 v{vT+2}, 1, v{vR3}"); A(f"v_lshlrev_b32 v{vT+1}, 2, v{vT+1}")
    A(f"v_lshl_add_u32 v{vT+1}, v{vT+2}, 7, v{vT+1}")
    A("s_waitcnt lgkmcnt(0)")
    A("s_barrier")
    for w in range(9): A(f"ds_read_b64 {v2(vK+2*w)}, v{vT} offset:{L_O+512*w}")
    if fpos[0] < len(fseq): fissue()
    A("s_waitcnt lgkmcnt(0)")
    for a, b in ((0,1),(2,3),(4,5),(6,7),(0,2),(4,6),(0,4),(0,8)):
        A(f"v_pk_add_f32 {v2(vK+2*a)}, {v2(vK+2*a)}, {v2(vK+2*b)}")
    A("s_nop 1")
    A(f"v_permlane32_swap_b32 v{vK}, v{vK+1}")
    A("s_nop 0")
    A(f"v_cvt_pk_bf16_f32 v{vK+2}, v{vK}, v{vK+1}")
    A(f"v_lshlrev_b32 v{vK}, 16, v{vK+2}"); A(f"v_and_b32 v{vK+1}, 0xffff0000, v{vK+2}")
    A(f"v_mul_f32 v{vK+2}, {f2u(-1.4426950408889634):#x}, v{vK}")
    A(f"v_exp_f32 v{vK+2}, v{vK+2}"); A("s_nop 0")
    A(f"v_add_f32 v{vK+2}, 1.0, v{vK+2}")
    A(f"v_rcp_f32 v{vK+2}, v{vK+2}"); A("s_nop 0")
    A(f"v_mul_f32 v{vK}, v{vK}, v{vK+2}")
    bf16r(g, vK, vK)
    A(f"v_mul_f32 v{vK}, v{vK}, v{vK+1}")
    A(f"v_cvt_pk_bf16_f32 v{vK}, v{vK}, v{vK}")
    for t in range(8): A(f"ds_bpermute_b32 v{vP+t}, v{vT+1}, v{vK} offset:{16*t}")
    while fpos[0] < len(fseq): fissue()
    A("s_waitcnt lgkmcnt(0)")
    for t in range(8): build_A(g, vK+16+4*t, vP+t)
    g.stamp(5)
    for t in range(8):
        g.vwait(f"D{t}")
        A(f"{MF} {v4(vACC)}, {v4(vK+16+4*t)}, {v4(greg('D',t))}, {'0' if t == 0 else v4(vACC)}")
    g.stamp(6)
    fpublish(g, vACC)
    g.stamp(7)
    A(f"v_and_b32 v{vT}, 31, v{vL}"); A(f"v_lshrrev_b32 v{vT+1}, 5, v{vL}")
    A(f"v_mul_u32_u24 v{vT+2}, {FROW}, v{vT}"); A(f"v_lshl_add_u32 v{vT+2}, v{vT+1}, 4, v{vT+2}")
    A(f"s_mul_i32 s{sT0}, s{sW}, {32*FROW}"); A(f"s_lshl_b32 s{sT1}, s{sU}, 5"); A(f"s_add_u32 s{sT0}, s{sT0}, s{sT1}")
    A(f"s_add_u32 s{sT0}, s{sT0}, {FB}")
    A(f"s_lshl_b32 s{sT2}, s{sW}, 5"); A(f"v_add_u32 v{vT+10}, s{sT2}, v{vT}")
    A(f"s_movk_i32 s{sT3}, 248")
    A(f"v_cmp_gt_u32 s[{sM0}:{sM0+1}], s{sT3}, v{vT+10}")
    A(f"v_lshlrev_b32 v{vT+5}, 1, v{vT+10}"); A(f"v_lshl_add_u32 v{vT+5}, v{vT+1}, 4, v{vT+5}")
    A(f"s_mul_i32 s{sT2}, s{sXCD}, 22"); A(f"s_mul_i32 s{sT3}, s{sXCD}, 9"); A(f"s_add_u32 s{sT3}, s{sT3}, 176")
    A(f"v_subrev_u32 v{vT+11}, s{sT2}, v{vT+10}"); A(f"v_subrev_u32 v{vT+12}, s{sT3}, v{vT+10}")
    A(f"v_cmp_gt_u32 s[{sM0+2}:{sM0+3}], 22, v{vT+11}")
    A(f"v_cmp_gt_u32 vcc, 9, v{vT+12}")
    A(f"v_mov_b32 v{vT+4}, {AOFF}")
    A(f"s_or_b64 vcc, s[{sM0+2}:{sM0+3}], vcc")
    for r in range(4): A(f"v_mov_b32 v{vK+r}, 0")
    A(f"v_cndmask_b32 v{vT+11}, 0, v{vT+4}, vcc")
    A(f"v_add_u32 v{vT+11}, v{vT+11}, v{vT+2}")
    tagsel(g)
    A(f"v_mov_b32 v{vT+6}, 0")
    A(f"ds_read_b128 {v4(vA)}, v{vT+6} offset:{L_Z}"); A(f"ds_read_b128 {v4(vA+4)}, v{vT+6} offset:{L_Z+16}"); A(f"ds_read_b32 v{vT+7}, v{vT+6} offset:{L_Z+32}")
    A("s_waitcnt lgkmcnt(0)")
    A(f"v_pk_add_f32 {v2(vA)}, {v2(vA)}, {v2(vA+2)}"); A(f"v_pk_add_f32 {v2(vA+4)}, {v2(vA+4)}, {v2(vA+6)}")
    A(f"v_pk_add_f32 {v2(vA)}, {v2(vA)}, {v2(vA+4)}")
    A(f"v_add_f32 v{vA}, v{vA}, v{vA+1}"); A(f"v_add_f32 v{vA}, v{vA}, v{vT+7}")
    bf16r(g, vA, vA)
    A(f"v_mul_f32 v{vA}, {f2u(-1.4426950408889634):#x}, v{vA}")
    A(f"v_exp_f32 v{vA}, v{vA}"); A("s_nop 0")
    A(f"v_add_f32 v{vA}, 1.0, v{vA}"); A(f"v_rcp_f32 v{vA}, v{vA}"); A("s_nop 0")
    bf16r(g, vA, vA)
    A(f"v_sub_f32 v{vA+1}, 1.0, v{vA}"); bf16r(g, vA+1, vA+1)
    A(f"v_and_b32 v{vT+9}, 7, v{vL}"); A(f"v_lshlrev_b32 v{vT+8}, 2, v{vT+9}"); A(f"v_lshlrev_b32 v{vT+9}, 1, v{vT+9}")
    A(f"v_add_u32 v{vT+8}, {L_R}, v{vT+8}")
    A(f"s_lshl_b32 s{sKO}, s{sU}, 4")
    A(f"s_mov_b32 s{sSPIN}, {SPIN}")
    A(f"s_mov_b64 exec, s[{sM0}:{sM0+1}]"); A("s_cbranch_execz L_fskip")
    g.lab("L_fpoll")
    if p["rsleep"]: A(f"s_sleep {p['rsleep']}")
    A(f"buffer_load_dwordx4 {v4(vK)}, v{vT+11}, {srd(SWS)}, s{sT0} offen sc1")
    A(f"s_sub_u32 s{sSPIN}, s{sSPIN}, 1"); A("s_cbranch_scc1 L_fpoll_end")
    A(f"s_cmp_eq_u32 s{sSPIN}, {SW}"); A("s_cbranch_scc0 L_fp1")
    A(f"v_mov_b32 v{vT+11}, v{vT+2}")
    g.lab("L_fp1")
    A("s_waitcnt vmcnt(0)")
    tagcheck(g, vK, vT+12)
    A(f"v_cmpx_ne_u32 vcc, s{sTAG}, v{vT+12}")
    A("s_cbranch_execnz L_fpoll")
    g.lab("L_fpoll_end")
    A("s_mov_b64 exec, -1")
    g.stamp(8)
    A("s_nop 2")
    rowred(g, "v_add_f32", [vK, vK+1, vK+2, vK+3])
    setexec(g, 0x00010001, 0x00010001)
    A(f"ds_write_b128 v{vT+5}, {v4(vK)} offset:{L_R}")
    g.lab("L_fskip")
    A("s_mov_b64 exec, -1")
    A("s_waitcnt lgkmcnt(0)")
    A("s_barrier")
    A(f"s_cmp_lg_u32 s{sW}, 0"); A("s_cbranch_scc1 L_fin")
    for k in range(8): A(f"ds_read2_b32 {v2(vK+2*k)}, v{vT+8} offset0:{16*k} offset1:{16*k+8}")
    A("s_waitcnt lgkmcnt(0)")
    A(f"v_pk_add_f32 {v2(vK)}, {v2(vK)}, {v2(vK+2)}"); A(f"v_pk_add_f32 {v2(vK+4)}, {v2(vK+4)}, {v2(vK+6)}")
    A(f"v_pk_add_f32 {v2(vK+12)}, {v2(vK+12)}, {v2(vK+14)}")
    A(f"v_pk_add_f32 {v2(vK)}, {v2(vK)}, {v2(vK+8)}")
    A(f"v_add_f32 v{vK+12}, v{vK+12}, v{vK+13}")
    A(f"v_pk_add_f32 {v2(vK)}, {v2(vK)}, {v2(vK+4)}")
    A(f"v_add_f32 v{vK+11}, v{vK+11}, v{vK+12}")
    A(f"v_add_f32 v{vK}, v{vK}, v{vK+1}"); A(f"v_add_f32 v{vK+10}, v{vK}, v{vK+10}")
    A(f"v_cvt_pk_bf16_f32 v{vK}, v{vK+10}, v{vK+11}")
    A(f"v_lshlrev_b32 v{vK+10}, 16, v{vK}"); A(f"v_and_b32 v{vK+11}, 0xffff0000, v{vK}")
    A(f"v_pk_mul_f32 {v2(vK+10)}, {v2(vK+10)}, {v2(vA)}")
    A(f"v_cvt_pk_bf16_f32 v{vK}, v{vK+10}, v{vK+11}")
    A(f"v_lshlrev_b32 v{vK+10}, 16, v{vK}"); A(f"v_and_b32 v{vK+11}, 0xffff0000, v{vK}")
    A(f"v_add_f32 v{vK}, v{vK+10}, v{vK+11}")
    A(f"v_cvt_pk_bf16_f32 v{vK}, v{vK}, v{vK}")
    setexec(g, 0xff, 0)
    A(f"buffer_store_short v{vK}, v{vT+9}, {srd(SOUT)}, s{sKO} offen")
    A(f"s_cmp_lg_u32 s{sU}, 0"); A("s_cbranch_scc1 L_fin")
    if p.get("diag"):
        A("s_memrealtime s[92:93]")
        A(f"v_lshlrev_b32 v{vT}, 7, v{vL}")
        A(f"buffer_load_dword v{vT+1}, v{vT}, {srd(SWS)}, 0 offen offset:1024 sc1"); A("s_waitcnt vmcnt(0) lgkmcnt(0)")
        for k in range(8): A(f"v_readlane_b32 s{80+k}, v{vT+1}, {k}")
        A("s_nop 3")
        for k in range(8): A(f"s_sub_u32 s{80+k}, s92, s{80+k}")
        A("s_mov_b32 s88, s80"); A("s_mov_b32 s89, s80")
        for k in range(1, 8): A(f"s_max_u32 s88, s88, s{80+k}"); A(f"s_min_u32 s89, s89, s{80+k}")
        d = p["diag"]
        if d == "skew": A("s_sub_u32 s88, s88, s89"); A("s_mul_i32 s88, s88, 10")
        elif d == "total": A("s_mul_i32 s88, s88, 4")
        elif d == "last": A("s_mul_i32 s88, s89, 4")
        elif d == "zero": A("s_mov_b32 s88, 0")
        A("s_min_u32 s88, s88, 20000")
        g.lab("L_dg2")
        A("s_memrealtime s[94:95]"); A("s_waitcnt lgkmcnt(0)"); A("s_sub_u32 s94, s94, s92"); A("s_cmp_lt_u32 s94, s88"); A("s_cbranch_scc1 L_dg2")
    A("s_mov_b64 exec, 1")
    A(f"v_mov_b32 v{vT+7}, s{sTAG}")
    A(f"buffer_store_dword v{vT+7}, v{vT+6}, {srd(SWS)}, 0 offen offset:{EPOCH}")
    g.lab("L_fin")
    if p["stamps"]:
        A("s_mov_b64 exec, -1")
        A("s_waitcnt vmcnt(0)")
        g.stamp(9)
        A("s_waitcnt lgkmcnt(0)")
        A(f"s_lshl_b32 s{sT0}, s2, 4"); A(f"s_add_u32 s{sT0}, s{sT0}, s{sW}"); A(f"s_lshl_b32 s{sT0}, s{sT0}, 6"); A(f"s_add_u32 s{sT0}, s{sT0}, {STB}")
        for k in range(10): A(f"v_mov_b32 v{vK+k}, s{80+2*k}")
        A(f"v_mov_b32 v{vK+10}, s{sSPIN}"); A(f"v_mov_b32 v{vK+11}, s{sTAG}")
        A(f"v_mov_b32 v{vT}, 0"); A("s_mov_b64 exec, 1")
        for k in range(3): A(f"buffer_store_dwordx4 {v4(vK+4*k)}, v{vT}, {srd(SWS)}, s{sT0} offen offset:{16*k}")
    g.lab("L_end")
    A("s_endpgm")
    out += g.L
    out += [f".fill ({NAME} + 9472 - .) / 4, 4, 0xbf800000"]
    out += ['.section .rodata,"a"', ".p2align 6", f".amdhsa_kernel {NAME}", f"  .amdhsa_next_free_vgpr {NV}",
            f"  .amdhsa_next_free_sgpr {100 if (p['stamps'] or p.get('diag')) else 80}", f"  .amdhsa_accum_offset {NV}", "  .amdhsa_group_segment_fixed_size 0",
            "  .amdhsa_kernarg_size 104", "  .amdhsa_user_sgpr_count 2", "  .amdhsa_user_sgpr_kernarg_segment_ptr 1",
            "  .amdhsa_system_sgpr_workgroup_id_x 1", ".end_amdhsa_kernel"]
    return "\n".join(out) + "\n"

if __name__ == "__main__":
    kw = {}
    for a in sys.argv[2:]:
        k, v = a.split("="); kw[k] = eval(v)
    open(sys.argv[1], "w").write(gen(**kw))
```

```python
import sys, struct
NAME = "gated_mix__sliding_block_cached__swiglu_ffn__decode_kernel"
HDR = open("gated_mix__sliding_block_cached__swiglu_ffn__decode.s.ref").read().split("; Override launch")[0]
def f2u(f): return struct.unpack("<I", struct.pack("<f", f))[0]

EPOCH = 0
HB = 4096
QB = HB + 72*256
OB = QB + 256*256
FB = OB + 256*2048
AOFF = 2 << 20
FROW = 2304
assert FB + 256*FROW <= AOFF
WS_USED = 2*AOFF
STB = 8 << 20
L_QP = 0; L_Q = 4608; L_M = 5120; L_L = 5184; L_Z = 5248; L_C = 5312
L_CNT = 5504; L_O = 5632; L_H = L_O + 9*1024; L_R = L_H + 9*256
LDS_BYTES = L_R + 640
OOB = 0x40000000

class G:
    def __init__(s, **kw):
        s.L = []; s.p = dict(WA=4, WF=3, N0=1, stamps=False, nt="nt", qsleep=2, qsleep0=25, spin=200000, apolls=300, bpos=1, rsleep=0, dmix=5,
                             prio=1, align=True, touch=True, pretouch=1, nmid=4, helper=1, hsleep=8)
        s.p.update(kw); s.vm = []
    def A(s, x):
        if s.p.get("pnt") and x.startswith("buffer_load") and x.endswith(" sc1"): x += " nt"
        if s.p.get("xnt") and (x.startswith("buffer_load_dword v") or x.startswith("buffer_load_ushort") or x.startswith("global_load_dword v")) and " nt" not in x: x += " nt"
        s.L.append("    " + x)
    def lab(s, x): s.L.append(x + ":")
    def vissue(s, name): s.vm.append(name)
    def vwait(s, name):
        i = s.vm.index(name); s.A(f"s_waitcnt vmcnt({len(s.vm)-1-i})")
    def stamp(s, k, prog=False):
        if s.p.get("prof") and not prog and 3 <= k <= 8 and k != 5: return
        if prog and s.p.get("prof") != int(prog): return
        if s.p["stamps"]: s.A(f"s_memrealtime s[{80+2*k}:{81+2*k}]")

sW=3
SX=8; SWQ=12; SWS=16; S1=20; S2=24; S3=28; SGW=32; SOUT=36
sE=40; sSTEP=41; sTAG=42
sXCD=44; sJ=45; sHK=46; sSLOT=47; sQI=48; sT0=49; sT1=50; sT2=51; sRUN=52; sBIAS=53; sSPIN=54
sKO=55; sOO=56; sSEL0=57; sSEL1=58; sPI=59; sC=60; sU=61
sM0=62; sEX=70; sAM=72; sWE=74; sT3=75; sT4=76; sMODE=77; sFF=78; sNOS=79
def srd(b): return f"s[{b}:{b+3}]"
vL=1; vM=2; vOT=6; vOK=7; vOV=8; vOWQ=9; vLT=10; vX0=11; vOU=12; vOD=13; vTB=14
vXG=16; vGW=17; vT=18
vA=32; vACC=40; vP=48; vOKL=60; vOVL=61; vR3=62; vOFP=63
vK=64; vV=112; NV=160
def v4(b): return f"v[{b}:{b+3}]"
def v2(b): return f"v[{b}:{b+1}]"
DPP = "row_mask:0xf bank_mask:0xf"
MF = "v_mfma_f32_16x16x32_bf16"

def build_A(g, dst, rep):
    for j in range(4): g.A(f"v_and_b32 v{dst+j}, v{rep}, v{vM+j}")
def rowred(g, op, regs):
    need = max(0, 2 - (len(regs) - 1))
    for r in (8, 4, 2, 1):
        if need: g.A(f"s_nop {need-1}")
        for x in regs: g.A(f"{op}_dpp v{x}, v{x}, v{x} row_ror:{r} {DPP}")
def crossrow(g, op, x, t):
    for sw in ("v_permlane16_swap_b32", "v_permlane32_swap_b32"):
        g.A(f"v_mov_b32 v{t}, v{x}"); g.A("s_nop 1"); g.A(f"{sw} v{x}, v{t}"); g.A("s_nop 1"); g.A(f"{op} v{x}, v{x}, v{t}")
def bf16r(g, d, s_):
    g.A(f"v_cvt_pk_bf16_f32 v{d}, v{s_}, v{s_}"); g.A(f"v_and_b32 v{d}, 0xffff0000, v{d}")
def setexec(g, lo, hi):
    g.A(f"s_mov_b32 exec_lo, {lo:#x}"); g.A(f"s_mov_b32 exec_hi, {hi:#x}")

def fpub_consts(g):
    A = g.A
    A(f"s_mul_i32 s{sPI}, s{sPI}, 9"); A(f"s_add_u32 s{sPI}, s{sPI}, s{sW}"); A(f"s_lshl_b32 s{sPI}, s{sPI}, 8"); A(f"s_add_u32 s{sPI}, s{sPI}, {FB}")
    A(f"s_lshl_b32 s{sT0}, s{sW}, 8"); A(f"s_mul_i32 s{sT1}, s{sXCD}, {72*4}"); A(f"s_sub_u32 s{sT0}, s{sT0}, s{sT1}")
    A(f"v_add_u32 v{vT}, s{sT0}, v{vOFP}")
    A(f"v_cmp_gt_u32 vcc, {72*4}, v{vT}")
    A(f"v_lshrrev_b32 v{vT}, 1, v{vL}"); A(f"v_and_b32 v{vT}, 16, v{vT}")
    A(f"v_lshrrev_b32 v{vTB}, v{vT}, s{sTAG}" if False else f"v_mov_b32 v{vTB}, s{sTAG}")
    A(f"v_lshrrev_b32 v{vTB}, v{vT}, v{vTB}")
    A(f"s_and_b32 s{sAM}, vcc_lo, 0x00ff00ff"); A(f"s_and_b32 s{sAM+1}, vcc_hi, 0x00ff00ff")
    A(f"v_lshrrev_b32 v{vTB+1}, 8, v{vTB}")
    A(f"s_movk_i32 s{sFF}, 0xff")

def tagcheck(g, d, t):
    g.A(f"v_perm_b32 v{t}, v{d+1}, v{d}, s{sSEL0}"); g.A(f"v_perm_b32 v{t+1}, v{d+3}, v{d+2}, s{sSEL1}")
    g.A(f"v_or_b32 v{t}, v{t}, v{t+1}")
def tagsel(g):
    g.A(f"s_mov_b32 s{sSEL0}, 0x0c0c0400"); g.A(f"s_mov_b32 s{sSEL1}, 0x04000c0c")

PROG = {"K3": 3, "K7": 4, "K11": 6, "V3": 7, "V7": 8}
uid = [0]
def fpublish(g, acc, acopy=True):
    g.A(f"s_add_u32 s{sT0}, s{sPI}, {AOFF}")
    g.A("s_nop 6")
    g.A(f"v_permlane32_swap_b32 v{acc}, v{acc+2}")
    g.A(f"v_permlane32_swap_b32 v{acc+1}, v{acc+3}")
    g.A("s_nop 0")
    g.A(f"v_add_f32_dpp v{acc}, v{acc+2}, v{acc} row_ror:8 {DPP}")
    g.A(f"v_add_f32_dpp v{acc+1}, v{acc+3}, v{acc+1} row_ror:8 {DPP}")
    setexec(g, 0x00ff00ff, 0x00ff00ff)
    g.A(f"v_bfi_b32 v{acc}, s{sFF}, v{vTB}, v{acc}"); g.A(f"v_bfi_b32 v{acc+1}, s{sFF}, v{vTB+1}, v{acc+1}")
    g.A(f"buffer_store_dwordx2 {v2(acc)}, v{vOFP}, {srd(SWS)}, s{sPI} offen sc1")
    if acopy:
        uid[0] += 1
        g.A(f"s_mov_b64 exec, s[{sAM}:{sAM+1}]"); g.A(f"s_cbranch_execz L_na{uid[0]}")
        g.A(f"buffer_store_dwordx2 {v2(acc)}, v{vOFP}, {srd(SWS)}, s{sT0} offen")
        g.lab(f"L_na{uid[0]}")
    g.A("s_mov_b64 exec, -1")

def gen(**kw):
    g = G(**kw); A = g.A; p = g.p; nt = p["nt"]; WA = p["WA"]; WF = p["WF"]
    SPIN = p["spin"]; SW = max(SPIN - p["apolls"], 0)
    NPRO = min(WA, WF)
    out = [HDR.rstrip("\n")]
    out.append(f"; @launch grid=(256,1,1) block=(576,1,1) lds={LDS_BYTES}")
    out += ['.amdgcn_target "amdgcn-amd-amdhsa--gfx950"', ".text"]
    if p["align"]: out += [".p2align 12", ".fill 832, 4, 0xbf800000"]
    out += [f".globl {NAME}", ".p2align 8", f".type {NAME},@function", f"{NAME}:"]
    g.stamp(0)
    if p.get("diag"): A("s_memrealtime s[90:91]")
    A("s_cmp_ge_u32 s2, 0x100"); A("s_cbranch_scc1 L_end")
    A(f"s_load_dwordx2 s[{SWQ}:{SWQ+1}], s[0:1], 24")
    if p.get("cpf", 1):
        A(f"s_getpc_b64 s[{sEX}:{sEX+1}]"); A(f"v_lshlrev_b32 v{vGW}, 4, v0")
        A(f"global_load_dword v{vGW}, v{vGW}, s[{sEX}:{sEX+1}]")
    A(f"s_load_dwordx2 s[{SX}:{SX+1}], s[0:1], 0")
    A(f"s_lshr_b32 s{sJ}, s2, 3")
    A(f"s_cmp_lt_u32 s{sJ}, 22")
    A(f"s_cselect_b32 s{sT0}, 8, 48"); A(f"s_cselect_b32 s{sT2}, 32, 64")
    A(f"s_load_dwordx4 s[4:7], s[0:1], s{sT0}")
    A(f"s_load_dwordx2 s[{S3}:{S3+1}], s[0:1], s{sT2}")
    A(f"s_load_dwordx2 s[{SGW}:{SGW+1}], s[0:1], 72")
    A(f"s_load_dwordx2 s[{SOUT}:{SOUT+1}], s[0:1], 80")
    A(f"s_load_dwordx2 s[{SWS}:{SWS+1}], s[0:1], 96")
    A(f"v_lshrrev_b32 v{vT}, 6, v0")
    A(f"v_and_b32 v{vL}, 63, v0")
    A(f"v_readfirstlane_b32 s{sW}, v{vT}")
    A(f"s_and_b32 s{sXCD}, s2, 7")
    A(f"v_lshrrev_b32 v{vR3}, 3, v{vL}")
    A(f"v_and_b32 v{vT+1}, 7, v{vL}")
    A(f"v_lshlrev_b32 v{vT+2}, 4, v{vT+1}")
    A(f"v_lshl_add_u32 v{vOWQ}, v{vR3}, 14, v{vT+2}")
    A(f"v_lshlrev_b32 v{vT+3}, 2, v{vR3}")
    A(f"s_bfe_u32 s{sT0}, s{sJ}, 0x20002"); A(f"s_mul_i32 s{sT0}, s{sT0}, 9"); A(f"s_add_u32 s{sT0}, s{sT0}, s{sW}")
    A(f"s_lshr_b32 s{sT1}, s{sJ}, 4"); A(f"s_lshl1_add_u32 s{sT1}, s{sXCD}, s{sT1}")
    A(f"s_and_b32 s{sT2}, s{sJ}, 3"); A(f"s_lshl2_add_u32 s{sT1}, s{sT1}, s{sT2}"); A(f"s_lshl_b32 s{sT1}, s{sT1}, 7")
    A(f"s_lshl_b32 s{sT2}, s{sT0}, 17"); A(f"s_add_u32 s{sT1}, s{sT1}, s{sT2}")
    A(f"s_add_u32 s{sT2}, s{sT1}, 8192")
    A(f"s_lshl_b32 s{sT0}, s{sT0}, 5")
    A(f"s_mov_b32 s{SWQ+2}, 4718592"); A(f"s_mov_b32 s{SWQ+3}, 0x20000")
    A(f"s_movk_i32 s{SX+2}, 1152"); A(f"s_mov_b32 s{SX+3}, s{SWQ+3}")
    vWQ = vV + 40
    A(f"v_mov_b32 v{vT+4}, 0")
    A(f"ds_write_b32 v{vT+4}, v{vT+4} offset:{L_CNT}")
    A("s_waitcnt lgkmcnt(0)")
    g.stamp(1)
    A(f"buffer_load_dwordx4 {v4(vWQ)}, v{vOWQ}, {srd(SWQ)}, s{sT1} offen {nt}"); g.vissue("wq0")
    A(f"buffer_load_dwordx4 {v4(vWQ+4)}, v{vOWQ}, {srd(SWQ)}, s{sT2} offen {nt}"); g.vissue("wq1")
    A(f"buffer_load_dword v{vX0}, v{vT+3}, {srd(SX)}, s{sT0} offen"); g.vissue("x0")
    A(f"s_load_dword s{sE}, s[{SWS}:{SWS+1}], {EPOCH}")
    g.stamp(3, 2)
    A("s_barrier")
    g.stamp(4, 2)
    if p.get("diag"): A("s_memrealtime s[96:97]")
    A(f"s_mov_b64 s[{S1}:{S1+1}], s[4:5]"); A(f"s_mov_b64 s[{S2}:{S2+1}], s[6:7]")
    A(f"s_mov_b32 s{S1+3}, s{SWQ+3}")
    A(f"v_lshlrev_b32 v{vOV}, 4, v{vL}")
    A(f"s_cmp_ge_u32 s{sJ}, 22"); A("s_cbranch_scc1 L_setF")
    A(f"s_mov_b32 s{S1+2}, 0x10000000"); A(f"s_mov_b32 s{S3+2}, s{SWQ+2}")
    A(f"s_cmp_ge_u32 s{sJ}, 11"); A(f"s_cselect_b32 s{sT0}, 1, 0"); A(f"s_cselect_b32 s{sT1}, 11, 0")
    A(f"s_lshl1_add_u32 s{sHK}, s{sXCD}, s{sT0}")
    A(f"s_sub_u32 s{sSLOT}, s{sJ}, s{sT1}")
    A(f"s_min_u32 s{sBIAS}, s{sSLOT}, 1"); A(f"s_mul_i32 s{sT1}, s{sSLOT}, 93"); A(f"s_add_u32 s{sBIAS}, s{sBIAS}, s{sW}")
    A(f"s_add_u32 s{sT0}, s{sBIAS}, s{sT1}"); A(f"s_lshl_b32 s{sT0}, s{sT0}, 10")
    A(f"s_lshl_b32 s{sKO}, s{sHK}, 24"); A(f"s_add_u32 s{sKO}, s{sKO}, s{sT0}")
    A(f"s_add_u32 s{sKO}, s{sKO}, {61440*256}")
    A(f"s_movk_i32 s{sSTEP}, 8192")
    A(f"v_bfe_u32 v{vT}, v{vL}, 2, 2"); A(f"v_lshrrev_b32 v{vT+1}, 4, v{vL}"); A(f"v_and_b32 v{vT+3}, 3, v{vL}")
    A(f"v_lshlrev_b32 v{vOK}, 8, v{vT}"); A(f"v_lshl_add_u32 v{vOK}, v{vT+1}, 6, v{vOK}"); A(f"v_lshl_add_u32 v{vOK}, v{vT+3}, 4, v{vOK}")
    A(f"s_cmp_eq_u32 s{sW}, 8"); A(f"s_cselect_b32 s{sNOS}, 1, 0")
    A("s_branch L_set_done")
    g.lab("L_setF")
    A(f"s_mov_b32 s{S1+2}, 5308416"); A(f"s_mov_b32 s{S3+2}, s{S1+2}")
    A(f"s_mul_i32 s{sU}, s{sXCD}, 9"); A(f"s_mov_b32 s{sWE}, s{sW}")
    A(f"s_cmp_eq_u32 s{sJ}, 31"); A("s_cbranch_scc0 L_setF1")
    A(f"s_add_u32 s{sHK}, s{sU}, s{sW}")
    A(f"s_and_b32 s{sU}, s{sHK}, 0x78"); A(f"s_sub_u32 s{sU}, s{sU}, {9-3}")
    A(f"s_bfe_u32 s{sWE}, s{sHK}, 0x20001"); A(f"s_add_u32 s{sWE}, s{sWE}, 5")
    A(f"s_bitcmp1_b32 s{sHK}, 0"); A(f"s_cselect_b64 s[{S1}:{S1+1}], s[6:7], s[4:5]")
    g.lab("L_setF1")
    A(f"s_add_u32 s{sU}, s{sU}, s{sJ}"); A(f"s_sub_u32 s{sU}, s{sU}, 22")
    A(f"s_movk_i32 s{sT0}, 9216"); A(f"v_mad_u32_u24 v{vOK}, v{vR3}, s{sT0}, v{vT+2}")
    A(f"s_mul_i32 s{sKO}, s{sWE}, {8*9216}"); A(f"s_lshl_b32 s{sT0}, s{sU}, 7"); A(f"s_add_u32 s{sKO}, s{sKO}, s{sT0}")
    A(f"s_mov_b32 s{sSTEP}, {72*9216}")
    A(f"s_and_b32 s{sT0}, s{sU}, 7"); A(f"s_cmp_eq_u32 s{sT0}, 3"); A(f"s_cselect_b32 s{sT0}, s{sW}, 0")
    A(f"s_cmp_ge_u32 s{sT0}, {5 if p['helper'] else 99}"); A(f"s_cselect_b32 s{sMODE}, 1, 0")
    A(f"s_cmp_eq_u32 s{sJ}, 31"); A(f"s_cselect_b32 s{sMODE}, 2, s{sMODE}")
    A(f"s_cmp_eq_u32 s{sMODE}, {1 if p['helper'] else 2}")
    A(f"s_cselect_b32 s{sT0}, {OOB:#x}, 0")
    A(f"v_add_u32 v{vOK}, s{sT0}, v{vOK}")
    A(f"s_mov_b32 s{sNOS}, 0")
    g.lab("L_set_done")
    A(f"s_mov_b32 s{sRUN}, s{sKO}")
    def s1_issue(i):
        A(f"buffer_load_dwordx4 {v4(vK+4*i)}, v{vOK}, {srd(S1)}, s{sRUN} offen {nt}"); g.vissue(f"K{i}")
        A(f"s_add_u32 s{sRUN}, s{sRUN}, s{sSTEP}")
    N0 = min(p.get("N0", 2), NPRO)
    A(f"s_cmp_eq_u32 s{sNOS}, 1"); A("s_cbranch_scc1 L_touch8")
    for i in range(N0): s1_issue(i)
    A(f"s_cmp_lt_u32 s{sJ}, 22"); A("s_cbranch_scc0 L_touchF")
    g.lab("L_touched")
    g.stamp(6, 2)
    if p.get("diag"): A("s_memrealtime s[98:99]")
    A(f"s_mov_b64 s[{S2+2}:{S2+3}], s[{S1+2}:{S1+3}]"); A(f"s_mov_b32 s{S3+3}, s{SWQ+3}")
    A(f"s_mov_b32 s{SWS+2}, {(16<<20) if p['stamps'] else WS_USED}"); A(f"s_mov_b32 s{SWS+3}, s{SWQ+3}")
    A(f"v_and_b32 v{vT}, 1, v{vL}"); A(f"v_lshlrev_b32 v{vT}, 4, v{vT}")
    A(f"v_mov_b32 v{vT+1}, 0xffff"); A(f"v_lshlrev_b32 v{vT}, v{vT}, v{vT+1}")
    A(f"v_bfe_u32 v{vT+1}, v{vL}, 1, 2")
    for j in range(4): A(f"v_cmp_eq_u32 s[{sM0+2*j}:{sM0+2*j+1}], {j}, v{vT+1}")
    A(f"s_mov_b32 s{sSEL0}, 0x01000100"); A(f"s_mov_b32 s{sSEL1}, 0x03020302")
    for j in range(4): A(f"v_cndmask_b32 v{vM+j}, 0, v{vT}, s[{sM0+2*j}:{sM0+2*j+1}]")
    A(f"v_lshrrev_b32 v{vT}, 5, v{vL}"); A(f"v_and_b32 v{vT+3}, 16, v{vL}")
    A(f"v_lshl_add_u32 v{vLT}, v{vT+2}, 1, v{vT+3}")
    A(f"v_lshl_add_u32 v{vOFP}, v{vT}, 3, v{vLT}")
    A(f"v_lshl_add_u32 v{vLT}, v{vT}, 8, v{vLT}")
    A(f"s_movk_i32 s{sT0}, 1152"); A(f"v_mad_u32_u24 v{vOT}, v{vR3}, s{sT0}, v{vT+2}")
    A(f"s_lshl_b32 s{sT0}, s{sW}, 9"); A(f"v_add_u32 v{vT+2}, s{sT0}, v{vLT}")
    g.stamp(7, 2)
    A(f"s_cmp_eq_u32 s{sNOS}, 1"); A("s_cbranch_scc0 L_w1")
    A("s_waitcnt vmcnt(0)")
    g.lab("L_w1")
    g.vwait("x0")
    g.stamp(2)
    A(f"v_perm_b32 v{vT}, v{vX0}, v{vX0}, s{sSEL0}"); A(f"v_perm_b32 v{vT+1}, v{vX0}, v{vX0}, s{sSEL1}")
    build_A(g, vA, vT); build_A(g, vA+4, vT+1)
    A("s_cbranch_scc1 L_w2")
    for i in range(N0, NPRO): s1_issue(i)
    g.lab("L_w2")
    A(f"v_mov_b32 v{vT+5}, 1")
    A(f"{MF} {v4(vACC)}, {v4(vA)}, {v4(vWQ)}, 0")
    A(f"{MF} {v4(vACC)}, {v4(vA+4)}, {v4(vWQ+4)}, {v4(vACC)}")
    setexec(g, 0x00ff00ff, 0xff00ff00)
    A("s_waitcnt lgkmcnt(0)")
    A(f"s_mul_i32 s{sTAG}, s{sE}, 0x9e3779b1"); A(f"s_add_u32 s{sTAG}, s{sTAG}, 0x7f4a7c15")
    A(f"s_lshl_b32 s{sOO}, s{sW}, 7")
    A("s_nop 1")
    A(f"ds_write_b128 v{vT+2}, {v4(vACC)} offset:{L_QP}")
    A("s_mov_b64 exec, 1")
    A(f"ds_add_u32 v{vT+4}, v{vT+5} offset:{L_CNT}")
    A("s_mov_b64 exec, -1")
    A(f"s_cmp_lg_u32 s{sW}, 8"); A("s_cbranch_scc1 L_nopub")
    base = vV
    A(f"v_lshlrev_b32 v{vT}, 2, v{vL}")
    A(f"s_lshl_b32 s{sT0}, s{sXCD}, 5"); A(f"s_add_u32 s{sT0}, s{sT0}, s{sJ}")
    A(f"s_lshl_b32 s{sT0}, s{sT0}, 8"); A(f"s_add_u32 s{sT0}, s{sT0}, {QB}"); A(f"s_add_u32 s{sT1}, s{sT0}, {AOFF}")
    A(f"v_and_b32 v{vT+1}, 3, v{vL}"); A(f"v_lshlrev_b32 v{vT+1}, 3, v{vT+1}"); A(f"v_mov_b32 v{vT+6}, s{sTAG}")
    A(f"v_lshrrev_b32 v{vT+1}, v{vT+1}, v{vT+6}"); A(f"s_movk_i32 s{sFF}, 0xff")
    g.lab("L_cnt")
    A(f"ds_read_b32 v{vT+6}, v{vT+4} offset:{L_CNT}")
    A("s_waitcnt lgkmcnt(0)")
    A(f"v_cmp_ne_u32 vcc, 9, v{vT+6}")
    A("s_cbranch_vccnz L_cnt")
    for k in range(9): A(f"ds_read2st64_b32 {v2(base+2*k)}, v{vT} offset0:{2*k} offset1:{2*k+1}")
    A("s_waitcnt lgkmcnt(0)")
    for a, b in ((0,1),(2,3),(4,5),(6,7),(0,2),(4,6),(0,4),(0,8)):
        A(f"v_pk_add_f32 {v2(base+2*a)}, {v2(base+2*a)}, {v2(base+2*b)}")
    A(f"v_add_f32 v{vT+8}, v{base}, v{base+1}")
    A(f"v_bfi_b32 v{vT+8}, s{sFF}, v{vT+1}, v{vT+8}")
    A(f"buffer_store_dword v{vT+8}, v{vT}, {srd(SWS)}, s{sT1} offen")
    A(f"buffer_store_dword v{vT+8}, v{vT}, {srd(SWS)}, s{sT0} offen sc1")
    g.stamp(3)
    A(f"s_cmp_lt_u32 s{sJ}, 22"); A("s_cbranch_scc1 L_attn8")
    g.lab("L_nopub")
    A(f"s_cmp_ge_u32 s{sJ}, 22"); A("s_cbranch_scc1 L_notattn")
    pre = list(g.vm)
    def attn_consts():
        A(f"s_lshl_b32 s{sT0}, s{sHK}, 5"); A(f"s_add_u32 s{sT0}, s{sT0}, s{sSLOT}"); A(f"s_mul_i32 s{sT0}, s{sT0}, 9216")
        A(f"s_add_u32 s{sOO}, s{sOO}, s{sT0}")
        A(f"s_mul_i32 s{sPI}, s{sHK}, 11"); A(f"s_add_u32 s{sPI}, s{sPI}, s{sSLOT}")
        fpub_consts(g)
        A(f"s_cmp_lt_u32 s{sSLOT}, 10"); A(f"s_cselect_b32 s{sT0}, 0, {OOB:#x}")
        A(f"v_add_u32 v{vOD}, s{sT0}, v{vOT}")
        A(f"v_and_b32 v{vT}, 15, v{vL}"); A(f"v_lshrrev_b32 v{vT+1}, 4, v{vL}")
        A(f"v_lshlrev_b32 v{vOU}, 11, v{vT}"); A(f"v_lshl_add_u32 v{vOU}, v{vT+1}, 4, v{vOU}")
    A(f"s_cmp_lt_u32 s{sBIAS}, 6"); A(f"s_cselect_b32 s{sT0}, 0, {OOB:#x}"); A(f"s_cselect_b32 s{sBIAS}, 0, {f2u(-1e30):#x}")
    A(f"v_add_u32 v{vOKL}, s{sT0}, v{vOK}"); A(f"v_add_u32 v{vOVL}, s{sT0}, v{vOV}")
    seq = [("K", i) for i in range(12)] + [("V", i) for i in range(12)] + [("O", i) for i in range(3)]
    pos = [NPRO]; land = [0]; vdone = [-1]
    def can_issue():
        if pos[0] >= len(seq): return False
        kind, i = seq[pos[0]]
        return kind != "O" or i <= vdone[0]
    def issue():
        kind, i = seq[pos[0]]; pos[0] += 1
        if kind == "O":
            A(f"buffer_load_dwordx4 {v4(vV+4*i)}, v{vOD if i == 2 else vOT}, {srd(S3)}, s{sOO} offen {nt}")
            if i < 2: A(f"s_add_u32 s{sOO}, s{sOO}, {11*9216}")
        else:
            off = {("K", True): vOKL, ("K", False): vOK, ("V", True): vOVL, ("V", False): vOV}[(kind, i == 11)]
            A(f"buffer_load_dwordx4 {v4((vK if kind == 'K' else vV)+4*i)}, v{off}, {srd(S1 if kind == 'K' else S2)}, s{sRUN} offen {nt}")
            if i < 11: A(f"s_add_u32 s{sRUN}, s{sRUN}, s{sSTEP}")
            elif kind == "K": A(f"s_mov_b32 s{sRUN}, s{sKO}")
        g.vissue(f"{kind}{i}")
    def refill():
        while pos[0] - land[0] < WA and can_issue(): issue()
    def step():
        kind, i = seq[land[0]]; land[0] += 1
        g.vwait(f"{kind}{i}")
        if f"{kind}{i}" in PROG: g.stamp(PROG[f"{kind}{i}"], True)
        refill()
    nmid = [p["nmid"]]
    def mid():
        if nmid[0] > 0 and can_issue(): issue(); nmid[0] -= 1; return True
        return False
    refill()
    g.stamp(8, 2)
    step(); attn_consts()
    while land[0] < 12 + p["bpos"] + 1: step()
    g.stamp(3)
    A(f"v_and_b32 v{vT}, 0xf0, v{vOK}"); A(f"v_and_b32 v{vT+1}, 1, v{vR3}")
    A(f"v_lshl_add_u32 v{vT}, v{vT+1}, 8, v{vT}")
    A("s_barrier")
    A(f"ds_read_b128 {v4(vA)}, v{vT} offset:{L_Q}")
    A(f"s_mov_b32 s{sC}, {f2u(128**-0.5 * 1.4426950408889634):#x}")
    A(f"v_lshlrev_b32 v{vT+1}, 5, v{vT+1}"); A(f"s_lshl_b32 s{sT0}, s{sW}, 2"); A(f"v_add_u32 v{vT+3}, s{sT0}, v{vT+1}")
    A("s_waitcnt lgkmcnt(0)")
    for i in range(12): A(f"{MF} {v4(vK+4*i)}, {v4(vK+4*i)}, {v4(vA)}, 0")
    for i in range(12): A(f"v_mov_b32_dpp v{vP+i}, v{vK+4*i} quad_perm:[0,0,0,0] {DPP}")
    for r in (1, 2, 3):
        if r == 2: mid()
        for i in range(12): A(f"v_add_f32_dpp v{vP+i}, v{vK+4*i+r}, v{vP+i} quad_perm:[{r},{r},{r},{r}] {DPP}")
    A(f"v_add_f32 v{vP+11}, s{sBIAS}, v{vP+11}")
    A(f"v_max3_f32 v{vT}, v{vP}, v{vP+1}, v{vP+2}")
    for i in range(3, 11, 2): A(f"v_max3_f32 v{vT}, v{vT}, v{vP+i}, v{vP+i+1}")
    A(f"v_max_f32 v{vT}, v{vT}, v{vP+11}")
    crossrow(g, "v_max_f32", vT, vT+2)
    setexec(g, 0x101, 0)
    A(f"ds_write_b32 v{vT+3}, v{vT} offset:{L_M}")
    A("s_mov_b64 exec, -1")
    mid()
    A("s_waitcnt lgkmcnt(0)")
    A("s_barrier")
    A(f"ds_read_b128 {v4(vA)}, v{vT+1} offset:{L_M}"); A(f"ds_read_b128 {v4(vA+4)}, v{vT+1} offset:{L_M+16}")
    A(f"v_and_b32 v{vT+5}, 15, v{vL}"); A(f"v_lshlrev_b32 v{vT+5}, 5, v{vT+5}")
    A(f"v_and_b32 v{vT+6}, 16, v{vL}"); A(f"v_add_u32 v{vT+5}, v{vT+5}, v{vT+6}")
    A(f"v_lshrrev_b32 v{vT+6}, 5, v{vL}"); A(f"v_lshl_add_u32 v{vT+5}, v{vT+6}, 9, v{vT+5}")
    A(f"s_lshl_b32 s{sT0}, s{sW}, 10"); A(f"v_add_u32 v{vT+5}, s{sT0}, v{vT+5}")
    A("s_waitcnt lgkmcnt(0)")
    A(f"v_max3_f32 v{vT}, v{vA}, v{vA+1}, v{vA+2}"); A(f"v_max3_f32 v{vT}, v{vT}, v{vA+3}, v{vA+4}")
    A(f"v_max3_f32 v{vT}, v{vT}, v{vA+5}, v{vA+6}"); A(f"v_max_f32 v{vT}, v{vT}, v{vA+7}")
    A(f"v_mul_f32 v{vT}, s{sC}, v{vT}")
    for i in range(12): A(f"v_fma_f32 v{vP+i}, v{vP+i}, s{sC}, -v{vT}")
    for i in range(12): A(f"v_exp_f32 v{vP+i}, v{vP+i}")
    if not mid(): A("s_nop 0")
    A(f"v_add_f32 v{vT+4}, v{vP}, v{vP+1}")
    for i in range(2, 12): A(f"v_add_f32 v{vT+4}, v{vT+4}, v{vP+i}")
    for i in range(12): A(f"v_cvt_pk_bf16_f32 v{vP+i}, v{vP+i}, v{vP+i}")
    crossrow(g, "v_add_f32", vT+4, vT+2)
    setexec(g, 0x101, 0)
    A(f"ds_write_b32 v{vT+3}, v{vT+4} offset:{L_L}")
    A("s_mov_b64 exec, -1")
    mid()
    for i in range(12): build_A(g, vK+4*i, vP+i)
    g.stamp(4)
    for i in range(12):
        if land[0] <= 12 + i:
            land[0] += 1; g.vwait(f"V{i}")
            if f"V{i}" in PROG: g.stamp(PROG[f"V{i}"], True)
        A(f"{MF} {v4(vACC)}, {v4(vK+4*i)}, {v4(vV+4*i)}, {'0' if i == 0 else v4(vACC)}")
        vdone[0] = i
        refill()
    assert pos[0] == len(seq)
    g.stamp(5)
    A("s_nop 7")
    A(f"ds_write_b128 v{vT+5}, {v4(vACC)} offset:{L_O}")
    A("s_waitcnt lgkmcnt(0)")
    g.lab("L_barC")
    A("s_barrier")
    A(f"s_cmp_lt_u32 s{sW}, 3"); A("s_cbranch_scc1 L_ogather")
    A(f"s_sub_u32 s{sT0}, s{sW}, 6"); A(f"s_cmp_lt_u32 s{sT0}, 2"); A("s_cbranch_scc0 L_barD")
    A(f"s_lshl_b32 s{sT1}, s{sT0}, 9"); A(f"v_lshl_add_u32 v{vT+2}, v{vL}, 3, s{sT1}")
    for w in range(8): A(f"ds_read_b64 {v2(vK+2*w)}, v{vT+2} offset:{L_O+1024*w}") if w else None
    A(f"s_lshl_b32 s{sT1}, s{sT0}, 5"); A(f"v_mov_b32 v{vT+1}, s{sT1}")
    A(f"ds_read_b128 {v4(vA)}, v{vT+1} offset:{L_L}"); A(f"ds_read_b128 {v4(vA+4)}, v{vT+1} offset:{L_L+16}")
    A(f"ds_read_b128 {v4(vP)}, v{vT+1} offset:{L_M}"); A(f"ds_read_b128 {v4(vP+4)}, v{vT+1} offset:{L_M+16}")
    A(f"ds_read_b64 {v2(vK)}, v{vT+2} offset:{L_O}")
    A(f"s_lshl4_add_u32 s{sT1}, s{sHK}, s{sSLOT}"); A(f"s_lshl1_add_u32 s{sT1}, s{sT1}, s{sT0}"); A(f"s_lshl_b32 s{sT1}, s{sT1}, 10")
    A(f"s_add_u32 s{sT1}, s{sT1}, {OB}"); A(f"s_add_u32 s{sT2}, s{sT1}, {AOFF}")
    A(f"v_mov_b32 v{vACC+3}, s{sTAG}")
    A("s_waitcnt lgkmcnt(5)")
    for a, b in ((2,3),(4,5),(6,7),(1,2),(4,6),(1,4)):
        A(f"v_pk_add_f32 {v2(vK+2*a)}, {v2(vK+2*a)}, {v2(vK+2*b)}")
    A("s_waitcnt lgkmcnt(0)")
    A(f"v_pk_add_f32 {v2(vA)}, {v2(vA)}, {v2(vA+2)}"); A(f"v_pk_add_f32 {v2(vA+4)}, {v2(vA+4)}, {v2(vA+6)}")
    A(f"v_max3_f32 v{vT}, v{vP}, v{vP+1}, v{vP+2}")
    A(f"v_pk_add_f32 {v2(vA)}, {v2(vA)}, {v2(vA+4)}")
    A(f"v_max3_f32 v{vT}, v{vT}, v{vP+3}, v{vP+4}")
    A(f"v_add_f32 v{vA}, v{vA}, v{vA+1}")
    A(f"v_max3_f32 v{vT}, v{vT}, v{vP+5}, v{vP+6}")
    A(f"v_rcp_f32 v{vA+2}, v{vA}"); A(f"v_log_f32 v{vA+4}, v{vA}")
    A(f"v_max_f32 v{vT}, v{vT}, v{vP+7}")
    A(f"v_pk_add_f32 {v2(vK)}, {v2(vK)}, {v2(vK+2)}")
    A(f"v_fma_f32 v{vACC+2}, v{vT}, s{sC}, v{vA+4}")
    A(f"v_mul_f32 v{vACC}, v{vK}, v{vA+2}"); A(f"v_mul_f32 v{vACC+1}, v{vK+1}, v{vA+2}")
    A(f"buffer_store_dwordx4 {v4(vACC)}, v{vOV}, {srd(SWS)}, s{sT2} offen")
    A(f"buffer_store_dwordx4 {v4(vACC)}, v{vOV}, {srd(SWS)}, s{sT1} offen sc1")
    g.stamp(6)
    A("s_waitcnt vmcnt(2)")
    A(f"v_lshlrev_b32 v{vT}, 2, v{vR3}")
    A("s_branch L_barD2")
    g.lab("L_ogather")
    A(f"s_mul_i32 s{sT0}, s{sW}, 11"); A(f"s_add_u32 s{sT0}, s{sT0}, s{sSLOT}")
    A(f"s_lshl_b32 s{sT1}, s{sHK}, 15"); A(f"s_lshl_b32 s{sT2}, s{sT0}, 6"); A(f"s_add_u32 s{sT1}, s{sT1}, s{sT2}"); A(f"s_add_u32 s{sT2}, s{sT1}, {OB}")
    A(f"s_add_u32 s{sT1}, s{sT2}, {AOFF}")
    A(f"v_mov_b32 v{vA}, 0"); A(f"v_mov_b32 v{vA+1}, 0"); A(f"v_mov_b32 v{vA+2}, {f2u(-1e30):#x}")
    A(f"v_lshrrev_b32 v{vT+1}, 4, v{vL}")
    A(f"s_lshl_b32 s{sT3}, s{sW}, 5"); A(f"v_lshl_add_u32 v{vT+3}, v{vT+1}, 3, s{sT3}")
    A(f"s_mov_b32 s{sSPIN}, {SPIN}")
    A(f"s_cmp_ge_u32 s{sT0}, 32"); A("s_cbranch_scc1 L_owrite")
    setexec(g, 0x07ff07ff, 0x07ff07ff)
    g.lab("L_opoll")
    A(f"buffer_load_dwordx4 {v4(vA)}, v{vOU}, {srd(SWS)}, s{sT1} offen sc1")
    A(f"s_sub_u32 s{sSPIN}, s{sSPIN}, 1"); A("s_cbranch_scc1 L_opoll_end")
    A(f"s_cmp_eq_u32 s{sSPIN}, {SW}"); A(f"s_cselect_b32 s{sT1}, s{sT2}, s{sT1}")
    A("s_waitcnt vmcnt(0)")
    A(f"v_cmpx_ne_u32 vcc, s{sTAG}, v{vA+3}")
    A("s_cbranch_execnz L_opoll")
    g.lab("L_opoll_end")
    A("s_mov_b64 exec, -1")
    g.stamp(6)
    A(f"v_mov_b32 v{vT+4}, v{vA+2}")
    A("s_nop 1")
    rowred(g, "v_max_f32", [vT+4])
    A(f"v_sub_f32 v{vA+2}, v{vA+2}, v{vT+4}")
    A(f"v_exp_f32 v{vA+2}, v{vA+2}")
    A("s_nop 0")
    A(f"v_mul_f32 v{vA}, v{vA}, v{vA+2}"); A(f"v_mul_f32 v{vA+1}, v{vA+1}, v{vA+2}")
    A("s_nop 0")
    rowred(g, "v_add_f32", [vA+2, vA, vA+1])
    A(f"v_rcp_f32 v{vA+2}, v{vA+2}")
    A("s_nop 0")
    A(f"v_mul_f32 v{vA}, v{vA}, v{vA+2}"); A(f"v_mul_f32 v{vA+1}, v{vA+1}, v{vA+2}")
    A(f"v_cvt_pk_bf16_f32 v{vA}, v{vA}, v{vA}"); A(f"v_cvt_pk_bf16_f32 v{vA+1}, v{vA+1}, v{vA+1}")
    g.lab("L_owrite")
    setexec(g, 0x00010001, 0x00010001)
    A(f"ds_write_b64 v{vT+3}, {v2(vA)} offset:{L_C}")
    A("s_mov_b64 exec, -1")
    g.lab("L_barD")
    A(f"v_lshlrev_b32 v{vT}, 2, v{vR3}")
    A("s_waitcnt vmcnt(0) lgkmcnt(0)")
    g.lab("L_barD2")
    A("s_barrier")
    g.stamp(8)
    for i in range(3): A(f"ds_read_b32 v{vP+i}, v{vT} offset:{L_C+32*i}")
    A("s_waitcnt lgkmcnt(0)")
    for i in range(3): build_A(g, vK+4*i, vP+i)
    for i in range(3): A(f"{MF} {v4(vACC+4)}, {v4(vK+4*i)}, {v4(vV+4*i)}, {'0' if i == 0 else v4(vACC+4)}")
    fpublish(g, vACC+4)
    g.stamp(7)
    A("s_endpgm" if not p["stamps"] else "s_branch L_fin")
    g.lab("L_touch8"); A("s_branch L_touched")
    g.lab("L_attn8")
    if p["prio"]: A("s_setprio 3")
    attn_consts()
    A(f"s_lshl_b32 s{sT2}, s{sHK}, 12"); A(f"s_add_u32 s{sT2}, s{sT2}, {QB}"); A(f"s_add_u32 s{sT0}, s{sT2}, {AOFF}")
    A(f"s_mov_b32 s{sSPIN}, {SPIN}")
    tagsel(g)
    if p.get("qsleep0"): A(f"s_sleep {p['qsleep0']}")
    g.lab("L_qpoll")
    A(f"s_sleep {p['qsleep']}")
    for rg in range(4):
        A(f"buffer_load_dwordx4 {v4(vK+4*rg)}, v{vOV}, {srd(SWS)}, s{sT0} offen offset:{rg*1024} sc1")
    A(f"s_sub_u32 s{sSPIN}, s{sSPIN}, 1"); A("s_cbranch_scc1 L_qpoll_end")
    A(f"s_cmp_eq_u32 s{sSPIN}, {max(SPIN-p['apolls']//4,0)}"); A(f"s_cselect_b32 s{sT0}, s{sT2}, s{sT0}")
    A("s_waitcnt vmcnt(0)")
    for rg in range(4): tagcheck(g, vK+4*rg, vT+2*rg)
    for rg in range(4): A(f"v_xor_b32 v{vT+2*rg}, s{sTAG}, v{vT+2*rg}")
    A(f"v_or3_b32 v{vT}, v{vT}, v{vT+2}, v{vT+4}"); A(f"v_or_b32 v{vT}, v{vT}, v{vT+6}")
    A(f"v_cmp_ne_u32 vcc, 0, v{vT}")
    A("s_cbranch_vccnz L_qpoll")
    g.lab("L_qpoll_end")
    for k in (0, 2):
        A(f"v_pk_add_f32 {v2(vK+k)}, {v2(vK+k)}, {v2(vK+4+k)}"); A(f"v_pk_add_f32 {v2(vK+8+k)}, {v2(vK+8+k)}, {v2(vK+12+k)}")
    for k in (0, 2): A(f"v_pk_add_f32 {v2(vK+k)}, {v2(vK+k)}, {v2(vK+8+k)}")
    A(f"v_cvt_pk_bf16_f32 v{vK}, v{vK}, v{vK+1}"); A(f"v_cvt_pk_bf16_f32 v{vK+1}, v{vK+2}, v{vK+3}")
    A(f"v_lshlrev_b32 v{vT}, 3, v{vL}")
    A(f"ds_write_b64 v{vT}, {v2(vK)} offset:{L_Q}")
    A("s_waitcnt lgkmcnt(0)")
    g.stamp(4)
    A("s_barrier")
    if p["pretouch"]:
        A(f"s_lshl4_add_u32 s{sT1}, s{sHK}, s{sSLOT}"); A(f"s_lshl_b32 s{sT1}, s{sT1}, 11"); A(f"s_add_u32 s{sT1}, s{sT1}, {OB+AOFF}")
        A(f"v_lshlrev_b32 v{vT}, 7, v{vL}")
        setexec(g, 0xffff, 0)
        A(f"buffer_load_dword v{vT+1}, v{vT}, {srd(SWS)}, s{sT1} offen sc1")
        A("s_mov_b64 exec, -1")
    A("s_barrier")
    for i in range(3):
        A(f"buffer_load_dwordx4 {v4(vV+4*i)}, v{vOD if i == 2 else vOT}, {srd(S3)}, s{sOO} offen {nt}")
        if i < 2: A(f"s_add_u32 s{sOO}, s{sOO}, {11*9216}")
    A("s_branch L_barC")
    g.lab("L_touchF"); A("s_branch L_touched")
    g.lab("L_notattn")
    if not p["helper"]:
        A(f"s_cmp_eq_u32 s{sJ}, 31"); A("s_cbranch_scc1 L_fin")
    g.vm = list(pre)
    if p.get("diag"):
        A(f"s_cmp_eq_u32 s{sJ}, 22"); A("s_cbranch_scc0 L_dg1"); A(f"s_cmp_eq_u32 s{sW}, 0"); A("s_cbranch_scc0 L_dg1")
        A(f"v_mov_b32 v{vT}, s90"); A(f"v_mov_b32 v{vT+1}, 0"); A(f"s_lshl_b32 s{sT0}, s{sXCD}, 7"); A("s_mov_b64 exec, 1")
        A(f"buffer_store_dword v{vT}, v{vT+1}, {srd(SWS)}, s{sT0} offen offset:1024 sc1"); A("s_mov_b64 exec, -1")
        g.lab("L_dg1")
    A(f"v_and_b32 v{vT+1}, 7, v{vL}"); A(f"v_mad_u32_u24 v{vT}, v{vR3}, 64, v{vT+1}"); A(f"v_lshl_add_u32 v{vT}, v{vR3}, 3, v{vT}")
    A(f"v_lshlrev_b32 v{vT}, 1, v{vT}"); A(f"s_lshl_b32 s{sT0}, s{sWE}, 4")
    A(f"s_mov_b64 s[{SGW+2}:{SGW+3}], s[{SX+2}:{SX+3}]"); A(f"s_mov_b64 s[{SOUT+2}:{SOUT+3}], s[{SX+2}:{SX+3}]")
    A(f"buffer_load_ushort v{vXG}, v{vT}, {srd(SX)}, s{sT0} offen"); g.vissue("xg")
    A(f"buffer_load_ushort v{vGW}, v{vT}, {srd(SGW)}, s{sT0} offen"); g.vissue("gw")
    A(f"s_cmp_eq_u32 s{sMODE}, 2"); A(f"s_cselect_b32 s{sT0}, {OOB:#x}, 0")
    A(f"v_or_b32 v{vOU}, s{sT0}, v{vOK}"); A(f"v_or_b32 v{vOD}, s{sT0}, v{vOT}")
    dm = p["dmix"]
    fseq = [("K", t) for t in range(8)] + [("U", t) for t in range(8)]
    if dm:
        o = []; di = 0
        for idx, e in enumerate(fseq):
            o.append(e)
            if idx >= NPRO and (idx % 2 == 1) and di < dm: o.append(("D", di)); di += 1
        fseq = o + [("D", t) for t in range(di, 8)]
    else: fseq += [("D", t) for t in range(8)]
    def greg(kind, t): return {"K": vK+4*t, "U": vK+32+4*t, "D": vV+16+4*t}[kind]
    fpos = [NPRO]
    def fissue():
        kind, t = fseq[fpos[0]]; fpos[0] += 1
        if kind == "D":
            A(f"buffer_load_dwordx4 {v4(greg(kind,t))}, v{vOD}, {srd(S3)}, s{sOO} offen {nt}")
            if t < 7: A(f"s_add_u32 s{sOO}, s{sOO}, 9216")
        else:
            A(f"buffer_load_dwordx4 {v4(greg(kind,t))}, v{vOK if kind == 'K' else vOU}, {srd(S1 if kind == 'K' else S2)}, s{sRUN} offen {nt}")
            if t < 7: A(f"s_add_u32 s{sRUN}, s{sRUN}, s{sSTEP}")
            elif kind == "K": A(f"s_mov_b32 s{sRUN}, s{sKO}")
        g.vissue(f"{kind}{t}")
    A(f"s_mul_i32 s{sT0}, s{sU}, {64*1152}"); A(f"s_add_u32 s{sOO}, s{sOO}, s{sT0}")
    A(f"s_add_u32 s{sPI}, s{sU}, 176")
    fpub_consts(g)
    fl = 0
    while fpos[0] < WF: fissue()
    for idx in range(NPRO):
        g.vwait(f"K{idx}"); fl = idx + 1
        while fpos[0] - fl < WF: fissue()
    g.vwait("gw")
    A(f"v_lshl_or_b32 v{vT+4}, v{vXG}, 16, v{vXG}")
    A(f"v_lshlrev_b32 v{vT+5}, 2, v{vR3}")
    for t in range(8): A(f"ds_bpermute_b32 v{vP+t}, v{vT+5}, v{vT+4} offset:{32*t}")
    A(f"v_lshlrev_b32 v{vXG}, 16, v{vXG}"); A(f"v_lshlrev_b32 v{vGW}, 16, v{vGW}")
    A(f"v_mul_f32 v{vXG}, v{vXG}, v{vGW}")
    bf16r(g, vXG, vXG)
    rowred(g, "v_add_f32", [vXG]); crossrow(g, "v_add_f32", vXG, vT)
    A(f"s_lshl_b32 s{sT0}, s{sW}, 2"); A(f"v_mov_b32 v{vT+3}, s{sT0}")
    A("s_mov_b64 exec, 1")
    A(f"ds_write_b32 v{vT+3}, v{vXG} offset:{L_Z}")
    A("s_mov_b64 exec, -1")
    A("s_waitcnt lgkmcnt(0)")
    ng = 0
    for idx, (kind, t) in enumerate(fseq):
        if ng == 16: break
        if kind != "D": build_A(g, vA+4*(ng & 1), vP+t)
        k = 0
        if idx >= fl:
            g.vwait(f"{kind}{t}"); fl = idx + 1; k = 1
            while fpos[0] - fl < WF and fpos[0] < len(fseq): fissue(); k += 1
        if kind != "D":
            if k < 2: A(f"s_nop {1-k}")
            acc = vACC if kind == "K" else vACC+4
            A(f"{MF} {v4(acc)}, {v4(vA+4*(ng&1))}, {v4(greg(kind,t))}, {'0' if t == 0 else v4(acc)}")
            ng += 1
    g.stamp(4)
    if p["helper"]:
        A(f"s_cmp_eq_u32 s{sMODE}, 2"); A("s_cbranch_scc0 L_noth")
        A(f"s_lshl_b32 s{sPI}, s{sHK}, 8"); A(f"s_add_u32 s{sPI}, s{sPI}, {HB}")
        fpublish(g, vACC, acopy=False)
        A("s_branch L_fin")
        g.lab("L_noth")
    A(f"s_lshl_b32 s{sT0}, s{sW}, 9"); A(f"v_add_u32 v{vT+2}, s{sT0}, v{vOFP}")
    A(f"v_permlane32_swap_b32 v{vACC}, v{vACC+2}"); A(f"v_permlane32_swap_b32 v{vACC+1}, v{vACC+3}")
    A("s_nop 1")
    A(f"v_add_f32_dpp v{vACC}, v{vACC+2}, v{vACC} row_ror:8 {DPP}"); A(f"v_add_f32_dpp v{vACC+1}, v{vACC+3}, v{vACC+1} row_ror:8 {DPP}")
    A(f"v_permlane32_swap_b32 v{vACC+4}, v{vACC+6}"); A(f"v_permlane32_swap_b32 v{vACC+5}, v{vACC+7}")
    A("s_nop 0")
    A(f"v_add_f32_dpp v{vACC+4}, v{vACC+6}, v{vACC+4} row_ror:8 {DPP}"); A(f"v_add_f32_dpp v{vACC+5}, v{vACC+7}, v{vACC+5} row_ror:8 {DPP}")
    setexec(g, 0x00ff00ff, 0x00ff00ff)
    A(f"ds_write_b64 v{vT+2}, {v2(vACC)} offset:{L_O}")
    A(f"ds_write_b64 v{vT+2}, {v2(vACC+4)} offset:{L_O+256}")
    A("s_mov_b64 exec, -1")
    if p["helper"]:
        A(f"s_cmp_eq_u32 s{sMODE}, 1"); A("s_cbranch_scc0 L_barE")
        A(f"s_and_b32 s{sT1}, s{sU}, 0x78"); A(f"s_lshl1_add_u32 s{sT1}, s{sW}, s{sT1}"); A(f"s_lshl_b32 s{sT1}, s{sT1}, 8")
        A(f"s_add_u32 s{sT1}, s{sT1}, {HB - 10*256}")
        A(f"v_add_u32 v{vT+3}, s{sT0}, v{vOV}")
        A(f"s_mov_b32 s{sSPIN}, {SPIN}")
        tagsel(g)
        A("s_mov_b32 exec_hi, 0")
        g.lab("L_hpoll")
        A(f"s_sleep {p['hsleep']}")
        A(f"buffer_load_dwordx4 {v4(vA)}, v{vOV}, {srd(SWS)}, s{sT1} offen sc1")
        A(f"s_sub_u32 s{sSPIN}, s{sSPIN}, 1"); A("s_cbranch_scc1 L_hpoll_end")
        A("s_waitcnt vmcnt(0)")
        tagcheck(g, vA, vT+4)
        A(f"v_cmp_ne_u32 vcc, s{sTAG}, v{vT+4}")
        A("s_cbranch_vccnz L_hpoll")
        g.lab("L_hpoll_end")
        A(f"ds_write_b128 v{vT+3}, {v4(vA)} offset:{L_O}")
        A("s_mov_b64 exec, -1")
        g.lab("L_barE")
    A(f"v_lshlrev_b32 v{vT}, 3, v{vL}")
    A(f"v_lshrrev_b32 v{vT+1}, 1, v{vR3}"); A(f"v_and_b32 v{vT+2}, 1, v{vR3}"); A(f"v_lshlrev_b32 v{vT+1}, 2, v{vT+1}")
    A(f"v_lshl_add_u32 v{vT+1}, v{vT+2}, 7, v{vT+1}")
    A("s_waitcnt lgkmcnt(0)")
    A("s_barrier")
    for w in range(9): A(f"ds_read_b64 {v2(vK+2*w)}, v{vT} offset:{L_O+512*w}")
    if fpos[0] < len(fseq): fissue()
    A("s_waitcnt lgkmcnt(0)")
    for a, b in ((0,1),(2,3),(4,5),(6,7),(0,2),(4,6),(0,4),(0,8)):
        A(f"v_pk_add_f32 {v2(vK+2*a)}, {v2(vK+2*a)}, {v2(vK+2*b)}")
    A("s_nop 1")
    A(f"v_permlane32_swap_b32 v{vK}, v{vK+1}")
    A("s_nop 0")
    A(f"v_cvt_pk_bf16_f32 v{vK+2}, v{vK}, v{vK+1}")
    A(f"v_lshlrev_b32 v{vK}, 16, v{vK+2}"); A(f"v_and_b32 v{vK+1}, 0xffff0000, v{vK+2}")
    A(f"v_mul_f32 v{vK+2}, {f2u(-1.4426950408889634):#x}, v{vK}")
    A(f"v_exp_f32 v{vK+2}, v{vK+2}"); A("s_nop 0")
    A(f"v_add_f32 v{vK+2}, 1.0, v{vK+2}")
    A(f"v_rcp_f32 v{vK+2}, v{vK+2}"); A("s_nop 0")
    A(f"v_mul_f32 v{vK}, v{vK}, v{vK+2}")
    bf16r(g, vK, vK)
    A(f"v_mul_f32 v{vK}, v{vK}, v{vK+1}")
    A(f"v_cvt_pk_bf16_f32 v{vK}, v{vK}, v{vK}")
    for t in range(8): A(f"ds_bpermute_b32 v{vP+t}, v{vT+1}, v{vK} offset:{16*t}")
    while fpos[0] < len(fseq): fissue()
    A("s_waitcnt lgkmcnt(0)")
    for t in range(8): build_A(g, vK+16+4*t, vP+t)
    g.stamp(5)
    for t in range(8):
        g.vwait(f"D{t}")
        A(f"{MF} {v4(vACC)}, {v4(vK+16+4*t)}, {v4(greg('D',t))}, {'0' if t == 0 else v4(vACC)}")
    g.stamp(6)
    fpublish(g, vACC)
    g.stamp(7)
    A(f"v_and_b32 v{vT}, 31, v{vL}"); A(f"v_lshrrev_b32 v{vT+1}, 5, v{vL}")
    A(f"v_mul_u32_u24 v{vT+2}, {FROW}, v{vT}"); A(f"v_lshl_add_u32 v{vT+2}, v{vT+1}, 4, v{vT+2}")
    A(f"s_mul_i32 s{sT0}, s{sW}, {32*FROW}"); A(f"s_lshl_b32 s{sT1}, s{sU}, 5"); A(f"s_add_u32 s{sT0}, s{sT0}, s{sT1}")
    A(f"s_add_u32 s{sT0}, s{sT0}, {FB}")
    A(f"s_lshl_b32 s{sT2}, s{sW}, 5"); A(f"v_add_u32 v{vT+10}, s{sT2}, v{vT}")
    A(f"s_movk_i32 s{sT3}, 248")
    A(f"v_cmp_gt_u32 s[{sM0}:{sM0+1}], s{sT3}, v{vT+10}")
    A(f"v_lshlrev_b32 v{vT+5}, 1, v{vT+10}"); A(f"v_lshl_add_u32 v{vT+5}, v{vT+1}, 4, v{vT+5}")
    A(f"s_mul_i32 s{sT2}, s{sXCD}, 22"); A(f"s_mul_i32 s{sT3}, s{sXCD}, 9"); A(f"s_add_u32 s{sT3}, s{sT3}, 176")
    A(f"v_subrev_u32 v{vT+11}, s{sT2}, v{vT+10}"); A(f"v_subrev_u32 v{vT+12}, s{sT3}, v{vT+10}")
    A(f"v_cmp_gt_u32 s[{sM0+2}:{sM0+3}], 22, v{vT+11}")
    A(f"v_cmp_gt_u32 vcc, 9, v{vT+12}")
    A(f"v_mov_b32 v{vT+4}, {AOFF}")
    A(f"s_or_b64 vcc, s[{sM0+2}:{sM0+3}], vcc")
    for r in range(4): A(f"v_mov_b32 v{vK+r}, 0")
    A(f"v_cndmask_b32 v{vT+11}, 0, v{vT+4}, vcc")
    A(f"v_add_u32 v{vT+11}, v{vT+11}, v{vT+2}")
    tagsel(g)
    A(f"v_mov_b32 v{vT+6}, 0")
    A(f"ds_read_b128 {v4(vA)}, v{vT+6} offset:{L_Z}"); A(f"ds_read_b128 {v4(vA+4)}, v{vT+6} offset:{L_Z+16}"); A(f"ds_read_b32 v{vT+7}, v{vT+6} offset:{L_Z+32}")
    A("s_waitcnt lgkmcnt(0)")
    A(f"v_pk_add_f32 {v2(vA)}, {v2(vA)}, {v2(vA+2)}"); A(f"v_pk_add_f32 {v2(vA+4)}, {v2(vA+4)}, {v2(vA+6)}")
    A(f"v_pk_add_f32 {v2(vA)}, {v2(vA)}, {v2(vA+4)}")
    A(f"v_add_f32 v{vA}, v{vA}, v{vA+1}"); A(f"v_add_f32 v{vA}, v{vA}, v{vT+7}")
    bf16r(g, vA, vA)
    A(f"v_mul_f32 v{vA}, {f2u(-1.4426950408889634):#x}, v{vA}")
    A(f"v_exp_f32 v{vA}, v{vA}"); A("s_nop 0")
    A(f"v_add_f32 v{vA}, 1.0, v{vA}"); A(f"v_rcp_f32 v{vA}, v{vA}"); A("s_nop 0")
    bf16r(g, vA, vA)
    A(f"v_sub_f32 v{vA+1}, 1.0, v{vA}"); bf16r(g, vA+1, vA+1)
    A(f"v_and_b32 v{vT+9}, 7, v{vL}"); A(f"v_lshlrev_b32 v{vT+8}, 2, v{vT+9}"); A(f"v_lshlrev_b32 v{vT+9}, 1, v{vT+9}")
    A(f"v_add_u32 v{vT+8}, {L_R}, v{vT+8}")
    A(f"s_lshl_b32 s{sKO}, s{sU}, 4")
    A(f"s_mov_b32 s{sSPIN}, {SPIN}")
    A(f"s_mov_b64 exec, s[{sM0}:{sM0+1}]"); A("s_cbranch_execz L_fskip")
    g.lab("L_fpoll")
    if p["rsleep"]: A(f"s_sleep {p['rsleep']}")
    A(f"buffer_load_dwordx4 {v4(vK)}, v{vT+11}, {srd(SWS)}, s{sT0} offen sc1")
    A(f"s_sub_u32 s{sSPIN}, s{sSPIN}, 1"); A("s_cbranch_scc1 L_fpoll_end")
    A(f"s_cmp_eq_u32 s{sSPIN}, {SW}"); A("s_cbranch_scc0 L_fp1")
    A(f"v_mov_b32 v{vT+11}, v{vT+2}")
    g.lab("L_fp1")
    A("s_waitcnt vmcnt(0)")
    tagcheck(g, vK, vT+12)
    A(f"v_cmpx_ne_u32 vcc, s{sTAG}, v{vT+12}")
    A("s_cbranch_execnz L_fpoll")
    g.lab("L_fpoll_end")
    A("s_mov_b64 exec, -1")
    g.stamp(8)
    A("s_nop 2")
    rowred(g, "v_add_f32", [vK, vK+1, vK+2, vK+3])
    setexec(g, 0x00010001, 0x00010001)
    A(f"ds_write_b128 v{vT+5}, {v4(vK)} offset:{L_R}")
    g.lab("L_fskip")
    A("s_mov_b64 exec, -1")
    A("s_waitcnt lgkmcnt(0)")
    A("s_barrier")
    A(f"s_cmp_lg_u32 s{sW}, 0"); A("s_cbranch_scc1 L_fin")
    for k in range(8): A(f"ds_read2_b32 {v2(vK+2*k)}, v{vT+8} offset0:{16*k} offset1:{16*k+8}")
    A("s_waitcnt lgkmcnt(0)")
    A(f"v_pk_add_f32 {v2(vK)}, {v2(vK)}, {v2(vK+2)}"); A(f"v_pk_add_f32 {v2(vK+4)}, {v2(vK+4)}, {v2(vK+6)}")
    A(f"v_pk_add_f32 {v2(vK+12)}, {v2(vK+12)}, {v2(vK+14)}")
    A(f"v_pk_add_f32 {v2(vK)}, {v2(vK)}, {v2(vK+8)}")
    A(f"v_add_f32 v{vK+12}, v{vK+12}, v{vK+13}")
    A(f"v_pk_add_f32 {v2(vK)}, {v2(vK)}, {v2(vK+4)}")
    A(f"v_add_f32 v{vK+11}, v{vK+11}, v{vK+12}")
    A(f"v_add_f32 v{vK}, v{vK}, v{vK+1}"); A(f"v_add_f32 v{vK+10}, v{vK}, v{vK+10}")
    A(f"v_cvt_pk_bf16_f32 v{vK}, v{vK+10}, v{vK+11}")
    A(f"v_lshlrev_b32 v{vK+10}, 16, v{vK}"); A(f"v_and_b32 v{vK+11}, 0xffff0000, v{vK}")
    A(f"v_pk_mul_f32 {v2(vK+10)}, {v2(vK+10)}, {v2(vA)}")
    A(f"v_cvt_pk_bf16_f32 v{vK}, v{vK+10}, v{vK+11}")
    A(f"v_lshlrev_b32 v{vK+10}, 16, v{vK}"); A(f"v_and_b32 v{vK+11}, 0xffff0000, v{vK}")
    A(f"v_add_f32 v{vK}, v{vK+10}, v{vK+11}")
    A(f"v_cvt_pk_bf16_f32 v{vK}, v{vK}, v{vK}")
    setexec(g, 0xff, 0)
    A(f"buffer_store_short v{vK}, v{vT+9}, {srd(SOUT)}, s{sKO} offen")
    A(f"s_cmp_lg_u32 s{sU}, 0"); A("s_cbranch_scc1 L_fin")
    if p.get("diag"):
        A("s_memrealtime s[92:93]")
        A(f"v_lshlrev_b32 v{vT}, 7, v{vL}")
        A(f"buffer_load_dword v{vT+1}, v{vT}, {srd(SWS)}, 0 offen offset:1024 sc1"); A("s_waitcnt vmcnt(0) lgkmcnt(0)")
        for k in range(8): A(f"v_readlane_b32 s{80+k}, v{vT+1}, {k}")
        A("s_nop 3")
        for k in range(8): A(f"s_sub_u32 s{80+k}, s92, s{80+k}")
        A("s_mov_b32 s88, s80"); A("s_mov_b32 s89, s80")
        for k in range(1, 8): A(f"s_max_u32 s88, s88, s{80+k}"); A(f"s_min_u32 s89, s89, s{80+k}")
        d = p["diag"]
        if d == "skew": A("s_sub_u32 s88, s88, s89"); A("s_mul_i32 s88, s88, 10")
        elif d == "total": A("s_mul_i32 s88, s88, 4")
        elif d == "last": A("s_mul_i32 s88, s89, 4")
        elif d == "zero": A("s_mov_b32 s88, 0")
        elif d == "a0": A("s_sub_u32 s88, s96, s90"); A("s_mul_i32 s88, s88, 20")
        elif d == "touch": A("s_sub_u32 s88, s98, s96"); A("s_mul_i32 s88, s88, 20")
        A("s_min_u32 s88, s88, 20000")
        g.lab("L_dg2")
        A("s_memrealtime s[94:95]"); A("s_waitcnt lgkmcnt(0)"); A("s_sub_u32 s94, s94, s92"); A("s_cmp_lt_u32 s94, s88"); A("s_cbranch_scc1 L_dg2")
    A("s_mov_b64 exec, 1")
    A(f"v_mov_b32 v{vT+7}, s{sTAG}")
    A(f"buffer_store_dword v{vT+7}, v{vT+6}, {srd(SWS)}, 0 offen offset:{EPOCH}")
    g.lab("L_fin")
    if p["stamps"]:
        A("s_mov_b64 exec, -1")
        A("s_waitcnt vmcnt(0)")
        g.stamp(9)
        A("s_waitcnt lgkmcnt(0)")
        A(f"s_lshl_b32 s{sT0}, s2, 4"); A(f"s_add_u32 s{sT0}, s{sT0}, s{sW}"); A(f"s_lshl_b32 s{sT0}, s{sT0}, 6"); A(f"s_add_u32 s{sT0}, s{sT0}, {STB}")
        for k in range(10): A(f"v_mov_b32 v{vK+k}, s{80+2*k}")
        A(f"v_mov_b32 v{vK+10}, s{sSPIN}"); A(f"v_mov_b32 v{vK+11}, s{sTAG}")
        A(f"v_mov_b32 v{vT}, 0"); A("s_mov_b64 exec, 1")
        for k in range(3): A(f"buffer_store_dwordx4 {v4(vK+4*k)}, v{vT}, {srd(SWS)}, s{sT0} offen offset:{16*k}")
    g.lab("L_end")
    A("s_endpgm")
    out += g.L
    out += [f".fill ({NAME} + 9472 - .) / 4, 4, 0xbf800000"]
    out += ['.section .rodata,"a"', ".p2align 6", f".amdhsa_kernel {NAME}", f"  .amdhsa_next_free_vgpr {NV}",
            f"  .amdhsa_next_free_sgpr {100 if (p['stamps'] or p.get('diag')) else 80}", f"  .amdhsa_accum_offset {NV}", "  .amdhsa_group_segment_fixed_size 0",
            "  .amdhsa_kernarg_size 104", "  .amdhsa_user_sgpr_count 2", "  .amdhsa_user_sgpr_kernarg_segment_ptr 1",
            "  .amdhsa_system_sgpr_workgroup_id_x 1", ".end_amdhsa_kernel"]
    return "\n".join(out) + "\n"

if __name__ == "__main__":
    kw = {}
    for a in sys.argv[2:]:
        k, v = a.split("="); kw[k] = eval(v)
    open(sys.argv[1], "w").write(gen(**kw))
```

```python
import sys, struct
NAME = "gated_mix__sliding_block_cached__swiglu_ffn__decode_kernel"
HDR = open("gated_mix__sliding_block_cached__swiglu_ffn__decode.s.ref").read().split("; Override launch")[0]
def f2u(f): return struct.unpack("<I", struct.pack("<f", f))[0]

EPOCH = 0
HB = 4096
QB = HB + 72*256
OB = QB + 256*256
FB = OB + 256*2048
AOFF = 2 << 20
FROW = 2304
assert FB + 256*FROW <= AOFF
WS_USED = 2*AOFF
STB = 8 << 20
L_QP = 0; L_Q = 4608; L_M = 5120; L_L = 5184; L_Z = 5248; L_C = 5312
L_CNT = 5504; L_O = 5632; L_H = L_O + 9*1024; L_R = L_H + 9*256
LDS_BYTES = L_R + 640
OOB = 0x40000000

class G:
    def __init__(s, **kw):
        s.L = []; s.p = dict(WA=4, WF=3, N0=2, c2=1, b3=1, stamps=False, nt="nt", qsleep=2, qsleep0=8, spin=200000, apolls=300, bpos=1, rsleep=0, dmix=5,
                             prio=1, align=True, touch=0, pretouch=0, cpf=0, nmid=4, helper=1, hsleep=8)
        s.p.update(kw); s.vm = []
    def A(s, x):
        if s.p.get("pnt") and x.startswith("buffer_load") and x.endswith(" sc1"): x += " nt"
        if s.p.get("xnt") and (x.startswith("buffer_load_dword v") or x.startswith("buffer_load_ushort") or x.startswith("global_load_dword v")) and " nt" not in x: x += " nt"
        s.L.append("    " + x)
    def lab(s, x): s.L.append(x + ":")
    def vissue(s, name): s.vm.append(name)
    def vwait(s, name):
        i = s.vm.index(name); s.A(f"s_waitcnt vmcnt({len(s.vm)-1-i})")
    def stamp(s, k, prog=False):
        if s.p.get("prof") and not prog and 3 <= k <= 8 and k != 5: return
        if prog and s.p.get("prof") != int(prog): return
        if s.p["stamps"]: s.A(f"s_memrealtime s[{80+2*k}:{81+2*k}]")

sW=3
SX=8; SWQ=12; SWS=16; S1=20; S2=24; S3=28; SGW=32; SOUT=36
sE=40; sSTEP=41; sTAG=42
sXCD=44; sJ=45; sHK=46; sSLOT=47; sQI=48; sT0=49; sT1=50; sT2=51; sRUN=52; sBIAS=53; sSPIN=54
sKO=55; sOO=56; sSEL0=57; sSEL1=58; sPI=59; sC=60; sU=61
sM0=62; sEX=70; sAM=72; sWE=74; sT3=75; sT4=76; sMODE=77; sFF=78; sNOS=79
def srd(b): return f"s[{b}:{b+3}]"
vL=1; vM=2; vOT=6; vOK=7; vOV=8; vOWQ=9; vLT=10; vX0=11; vOU=12; vOD=13; vTB=14
vXG=16; vGW=17; vT=18
vA=32; vACC=40; vP=48; vOKL=60; vOVL=61; vR3=62; vOFP=63
vK=64; vV=112; NV=160
def v4(b): return f"v[{b}:{b+3}]"
def v2(b): return f"v[{b}:{b+1}]"
DPP = "row_mask:0xf bank_mask:0xf"
MF = "v_mfma_f32_16x16x32_bf16"

def build_A(g, dst, rep):
    for j in range(4): g.A(f"v_and_b32 v{dst+j}, v{rep}, v{vM+j}")
def rowred(g, op, regs):
    need = max(0, 2 - (len(regs) - 1))
    for r in (8, 4, 2, 1):
        if need: g.A(f"s_nop {need-1}")
        for x in regs: g.A(f"{op}_dpp v{x}, v{x}, v{x} row_ror:{r} {DPP}")
def crossrow(g, op, x, t):
    for sw in ("v_permlane16_swap_b32", "v_permlane32_swap_b32"):
        g.A(f"v_mov_b32 v{t}, v{x}"); g.A("s_nop 1"); g.A(f"{sw} v{x}, v{t}"); g.A("s_nop 1"); g.A(f"{op} v{x}, v{x}, v{t}")
def bf16r(g, d, s_):
    g.A(f"v_cvt_pk_bf16_f32 v{d}, v{s_}, v{s_}"); g.A(f"v_and_b32 v{d}, 0xffff0000, v{d}")
def setexec(g, lo, hi):
    g.A(f"s_mov_b32 exec_lo, {lo:#x}"); g.A(f"s_mov_b32 exec_hi, {hi:#x}")

def fpub_consts(g):
    A = g.A
    A(f"s_mul_i32 s{sPI}, s{sPI}, 9"); A(f"s_add_u32 s{sPI}, s{sPI}, s{sW}"); A(f"s_lshl_b32 s{sPI}, s{sPI}, 8"); A(f"s_add_u32 s{sPI}, s{sPI}, {FB}")
    A(f"s_lshl_b32 s{sT0}, s{sW}, 8"); A(f"s_mul_i32 s{sT1}, s{sXCD}, {72*4}"); A(f"s_sub_u32 s{sT0}, s{sT0}, s{sT1}")
    A(f"v_add_u32 v{vT}, s{sT0}, v{vOFP}")
    A(f"v_cmp_gt_u32 vcc, {72*4}, v{vT}")
    A(f"v_lshrrev_b32 v{vT}, 1, v{vL}"); A(f"v_and_b32 v{vT}, 16, v{vT}")
    A(f"v_lshrrev_b32 v{vTB}, v{vT}, s{sTAG}" if False else f"v_mov_b32 v{vTB}, s{sTAG}")
    A(f"v_lshrrev_b32 v{vTB}, v{vT}, v{vTB}")
    A(f"s_and_b32 s{sAM}, vcc_lo, 0x00ff00ff"); A(f"s_and_b32 s{sAM+1}, vcc_hi, 0x00ff00ff")
    A(f"v_lshrrev_b32 v{vTB+1}, 8, v{vTB}")
    A(f"s_movk_i32 s{sFF}, 0xff")

def tagcheck(g, d, t):
    g.A(f"v_perm_b32 v{t}, v{d+1}, v{d}, s{sSEL0}"); g.A(f"v_perm_b32 v{t+1}, v{d+3}, v{d+2}, s{sSEL1}")
    g.A(f"v_or_b32 v{t}, v{t}, v{t+1}")
def tagsel(g):
    g.A(f"s_mov_b32 s{sSEL0}, 0x0c0c0400"); g.A(f"s_mov_b32 s{sSEL1}, 0x04000c0c")

PROG = {"K3": 3, "K7": 4, "K11": 6, "V3": 7, "V7": 8}
uid = [0]
def fpublish(g, acc, acopy=True):
    g.A(f"s_add_u32 s{sT0}, s{sPI}, {AOFF}")
    g.A("s_nop 6")
    g.A(f"v_permlane32_swap_b32 v{acc}, v{acc+2}")
    g.A(f"v_permlane32_swap_b32 v{acc+1}, v{acc+3}")
    g.A("s_nop 0")
    g.A(f"v_add_f32_dpp v{acc}, v{acc+2}, v{acc} row_ror:8 {DPP}")
    g.A(f"v_add_f32_dpp v{acc+1}, v{acc+3}, v{acc+1} row_ror:8 {DPP}")
    setexec(g, 0x00ff00ff, 0x00ff00ff)
    g.A(f"v_bfi_b32 v{acc}, s{sFF}, v{vTB}, v{acc}"); g.A(f"v_bfi_b32 v{acc+1}, s{sFF}, v{vTB+1}, v{acc+1}")
    g.A(f"buffer_store_dwordx2 {v2(acc)}, v{vOFP}, {srd(SWS)}, s{sPI} offen {g.p.get('fst','sc1')}")
    if acopy:
        uid[0] += 1
        g.A(f"s_mov_b64 exec, s[{sAM}:{sAM+1}]"); g.A(f"s_cbranch_execz L_na{uid[0]}")
        g.A(f"buffer_store_dwordx2 {v2(acc)}, v{vOFP}, {srd(SWS)}, s{sT0} offen")
        g.lab(f"L_na{uid[0]}")
    g.A("s_mov_b64 exec, -1")

def gen(**kw):
    g = G(**kw); A = g.A; p = g.p; nt = p["nt"]; WA = p["WA"]; WF = p["WF"]
    SPIN = p["spin"]; SW = max(SPIN - p["apolls"], 0)
    NPRO = min(WA, WF)
    out = [HDR.rstrip("\n")]
    out.append(f"; @launch grid=(256,1,1) block=(576,1,1) lds={LDS_BYTES}")
    out += ['.amdgcn_target "amdgcn-amd-amdhsa--gfx950"', ".text"]
    if p["align"]: out += [".p2align 12", ".fill 832, 4, 0xbf800000"]
    out += [f".globl {NAME}", ".p2align 8", f".type {NAME},@function", f"{NAME}:"]
    g.stamp(0)
    if p.get("diag"): A("s_memrealtime s[90:91]")
    A("s_cmp_ge_u32 s2, 0x100"); A("s_cbranch_scc1 L_end")
    A(f"s_load_dwordx2 s[{SWQ}:{SWQ+1}], s[0:1], 24")
    A(f"s_load_dwordx2 s[{SX}:{SX+1}], s[0:1], 0")
    A(f"s_lshr_b32 s{sJ}, s2, 3")
    A(f"s_cmp_lt_u32 s{sJ}, 22")
    A(f"s_cselect_b32 s{sT0}, 8, 48"); A(f"s_cselect_b32 s{sT2}, 32, 64")
    A(f"s_load_dwordx4 s[4:7], s[0:1], s{sT0}")
    A(f"s_load_dwordx2 s[{S3}:{S3+1}], s[0:1], s{sT2}")
    A(f"s_load_dwordx2 s[{SGW}:{SGW+1}], s[0:1], 72")
    A(f"s_load_dwordx2 s[{SOUT}:{SOUT+1}], s[0:1], 80")
    A(f"s_load_dwordx2 s[{SWS}:{SWS+1}], s[0:1], 96")
    A(f"v_lshrrev_b32 v{vT}, 6, v0")
    A(f"v_and_b32 v{vL}, 63, v0")
    A(f"v_readfirstlane_b32 s{sW}, v{vT}")
    A(f"s_and_b32 s{sXCD}, s2, 7")
    A(f"v_lshrrev_b32 v{vR3}, 3, v{vL}")
    A(f"v_and_b32 v{vT+1}, 7, v{vL}")
    A(f"v_lshlrev_b32 v{vT+2}, 4, v{vT+1}")
    A(f"v_lshl_add_u32 v{vOWQ}, v{vR3}, 14, v{vT+2}")
    A(f"v_lshlrev_b32 v{vT+3}, 2, v{vR3}")
    A(f"s_bfe_u32 s{sT0}, s{sJ}, 0x20002"); A(f"s_mul_i32 s{sT0}, s{sT0}, 9"); A(f"s_add_u32 s{sT0}, s{sT0}, s{sW}")
    A(f"s_lshr_b32 s{sT1}, s{sJ}, 4"); A(f"s_lshl1_add_u32 s{sT1}, s{sXCD}, s{sT1}")
    A(f"s_and_b32 s{sT2}, s{sJ}, 3"); A(f"s_lshl2_add_u32 s{sT1}, s{sT1}, s{sT2}"); A(f"s_lshl_b32 s{sT1}, s{sT1}, 7")
    A(f"s_lshl_b32 s{sT2}, s{sT0}, 17"); A(f"s_add_u32 s{sT1}, s{sT1}, s{sT2}")
    A(f"s_add_u32 s{sT2}, s{sT1}, 8192")
    A(f"s_lshl_b32 s{sT0}, s{sT0}, 5")
    A(f"s_mov_b32 s{SWQ+2}, 4718592"); A(f"s_mov_b32 s{SWQ+3}, 0x20000")
    A(f"s_movk_i32 s{SX+2}, 1152"); A(f"s_mov_b32 s{SX+3}, s{SWQ+3}")
    vWQ = vV + 40
    A(f"v_mov_b32 v{vT+4}, 0")
    A(f"ds_write_b32 v{vT+4}, v{vT+4} offset:{L_CNT}")
    A("s_waitcnt lgkmcnt(0)")
    g.stamp(1)
    A(f"buffer_load_dwordx4 {v4(vWQ)}, v{vOWQ}, {srd(SWQ)}, s{sT1} offen {nt}"); g.vissue("wq0")
    A(f"buffer_load_dwordx4 {v4(vWQ+4)}, v{vOWQ}, {srd(SWQ)}, s{sT2} offen {nt}"); g.vissue("wq1")
    A(f"buffer_load_dword v{vX0}, v{vT+3}, {srd(SX)}, s{sT0} offen"); g.vissue("x0")
    A(f"s_load_dword s{sE}, s[{SWS}:{SWS+1}], {EPOCH}")
    g.stamp(3, 2)
    A("s_barrier")
    g.stamp(4, 2)
    if p.get("diag"): A("s_memrealtime s[96:97]")
    A(f"s_mov_b64 s[{S1}:{S1+1}], s[4:5]"); A(f"s_mov_b64 s[{S2}:{S2+1}], s[6:7]")
    A(f"s_mov_b32 s{S1+3}, s{SWQ+3}")
    A(f"v_lshlrev_b32 v{vOV}, 4, v{vL}")
    A(f"s_cmp_ge_u32 s{sJ}, 22"); A("s_cbranch_scc1 L_setF")
    A(f"s_mov_b32 s{S1+2}, 0x10000000"); A(f"s_mov_b32 s{S3+2}, s{SWQ+2}")
    A(f"s_cmp_ge_u32 s{sJ}, 11"); A(f"s_cselect_b32 s{sT0}, 1, 0"); A(f"s_cselect_b32 s{sT1}, 8, 0")
    A(f"s_lshl1_add_u32 s{sHK}, s{sXCD}, s{sT0}")
    A(f"s_cmp_ge_u32 s{sJ}, 19"); A(f"s_cselect_b32 s{sT1}, 19, s{sT1}")
    A(f"s_sub_u32 s{sSLOT}, s{sJ}, s{sT1}")
    A(f"s_min_u32 s{sT0}, s{sSLOT}, 2"); A(f"s_mul_i32 s{sT1}, s{sSLOT}, 94"); A(f"s_add_u32 s{sT0}, s{sT0}, s{sT1}")
    A(f"s_lshr_b32 s{sT1}, s{sSLOT}, 2"); A(f"s_mul_i32 s{sT1}, s{sT1}, 6"); A(f"s_sub_u32 s{sT0}, s{sT0}, s{sT1}")
    A(f"s_add_u32 s{sT0}, s{sT0}, s{sW}"); A(f"s_lshl_b32 s{sT0}, s{sT0}, 10")
    A(f"s_lshl_b32 s{sKO}, s{sHK}, 24"); A(f"s_add_u32 s{sKO}, s{sKO}, s{sT0}")
    A(f"s_add_u32 s{sKO}, s{sKO}, {61440*256}")
    A(f"s_movk_i32 s{sSTEP}, 8192")
    A(f"v_bfe_u32 v{vT}, v{vL}, 2, 2"); A(f"v_lshrrev_b32 v{vT+1}, 4, v{vL}"); A(f"v_and_b32 v{vT+3}, 3, v{vL}")
    A(f"v_lshlrev_b32 v{vOK}, 8, v{vT}"); A(f"v_lshl_add_u32 v{vOK}, v{vT+1}, 6, v{vOK}"); A(f"v_lshl_add_u32 v{vOK}, v{vT+3}, 4, v{vOK}")
    A(f"s_cmp_eq_u32 s{sW}, 8"); A(f"s_cselect_b32 s{sNOS}, 1, 0")
    A("s_branch L_set_done")
    g.lab("L_setF")
    A(f"s_mov_b32 s{S1+2}, 5308416"); A(f"s_mov_b32 s{S3+2}, s{S1+2}")
    A(f"s_mul_i32 s{sU}, s{sXCD}, 9"); A(f"s_mov_b32 s{sWE}, s{sW}")
    A(f"s_cmp_eq_u32 s{sJ}, 31"); A("s_cbranch_scc0 L_setF1")
    A(f"s_add_u32 s{sHK}, s{sU}, s{sW}")
    A(f"s_and_b32 s{sU}, s{sHK}, 0x78"); A(f"s_sub_u32 s{sU}, s{sU}, {9-3}")
    A(f"s_bfe_u32 s{sWE}, s{sHK}, 0x20001"); A(f"s_add_u32 s{sWE}, s{sWE}, 5")
    A(f"s_bitcmp1_b32 s{sHK}, 0"); A(f"s_cselect_b64 s[{S1}:{S1+1}], s[6:7], s[4:5]")
    g.lab("L_setF1")
    A(f"s_add_u32 s{sU}, s{sU}, s{sJ}"); A(f"s_sub_u32 s{sU}, s{sU}, 22")
    A(f"s_movk_i32 s{sT0}, 9216"); A(f"v_mad_u32_u24 v{vOK}, v{vR3}, s{sT0}, v{vT+2}")
    A(f"s_mul_i32 s{sKO}, s{sWE}, {8*9216}"); A(f"s_lshl_b32 s{sT0}, s{sU}, 7"); A(f"s_add_u32 s{sKO}, s{sKO}, s{sT0}")
    A(f"s_mov_b32 s{sSTEP}, {72*9216}")
    A(f"s_and_b32 s{sT0}, s{sU}, 7"); A(f"s_cmp_eq_u32 s{sT0}, 3"); A(f"s_cselect_b32 s{sT0}, s{sW}, 0")
    A(f"s_cmp_ge_u32 s{sT0}, {5 if p['helper'] else 99}"); A(f"s_cselect_b32 s{sMODE}, 1, 0")
    A(f"s_cmp_eq_u32 s{sJ}, 31"); A(f"s_cselect_b32 s{sMODE}, 2, s{sMODE}")
    A(f"s_cmp_eq_u32 s{sMODE}, {1 if p['helper'] else 2}")
    A(f"s_cselect_b32 s{sT0}, {OOB:#x}, 0")
    A(f"v_add_u32 v{vOK}, s{sT0}, v{vOK}")
    A(f"s_mov_b32 s{sNOS}, 0")
    g.lab("L_set_done")
    A(f"s_mov_b32 s{sRUN}, s{sKO}")
    def s1_issue(i):
        A(f"buffer_load_dwordx4 {v4(vK+4*i)}, v{vOK}, {srd(S1)}, s{sRUN} offen {nt}"); g.vissue(f"K{i}")
        A(f"s_add_u32 s{sRUN}, s{sRUN}, s{sSTEP}")
    N0 = min(p.get("N0", 2), NPRO)
    A(f"s_cmp_eq_u32 s{sNOS}, 1"); A("s_cbranch_scc1 " + "L_touched")
    for i in range(N0): s1_issue(i)
    g.lab("L_touched")
    g.stamp(6, 2)
    if p.get("diag"): A("s_memrealtime s[98:99]")
    A(f"s_mov_b64 s[{S2+2}:{S2+3}], s[{S1+2}:{S1+3}]"); A(f"s_mov_b32 s{S3+3}, s{SWQ+3}")
    A(f"s_mov_b32 s{SWS+2}, {(16<<20) if p['stamps'] else WS_USED}"); A(f"s_mov_b32 s{SWS+3}, s{SWQ+3}")
    A(f"v_and_b32 v{vT}, 1, v{vL}"); A(f"v_lshlrev_b32 v{vT}, 4, v{vT}")
    A(f"v_mov_b32 v{vT+1}, 0xffff"); A(f"v_lshlrev_b32 v{vT}, v{vT}, v{vT+1}")
    A(f"v_bfe_u32 v{vT+1}, v{vL}, 1, 2")
    for j in range(4): A(f"v_cmp_eq_u32 s[{sM0+2*j}:{sM0+2*j+1}], {j}, v{vT+1}")
    A(f"s_mov_b32 s{sSEL0}, 0x01000100"); A(f"s_mov_b32 s{sSEL1}, 0x03020302")
    for j in range(4): A(f"v_cndmask_b32 v{vM+j}, 0, v{vT}, s[{sM0+2*j}:{sM0+2*j+1}]")
    A(f"v_lshrrev_b32 v{vT}, 5, v{vL}"); A(f"v_and_b32 v{vT+3}, 16, v{vL}")
    A(f"v_lshl_add_u32 v{vLT}, v{vT+2}, 1, v{vT+3}")
    A(f"v_lshl_add_u32 v{vOFP}, v{vT}, 3, v{vLT}")
    A(f"v_lshl_add_u32 v{vLT}, v{vT}, 8, v{vLT}")
    A(f"s_movk_i32 s{sT0}, 1152"); A(f"v_mad_u32_u24 v{vOT}, v{vR3}, s{sT0}, v{vT+2}")
    A(f"s_lshl_b32 s{sT0}, s{sW}, 9"); A(f"v_add_u32 v{vT+2}, s{sT0}, v{vLT}")
    g.stamp(7, 2)
    A(f"s_cmp_eq_u32 s{sNOS}, 1"); A("s_cbranch_scc0 L_w1")
    A("s_waitcnt vmcnt(0)")
    g.lab("L_w1")
    g.vwait("x0")
    g.stamp(2)
    A(f"v_perm_b32 v{vT}, v{vX0}, v{vX0}, s{sSEL0}"); A(f"v_perm_b32 v{vT+1}, v{vX0}, v{vX0}, s{sSEL1}")
    build_A(g, vA, vT); build_A(g, vA+4, vT+1)
    A("s_cbranch_scc1 L_w2")
    for i in range(N0, NPRO): s1_issue(i)
    g.lab("L_w2")
    A(f"v_mov_b32 v{vT+5}, 1")
    A(f"{MF} {v4(vACC)}, {v4(vA)}, {v4(vWQ)}, 0")
    A(f"{MF} {v4(vACC)}, {v4(vA+4)}, {v4(vWQ+4)}, {v4(vACC)}")
    setexec(g, 0x00ff00ff, 0xff00ff00)
    A("s_waitcnt lgkmcnt(0)")
    A(f"s_mul_i32 s{sTAG}, s{sE}, 0x9e3779b1"); A(f"s_add_u32 s{sTAG}, s{sTAG}, 0x7f4a7c15")
    A(f"s_lshl_b32 s{sOO}, s{sW}, 7")
    A("s_nop 1")
    A(f"ds_write_b128 v{vT+2}, {v4(vACC)} offset:{L_QP}")
    A("s_mov_b64 exec, 1")
    A(f"ds_add_u32 v{vT+4}, v{vT+5} offset:{L_CNT}")
    A("s_mov_b64 exec, -1")
    A(f"s_cmp_lg_u32 s{sW}, 8"); A("s_cbranch_scc1 L_nopub")
    base = vV
    A(f"v_lshlrev_b32 v{vT}, 2, v{vL}")
    A(f"s_lshl_b32 s{sT0}, s{sXCD}, 5"); A(f"s_add_u32 s{sT0}, s{sT0}, s{sJ}")
    A(f"s_lshl_b32 s{sT0}, s{sT0}, 8"); A(f"s_add_u32 s{sT0}, s{sT0}, {QB}"); A(f"s_add_u32 s{sT1}, s{sT0}, {AOFF}")
    A(f"v_and_b32 v{vT+1}, 3, v{vL}"); A(f"v_lshlrev_b32 v{vT+1}, 3, v{vT+1}"); A(f"v_mov_b32 v{vT+6}, s{sTAG}")
    A(f"v_lshrrev_b32 v{vT+1}, v{vT+1}, v{vT+6}"); A(f"s_movk_i32 s{sFF}, 0xff")
    g.lab("L_cnt")
    A(f"ds_read_b32 v{vT+6}, v{vT+4} offset:{L_CNT}")
    A("s_waitcnt lgkmcnt(0)")
    A(f"v_cmp_ne_u32 vcc, 9, v{vT+6}")
    A("s_cbranch_vccnz L_cnt")
    for k in range(9): A(f"ds_read2st64_b32 {v2(base+2*k)}, v{vT} offset0:{2*k} offset1:{2*k+1}")
    A("s_waitcnt lgkmcnt(0)")
    for a, b in ((0,1),(2,3),(4,5),(6,7),(0,2),(4,6),(0,4),(0,8)):
        A(f"v_pk_add_f32 {v2(base+2*a)}, {v2(base+2*a)}, {v2(base+2*b)}")
    A(f"v_add_f32 v{vT+8}, v{base}, v{base+1}")
    A(f"v_bfi_b32 v{vT+8}, s{sFF}, v{vT+1}, v{vT+8}")
    A(f"buffer_store_dword v{vT+8}, v{vT}, {srd(SWS)}, s{sT1} offen")
    A(f"buffer_store_dword v{vT+8}, v{vT}, {srd(SWS)}, s{sT0} offen sc1")
    g.stamp(3)
    A(f"s_cmp_lt_u32 s{sJ}, 22"); A("s_cbranch_scc1 L_attn8")
    g.lab("L_nopub")
    A(f"s_cmp_ge_u32 s{sJ}, 22"); A("s_cbranch_scc1 L_notattn")
    pre = list(g.vm)
    def attn_consts():
        A(f"s_lshl_b32 s{sT0}, s{sHK}, 5"); A(f"s_add_u32 s{sT0}, s{sT0}, s{sSLOT}"); A(f"s_mul_i32 s{sT0}, s{sT0}, 9216")
        A(f"s_add_u32 s{sOO}, s{sOO}, s{sT0}")
        A(f"s_mul_i32 s{sPI}, s{sHK}, 11"); A(f"s_add_u32 s{sPI}, s{sPI}, s{sSLOT}")
        fpub_consts(g)
        A(f"s_cmp_lt_u32 s{sSLOT}, 10"); A(f"s_cselect_b32 s{sT0}, 0, {OOB:#x}")
        A(f"v_add_u32 v{vOD}, s{sT0}, v{vOT}")
        A(f"v_and_b32 v{vT}, 15, v{vL}"); A(f"v_lshrrev_b32 v{vT+1}, 4, v{vL}")
        A(f"v_lshlrev_b32 v{vOU}, 11, v{vT}"); A(f"v_lshl_add_u32 v{vOU}, v{vT+1}, 4, v{vOU}")
    for i in range(NPRO, WA): s1_issue(i)
    A(f"s_cmp_lt_u32 s{sSLOT}, 2"); A(f"s_cselect_b32 s{sT0}, 7, 6")
    A(f"s_and_b32 s{sT1}, s{sSLOT}, 3"); A(f"s_cmp_eq_u32 s{sT1}, 3"); A(f"s_cselect_b32 s{sT0}, 0, s{sT0}")
    A(f"s_cmp_lt_u32 s{sW}, s{sT0}"); A(f"s_cselect_b32 s{sT0}, 0, {OOB:#x}"); A(f"s_cselect_b32 s{sBIAS}, 0, {f2u(-1e30):#x}")
    A(f"v_add_u32 v{vOKL}, s{sT0}, v{vOK}"); A(f"v_add_u32 v{vOVL}, s{sT0}, v{vOV}")
    seq = [("K", i) for i in range(12)] + [("V", i) for i in range(12)] + [("O", i) for i in range(3)]
    pos = [max(NPRO, WA)]; land = [0]; vdone = [-1]
    def can_issue():
        if pos[0] >= len(seq): return False
        kind, i = seq[pos[0]]
        return kind != "O" or i <= vdone[0]
    def issue():
        kind, i = seq[pos[0]]; pos[0] += 1
        if kind == "O":
            A(f"buffer_load_dwordx4 {v4(vV+4*i)}, v{vOD if i == 2 else vOT}, {srd(S3)}, s{sOO} offen {nt}")
            if i < 2: A(f"s_add_u32 s{sOO}, s{sOO}, {11*9216}")
        else:
            off = {("K", True): vOKL, ("K", False): vOK, ("V", True): vOVL, ("V", False): vOV}[(kind, i == 11)]
            A(f"buffer_load_dwordx4 {v4((vK if kind == 'K' else vV)+4*i)}, v{off}, {srd(S1 if kind == 'K' else S2)}, s{sRUN} offen {nt}")
            if i < 11: A(f"s_add_u32 s{sRUN}, s{sRUN}, s{sSTEP}")
            elif kind == "K": A(f"s_mov_b32 s{sRUN}, s{sKO}")
        g.vissue(f"{kind}{i}")
    def refill():
        while pos[0] - land[0] < WA and can_issue(): issue()
    def step():
        kind, i = seq[land[0]]; land[0] += 1
        g.vwait(f"{kind}{i}")
        if f"{kind}{i}" in PROG: g.stamp(PROG[f"{kind}{i}"], True)
        refill()
        if p.get("gate") == f"{kind}{i}":
            A(f"s_lshl4_add_u32 s{sT0}, s{sJ}, s{sW}"); A(f"s_cmp_lg_u32 s{sT0}, {p.get('gsrc', 5)*16+7}"); A("s_cbranch_scc1 L_nogate")
            A(f"s_lshl_b32 s{sT0}, s{sXCD}, 7"); A(f"v_mov_b32 v{vT+8}, s{sTAG}"); A(f"v_mov_b32 v{vT+9}, 0"); A("s_mov_b64 exec, 1")
            A(f"buffer_store_dword v{vT+8}, v{vT+9}, {srd(SWS)}, s{sT0} offen offset:2048 sc1"); A("s_mov_b64 exec, -1")
            g.lab("L_nogate")
    nmid = [p["nmid"]]
    def mid():
        if nmid[0] > 0 and can_issue(): issue(); nmid[0] -= 1; return True
        return False
    refill()
    g.stamp(8, 2)
    step(); attn_consts()
    while land[0] < 12 + p["bpos"] + 1: step()
    g.stamp(3)
    A(f"v_and_b32 v{vT}, 0xf0, v{vOK}"); A(f"v_and_b32 v{vT+1}, 1, v{vR3}")
    A(f"v_lshl_add_u32 v{vT}, v{vT+1}, 8, v{vT}")
    A("s_barrier")
    A(f"ds_read_b128 {v4(vA)}, v{vT} offset:{L_Q}")
    A(f"s_mov_b32 s{sC}, {f2u(128**-0.5 * 1.4426950408889634):#x}")
    A(f"v_lshlrev_b32 v{vT+1}, 5, v{vT+1}"); A(f"s_lshl_b32 s{sT0}, s{sW}, 2"); A(f"v_add_u32 v{vT+3}, s{sT0}, v{vT+1}")
    A("s_waitcnt lgkmcnt(0)")
    for i in range(12): A(f"{MF} {v4(vK+4*i)}, {v4(vK+4*i)}, {v4(vA)}, 0")
    for i in range(12): A(f"v_mov_b32_dpp v{vP+i}, v{vK+4*i} quad_perm:[0,0,0,0] {DPP}")
    for r in (1, 2, 3):
        if r == 2: mid()
        for i in range(12): A(f"v_add_f32_dpp v{vP+i}, v{vK+4*i+r}, v{vP+i} quad_perm:[{r},{r},{r},{r}] {DPP}")
    A(f"v_add_f32 v{vP+11}, s{sBIAS}, v{vP+11}")
    A(f"v_max3_f32 v{vT}, v{vP}, v{vP+1}, v{vP+2}")
    for i in range(3, 11, 2): A(f"v_max3_f32 v{vT}, v{vT}, v{vP+i}, v{vP+i+1}")
    A(f"v_max_f32 v{vT}, v{vT}, v{vP+11}")
    crossrow(g, "v_max_f32", vT, vT+2)
    setexec(g, 0x101, 0)
    A(f"ds_write_b32 v{vT+3}, v{vT} offset:{L_M}")
    A("s_mov_b64 exec, -1")
    mid()
    A("s_waitcnt lgkmcnt(0)")
    A("s_barrier")
    A(f"ds_read_b128 {v4(vA)}, v{vT+1} offset:{L_M}"); A(f"ds_read_b128 {v4(vA+4)}, v{vT+1} offset:{L_M+16}")
    A(f"v_and_b32 v{vT+5}, 15, v{vL}"); A(f"v_lshlrev_b32 v{vT+5}, 5, v{vT+5}")
    A(f"v_and_b32 v{vT+6}, 16, v{vL}"); A(f"v_add_u32 v{vT+5}, v{vT+5}, v{vT+6}")
    A(f"v_lshrrev_b32 v{vT+6}, 5, v{vL}"); A(f"v_lshl_add_u32 v{vT+5}, v{vT+6}, 9, v{vT+5}")
    A(f"s_lshl_b32 s{sT0}, s{sW}, 10"); A(f"v_add_u32 v{vT+5}, s{sT0}, v{vT+5}")
    A("s_waitcnt lgkmcnt(0)")
    A(f"v_max3_f32 v{vT}, v{vA}, v{vA+1}, v{vA+2}"); A(f"v_max3_f32 v{vT}, v{vT}, v{vA+3}, v{vA+4}")
    A(f"v_max3_f32 v{vT}, v{vT}, v{vA+5}, v{vA+6}"); A(f"v_max_f32 v{vT}, v{vT}, v{vA+7}")
    A(f"v_mul_f32 v{vT}, s{sC}, v{vT}")
    for i in range(12): A(f"v_fma_f32 v{vP+i}, v{vP+i}, s{sC}, -v{vT}")
    for i in range(12): A(f"v_exp_f32 v{vP+i}, v{vP+i}")
    if not mid(): A("s_nop 0")
    A(f"v_add_f32 v{vT+4}, v{vP}, v{vP+1}")
    for i in range(2, 12): A(f"v_add_f32 v{vT+4}, v{vT+4}, v{vP+i}")
    for i in range(12): A(f"v_cvt_pk_bf16_f32 v{vP+i}, v{vP+i}, v{vP+i}")
    crossrow(g, "v_add_f32", vT+4, vT+2)
    setexec(g, 0x101, 0)
    A(f"ds_write_b32 v{vT+3}, v{vT+4} offset:{L_L}")
    A("s_mov_b64 exec, -1")
    mid()
    for i in range(12): build_A(g, vK+4*i, vP+i)
    A("s_waitcnt lgkmcnt(0)")
    A("s_barrier")
    A(f"s_cmp_lt_u32 s{sW}, 6"); A("s_cbranch_scc1 L_nolse")
    A(f"s_sub_u32 s{sT0}, s{sW}, 6")
    A(f"s_lshl_b32 s{sT1}, s{sT0}, 5"); A(f"v_mov_b32 v{vT+1}, s{sT1}")
    A(f"ds_read_b128 {v4(vA)}, v{vT+1} offset:{L_L}"); A(f"ds_read_b128 {v4(vA+4)}, v{vT+1} offset:{L_L+16}")
    A(f"ds_read_b128 {v4(vP)}, v{vT+1} offset:{L_M}"); A(f"ds_read_b128 {v4(vP+4)}, v{vT+1} offset:{L_M+16}")
    A(f"s_lshl_b32 s{sT1}, s{sT0}, 9"); A(f"v_lshl_add_u32 v{vT+2}, v{vL}, 3, s{sT1}")
    A(f"s_lshl4_add_u32 s{sT3}, s{sHK}, s{sSLOT}"); A(f"s_lshl1_add_u32 s{sT3}, s{sT3}, s{sT0}"); A(f"s_lshl_b32 s{sT3}, s{sT3}, 10")
    A(f"s_add_u32 s{sT3}, s{sT3}, {OB}"); A(f"s_add_u32 s{sT4}, s{sT3}, {AOFF}")
    A("s_waitcnt lgkmcnt(0)")
    A(f"v_pk_add_f32 {v2(vA)}, {v2(vA)}, {v2(vA+2)}"); A(f"v_pk_add_f32 {v2(vA+4)}, {v2(vA+4)}, {v2(vA+6)}")
    A(f"v_max3_f32 v{vT}, v{vP}, v{vP+1}, v{vP+2}")
    A(f"v_pk_add_f32 {v2(vA)}, {v2(vA)}, {v2(vA+4)}")
    A(f"v_max3_f32 v{vT}, v{vT}, v{vP+3}, v{vP+4}")
    A(f"v_add_f32 v{vA}, v{vA}, v{vA+1}")
    A(f"v_max3_f32 v{vT}, v{vT}, v{vP+5}, v{vP+6}")
    A(f"v_rcp_f32 v{vA+2}, v{vA}"); A(f"v_log_f32 v{vA+4}, v{vA}")
    A(f"v_max_f32 v{vT}, v{vT}, v{vP+7}")
    A(f"v_mov_b32 v{vP+11}, s{sTAG}")
    A(f"v_fma_f32 v{vP+10}, v{vT}, s{sC}, v{vA+4}")
    g.lab("L_nolse")
    g.stamp(4)
    for i in range(12):
        if land[0] <= 12 + i:
            land[0] += 1; g.vwait(f"V{i}")
            if f"V{i}" in PROG: g.stamp(PROG[f"V{i}"], True)
        A(f"{MF} {v4(vACC)}, {v4(vK+4*i)}, {v4(vV+4*i)}, {'0' if i == 0 else v4(vACC)}")
        vdone[0] = i
        refill()
    assert pos[0] == len(seq)
    g.stamp(5)
    A("s_nop 7")
    A(f"ds_write_b128 v{vT+5}, {v4(vACC)} offset:{L_O}")
    A("s_waitcnt lgkmcnt(0)")
    A("s_branch L_barC")
    g.L.append(".p2align 12")
    g.lab("L_attn8")
    if p["prio"]: A("s_setprio 3")
    attn_consts()
    A(f"s_lshl_b32 s{sT2}, s{sHK}, 12"); A(f"s_add_u32 s{sT2}, s{sT2}, {QB}"); A(f"s_add_u32 s{sT0}, s{sT2}, {AOFF}")
    A(f"s_mov_b32 s{sSPIN}, {SPIN}")
    tagsel(g)
    if p.get("qsleep0"): A(f"s_sleep {p['qsleep0']}")
    g.lab("L_qpoll")
    A(f"s_sleep {p['qsleep']}")
    for rg in range(4):
        A(f"buffer_load_dwordx4 {v4(vK+4*rg)}, v{vOV}, {srd(SWS)}, s{sT0} offen offset:{rg*1024} sc1")
    A(f"s_sub_u32 s{sSPIN}, s{sSPIN}, 1"); A("s_cbranch_scc1 L_qpoll_end")
    A(f"s_cmp_eq_u32 s{sSPIN}, {max(SPIN-p['apolls']//4,0)}"); A(f"s_cselect_b32 s{sT0}, s{sT2}, s{sT0}")
    A("s_waitcnt vmcnt(0)")
    for rg in range(4): tagcheck(g, vK+4*rg, vT+2*rg)
    for rg in range(4): A(f"v_xor_b32 v{vT+2*rg}, s{sTAG}, v{vT+2*rg}")
    A(f"v_or3_b32 v{vT}, v{vT}, v{vT+2}, v{vT+4}"); A(f"v_or_b32 v{vT}, v{vT}, v{vT+6}")
    A(f"v_cmp_ne_u32 vcc, 0, v{vT}")
    A("s_cbranch_vccnz L_qpoll")
    g.lab("L_qpoll_end")
    for k in (0, 2):
        A(f"v_pk_add_f32 {v2(vK+k)}, {v2(vK+k)}, {v2(vK+4+k)}"); A(f"v_pk_add_f32 {v2(vK+8+k)}, {v2(vK+8+k)}, {v2(vK+12+k)}")
    for k in (0, 2): A(f"v_pk_add_f32 {v2(vK+k)}, {v2(vK+k)}, {v2(vK+8+k)}")
    A(f"v_cvt_pk_bf16_f32 v{vK}, v{vK}, v{vK+1}"); A(f"v_cvt_pk_bf16_f32 v{vK+1}, v{vK+2}, v{vK+3}")
    A(f"v_lshlrev_b32 v{vT}, 3, v{vL}")
    A(f"ds_write_b64 v{vT}, {v2(vK)} offset:{L_Q}")
    A("s_waitcnt lgkmcnt(0)")
    if p.get("gate"):
        A(f"v_lshlrev_b32 v{vT}, 7, v{vL}")
        A(f"s_lshl_b32 s{sT0}, 1, s{sXCD}"); A(f"s_xor_b32 exec_lo, s{sT0}, 0xff"); A("s_mov_b32 exec_hi, 0")
        g.lab("L_gpoll")
        A(f"s_sleep {p.get('gsleep', 2)}")
        A(f"buffer_load_dword v{vT+1}, v{vT}, {srd(SWS)}, 0 offen offset:2048 sc1")
        A(f"s_sub_u32 s{sSPIN}, s{sSPIN}, 1"); A("s_cbranch_scc1 L_gpoll_end")
        A("s_waitcnt vmcnt(0)")
        A(f"v_cmpx_ne_u32 vcc, s{sTAG}, v{vT+1}")
        A("s_cbranch_execnz L_gpoll")
        g.lab("L_gpoll_end")
        A("s_mov_b64 exec, -1")
    g.stamp(4)
    A("s_barrier")
    if p["pretouch"]:
        A(f"s_lshl4_add_u32 s{sT1}, s{sHK}, s{sSLOT}"); A(f"s_lshl_b32 s{sT1}, s{sT1}, 11"); A(f"s_add_u32 s{sT1}, s{sT1}, {OB+AOFF}")
        A(f"v_lshlrev_b32 v{vT}, 7, v{vL}")
        setexec(g, 0xffff, 0)
        A(f"buffer_load_dword v{vT+1}, v{vT}, {srd(SWS)}, s{sT1} offen sc1")
        A("s_mov_b64 exec, -1")
    A("s_barrier")
    for i in range(3):
        A(f"buffer_load_dwordx4 {v4(vV+4*i)}, v{vOD if i == 2 else vOT}, {srd(S3)}, s{sOO} offen {nt}")
        if i < 2: A(f"s_add_u32 s{sOO}, s{sOO}, {11*9216}")
    A("s_barrier")
    g.lab("L_barC")
    A("s_barrier")
    A(f"s_cmp_lt_u32 s{sW}, 3"); A("s_cbranch_scc1 L_ogather")
    A(f"s_sub_u32 s{sT0}, s{sW}, 6"); A(f"s_cmp_lt_u32 s{sT0}, 2"); A("s_cbranch_scc0 " + ("L_barC2" if p.get("c2") else "L_barD"))
    for w in range(8): A(f"ds_read_b64 {v2(vK+2*w)}, v{vT+2} offset:{L_O+1024*w}")
    A("s_waitcnt lgkmcnt(4)")
    for a, b in ((0,1),(2,3),(0,2)): A(f"v_pk_add_f32 {v2(vK+2*a)}, {v2(vK+2*a)}, {v2(vK+2*b)}")
    A("s_waitcnt lgkmcnt(0)")
    for a, b in ((4,5),(6,7),(0,4),(0,6)): A(f"v_pk_add_f32 {v2(vK+2*a)}, {v2(vK+2*a)}, {v2(vK+2*b)}")
    A(f"v_mul_f32 v{vP+8}, v{vK}, v{vA+2}"); A(f"v_mul_f32 v{vP+9}, v{vK+1}, v{vA+2}")
    A(f"buffer_store_dwordx4 {v4(vP+8)}, v{vOV}, {srd(SWS)}, s{sT4} offen")
    A(f"buffer_store_dwordx4 {v4(vP+8)}, v{vOV}, {srd(SWS)}, s{sT3} offen sc1")
    g.stamp(6)
    if p.get("c2"): A("s_barrier")
    A("s_waitcnt vmcnt(2)")
    A(f"v_lshlrev_b32 v{vT}, 2, v{vR3}")
    A("s_branch L_barD2")
    if p.get("c2"):
        g.lab("L_barC2"); A("s_barrier"); A("s_branch L_barD")
    g.lab("L_ogather")
    A(f"s_mul_i32 s{sT0}, s{sW}, 11"); A(f"s_add_u32 s{sT0}, s{sT0}, s{sSLOT}")
    A(f"s_lshl_b32 s{sT1}, s{sHK}, 15"); A(f"s_lshl_b32 s{sT2}, s{sT0}, 6"); A(f"s_add_u32 s{sT1}, s{sT1}, s{sT2}"); A(f"s_add_u32 s{sT2}, s{sT1}, {OB}")
    A(f"s_add_u32 s{sT1}, s{sT2}, {AOFF}")
    A(f"v_mov_b32 v{vA}, 0"); A(f"v_mov_b32 v{vA+1}, 0"); A(f"v_mov_b32 v{vA+2}, {f2u(-1e30):#x}")
    A(f"v_lshrrev_b32 v{vT+1}, 4, v{vL}")
    A(f"s_lshl_b32 s{sT3}, s{sW}, 5"); A(f"v_lshl_add_u32 v{vT+3}, v{vT+1}, 3, s{sT3}")
    A(f"s_mov_b32 s{sSPIN}, {SPIN}")
    if p.get("c2"): A("s_barrier")
    A(f"s_cmp_ge_u32 s{sT0}, 32"); A("s_cbranch_scc1 L_owrite")
    setexec(g, 0x07ff07ff, 0x07ff07ff)
    g.lab("L_opoll")
    A(f"buffer_load_dwordx4 {v4(vA)}, v{vOU}, {srd(SWS)}, s{sT1} offen sc1")
    A(f"s_sub_u32 s{sSPIN}, s{sSPIN}, 1"); A("s_cbranch_scc1 L_opoll_end")
    A(f"s_cmp_eq_u32 s{sSPIN}, {SW}"); A(f"s_cselect_b32 s{sT1}, s{sT2}, s{sT1}")
    A("s_waitcnt vmcnt(0)")
    A(f"v_cmpx_ne_u32 vcc, s{sTAG}, v{vA+3}")
    A("s_cbranch_execnz L_opoll")
    g.lab("L_opoll_end")
    A("s_mov_b64 exec, -1")
    g.stamp(6)
    A(f"v_mov_b32 v{vT+4}, v{vA+2}")
    A("s_nop 1")
    rowred(g, "v_max_f32", [vT+4])
    A(f"v_sub_f32 v{vA+2}, v{vA+2}, v{vT+4}")
    A(f"v_exp_f32 v{vA+2}, v{vA+2}")
    A("s_nop 0")
    A(f"v_mul_f32 v{vA}, v{vA}, v{vA+2}"); A(f"v_mul_f32 v{vA+1}, v{vA+1}, v{vA+2}")
    A("s_nop 0")
    rowred(g, "v_add_f32", [vA+2, vA, vA+1])
    A(f"v_rcp_f32 v{vA+2}, v{vA+2}")
    A("s_nop 0")
    A(f"v_mul_f32 v{vA}, v{vA}, v{vA+2}"); A(f"v_mul_f32 v{vA+1}, v{vA+1}, v{vA+2}")
    A(f"v_cvt_pk_bf16_f32 v{vA}, v{vA}, v{vA}"); A(f"v_cvt_pk_bf16_f32 v{vA+1}, v{vA+1}, v{vA+1}")
    g.lab("L_owrite")
    setexec(g, 0x00010001, 0x00010001)
    A(f"ds_write_b64 v{vT+3}, {v2(vA)} offset:{L_C}")
    A("s_mov_b64 exec, -1")
    g.lab("L_barD")
    A(f"v_lshlrev_b32 v{vT}, 2, v{vR3}")
    A("s_waitcnt vmcnt(0) lgkmcnt(0)")
    g.lab("L_barD2")
    A("s_barrier")
    g.stamp(8)
    for i in range(3): A(f"ds_read_b32 v{vP+i}, v{vT} offset:{L_C+32*i}")
    A("s_waitcnt lgkmcnt(0)")
    for i in range(3): build_A(g, vK+4*i, vP+i)
    for i in range(3): A(f"{MF} {v4(vACC+4)}, {v4(vK+4*i)}, {v4(vV+4*i)}, {'0' if i == 0 else v4(vACC+4)}")
    fpublish(g, vACC+4)
    g.stamp(7)
    A("s_endpgm" if not p["stamps"] else "s_branch L_fin")
    g.L.append(".p2align 12")
    g.lab("L_notattn")
    if not p["helper"]:
        A(f"s_cmp_eq_u32 s{sJ}, 31"); A("s_cbranch_scc1 L_fin")
    g.vm = list(pre)
    if p.get("diag"):
        A(f"s_cmp_eq_u32 s{sJ}, 22"); A("s_cbranch_scc0 L_dg1"); A(f"s_cmp_eq_u32 s{sW}, 0"); A("s_cbranch_scc0 L_dg1")
        A(f"v_mov_b32 v{vT}, s90"); A(f"v_mov_b32 v{vT+1}, 0"); A(f"s_lshl_b32 s{sT0}, s{sXCD}, 7"); A("s_mov_b64 exec, 1")
        A(f"buffer_store_dword v{vT}, v{vT+1}, {srd(SWS)}, s{sT0} offen offset:1024 sc1"); A("s_mov_b64 exec, -1")
        g.lab("L_dg1")
    A(f"v_and_b32 v{vT+1}, 7, v{vL}"); A(f"v_mad_u32_u24 v{vT}, v{vR3}, 64, v{vT+1}"); A(f"v_lshl_add_u32 v{vT}, v{vR3}, 3, v{vT}")
    A(f"v_lshlrev_b32 v{vT}, 1, v{vT}"); A(f"s_lshl_b32 s{sT0}, s{sWE}, 4")
    A(f"s_mov_b64 s[{SGW+2}:{SGW+3}], s[{SX+2}:{SX+3}]"); A(f"s_mov_b64 s[{SOUT+2}:{SOUT+3}], s[{SX+2}:{SX+3}]")
    A(f"buffer_load_ushort v{vXG}, v{vT}, {srd(SX)}, s{sT0} offen"); g.vissue("xg")
    A(f"buffer_load_ushort v{vGW}, v{vT}, {srd(SGW)}, s{sT0} offen"); g.vissue("gw")
    A(f"s_cmp_eq_u32 s{sMODE}, 2"); A(f"s_cselect_b32 s{sT0}, {OOB:#x}, 0")
    A(f"v_or_b32 v{vOU}, s{sT0}, v{vOK}"); A(f"v_or_b32 v{vOD}, s{sT0}, v{vOT}")
    dm = p["dmix"]
    fseq = [("K", t) for t in range(8)] + [("U", t) for t in range(8)]
    if dm:
        o = []; di = 0
        for idx, e in enumerate(fseq):
            o.append(e)
            if idx >= NPRO and (idx % 2 == 1) and di < dm: o.append(("D", di)); di += 1
        fseq = o + [("D", t) for t in range(di, 8)]
    else: fseq += [("D", t) for t in range(8)]
    def greg(kind, t): return {"K": vK+4*t, "U": vK+32+4*t, "D": vV+16+4*t}[kind]
    fpos = [NPRO]
    def fissue():
        kind, t = fseq[fpos[0]]; fpos[0] += 1
        if kind == "D":
            A(f"buffer_load_dwordx4 {v4(greg(kind,t))}, v{vOD}, {srd(S3)}, s{sOO} offen {nt}")
            if t < 7: A(f"s_add_u32 s{sOO}, s{sOO}, 9216")
        else:
            A(f"buffer_load_dwordx4 {v4(greg(kind,t))}, v{vOK if kind == 'K' else vOU}, {srd(S1 if kind == 'K' else S2)}, s{sRUN} offen {nt}")
            if t < 7: A(f"s_add_u32 s{sRUN}, s{sRUN}, s{sSTEP}")
            elif kind == "K": A(f"s_mov_b32 s{sRUN}, s{sKO}")
        g.vissue(f"{kind}{t}")
    A(f"s_mul_i32 s{sT0}, s{sU}, {64*1152}"); A(f"s_add_u32 s{sOO}, s{sOO}, s{sT0}")
    A(f"s_add_u32 s{sPI}, s{sU}, 176")
    fpub_consts(g)
    fl = 0
    while fpos[0] < WF: fissue()
    for idx in range(NPRO):
        g.vwait(f"K{idx}"); fl = idx + 1
        while fpos[0] - fl < WF: fissue()
    g.vwait("gw")
    A(f"v_lshl_or_b32 v{vT+4}, v{vXG}, 16, v{vXG}")
    A(f"v_lshlrev_b32 v{vT+5}, 2, v{vR3}")
    for t in range(8): A(f"ds_bpermute_b32 v{vP+t}, v{vT+5}, v{vT+4} offset:{32*t}")
    A(f"v_lshlrev_b32 v{vXG}, 16, v{vXG}"); A(f"v_lshlrev_b32 v{vGW}, 16, v{vGW}")
    A(f"v_mul_f32 v{vXG}, v{vXG}, v{vGW}")
    bf16r(g, vXG, vXG)
    rowred(g, "v_add_f32", [vXG]); crossrow(g, "v_add_f32", vXG, vT)
    A(f"s_lshl_b32 s{sT0}, s{sW}, 2"); A(f"v_mov_b32 v{vT+3}, s{sT0}")
    A("s_mov_b64 exec, 1")
    A(f"ds_write_b32 v{vT+3}, v{vXG} offset:{L_Z}")
    A("s_mov_b64 exec, -1")
    A("s_waitcnt lgkmcnt(0)")
    dissued = sum(1 for e in fseq[:fpos[0]] if e[0] == "D")
    A(f"s_cmp_eq_u32 s{sMODE}, 1"); A("s_cbranch_scc1 L_m1")
    ng = 0
    for idx, (kind, t) in enumerate(fseq):
        if ng == 16: break
        if ng == 8 and kind == "U" and t == 0:
            A(f"s_cmp_eq_u32 s{sMODE}, 2"); A("s_cbranch_scc1 L_help")
        if kind != "D": build_A(g, vA+4*(ng & 1), vP+t)
        k = 0
        if idx >= fl:
            g.vwait(f"{kind}{t}"); fl = idx + 1; k = 1
            while fpos[0] - fl < WF and fpos[0] < len(fseq): fissue(); k += 1
        if kind != "D":
            if k < 2: A(f"s_nop {1-k}")
            acc = vACC if kind == "K" else vACC+4
            A(f"{MF} {v4(acc)}, {v4(vA+4*(ng&1))}, {v4(greg(kind,t))}, {'0' if t == 0 else v4(acc)}")
            ng += 1
    g.stamp(4)
    assert fpos[0] == len(fseq), "all down tiles must be issued before barrier E"
    A("s_nop 1")
    A(f"s_lshl_b32 s{sT0}, s{sW}, 9"); A(f"v_add_u32 v{vT+2}, s{sT0}, v{vOFP}")
    A(f"v_permlane32_swap_b32 v{vACC}, v{vACC+2}"); A(f"v_permlane32_swap_b32 v{vACC+1}, v{vACC+3}")
    A("s_nop 1")
    A(f"v_add_f32_dpp v{vACC}, v{vACC+2}, v{vACC} row_ror:8 {DPP}"); A(f"v_add_f32_dpp v{vACC+1}, v{vACC+3}, v{vACC+1} row_ror:8 {DPP}")
    A(f"v_permlane32_swap_b32 v{vACC+4}, v{vACC+6}"); A(f"v_permlane32_swap_b32 v{vACC+5}, v{vACC+7}")
    A("s_nop 0")
    A(f"v_add_f32_dpp v{vACC+4}, v{vACC+6}, v{vACC+4} row_ror:8 {DPP}"); A(f"v_add_f32_dpp v{vACC+5}, v{vACC+7}, v{vACC+5} row_ror:8 {DPP}")
    setexec(g, 0x00ff00ff, 0x00ff00ff)
    A(f"ds_write_b64 v{vT+2}, {v2(vACC)} offset:{L_O}")
    A(f"ds_write_b64 v{vT+2}, {v2(vACC+4)} offset:{L_O+256}")
    A("s_mov_b64 exec, -1")
    g.lab("L_barE")
    A(f"v_lshlrev_b32 v{vT}, 3, v{vL}")
    A(f"v_lshrrev_b32 v{vT+1}, 1, v{vR3}"); A(f"v_and_b32 v{vT+2}, 1, v{vR3}"); A(f"v_lshlrev_b32 v{vT+1}, 2, v{vT+1}")
    A(f"v_lshl_add_u32 v{vT+1}, v{vT+2}, 7, v{vT+1}")
    A("s_waitcnt lgkmcnt(0)")
    A("s_barrier")
    for w in range(9): A(f"ds_read_b64 {v2(vK+2*w)}, v{vT} offset:{L_O+512*w}")
    if fpos[0] < len(fseq): fissue()
    A("s_waitcnt lgkmcnt(0)")
    for a, b in ((0,1),(2,3),(4,5),(6,7),(0,2),(4,6),(0,4),(0,8)):
        A(f"v_pk_add_f32 {v2(vK+2*a)}, {v2(vK+2*a)}, {v2(vK+2*b)}")
    A("s_nop 1")
    A(f"v_permlane32_swap_b32 v{vK}, v{vK+1}")
    A("s_nop 0")
    A(f"v_cvt_pk_bf16_f32 v{vK+2}, v{vK}, v{vK+1}")
    A(f"v_lshlrev_b32 v{vK}, 16, v{vK+2}"); A(f"v_and_b32 v{vK+1}, 0xffff0000, v{vK+2}")
    A(f"v_mul_f32 v{vK+2}, {f2u(-1.4426950408889634):#x}, v{vK}")
    A(f"v_exp_f32 v{vK+2}, v{vK+2}"); A("s_nop 0")
    A(f"v_add_f32 v{vK+2}, 1.0, v{vK+2}")
    A(f"v_rcp_f32 v{vK+2}, v{vK+2}"); A("s_nop 0")
    A(f"v_mul_f32 v{vK}, v{vK}, v{vK+2}")
    bf16r(g, vK, vK)
    A(f"v_mul_f32 v{vK}, v{vK}, v{vK+1}")
    A(f"v_cvt_pk_bf16_f32 v{vK}, v{vK}, v{vK}")
    for t in range(8): A(f"ds_bpermute_b32 v{vP+t}, v{vT+1}, v{vK} offset:{16*t}")
    while fpos[0] < len(fseq): fissue()
    A("s_waitcnt lgkmcnt(0)")
    for t in range(8): build_A(g, vK+16+4*t, vP+t)
    g.stamp(5)
    for t in range(8):
        g.vwait(f"D{t}")
        A(f"{MF} {v4(vACC)}, {v4(vK+16+4*t)}, {v4(greg('D',t))}, {'0' if t == 0 else v4(vACC)}")
    g.stamp(6)
    fpublish(g, vACC)
    g.stamp(7)
    A(f"v_and_b32 v{vT}, 31, v{vL}"); A(f"v_lshrrev_b32 v{vT+1}, 5, v{vL}")
    A(f"v_mul_u32_u24 v{vT+2}, {FROW}, v{vT}"); A(f"v_lshl_add_u32 v{vT+2}, v{vT+1}, 4, v{vT+2}")
    A(f"s_mul_i32 s{sT0}, s{sW}, {32*FROW}"); A(f"s_lshl_b32 s{sT1}, s{sU}, 5"); A(f"s_add_u32 s{sT0}, s{sT0}, s{sT1}")
    A(f"s_add_u32 s{sT0}, s{sT0}, {FB}")
    A(f"s_lshl_b32 s{sT2}, s{sW}, 5"); A(f"v_add_u32 v{vT+10}, s{sT2}, v{vT}")
    A(f"s_movk_i32 s{sT3}, 248")
    A(f"v_cmp_gt_u32 s[{sM0}:{sM0+1}], s{sT3}, v{vT+10}")
    A(f"v_lshlrev_b32 v{vT+5}, 1, v{vT+10}"); A(f"v_lshl_add_u32 v{vT+5}, v{vT+1}, 4, v{vT+5}")
    A(f"s_mul_i32 s{sT2}, s{sXCD}, 22"); A(f"s_mul_i32 s{sT3}, s{sXCD}, 9"); A(f"s_add_u32 s{sT3}, s{sT3}, 176")
    A(f"v_subrev_u32 v{vT+11}, s{sT2}, v{vT+10}"); A(f"v_subrev_u32 v{vT+12}, s{sT3}, v{vT+10}")
    A(f"v_cmp_gt_u32 s[{sM0+2}:{sM0+3}], 22, v{vT+11}")
    A(f"v_cmp_gt_u32 vcc, 9, v{vT+12}")
    A(f"v_mov_b32 v{vT+4}, {AOFF}")
    A(f"s_or_b64 vcc, s[{sM0+2}:{sM0+3}], vcc")
    for r in range(4): A(f"v_mov_b32 v{vK+r}, 0")
    A(f"v_cndmask_b32 v{vT+11}, 0, v{vT+4}, vcc")
    A(f"v_add_u32 v{vT+11}, v{vT+11}, v{vT+2}")
    tagsel(g)
    A(f"v_mov_b32 v{vT+6}, 0")
    A(f"ds_read_b128 {v4(vA)}, v{vT+6} offset:{L_Z}"); A(f"ds_read_b128 {v4(vA+4)}, v{vT+6} offset:{L_Z+16}"); A(f"ds_read_b32 v{vT+7}, v{vT+6} offset:{L_Z+32}")
    A("s_waitcnt lgkmcnt(0)")
    A(f"v_pk_add_f32 {v2(vA)}, {v2(vA)}, {v2(vA+2)}"); A(f"v_pk_add_f32 {v2(vA+4)}, {v2(vA+4)}, {v2(vA+6)}")
    A(f"v_pk_add_f32 {v2(vA)}, {v2(vA)}, {v2(vA+4)}")
    A(f"v_add_f32 v{vA}, v{vA}, v{vA+1}"); A(f"v_add_f32 v{vA}, v{vA}, v{vT+7}")
    bf16r(g, vA, vA)
    A(f"v_mul_f32 v{vA}, {f2u(-1.4426950408889634):#x}, v{vA}")
    A(f"v_exp_f32 v{vA}, v{vA}"); A("s_nop 0")
    A(f"v_add_f32 v{vA}, 1.0, v{vA}"); A(f"v_rcp_f32 v{vA}, v{vA}"); A("s_nop 0")
    bf16r(g, vA, vA)
    A(f"v_sub_f32 v{vA+1}, 1.0, v{vA}"); bf16r(g, vA+1, vA+1)
    A(f"v_and_b32 v{vT+9}, 7, v{vL}"); A(f"v_lshlrev_b32 v{vT+8}, 2, v{vT+9}"); A(f"v_lshlrev_b32 v{vT+9}, 1, v{vT+9}")
    A(f"v_add_u32 v{vT+8}, {L_R}, v{vT+8}")
    A(f"s_lshl_b32 s{sKO}, s{sU}, 4")
    A(f"s_mov_b32 s{sSPIN}, {SPIN}")
    A(f"s_mov_b64 exec, s[{sM0}:{sM0+1}]"); A("s_cbranch_execz L_fskip")
    g.lab("L_fpoll")
    if p.get("radapt"):
        A(f"s_cmp_eq_u64 exec, s[{sM0}:{sM0+1}]"); A("s_cbranch_scc0 L_fp0"); A(f"s_sleep {p['radapt']}")
        g.lab("L_fp0")
    elif p["rsleep"]: A(f"s_sleep {p['rsleep']}")
    A(f"buffer_load_dwordx4 {v4(vK)}, v{vT+11}, {srd(SWS)}, s{sT0} offen {p.get('fld','sc1')}")
    A(f"s_sub_u32 s{sSPIN}, s{sSPIN}, 1"); A("s_cbranch_scc1 L_fpoll_end")
    A(f"s_cmp_eq_u32 s{sSPIN}, {SW}"); A("s_cbranch_scc0 L_fp1")
    A(f"v_mov_b32 v{vT+11}, v{vT+2}")
    g.lab("L_fp1")
    A("s_waitcnt vmcnt(0)")
    tagcheck(g, vK, vT+12)
    A(f"v_cmpx_ne_u32 vcc, s{sTAG}, v{vT+12}")
    A("s_cbranch_execnz L_fpoll")
    g.lab("L_fpoll_end")
    A("s_mov_b64 exec, -1")
    g.stamp(8)
    A("s_nop 2")
    rowred(g, "v_add_f32", [vK, vK+1, vK+2, vK+3])
    setexec(g, 0x00010001, 0x00010001)
    A(f"ds_write_b128 v{vT+5}, {v4(vK)} offset:{L_R}")
    g.lab("L_fskip")
    A("s_mov_b64 exec, -1")
    A("s_waitcnt lgkmcnt(0)")
    A("s_barrier")
    A(f"s_cmp_lg_u32 s{sW}, 0"); A("s_cbranch_scc1 L_fin")
    for k in range(8): A(f"ds_read2_b32 {v2(vK+2*k)}, v{vT+8} offset0:{16*k} offset1:{16*k+8}")
    A("s_waitcnt lgkmcnt(0)")
    A(f"v_pk_add_f32 {v2(vK)}, {v2(vK)}, {v2(vK+2)}"); A(f"v_pk_add_f32 {v2(vK+4)}, {v2(vK+4)}, {v2(vK+6)}")
    A(f"v_pk_add_f32 {v2(vK+12)}, {v2(vK+12)}, {v2(vK+14)}")
    A(f"v_pk_add_f32 {v2(vK)}, {v2(vK)}, {v2(vK+8)}")
    A(f"v_add_f32 v{vK+12}, v{vK+12}, v{vK+13}")
    A(f"v_pk_add_f32 {v2(vK)}, {v2(vK)}, {v2(vK+4)}")
    A(f"v_add_f32 v{vK+11}, v{vK+11}, v{vK+12}")
    A(f"v_add_f32 v{vK}, v{vK}, v{vK+1}"); A(f"v_add_f32 v{vK+10}, v{vK}, v{vK+10}")
    A(f"v_cvt_pk_bf16_f32 v{vK}, v{vK+10}, v{vK+11}")
    A(f"v_lshlrev_b32 v{vK+10}, 16, v{vK}"); A(f"v_and_b32 v{vK+11}, 0xffff0000, v{vK}")
    A(f"v_pk_mul_f32 {v2(vK+10)}, {v2(vK+10)}, {v2(vA)}")
    A(f"v_cvt_pk_bf16_f32 v{vK}, v{vK+10}, v{vK+11}")
    A(f"v_lshlrev_b32 v{vK+10}, 16, v{vK}"); A(f"v_and_b32 v{vK+11}, 0xffff0000, v{vK}")
    A(f"v_add_f32 v{vK}, v{vK+10}, v{vK+11}")
    A(f"v_cvt_pk_bf16_f32 v{vK}, v{vK}, v{vK}")
    setexec(g, 0xff, 0)
    A(f"buffer_store_short v{vK}, v{vT+9}, {srd(SOUT)}, s{sKO} offen {p.get('ost','')}")
    A(f"s_cmp_lg_u32 s{sU}, 0"); A("s_cbranch_scc1 L_fin")
    if p.get("diag"):
        A("s_memrealtime s[92:93]")
        A(f"v_lshlrev_b32 v{vT}, 7, v{vL}")
        A(f"buffer_load_dword v{vT+1}, v{vT}, {srd(SWS)}, 0 offen offset:1024 sc1"); A("s_waitcnt vmcnt(0) lgkmcnt(0)")
        for k in range(8): A(f"v_readlane_b32 s{80+k}, v{vT+1}, {k}")
        A("s_nop 3")
        for k in range(8): A(f"s_sub_u32 s{80+k}, s92, s{80+k}")
        A("s_mov_b32 s88, s80"); A("s_mov_b32 s89, s80")
        for k in range(1, 8): A(f"s_max_u32 s88, s88, s{80+k}"); A(f"s_min_u32 s89, s89, s{80+k}")
        d = p["diag"]
        if d == "skew": A("s_sub_u32 s88, s88, s89"); A("s_mul_i32 s88, s88, 10")
        elif d == "total": A("s_mul_i32 s88, s88, 4")
        elif d == "last": A("s_mul_i32 s88, s89, 4")
        elif d == "zero": A("s_mov_b32 s88, 0")
        elif d == "a0": A("s_sub_u32 s88, s96, s90"); A("s_mul_i32 s88, s88, 20")
        elif d == "touch": A("s_sub_u32 s88, s98, s96"); A("s_mul_i32 s88, s88, 20")
        A("s_min_u32 s88, s88, 20000")
        g.lab("L_dg2")
        A("s_memrealtime s[94:95]"); A("s_waitcnt lgkmcnt(0)"); A("s_sub_u32 s94, s94, s92"); A("s_cmp_lt_u32 s94, s88"); A("s_cbranch_scc1 L_dg2")
    A("s_mov_b64 exec, 1")
    A(f"v_mov_b32 v{vT+7}, s{sTAG}")
    A(f"buffer_store_dword v{vT+7}, v{vT+6}, {srd(SWS)}, 0 offen offset:{EPOCH}")
    g.lab("L_fin")
    if p["stamps"]:
        A("s_mov_b64 exec, -1")
        A("s_waitcnt vmcnt(0)")
        g.stamp(9)
        A("s_waitcnt lgkmcnt(0)")
        A(f"s_lshl_b32 s{sT0}, s2, 4"); A(f"s_add_u32 s{sT0}, s{sT0}, s{sW}"); A(f"s_lshl_b32 s{sT0}, s{sT0}, 6"); A(f"s_add_u32 s{sT0}, s{sT0}, {STB}")
        for k in range(10): A(f"v_mov_b32 v{vK+k}, s{80+2*k}")
        A(f"v_mov_b32 v{vK+10}, s{sSPIN}"); A(f"v_mov_b32 v{vK+11}, s{sTAG}")
        A(f"v_mov_b32 v{vT}, 0"); A("s_mov_b64 exec, 1")
        for k in range(3): A(f"buffer_store_dwordx4 {v4(vK+4*k)}, v{vT}, {srd(SWS)}, s{sT0} offen offset:{16*k}")
    g.lab("L_end")
    A("s_endpgm")
    if True:
        g.lab("L_m1")
        for t in range(dissued, 8):
            A(f"s_waitcnt vmcnt(1)")
            A(f"buffer_load_dwordx4 {v4(greg('D',t))}, v{vOD}, {srd(S3)}, s{sOO} offen {nt}")
            if t < 7: A(f"s_add_u32 s{sOO}, s{sOO}, 9216")
        A(f"s_lshl_b32 s{sT0}, s{sW}, 9")
        A(f"s_and_b32 s{sT1}, s{sU}, 0x78"); A(f"s_lshl1_add_u32 s{sT1}, s{sW}, s{sT1}"); A(f"s_lshl_b32 s{sT1}, s{sT1}, 8")
        A(f"s_add_u32 s{sT1}, s{sT1}, {HB - 10*256}")
        A(f"v_add_u32 v{vT+3}, s{sT0}, v{vOV}")
        A(f"s_mov_b32 s{sSPIN}, {SPIN}")
        tagsel(g)
        A("s_mov_b32 exec_hi, 0")
        g.lab("L_hpoll")
        A(f"s_sleep {p['hsleep']}")
        A(f"buffer_load_dwordx4 {v4(vA)}, v{vOV}, {srd(SWS)}, s{sT1} offen sc1")
        A(f"s_sub_u32 s{sSPIN}, s{sSPIN}, 1"); A("s_cbranch_scc1 L_hpoll_end")
        A("s_waitcnt vmcnt(0)")
        tagcheck(g, vA, vT+4)
        A(f"v_cmp_ne_u32 vcc, s{sTAG}, v{vT+4}")
        A("s_cbranch_vccnz L_hpoll")
        g.lab("L_hpoll_end")
        A(f"ds_write_b128 v{vT+3}, {v4(vA)} offset:{L_O}")
        A("s_mov_b64 exec, -1")
        A("s_branch L_barE")
        g.lab("L_help")
        A(f"s_lshl_b32 s{sPI}, s{sHK}, 8"); A(f"s_add_u32 s{sPI}, s{sPI}, {HB}")
        fpublish(g, vACC, acopy=False)
        g.stamp(4)
        A("s_branch L_fin")
    out += g.L
    out += ['.section .rodata,"a"', ".p2align 6", f".amdhsa_kernel {NAME}", f"  .amdhsa_next_free_vgpr {NV}",
            f"  .amdhsa_next_free_sgpr {100 if (p['stamps'] or p.get('diag')) else 80}", f"  .amdhsa_accum_offset {NV}", "  .amdhsa_group_segment_fixed_size 0",
            "  .amdhsa_kernarg_size 104", "  .amdhsa_user_sgpr_count 2", "  .amdhsa_user_sgpr_kernarg_segment_ptr 1",
            "  .amdhsa_system_sgpr_workgroup_id_x 1", ".end_amdhsa_kernel"]
    return "\n".join(out) + "\n"

if __name__ == "__main__":
    kw = {}
    for a in sys.argv[2:]:
        k, v = a.split("="); kw[k] = eval(v)
    open(sys.argv[1], "w").write(gen(**kw))
```

```python
import sys, struct
NAME = "gated_mix__sliding_block_cached__swiglu_ffn__decode_kernel"
HDR = open("gated_mix__sliding_block_cached__swiglu_ffn__decode.s.ref").read().split("; Override launch")[0]
def f2u(f): return struct.unpack("<I", struct.pack("<f", f))[0]

EPOCH = 0
HB = 4096
QB = HB + 72*256
OB = QB + 256*256
FB = OB + 256*2048
AOFF = 2 << 20
FROW = 2304
assert FB + 256*FROW <= AOFF
WS_USED = 2*AOFF
STB = 8 << 20
L_QP = 0; L_Q = 4608; L_M = 5120; L_L = 5184; L_Z = 5248; L_C = 5312
L_CNT = 5504; L_O = 5632; L_H = L_O + 9*1024; L_R = L_H + 9*256
LDS_BYTES = L_R + 640
OOB = 0x40000000

class G:
    def __init__(s, **kw):
        s.L = []; s.p = dict(WA=4, WF=3, N0=2, c2=1, b3=1, stamps=False, nt="nt", qsleep=2, qsleep0=8, spin=200000, apolls=300, bpos=1, rsleep=0, radapt=8, dmix=5,
                             prio=1, align=True, touch=0, pretouch=0, cpf=0, nmid=4, helper=1, hsleep=8)
        s.p.update(kw); s.vm = []
    def A(s, x):
        if s.p.get("pnt") and x.startswith("buffer_load") and x.endswith(" sc1"): x += " nt"
        if s.p.get("xnt") and (x.startswith("buffer_load_dword v") or x.startswith("buffer_load_ushort") or x.startswith("global_load_dword v")) and " nt" not in x: x += " nt"
        s.L.append("    " + x)
    def lab(s, x): s.L.append(x + ":")
    def vissue(s, name): s.vm.append(name)
    def vwait(s, name):
        i = s.vm.index(name); s.A(f"s_waitcnt vmcnt({len(s.vm)-1-i})")
    def stamp(s, k, prog=False):
        if s.p.get("prof") and not prog and 3 <= k <= 8 and k != 5: return
        if prog and s.p.get("prof") != int(prog): return
        if s.p["stamps"]: s.A(f"s_memrealtime s[{80+2*k}:{81+2*k}]")

sW=3
SX=8; SWQ=12; SWS=16; S1=20; S2=24; S3=28; SGW=32; SOUT=36
sE=40; sSTEP=41; sTAG=42
sXCD=44; sJ=45; sHK=46; sSLOT=47; sQI=48; sT0=49; sT1=50; sT2=51; sRUN=52; sBIAS=53; sSPIN=54
sKO=55; sOO=56; sSEL0=57; sSEL1=58; sPI=59; sC=60; sU=61
sM0=62; sEX=70; sAM=72; sWE=74; sT3=75; sT4=76; sMODE=77; sFF=78; sNOS=79
def srd(b): return f"s[{b}:{b+3}]"
vL=1; vM=2; vOT=6; vOK=7; vOV=8; vOWQ=9; vLT=10; vX0=11; vOU=12; vOD=13; vTB=14
vXG=16; vGW=17; vT=18
vA=32; vACC=40; vP=48; vOKL=60; vOVL=61; vR3=62; vOFP=63
vK=64; vV=112; NV=160
def v4(b): return f"v[{b}:{b+3}]"
def v2(b): return f"v[{b}:{b+1}]"
DPP = "row_mask:0xf bank_mask:0xf"
MF = "v_mfma_f32_16x16x32_bf16"

def build_A(g, dst, rep):
    for j in range(4): g.A(f"v_and_b32 v{dst+j}, v{rep}, v{vM+j}")
def rowred(g, op, regs):
    need = max(0, 2 - (len(regs) - 1))
    for r in (8, 4, 2, 1):
        if need: g.A(f"s_nop {need-1}")
        for x in regs: g.A(f"{op}_dpp v{x}, v{x}, v{x} row_ror:{r} {DPP}")
def crossrow(g, op, x, t):
    for sw in ("v_permlane16_swap_b32", "v_permlane32_swap_b32"):
        g.A(f"v_mov_b32 v{t}, v{x}"); g.A("s_nop 1"); g.A(f"{sw} v{x}, v{t}"); g.A("s_nop 1"); g.A(f"{op} v{x}, v{x}, v{t}")
def bf16r(g, d, s_):
    g.A(f"v_cvt_pk_bf16_f32 v{d}, v{s_}, v{s_}"); g.A(f"v_and_b32 v{d}, 0xffff0000, v{d}")
def setexec(g, lo, hi):
    g.A(f"s_mov_b32 exec_lo, {lo:#x}"); g.A(f"s_mov_b32 exec_hi, {hi:#x}")

def fpub_consts(g):
    A = g.A
    A(f"s_mul_i32 s{sPI}, s{sPI}, 9"); A(f"s_add_u32 s{sPI}, s{sPI}, s{sW}"); A(f"s_lshl_b32 s{sPI}, s{sPI}, 8"); A(f"s_add_u32 s{sPI}, s{sPI}, {FB}")
    A(f"s_lshl_b32 s{sT0}, s{sW}, 8"); A(f"s_mul_i32 s{sT1}, s{sXCD}, {72*4}"); A(f"s_sub_u32 s{sT0}, s{sT0}, s{sT1}")
    A(f"v_add_u32 v{vT}, s{sT0}, v{vOFP}")
    A(f"v_cmp_gt_u32 vcc, {72*4}, v{vT}")
    A(f"v_lshrrev_b32 v{vT}, 1, v{vL}"); A(f"v_and_b32 v{vT}, 16, v{vT}")
    A(f"v_lshrrev_b32 v{vTB}, v{vT}, s{sTAG}" if False else f"v_mov_b32 v{vTB}, s{sTAG}")
    A(f"v_lshrrev_b32 v{vTB}, v{vT}, v{vTB}")
    A(f"s_and_b32 s{sAM}, vcc_lo, 0x00ff00ff"); A(f"s_and_b32 s{sAM+1}, vcc_hi, 0x00ff00ff")
    A(f"v_lshrrev_b32 v{vTB+1}, 8, v{vTB}")
    A(f"s_movk_i32 s{sFF}, 0xff")

def tagcheck(g, d, t):
    g.A(f"v_perm_b32 v{t}, v{d+1}, v{d}, s{sSEL0}"); g.A(f"v_perm_b32 v{t+1}, v{d+3}, v{d+2}, s{sSEL1}")
    g.A(f"v_or_b32 v{t}, v{t}, v{t+1}")
def tagsel(g):
    g.A(f"s_mov_b32 s{sSEL0}, 0x0c0c0400"); g.A(f"s_mov_b32 s{sSEL1}, 0x04000c0c")

PROG = {"K3": 3, "K7": 4, "K11": 6, "V3": 7, "V7": 8}
uid = [0]
def fpublish(g, acc, acopy=True):
    g.A(f"s_add_u32 s{sT0}, s{sPI}, {AOFF}")
    g.A("s_nop 6")
    g.A(f"v_permlane32_swap_b32 v{acc}, v{acc+2}")
    g.A(f"v_permlane32_swap_b32 v{acc+1}, v{acc+3}")
    g.A("s_nop 0")
    g.A(f"v_add_f32_dpp v{acc}, v{acc+2}, v{acc} row_ror:8 {DPP}")
    g.A(f"v_add_f32_dpp v{acc+1}, v{acc+3}, v{acc+1} row_ror:8 {DPP}")
    setexec(g, 0x00ff00ff, 0x00ff00ff)
    g.A(f"v_bfi_b32 v{acc}, s{sFF}, v{vTB}, v{acc}"); g.A(f"v_bfi_b32 v{acc+1}, s{sFF}, v{vTB+1}, v{acc+1}")
    g.A(f"buffer_store_dwordx2 {v2(acc)}, v{vOFP}, {srd(SWS)}, s{sPI} offen {g.p.get('fst','sc1')}")
    if acopy:
        uid[0] += 1
        g.A(f"s_mov_b64 exec, s[{sAM}:{sAM+1}]"); g.A(f"s_cbranch_execz L_na{uid[0]}")
        g.A(f"buffer_store_dwordx2 {v2(acc)}, v{vOFP}, {srd(SWS)}, s{sT0} offen")
        g.lab(f"L_na{uid[0]}")
    g.A("s_mov_b64 exec, -1")

def gen(**kw):
    g = G(**kw); A = g.A; p = g.p; nt = p["nt"]; WA = p["WA"]; WF = p["WF"]
    SPIN = p["spin"]; SW = max(SPIN - p["apolls"], 0)
    NPRO = min(WA, WF)
    out = [HDR.rstrip("\n")]
    out.append(f"; @launch grid=(256,1,1) block=(576,1,1) lds={LDS_BYTES}")
    out += ['.amdgcn_target "amdgcn-amd-amdhsa--gfx950"', ".text"]
    if p["align"]: out += [".p2align 12", ".fill 832, 4, 0xbf800000"]
    out += [f".globl {NAME}", ".p2align 8", f".type {NAME},@function", f"{NAME}:"]
    g.stamp(0)
    if p.get("diag"): A("s_memrealtime s[90:91]")
    A("s_cmp_ge_u32 s2, 0x100"); A("s_cbranch_scc1 L_end")
    A(f"s_load_dwordx2 s[{SWQ}:{SWQ+1}], s[0:1], 24")
    A(f"s_load_dwordx2 s[{SX}:{SX+1}], s[0:1], 0")
    A(f"s_lshr_b32 s{sJ}, s2, 3")
    A(f"s_cmp_lt_u32 s{sJ}, 22")
    A(f"s_cselect_b32 s{sT0}, 8, 48"); A(f"s_cselect_b32 s{sT2}, 32, 64")
    A(f"s_load_dwordx4 s[4:7], s[0:1], s{sT0}")
    A(f"s_load_dwordx2 s[{S3}:{S3+1}], s[0:1], s{sT2}")
    A(f"s_load_dwordx2 s[{SGW}:{SGW+1}], s[0:1], 72")
    A(f"s_load_dwordx2 s[{SOUT}:{SOUT+1}], s[0:1], 80")
    A(f"s_load_dwordx2 s[{SWS}:{SWS+1}], s[0:1], 96")
    A(f"v_lshrrev_b32 v{vT}, 6, v0")
    A(f"v_and_b32 v{vL}, 63, v0")
    A(f"v_readfirstlane_b32 s{sW}, v{vT}")
    A(f"s_and_b32 s{sXCD}, s2, 7")
    A(f"v_lshrrev_b32 v{vR3}, 3, v{vL}")
    A(f"v_and_b32 v{vT+1}, 7, v{vL}")
    A(f"v_lshlrev_b32 v{vT+2}, 4, v{vT+1}")
    A(f"v_lshl_add_u32 v{vOWQ}, v{vR3}, 14, v{vT+2}")
    A(f"v_lshlrev_b32 v{vT+3}, 2, v{vR3}")
    A(f"s_bfe_u32 s{sT0}, s{sJ}, 0x20002"); A(f"s_mul_i32 s{sT0}, s{sT0}, 9"); A(f"s_add_u32 s{sT0}, s{sT0}, s{sW}")
    A(f"s_lshr_b32 s{sT1}, s{sJ}, 4"); A(f"s_lshl1_add_u32 s{sT1}, s{sXCD}, s{sT1}")
    A(f"s_and_b32 s{sT2}, s{sJ}, 3"); A(f"s_lshl2_add_u32 s{sT1}, s{sT1}, s{sT2}"); A(f"s_lshl_b32 s{sT1}, s{sT1}, 7")
    A(f"s_lshl_b32 s{sT2}, s{sT0}, 17"); A(f"s_add_u32 s{sT1}, s{sT1}, s{sT2}")
    A(f"s_add_u32 s{sT2}, s{sT1}, 8192")
    A(f"s_lshl_b32 s{sT0}, s{sT0}, 5")
    A(f"s_mov_b32 s{SWQ+2}, 4718592"); A(f"s_mov_b32 s{SWQ+3}, 0x20000")
    A(f"s_movk_i32 s{SX+2}, 1152"); A(f"s_mov_b32 s{SX+3}, s{SWQ+3}")
    vWQ = vV + 40
    A(f"v_mov_b32 v{vT+4}, 0")
    A(f"ds_write_b32 v{vT+4}, v{vT+4} offset:{L_CNT}")
    A("s_waitcnt lgkmcnt(0)")
    g.stamp(1)
    A(f"buffer_load_dwordx4 {v4(vWQ)}, v{vOWQ}, {srd(SWQ)}, s{sT1} offen {nt}"); g.vissue("wq0")
    A(f"buffer_load_dwordx4 {v4(vWQ+4)}, v{vOWQ}, {srd(SWQ)}, s{sT2} offen {nt}"); g.vissue("wq1")
    A(f"buffer_load_dword v{vX0}, v{vT+3}, {srd(SX)}, s{sT0} offen"); g.vissue("x0")
    A(f"s_load_dword s{sE}, s[{SWS}:{SWS+1}], {EPOCH}")
    g.stamp(3, 2)
    A("s_barrier")
    g.stamp(4, 2)
    if p.get("diag"): A("s_memrealtime s[96:97]")
    A(f"s_mov_b64 s[{S1}:{S1+1}], s[4:5]"); A(f"s_mov_b64 s[{S2}:{S2+1}], s[6:7]")
    A(f"s_mov_b32 s{S1+3}, s{SWQ+3}")
    A(f"v_lshlrev_b32 v{vOV}, 4, v{vL}")
    A(f"s_cmp_ge_u32 s{sJ}, 22"); A("s_cbranch_scc1 L_setF")
    A(f"s_mov_b32 s{S1+2}, 0x10000000"); A(f"s_mov_b32 s{S3+2}, s{SWQ+2}")
    A(f"s_cmp_ge_u32 s{sJ}, 11"); A(f"s_cselect_b32 s{sT0}, 1, 0"); A(f"s_cselect_b32 s{sT1}, 8, 0")
    A(f"s_lshl1_add_u32 s{sHK}, s{sXCD}, s{sT0}")
    A(f"s_cmp_ge_u32 s{sJ}, 19"); A(f"s_cselect_b32 s{sT1}, 19, s{sT1}")
    A(f"s_sub_u32 s{sSLOT}, s{sJ}, s{sT1}")
    A(f"s_min_u32 s{sT0}, s{sSLOT}, 2"); A(f"s_mul_i32 s{sT1}, s{sSLOT}, 94"); A(f"s_add_u32 s{sT0}, s{sT0}, s{sT1}")
    A(f"s_lshr_b32 s{sT1}, s{sSLOT}, 2"); A(f"s_mul_i32 s{sT1}, s{sT1}, 6"); A(f"s_sub_u32 s{sT0}, s{sT0}, s{sT1}")
    A(f"s_add_u32 s{sT0}, s{sT0}, s{sW}"); A(f"s_lshl_b32 s{sT0}, s{sT0}, 10")
    A(f"s_lshl_b32 s{sKO}, s{sHK}, 24"); A(f"s_add_u32 s{sKO}, s{sKO}, s{sT0}")
    A(f"s_add_u32 s{sKO}, s{sKO}, {61440*256}")
    A(f"s_movk_i32 s{sSTEP}, 8192")
    A(f"v_bfe_u32 v{vT}, v{vL}, 2, 2"); A(f"v_lshrrev_b32 v{vT+1}, 4, v{vL}"); A(f"v_and_b32 v{vT+3}, 3, v{vL}")
    A(f"v_lshlrev_b32 v{vOK}, 8, v{vT}"); A(f"v_lshl_add_u32 v{vOK}, v{vT+1}, 6, v{vOK}"); A(f"v_lshl_add_u32 v{vOK}, v{vT+3}, 4, v{vOK}")
    A(f"s_cmp_eq_u32 s{sW}, 8"); A(f"s_cselect_b32 s{sNOS}, 1, 0")
    A("s_branch L_set_done")
    g.lab("L_setF")
    A(f"s_mov_b32 s{S1+2}, 5308416"); A(f"s_mov_b32 s{S3+2}, s{S1+2}")
    A(f"s_mul_i32 s{sU}, s{sXCD}, 9"); A(f"s_mov_b32 s{sWE}, s{sW}")
    A(f"s_cmp_eq_u32 s{sJ}, 31"); A("s_cbranch_scc0 L_setF1")
    A(f"s_add_u32 s{sHK}, s{sU}, s{sW}")
    A(f"s_and_b32 s{sU}, s{sHK}, 0x78"); A(f"s_sub_u32 s{sU}, s{sU}, {9-3}")
    A(f"s_bfe_u32 s{sWE}, s{sHK}, 0x20001"); A(f"s_add_u32 s{sWE}, s{sWE}, 5")
    A(f"s_bitcmp1_b32 s{sHK}, 0"); A(f"s_cselect_b64 s[{S1}:{S1+1}], s[6:7], s[4:5]")
    g.lab("L_setF1")
    A(f"s_add_u32 s{sU}, s{sU}, s{sJ}"); A(f"s_sub_u32 s{sU}, s{sU}, 22")
    A(f"s_movk_i32 s{sT0}, 9216"); A(f"v_mad_u32_u24 v{vOK}, v{vR3}, s{sT0}, v{vT+2}")
    A(f"s_mul_i32 s{sKO}, s{sWE}, {8*9216}"); A(f"s_lshl_b32 s{sT0}, s{sU}, 7"); A(f"s_add_u32 s{sKO}, s{sKO}, s{sT0}")
    A(f"s_mov_b32 s{sSTEP}, {72*9216}")
    A(f"s_and_b32 s{sT0}, s{sU}, 7"); A(f"s_cmp_eq_u32 s{sT0}, 3"); A(f"s_cselect_b32 s{sT0}, s{sW}, 0")
    A(f"s_cmp_ge_u32 s{sT0}, {5 if p['helper'] else 99}"); A(f"s_cselect_b32 s{sMODE}, 1, 0")
    A(f"s_cmp_eq_u32 s{sJ}, 31"); A(f"s_cselect_b32 s{sMODE}, 2, s{sMODE}")
    A(f"s_cmp_eq_u32 s{sMODE}, {1 if p['helper'] else 2}")
    A(f"s_cselect_b32 s{sT0}, {OOB:#x}, 0")
    A(f"v_add_u32 v{vOK}, s{sT0}, v{vOK}")
    A(f"s_mov_b32 s{sNOS}, 0")
    g.lab("L_set_done")
    A(f"s_mov_b32 s{sRUN}, s{sKO}")
    def s1_issue(i):
        A(f"buffer_load_dwordx4 {v4(vK+4*i)}, v{vOK}, {srd(S1)}, s{sRUN} offen {nt}"); g.vissue(f"K{i}")
        A(f"s_add_u32 s{sRUN}, s{sRUN}, s{sSTEP}")
    N0 = min(p.get("N0", 2), NPRO)
    A(f"s_cmp_eq_u32 s{sNOS}, 1"); A("s_cbranch_scc1 " + "L_touched")
    for i in range(N0): s1_issue(i)
    g.lab("L_touched")
    g.stamp(6, 2)
    if p.get("diag"): A("s_memrealtime s[98:99]")
    A(f"s_mov_b64 s[{S2+2}:{S2+3}], s[{S1+2}:{S1+3}]"); A(f"s_mov_b32 s{S3+3}, s{SWQ+3}")
    A(f"s_mov_b32 s{SWS+2}, {(16<<20) if p['stamps'] else WS_USED}"); A(f"s_mov_b32 s{SWS+3}, s{SWQ+3}")
    A(f"v_and_b32 v{vT}, 1, v{vL}"); A(f"v_lshlrev_b32 v{vT}, 4, v{vT}")
    A(f"v_mov_b32 v{vT+1}, 0xffff"); A(f"v_lshlrev_b32 v{vT}, v{vT}, v{vT+1}")
    A(f"v_bfe_u32 v{vT+1}, v{vL}, 1, 2")
    for j in range(4): A(f"v_cmp_eq_u32 s[{sM0+2*j}:{sM0+2*j+1}], {j}, v{vT+1}")
    A(f"s_mov_b32 s{sSEL0}, 0x01000100"); A(f"s_mov_b32 s{sSEL1}, 0x03020302")
    for j in range(4): A(f"v_cndmask_b32 v{vM+j}, 0, v{vT}, s[{sM0+2*j}:{sM0+2*j+1}]")
    A(f"v_lshrrev_b32 v{vT}, 5, v{vL}"); A(f"v_and_b32 v{vT+3}, 16, v{vL}")
    A(f"v_lshl_add_u32 v{vLT}, v{vT+2}, 1, v{vT+3}")
    A(f"v_lshl_add_u32 v{vOFP}, v{vT}, 3, v{vLT}")
    A(f"v_lshl_add_u32 v{vLT}, v{vT}, 8, v{vLT}")
    A(f"s_movk_i32 s{sT0}, 1152"); A(f"v_mad_u32_u24 v{vOT}, v{vR3}, s{sT0}, v{vT+2}")
    A(f"s_lshl_b32 s{sT0}, s{sW}, 9"); A(f"v_add_u32 v{vT+2}, s{sT0}, v{vLT}")
    g.stamp(7, 2)
    A(f"s_cmp_eq_u32 s{sNOS}, 1"); A("s_cbranch_scc0 L_w1")
    A("s_waitcnt vmcnt(0)")
    g.lab("L_w1")
    g.vwait("x0")
    g.stamp(2)
    A(f"v_perm_b32 v{vT}, v{vX0}, v{vX0}, s{sSEL0}"); A(f"v_perm_b32 v{vT+1}, v{vX0}, v{vX0}, s{sSEL1}")
    build_A(g, vA, vT); build_A(g, vA+4, vT+1)
    A("s_cbranch_scc1 L_w2")
    for i in range(N0, NPRO): s1_issue(i)
    g.lab("L_w2")
    A(f"v_mov_b32 v{vT+5}, 1")
    A(f"{MF} {v4(vACC)}, {v4(vA)}, {v4(vWQ)}, 0")
    A(f"{MF} {v4(vACC)}, {v4(vA+4)}, {v4(vWQ+4)}, {v4(vACC)}")
    setexec(g, 0x00ff00ff, 0xff00ff00)
    A("s_waitcnt lgkmcnt(0)")
    A(f"s_mul_i32 s{sTAG}, s{sE}, 0x9e3779b1"); A(f"s_add_u32 s{sTAG}, s{sTAG}, 0x7f4a7c15")
    A(f"s_lshl_b32 s{sOO}, s{sW}, 7")
    A("s_nop 1")
    A(f"ds_write_b128 v{vT+2}, {v4(vACC)} offset:{L_QP}")
    A("s_mov_b64 exec, 1")
    A(f"ds_add_u32 v{vT+4}, v{vT+5} offset:{L_CNT}")
    A("s_mov_b64 exec, -1")
    A(f"s_cmp_lg_u32 s{sW}, 8"); A("s_cbranch_scc1 L_nopub")
    base = vV
    A(f"v_lshlrev_b32 v{vT}, 2, v{vL}")
    A(f"s_lshl_b32 s{sT0}, s{sXCD}, 5"); A(f"s_add_u32 s{sT0}, s{sT0}, s{sJ}")
    A(f"s_lshl_b32 s{sT0}, s{sT0}, 8"); A(f"s_add_u32 s{sT0}, s{sT0}, {QB}"); A(f"s_add_u32 s{sT1}, s{sT0}, {AOFF}")
    A(f"v_and_b32 v{vT+1}, 3, v{vL}"); A(f"v_lshlrev_b32 v{vT+1}, 3, v{vT+1}"); A(f"v_mov_b32 v{vT+6}, s{sTAG}")
    A(f"v_lshrrev_b32 v{vT+1}, v{vT+1}, v{vT+6}"); A(f"s_movk_i32 s{sFF}, 0xff")
    g.lab("L_cnt")
    A(f"ds_read_b32 v{vT+6}, v{vT+4} offset:{L_CNT}")
    A("s_waitcnt lgkmcnt(0)")
    A(f"v_cmp_ne_u32 vcc, 9, v{vT+6}")
    A("s_cbranch_vccnz L_cnt")
    for k in range(9): A(f"ds_read2st64_b32 {v2(base+2*k)}, v{vT} offset0:{2*k} offset1:{2*k+1}")
    A("s_waitcnt lgkmcnt(0)")
    for a, b in ((0,1),(2,3),(4,5),(6,7),(0,2),(4,6),(0,4),(0,8)):
        A(f"v_pk_add_f32 {v2(base+2*a)}, {v2(base+2*a)}, {v2(base+2*b)}")
    A(f"v_add_f32 v{vT+8}, v{base}, v{base+1}")
    A(f"v_bfi_b32 v{vT+8}, s{sFF}, v{vT+1}, v{vT+8}")
    A(f"buffer_store_dword v{vT+8}, v{vT}, {srd(SWS)}, s{sT1} offen")
    A(f"buffer_store_dword v{vT+8}, v{vT}, {srd(SWS)}, s{sT0} offen sc1")
    g.stamp(3)
    A(f"s_cmp_lt_u32 s{sJ}, 22"); A("s_cbranch_scc1 L_attn8")
    g.lab("L_nopub")
    A(f"s_cmp_ge_u32 s{sJ}, 22"); A("s_cbranch_scc1 L_notattn")
    pre = list(g.vm)
    def attn_consts():
        A(f"s_lshl_b32 s{sT0}, s{sHK}, 5"); A(f"s_add_u32 s{sT0}, s{sT0}, s{sSLOT}"); A(f"s_mul_i32 s{sT0}, s{sT0}, 9216")
        A(f"s_add_u32 s{sOO}, s{sOO}, s{sT0}")
        A(f"s_mul_i32 s{sPI}, s{sHK}, 11"); A(f"s_add_u32 s{sPI}, s{sPI}, s{sSLOT}")
        fpub_consts(g)
        A(f"s_cmp_lt_u32 s{sSLOT}, 10"); A(f"s_cselect_b32 s{sT0}, 0, {OOB:#x}")
        A(f"v_add_u32 v{vOD}, s{sT0}, v{vOT}")
        A(f"v_and_b32 v{vT}, 15, v{vL}"); A(f"v_lshrrev_b32 v{vT+1}, 4, v{vL}")
        A(f"v_lshlrev_b32 v{vOU}, 11, v{vT}"); A(f"v_lshl_add_u32 v{vOU}, v{vT+1}, 4, v{vOU}")
    for i in range(NPRO, WA): s1_issue(i)
    A(f"s_cmp_lt_u32 s{sSLOT}, 2"); A(f"s_cselect_b32 s{sT0}, 7, 6")
    A(f"s_and_b32 s{sT1}, s{sSLOT}, 3"); A(f"s_cmp_eq_u32 s{sT1}, 3"); A(f"s_cselect_b32 s{sT0}, 0, s{sT0}")
    A(f"s_cmp_lt_u32 s{sW}, s{sT0}"); A(f"s_cselect_b32 s{sT0}, 0, {OOB:#x}"); A(f"s_cselect_b32 s{sBIAS}, 0, {f2u(-1e30):#x}")
    A(f"v_add_u32 v{vOKL}, s{sT0}, v{vOK}"); A(f"v_add_u32 v{vOVL}, s{sT0}, v{vOV}")
    seq = [("K", i) for i in range(12)] + [("V", i) for i in range(12)] + [("O", i) for i in range(3)]
    pos = [max(NPRO, WA)]; land = [0]; vdone = [-1]
    def can_issue():
        if pos[0] >= len(seq): return False
        kind, i = seq[pos[0]]
        return kind != "O" or i <= vdone[0]
    def issue():
        kind, i = seq[pos[0]]; pos[0] += 1
        if kind == "O":
            A(f"buffer_load_dwordx4 {v4(vV+4*i)}, v{vOD if i == 2 else vOT}, {srd(S3)}, s{sOO} offen {nt}")
            if i < 2: A(f"s_add_u32 s{sOO}, s{sOO}, {11*9216}")
        else:
            off = {("K", True): vOKL, ("K", False): vOK, ("V", True): vOVL, ("V", False): vOV}[(kind, i == 11)]
            A(f"buffer_load_dwordx4 {v4((vK if kind == 'K' else vV)+4*i)}, v{off}, {srd(S1 if kind == 'K' else S2)}, s{sRUN} offen {nt}")
            if i < 11: A(f"s_add_u32 s{sRUN}, s{sRUN}, s{sSTEP}")
            elif kind == "K": A(f"s_mov_b32 s{sRUN}, s{sKO}")
        g.vissue(f"{kind}{i}")
    def refill():
        while pos[0] - land[0] < WA and can_issue(): issue()
    def step():
        kind, i = seq[land[0]]; land[0] += 1
        g.vwait(f"{kind}{i}")
        if f"{kind}{i}" in PROG: g.stamp(PROG[f"{kind}{i}"], True)
        refill()
        if p.get("gate") == f"{kind}{i}":
            A(f"s_lshl4_add_u32 s{sT0}, s{sJ}, s{sW}"); A(f"s_cmp_lg_u32 s{sT0}, {p.get('gsrc', 5)*16+7}"); A("s_cbranch_scc1 L_nogate")
            A(f"s_lshl_b32 s{sT0}, s{sXCD}, 7"); A(f"v_mov_b32 v{vT+8}, s{sTAG}"); A(f"v_mov_b32 v{vT+9}, 0"); A("s_mov_b64 exec, 1")
            A(f"buffer_store_dword v{vT+8}, v{vT+9}, {srd(SWS)}, s{sT0} offen offset:2048 sc1"); A("s_mov_b64 exec, -1")
            g.lab("L_nogate")
    nmid = [p["nmid"]]
    def mid():
        if nmid[0] > 0 and can_issue(): issue(); nmid[0] -= 1; return True
        return False
    refill()
    g.stamp(8, 2)
    step(); attn_consts()
    while land[0] < 12 + p["bpos"] + 1: step()
    g.stamp(3)
    A(f"v_and_b32 v{vT}, 0xf0, v{vOK}"); A(f"v_and_b32 v{vT+1}, 1, v{vR3}")
    A(f"v_lshl_add_u32 v{vT}, v{vT+1}, 8, v{vT}")
    A("s_barrier")
    A(f"ds_read_b128 {v4(vA)}, v{vT} offset:{L_Q}")
    A(f"s_mov_b32 s{sC}, {f2u(128**-0.5 * 1.4426950408889634):#x}")
    A(f"v_lshlrev_b32 v{vT+1}, 5, v{vT+1}"); A(f"s_lshl_b32 s{sT0}, s{sW}, 2"); A(f"v_add_u32 v{vT+3}, s{sT0}, v{vT+1}")
    A("s_waitcnt lgkmcnt(0)")
    for i in range(12): A(f"{MF} {v4(vK+4*i)}, {v4(vK+4*i)}, {v4(vA)}, 0")
    for i in range(12): A(f"v_mov_b32_dpp v{vP+i}, v{vK+4*i} quad_perm:[0,0,0,0] {DPP}")
    for r in (1, 2, 3):
        if r == 2: mid()
        for i in range(12): A(f"v_add_f32_dpp v{vP+i}, v{vK+4*i+r}, v{vP+i} quad_perm:[{r},{r},{r},{r}] {DPP}")
    A(f"v_add_f32 v{vP+11}, s{sBIAS}, v{vP+11}")
    A(f"v_max3_f32 v{vT}, v{vP}, v{vP+1}, v{vP+2}")
    for i in range(3, 11, 2): A(f"v_max3_f32 v{vT}, v{vT}, v{vP+i}, v{vP+i+1}")
    A(f"v_max_f32 v{vT}, v{vT}, v{vP+11}")
    crossrow(g, "v_max_f32", vT, vT+2)
    setexec(g, 0x101, 0)
    A(f"ds_write_b32 v{vT+3}, v{vT} offset:{L_M}")
    A("s_mov_b64 exec, -1")
    mid()
    A("s_waitcnt lgkmcnt(0)")
    A("s_barrier")
    A(f"ds_read_b128 {v4(vA)}, v{vT+1} offset:{L_M}"); A(f"ds_read_b128 {v4(vA+4)}, v{vT+1} offset:{L_M+16}")
    A(f"v_and_b32 v{vT+5}, 15, v{vL}"); A(f"v_lshlrev_b32 v{vT+5}, 5, v{vT+5}")
    A(f"v_and_b32 v{vT+6}, 16, v{vL}"); A(f"v_add_u32 v{vT+5}, v{vT+5}, v{vT+6}")
    A(f"v_lshrrev_b32 v{vT+6}, 5, v{vL}"); A(f"v_lshl_add_u32 v{vT+5}, v{vT+6}, 9, v{vT+5}")
    A(f"s_lshl_b32 s{sT0}, s{sW}, 10"); A(f"v_add_u32 v{vT+5}, s{sT0}, v{vT+5}")
    A("s_waitcnt lgkmcnt(0)")
    A(f"v_max3_f32 v{vT}, v{vA}, v{vA+1}, v{vA+2}"); A(f"v_max3_f32 v{vT}, v{vT}, v{vA+3}, v{vA+4}")
    A(f"v_max3_f32 v{vT}, v{vT}, v{vA+5}, v{vA+6}"); A(f"v_max_f32 v{vT}, v{vT}, v{vA+7}")
    A(f"v_mul_f32 v{vT}, s{sC}, v{vT}")
    for i in range(12): A(f"v_fma_f32 v{vP+i}, v{vP+i}, s{sC}, -v{vT}")
    for i in range(12): A(f"v_exp_f32 v{vP+i}, v{vP+i}")
    if not mid(): A("s_nop 0")
    A(f"v_add_f32 v{vT+4}, v{vP}, v{vP+1}")
    for i in range(2, 12): A(f"v_add_f32 v{vT+4}, v{vT+4}, v{vP+i}")
    for i in range(12): A(f"v_cvt_pk_bf16_f32 v{vP+i}, v{vP+i}, v{vP+i}")
    crossrow(g, "v_add_f32", vT+4, vT+2)
    setexec(g, 0x101, 0)
    A(f"ds_write_b32 v{vT+3}, v{vT+4} offset:{L_L}")
    A("s_mov_b64 exec, -1")
    mid()
    for i in range(12): build_A(g, vK+4*i, vP+i)
    A("s_waitcnt lgkmcnt(0)")
    A("s_barrier")
    A(f"s_cmp_lt_u32 s{sW}, 6"); A("s_cbranch_scc1 L_nolse")
    A(f"s_sub_u32 s{sT0}, s{sW}, 6")
    A(f"s_lshl_b32 s{sT1}, s{sT0}, 5"); A(f"v_mov_b32 v{vT+1}, s{sT1}")
    A(f"ds_read_b128 {v4(vA)}, v{vT+1} offset:{L_L}"); A(f"ds_read_b128 {v4(vA+4)}, v{vT+1} offset:{L_L+16}")
    A(f"ds_read_b128 {v4(vP)}, v{vT+1} offset:{L_M}"); A(f"ds_read_b128 {v4(vP+4)}, v{vT+1} offset:{L_M+16}")
    A(f"s_lshl_b32 s{sT1}, s{sT0}, 9"); A(f"v_lshl_add_u32 v{vT+2}, v{vL}, 3, s{sT1}")
    A(f"s_lshl4_add_u32 s{sT3}, s{sHK}, s{sSLOT}"); A(f"s_lshl1_add_u32 s{sT3}, s{sT3}, s{sT0}"); A(f"s_lshl_b32 s{sT3}, s{sT3}, 10")
    A(f"s_add_u32 s{sT3}, s{sT3}, {OB}"); A(f"s_add_u32 s{sT4}, s{sT3}, {AOFF}")
    A("s_waitcnt lgkmcnt(0)")
    A(f"v_pk_add_f32 {v2(vA)}, {v2(vA)}, {v2(vA+2)}"); A(f"v_pk_add_f32 {v2(vA+4)}, {v2(vA+4)}, {v2(vA+6)}")
    A(f"v_max3_f32 v{vT}, v{vP}, v{vP+1}, v{vP+2}")
    A(f"v_pk_add_f32 {v2(vA)}, {v2(vA)}, {v2(vA+4)}")
    A(f"v_max3_f32 v{vT}, v{vT}, v{vP+3}, v{vP+4}")
    A(f"v_add_f32 v{vA}, v{vA}, v{vA+1}")
    A(f"v_max3_f32 v{vT}, v{vT}, v{vP+5}, v{vP+6}")
    A(f"v_rcp_f32 v{vA+2}, v{vA}"); A(f"v_log_f32 v{vA+4}, v{vA}")
    A(f"v_max_f32 v{vT}, v{vT}, v{vP+7}")
    A(f"v_mov_b32 v{vP+11}, s{sTAG}")
    A(f"v_fma_f32 v{vP+10}, v{vT}, s{sC}, v{vA+4}")
    g.lab("L_nolse")
    g.stamp(4)
    for i in range(12):
        if land[0] <= 12 + i:
            land[0] += 1; g.vwait(f"V{i}")
            if f"V{i}" in PROG: g.stamp(PROG[f"V{i}"], True)
        A(f"{MF} {v4(vACC)}, {v4(vK+4*i)}, {v4(vV+4*i)}, {'0' if i == 0 else v4(vACC)}")
        vdone[0] = i
        refill()
    assert pos[0] == len(seq)
    g.stamp(5)
    A("s_nop 7")
    A(f"ds_write_b128 v{vT+5}, {v4(vACC)} offset:{L_O}")
    A("s_waitcnt lgkmcnt(0)")
    A("s_branch L_barC")
    g.L.append(".p2align 12")
    g.lab("L_attn8")
    if p["prio"]: A("s_setprio 3")
    attn_consts()
    A(f"s_lshl_b32 s{sT2}, s{sHK}, 12"); A(f"s_add_u32 s{sT2}, s{sT2}, {QB}"); A(f"s_add_u32 s{sT0}, s{sT2}, {AOFF}")
    A(f"s_mov_b32 s{sSPIN}, {SPIN}")
    tagsel(g)
    if p.get("qsleep0"): A(f"s_sleep {p['qsleep0']}")
    g.lab("L_qpoll")
    A(f"s_sleep {p['qsleep']}")
    for rg in range(4):
        A(f"buffer_load_dwordx4 {v4(vK+4*rg)}, v{vOV}, {srd(SWS)}, s{sT0} offen offset:{rg*1024} sc1")
    A(f"s_sub_u32 s{sSPIN}, s{sSPIN}, 1"); A("s_cbranch_scc1 L_qpoll_end")
    A(f"s_cmp_eq_u32 s{sSPIN}, {max(SPIN-p['apolls']//4,0)}"); A(f"s_cselect_b32 s{sT0}, s{sT2}, s{sT0}")
    A("s_waitcnt vmcnt(0)")
    for rg in range(4): tagcheck(g, vK+4*rg, vT+2*rg)
    for rg in range(4): A(f"v_xor_b32 v{vT+2*rg}, s{sTAG}, v{vT+2*rg}")
    A(f"v_or3_b32 v{vT}, v{vT}, v{vT+2}, v{vT+4}"); A(f"v_or_b32 v{vT}, v{vT}, v{vT+6}")
    A(f"v_cmp_ne_u32 vcc, 0, v{vT}")
    A("s_cbranch_vccnz L_qpoll")
    g.lab("L_qpoll_end")
    for k in (0, 2):
        A(f"v_pk_add_f32 {v2(vK+k)}, {v2(vK+k)}, {v2(vK+4+k)}"); A(f"v_pk_add_f32 {v2(vK+8+k)}, {v2(vK+8+k)}, {v2(vK+12+k)}")
    for k in (0, 2): A(f"v_pk_add_f32 {v2(vK+k)}, {v2(vK+k)}, {v2(vK+8+k)}")
    A(f"v_cvt_pk_bf16_f32 v{vK}, v{vK}, v{vK+1}"); A(f"v_cvt_pk_bf16_f32 v{vK+1}, v{vK+2}, v{vK+3}")
    A(f"v_lshlrev_b32 v{vT}, 3, v{vL}")
    A(f"ds_write_b64 v{vT}, {v2(vK)} offset:{L_Q}")
    A("s_waitcnt lgkmcnt(0)")
    if p.get("gate"):
        A(f"v_lshlrev_b32 v{vT}, 7, v{vL}")
        A(f"s_lshl_b32 s{sT0}, 1, s{sXCD}"); A(f"s_xor_b32 exec_lo, s{sT0}, 0xff"); A("s_mov_b32 exec_hi, 0")
        g.lab("L_gpoll")
        A(f"s_sleep {p.get('gsleep', 2)}")
        A(f"buffer_load_dword v{vT+1}, v{vT}, {srd(SWS)}, 0 offen offset:2048 sc1")
        A(f"s_sub_u32 s{sSPIN}, s{sSPIN}, 1"); A("s_cbranch_scc1 L_gpoll_end")
        A("s_waitcnt vmcnt(0)")
        A(f"v_cmpx_ne_u32 vcc, s{sTAG}, v{vT+1}")
        A("s_cbranch_execnz L_gpoll")
        g.lab("L_gpoll_end")
        A("s_mov_b64 exec, -1")
    g.stamp(4)
    A("s_barrier")
    if p["pretouch"]:
        A(f"s_lshl4_add_u32 s{sT1}, s{sHK}, s{sSLOT}"); A(f"s_lshl_b32 s{sT1}, s{sT1}, 11"); A(f"s_add_u32 s{sT1}, s{sT1}, {OB+AOFF}")
        A(f"v_lshlrev_b32 v{vT}, 7, v{vL}")
        setexec(g, 0xffff, 0)
        A(f"buffer_load_dword v{vT+1}, v{vT}, {srd(SWS)}, s{sT1} offen sc1")
        A("s_mov_b64 exec, -1")
    A("s_barrier")
    for i in range(3):
        A(f"buffer_load_dwordx4 {v4(vV+4*i)}, v{vOD if i == 2 else vOT}, {srd(S3)}, s{sOO} offen {nt}")
        if i < 2: A(f"s_add_u32 s{sOO}, s{sOO}, {11*9216}")
    A("s_barrier")
    g.lab("L_barC")
    A("s_barrier")
    A(f"s_cmp_lt_u32 s{sW}, 3"); A("s_cbranch_scc1 L_ogather")
    A(f"s_sub_u32 s{sT0}, s{sW}, 6"); A(f"s_cmp_lt_u32 s{sT0}, 2"); A("s_cbranch_scc0 " + ("L_barC2" if p.get("c2") else "L_barD"))
    for w in range(8): A(f"ds_read_b64 {v2(vK+2*w)}, v{vT+2} offset:{L_O+1024*w}")
    A("s_waitcnt lgkmcnt(4)")
    for a, b in ((0,1),(2,3),(0,2)): A(f"v_pk_add_f32 {v2(vK+2*a)}, {v2(vK+2*a)}, {v2(vK+2*b)}")
    A("s_waitcnt lgkmcnt(0)")
    for a, b in ((4,5),(6,7),(0,4),(0,6)): A(f"v_pk_add_f32 {v2(vK+2*a)}, {v2(vK+2*a)}, {v2(vK+2*b)}")
    A(f"v_mul_f32 v{vP+8}, v{vK}, v{vA+2}"); A(f"v_mul_f32 v{vP+9}, v{vK+1}, v{vA+2}")
    A(f"buffer_store_dwordx4 {v4(vP+8)}, v{vOV}, {srd(SWS)}, s{sT4} offen")
    A(f"buffer_store_dwordx4 {v4(vP+8)}, v{vOV}, {srd(SWS)}, s{sT3} offen sc1")
    g.stamp(6)
    if p.get("c2"): A("s_barrier")
    A("s_waitcnt vmcnt(2)")
    A(f"v_lshlrev_b32 v{vT}, 2, v{vR3}")
    A("s_branch L_barD2")
    if p.get("c2"):
        g.lab("L_barC2"); A("s_barrier"); A("s_branch L_barD")
    g.lab("L_ogather")
    A(f"s_mul_i32 s{sT0}, s{sW}, 11"); A(f"s_add_u32 s{sT0}, s{sT0}, s{sSLOT}")
    A(f"s_lshl_b32 s{sT1}, s{sHK}, 15"); A(f"s_lshl_b32 s{sT2}, s{sT0}, 6"); A(f"s_add_u32 s{sT1}, s{sT1}, s{sT2}"); A(f"s_add_u32 s{sT2}, s{sT1}, {OB}")
    A(f"s_add_u32 s{sT1}, s{sT2}, {AOFF}")
    A(f"v_mov_b32 v{vA}, 0"); A(f"v_mov_b32 v{vA+1}, 0"); A(f"v_mov_b32 v{vA+2}, {f2u(-1e30):#x}")
    A(f"v_lshrrev_b32 v{vT+1}, 4, v{vL}")
    A(f"s_lshl_b32 s{sT3}, s{sW}, 5"); A(f"v_lshl_add_u32 v{vT+3}, v{vT+1}, 3, s{sT3}")
    A(f"s_mov_b32 s{sSPIN}, {SPIN}")
    if p.get("c2"): A("s_barrier")
    A(f"s_cmp_ge_u32 s{sT0}, 32"); A("s_cbranch_scc1 L_owrite")
    setexec(g, 0x07ff07ff, 0x07ff07ff)
    g.lab("L_opoll")
    A(f"buffer_load_dwordx4 {v4(vA)}, v{vOU}, {srd(SWS)}, s{sT1} offen sc1")
    A(f"s_sub_u32 s{sSPIN}, s{sSPIN}, 1"); A("s_cbranch_scc1 L_opoll_end")
    A(f"s_cmp_eq_u32 s{sSPIN}, {SW}"); A(f"s_cselect_b32 s{sT1}, s{sT2}, s{sT1}")
    A("s_waitcnt vmcnt(0)")
    A(f"v_cmpx_ne_u32 vcc, s{sTAG}, v{vA+3}")
    A("s_cbranch_execnz L_opoll")
    g.lab("L_opoll_end")
    A("s_mov_b64 exec, -1")
    g.stamp(6)
    A(f"v_mov_b32 v{vT+4}, v{vA+2}")
    A("s_nop 1")
    rowred(g, "v_max_f32", [vT+4])
    A(f"v_sub_f32 v{vA+2}, v{vA+2}, v{vT+4}")
    A(f"v_exp_f32 v{vA+2}, v{vA+2}")
    A("s_nop 0")
    A(f"v_mul_f32 v{vA}, v{vA}, v{vA+2}"); A(f"v_mul_f32 v{vA+1}, v{vA+1}, v{vA+2}")
    A("s_nop 0")
    rowred(g, "v_add_f32", [vA+2, vA, vA+1])
    A(f"v_rcp_f32 v{vA+2}, v{vA+2}")
    A("s_nop 0")
    A(f"v_mul_f32 v{vA}, v{vA}, v{vA+2}"); A(f"v_mul_f32 v{vA+1}, v{vA+1}, v{vA+2}")
    A(f"v_cvt_pk_bf16_f32 v{vA}, v{vA}, v{vA}"); A(f"v_cvt_pk_bf16_f32 v{vA+1}, v{vA+1}, v{vA+1}")
    g.lab("L_owrite")
    setexec(g, 0x00010001, 0x00010001)
    A(f"ds_write_b64 v{vT+3}, {v2(vA)} offset:{L_C}")
    A("s_mov_b64 exec, -1")
    g.lab("L_barD")
    A(f"v_lshlrev_b32 v{vT}, 2, v{vR3}")
    A("s_waitcnt vmcnt(0) lgkmcnt(0)")
    g.lab("L_barD2")
    A("s_barrier")
    g.stamp(8)
    for i in range(3): A(f"ds_read_b32 v{vP+i}, v{vT} offset:{L_C+32*i}")
    A("s_waitcnt lgkmcnt(0)")
    for i in range(3): build_A(g, vK+4*i, vP+i)
    for i in range(3): A(f"{MF} {v4(vACC+4)}, {v4(vK+4*i)}, {v4(vV+4*i)}, {'0' if i == 0 else v4(vACC+4)}")
    hd = p.get("hd")
    if hd and hd[0] == "A":
        g.stamp(9)
        A(f"s_cmp_eq_u32 s2, {p.get('hdwg', 43)}"); A("s_cbranch_scc0 L_hd1"); A(f"s_cmp_eq_u32 s{sW}, {hd[1]}"); A("s_cbranch_scc0 L_hd1")
        A("s_waitcnt lgkmcnt(0)"); A(f"s_sub_u32 s{sT0}, s{80+2*hd[3]}, s{80+2*hd[2]}")
        A(f"v_mov_b32 v{vT}, s{sT0}"); A(f"v_mov_b32 v{vT+1}, 0"); A("s_mov_b64 exec, 1")
        A(f"buffer_store_dword v{vT}, v{vT+1}, {srd(SWS)}, 0 offen offset:1024 sc1"); A("s_mov_b64 exec, -1")
        g.lab("L_hd1")
    fpublish(g, vACC+4)
    g.stamp(7)
    A("s_endpgm" if not p["stamps"] else "s_branch L_fin")
    g.L.append(".p2align 12")
    g.lab("L_notattn")
    if not p["helper"]:
        A(f"s_cmp_eq_u32 s{sJ}, 31"); A("s_cbranch_scc1 L_fin")
    g.vm = list(pre)
    if p.get("diag"):
        A(f"s_cmp_eq_u32 s{sJ}, 22"); A("s_cbranch_scc0 L_dg1"); A(f"s_cmp_eq_u32 s{sW}, 0"); A("s_cbranch_scc0 L_dg1")
        A(f"v_mov_b32 v{vT}, s90"); A(f"v_mov_b32 v{vT+1}, 0"); A(f"s_lshl_b32 s{sT0}, s{sXCD}, 7"); A("s_mov_b64 exec, 1")
        A(f"buffer_store_dword v{vT}, v{vT+1}, {srd(SWS)}, s{sT0} offen offset:1024 sc1"); A("s_mov_b64 exec, -1")
        g.lab("L_dg1")
    A(f"v_and_b32 v{vT+1}, 7, v{vL}"); A(f"v_mad_u32_u24 v{vT}, v{vR3}, 64, v{vT+1}"); A(f"v_lshl_add_u32 v{vT}, v{vR3}, 3, v{vT}")
    A(f"v_lshlrev_b32 v{vT}, 1, v{vT}"); A(f"s_lshl_b32 s{sT0}, s{sWE}, 4")
    A(f"s_mov_b64 s[{SGW+2}:{SGW+3}], s[{SX+2}:{SX+3}]"); A(f"s_mov_b64 s[{SOUT+2}:{SOUT+3}], s[{SX+2}:{SX+3}]")
    A(f"buffer_load_ushort v{vXG}, v{vT}, {srd(SX)}, s{sT0} offen"); g.vissue("xg")
    A(f"buffer_load_ushort v{vGW}, v{vT}, {srd(SGW)}, s{sT0} offen"); g.vissue("gw")
    A(f"s_cmp_eq_u32 s{sMODE}, 2"); A(f"s_cselect_b32 s{sT0}, {OOB:#x}, 0")
    A(f"v_or_b32 v{vOU}, s{sT0}, v{vOK}"); A(f"v_or_b32 v{vOD}, s{sT0}, v{vOT}")
    dm = p["dmix"]
    fseq = [("K", t) for t in range(8)] + [("U", t) for t in range(8)]
    if dm:
        o = []; di = 0
        for idx, e in enumerate(fseq):
            o.append(e)
            if idx >= NPRO and (idx % 2 == 1) and di < dm: o.append(("D", di)); di += 1
        fseq = o + [("D", t) for t in range(di, 8)]
    else: fseq += [("D", t) for t in range(8)]
    def greg(kind, t): return {"K": vK+4*t, "U": vK+32+4*t, "D": vV+16+4*t}[kind]
    fpos = [NPRO]
    def fissue():
        kind, t = fseq[fpos[0]]; fpos[0] += 1
        if kind == "D":
            A(f"buffer_load_dwordx4 {v4(greg(kind,t))}, v{vOD}, {srd(S3)}, s{sOO} offen {nt}")
            if t < 7: A(f"s_add_u32 s{sOO}, s{sOO}, 9216")
        else:
            A(f"buffer_load_dwordx4 {v4(greg(kind,t))}, v{vOK if kind == 'K' else vOU}, {srd(S1 if kind == 'K' else S2)}, s{sRUN} offen {nt}")
            if t < 7: A(f"s_add_u32 s{sRUN}, s{sRUN}, s{sSTEP}")
            elif kind == "K": A(f"s_mov_b32 s{sRUN}, s{sKO}")
        g.vissue(f"{kind}{t}")
    A(f"s_mul_i32 s{sT0}, s{sU}, {64*1152}"); A(f"s_add_u32 s{sOO}, s{sOO}, s{sT0}")
    A(f"s_add_u32 s{sPI}, s{sU}, 176")
    fpub_consts(g)
    fl = 0
    while fpos[0] < WF: fissue()
    for idx in range(NPRO):
        g.vwait(f"K{idx}"); fl = idx + 1
        while fpos[0] - fl < WF: fissue()
    g.vwait("gw")
    A(f"v_lshl_or_b32 v{vT+4}, v{vXG}, 16, v{vXG}")
    A(f"v_lshlrev_b32 v{vT+5}, 2, v{vR3}")
    for t in range(8): A(f"ds_bpermute_b32 v{vP+t}, v{vT+5}, v{vT+4} offset:{32*t}")
    A(f"v_lshlrev_b32 v{vXG}, 16, v{vXG}"); A(f"v_lshlrev_b32 v{vGW}, 16, v{vGW}")
    A(f"v_mul_f32 v{vXG}, v{vXG}, v{vGW}")
    bf16r(g, vXG, vXG)
    rowred(g, "v_add_f32", [vXG]); crossrow(g, "v_add_f32", vXG, vT)
    A(f"s_lshl_b32 s{sT0}, s{sW}, 2"); A(f"v_mov_b32 v{vT+3}, s{sT0}")
    A("s_mov_b64 exec, 1")
    A(f"ds_write_b32 v{vT+3}, v{vXG} offset:{L_Z}")
    A("s_mov_b64 exec, -1")
    A("s_waitcnt lgkmcnt(0)")
    dissued = sum(1 for e in fseq[:fpos[0]] if e[0] == "D")
    A(f"s_cmp_eq_u32 s{sMODE}, 1"); A("s_cbranch_scc1 L_m1")
    ng = 0
    for idx, (kind, t) in enumerate(fseq):
        if ng == 16: break
        if ng == 8 and kind == "U" and t == 0:
            A(f"s_cmp_eq_u32 s{sMODE}, 2"); A("s_cbranch_scc1 L_help")
        if kind != "D": build_A(g, vA+4*(ng & 1), vP+t)
        k = 0
        if idx >= fl:
            g.vwait(f"{kind}{t}"); fl = idx + 1; k = 1
            while fpos[0] - fl < WF and fpos[0] < len(fseq): fissue(); k += 1
        if kind != "D":
            if k < 2: A(f"s_nop {1-k}")
            acc = vACC if kind == "K" else vACC+4
            A(f"{MF} {v4(acc)}, {v4(vA+4*(ng&1))}, {v4(greg(kind,t))}, {'0' if t == 0 else v4(acc)}")
            ng += 1
    g.stamp(4)
    assert fpos[0] == len(fseq), "all down tiles must be issued before barrier E"
    A("s_nop 1")
    A(f"s_lshl_b32 s{sT0}, s{sW}, 9"); A(f"v_add_u32 v{vT+2}, s{sT0}, v{vOFP}")
    A(f"v_permlane32_swap_b32 v{vACC}, v{vACC+2}"); A(f"v_permlane32_swap_b32 v{vACC+1}, v{vACC+3}")
    A("s_nop 1")
    A(f"v_add_f32_dpp v{vACC}, v{vACC+2}, v{vACC} row_ror:8 {DPP}"); A(f"v_add_f32_dpp v{vACC+1}, v{vACC+3}, v{vACC+1} row_ror:8 {DPP}")
    A(f"v_permlane32_swap_b32 v{vACC+4}, v{vACC+6}"); A(f"v_permlane32_swap_b32 v{vACC+5}, v{vACC+7}")
    A("s_nop 0")
    A(f"v_add_f32_dpp v{vACC+4}, v{vACC+6}, v{vACC+4} row_ror:8 {DPP}"); A(f"v_add_f32_dpp v{vACC+5}, v{vACC+7}, v{vACC+5} row_ror:8 {DPP}")
    setexec(g, 0x00ff00ff, 0x00ff00ff)
    A(f"ds_write_b64 v{vT+2}, {v2(vACC)} offset:{L_O}")
    A(f"ds_write_b64 v{vT+2}, {v2(vACC+4)} offset:{L_O+256}")
    A("s_mov_b64 exec, -1")
    g.lab("L_barE")
    A(f"v_lshlrev_b32 v{vT}, 3, v{vL}")
    A(f"v_lshrrev_b32 v{vT+1}, 1, v{vR3}"); A(f"v_and_b32 v{vT+2}, 1, v{vR3}"); A(f"v_lshlrev_b32 v{vT+1}, 2, v{vT+1}")
    A(f"v_lshl_add_u32 v{vT+1}, v{vT+2}, 7, v{vT+1}")
    A("s_waitcnt lgkmcnt(0)")
    A("s_barrier")
    for w in range(9): A(f"ds_read_b64 {v2(vK+2*w)}, v{vT} offset:{L_O+512*w}")
    if fpos[0] < len(fseq): fissue()
    A("s_waitcnt lgkmcnt(0)")
    for a, b in ((0,1),(2,3),(4,5),(6,7),(0,2),(4,6),(0,4),(0,8)):
        A(f"v_pk_add_f32 {v2(vK+2*a)}, {v2(vK+2*a)}, {v2(vK+2*b)}")
    A("s_nop 1")
    A(f"v_permlane32_swap_b32 v{vK}, v{vK+1}")
    A("s_nop 0")
    A(f"v_cvt_pk_bf16_f32 v{vK+2}, v{vK}, v{vK+1}")
    A(f"v_lshlrev_b32 v{vK}, 16, v{vK+2}"); A(f"v_and_b32 v{vK+1}, 0xffff0000, v{vK+2}")
    A(f"v_mul_f32 v{vK+2}, {f2u(-1.4426950408889634):#x}, v{vK}")
    A(f"v_exp_f32 v{vK+2}, v{vK+2}"); A("s_nop 0")
    A(f"v_add_f32 v{vK+2}, 1.0, v{vK+2}")
    A(f"v_rcp_f32 v{vK+2}, v{vK+2}"); A("s_nop 0")
    A(f"v_mul_f32 v{vK}, v{vK}, v{vK+2}")
    bf16r(g, vK, vK)
    A(f"v_mul_f32 v{vK}, v{vK}, v{vK+1}")
    A(f"v_cvt_pk_bf16_f32 v{vK}, v{vK}, v{vK}")
    for t in range(8): A(f"ds_bpermute_b32 v{vP+t}, v{vT+1}, v{vK} offset:{16*t}")
    while fpos[0] < len(fseq): fissue()
    A("s_waitcnt lgkmcnt(0)")
    for t in range(8): build_A(g, vK+16+4*t, vP+t)
    g.stamp(5)
    for t in range(8):
        g.vwait(f"D{t}")
        A(f"{MF} {v4(vACC)}, {v4(vK+16+4*t)}, {v4(greg('D',t))}, {'0' if t == 0 else v4(vACC)}")
    g.stamp(6)
    fpublish(g, vACC)
    g.stamp(7)
    A(f"v_and_b32 v{vT}, 31, v{vL}"); A(f"v_lshrrev_b32 v{vT+1}, 5, v{vL}")
    A(f"v_mul_u32_u24 v{vT+2}, {FROW}, v{vT}"); A(f"v_lshl_add_u32 v{vT+2}, v{vT+1}, 4, v{vT+2}")
    A(f"s_mul_i32 s{sT0}, s{sW}, {32*FROW}"); A(f"s_lshl_b32 s{sT1}, s{sU}, 5"); A(f"s_add_u32 s{sT0}, s{sT0}, s{sT1}")
    A(f"s_add_u32 s{sT0}, s{sT0}, {FB}")
    A(f"s_lshl_b32 s{sT2}, s{sW}, 5"); A(f"v_add_u32 v{vT+10}, s{sT2}, v{vT}")
    A(f"s_movk_i32 s{sT3}, 248")
    A(f"v_cmp_gt_u32 s[{sM0}:{sM0+1}], s{sT3}, v{vT+10}")
    A(f"v_lshlrev_b32 v{vT+5}, 1, v{vT+10}"); A(f"v_lshl_add_u32 v{vT+5}, v{vT+1}, 4, v{vT+5}")
    A(f"s_mul_i32 s{sT2}, s{sXCD}, 22"); A(f"s_mul_i32 s{sT3}, s{sXCD}, 9"); A(f"s_add_u32 s{sT3}, s{sT3}, 176")
    A(f"v_subrev_u32 v{vT+11}, s{sT2}, v{vT+10}"); A(f"v_subrev_u32 v{vT+12}, s{sT3}, v{vT+10}")
    A(f"v_cmp_gt_u32 s[{sM0+2}:{sM0+3}], 22, v{vT+11}")
    A(f"v_cmp_gt_u32 vcc, 9, v{vT+12}")
    A(f"v_mov_b32 v{vT+4}, {AOFF}")
    A(f"s_or_b64 vcc, s[{sM0+2}:{sM0+3}], vcc")
    for r in range(4): A(f"v_mov_b32 v{vK+r}, 0")
    A(f"v_cndmask_b32 v{vT+11}, 0, v{vT+4}, vcc")
    A(f"v_add_u32 v{vT+11}, v{vT+11}, v{vT+2}")
    tagsel(g)
    A(f"v_mov_b32 v{vT+6}, 0")
    A(f"ds_read_b128 {v4(vA)}, v{vT+6} offset:{L_Z}"); A(f"ds_read_b128 {v4(vA+4)}, v{vT+6} offset:{L_Z+16}"); A(f"ds_read_b32 v{vT+7}, v{vT+6} offset:{L_Z+32}")
    A("s_waitcnt lgkmcnt(0)")
    A(f"v_pk_add_f32 {v2(vA)}, {v2(vA)}, {v2(vA+2)}"); A(f"v_pk_add_f32 {v2(vA+4)}, {v2(vA+4)}, {v2(vA+6)}")
    A(f"v_pk_add_f32 {v2(vA)}, {v2(vA)}, {v2(vA+4)}")
    A(f"v_add_f32 v{vA}, v{vA}, v{vA+1}"); A(f"v_add_f32 v{vA}, v{vA}, v{vT+7}")
    bf16r(g, vA, vA)
    A(f"v_mul_f32 v{vA}, {f2u(-1.4426950408889634):#x}, v{vA}")
    A(f"v_exp_f32 v{vA}, v{vA}"); A("s_nop 0")
    A(f"v_add_f32 v{vA}, 1.0, v{vA}"); A(f"v_rcp_f32 v{vA}, v{vA}"); A("s_nop 0")
    bf16r(g, vA, vA)
    A(f"v_sub_f32 v{vA+1}, 1.0, v{vA}"); bf16r(g, vA+1, vA+1)
    A(f"v_and_b32 v{vT+9}, 7, v{vL}"); A(f"v_lshlrev_b32 v{vT+8}, 2, v{vT+9}"); A(f"v_lshlrev_b32 v{vT+9}, 1, v{vT+9}")
    A(f"v_add_u32 v{vT+8}, {L_R}, v{vT+8}")
    A(f"s_lshl_b32 s{sKO}, s{sU}, 4")
    A(f"s_mov_b32 s{sSPIN}, {SPIN}")
    A(f"s_mov_b64 exec, s[{sM0}:{sM0+1}]"); A("s_cbranch_execz L_fskip")
    g.lab("L_fpoll")
    if p.get("radapt"):
        A(f"s_cmp_eq_u64 exec, s[{sM0}:{sM0+1}]"); A("s_cbranch_scc0 L_fp0"); A(f"s_sleep {p['radapt']}")
        g.lab("L_fp0")
    elif p["rsleep"]: A(f"s_sleep {p['rsleep']}")
    A(f"buffer_load_dwordx4 {v4(vK)}, v{vT+11}, {srd(SWS)}, s{sT0} offen {p.get('fld','sc1')}")
    A(f"s_sub_u32 s{sSPIN}, s{sSPIN}, 1"); A("s_cbranch_scc1 L_fpoll_end")
    A(f"s_cmp_eq_u32 s{sSPIN}, {SW}"); A("s_cbranch_scc0 L_fp1")
    A(f"v_mov_b32 v{vT+11}, v{vT+2}")
    g.lab("L_fp1")
    A("s_waitcnt vmcnt(0)")
    tagcheck(g, vK, vT+12)
    A(f"v_cmpx_ne_u32 vcc, s{sTAG}, v{vT+12}")
    A("s_cbranch_execnz L_fpoll")
    g.lab("L_fpoll_end")
    A("s_mov_b64 exec, -1")
    g.stamp(8)
    A("s_nop 2")
    rowred(g, "v_add_f32", [vK, vK+1, vK+2, vK+3])
    setexec(g, 0x00010001, 0x00010001)
    A(f"ds_write_b128 v{vT+5}, {v4(vK)} offset:{L_R}")
    g.lab("L_fskip")
    A("s_mov_b64 exec, -1")
    A("s_waitcnt lgkmcnt(0)")
    A("s_barrier")
    A(f"s_cmp_lg_u32 s{sW}, 0"); A("s_cbranch_scc1 L_fin")
    for k in range(8): A(f"ds_read2_b32 {v2(vK+2*k)}, v{vT+8} offset0:{16*k} offset1:{16*k+8}")
    A("s_waitcnt lgkmcnt(0)")
    A(f"v_pk_add_f32 {v2(vK)}, {v2(vK)}, {v2(vK+2)}"); A(f"v_pk_add_f32 {v2(vK+4)}, {v2(vK+4)}, {v2(vK+6)}")
    A(f"v_pk_add_f32 {v2(vK+12)}, {v2(vK+12)}, {v2(vK+14)}")
    A(f"v_pk_add_f32 {v2(vK)}, {v2(vK)}, {v2(vK+8)}")
    A(f"v_add_f32 v{vK+12}, v{vK+12}, v{vK+13}")
    A(f"v_pk_add_f32 {v2(vK)}, {v2(vK)}, {v2(vK+4)}")
    A(f"v_add_f32 v{vK+11}, v{vK+11}, v{vK+12}")
    A(f"v_add_f32 v{vK}, v{vK}, v{vK+1}"); A(f"v_add_f32 v{vK+10}, v{vK}, v{vK+10}")
    A(f"v_cvt_pk_bf16_f32 v{vK}, v{vK+10}, v{vK+11}")
    A(f"v_lshlrev_b32 v{vK+10}, 16, v{vK}"); A(f"v_and_b32 v{vK+11}, 0xffff0000, v{vK}")
    A(f"v_pk_mul_f32 {v2(vK+10)}, {v2(vK+10)}, {v2(vA)}")
    A(f"v_cvt_pk_bf16_f32 v{vK}, v{vK+10}, v{vK+11}")
    A(f"v_lshlrev_b32 v{vK+10}, 16, v{vK}"); A(f"v_and_b32 v{vK+11}, 0xffff0000, v{vK}")
    A(f"v_add_f32 v{vK}, v{vK+10}, v{vK+11}")
    A(f"v_cvt_pk_bf16_f32 v{vK}, v{vK}, v{vK}")
    setexec(g, 0xff, 0)
    A(f"buffer_store_short v{vK}, v{vT+9}, {srd(SOUT)}, s{sKO} offen {p.get('ost','')}")
    A(f"s_cmp_lg_u32 s{sU}, 0"); A("s_cbranch_scc1 L_fin")
    if hd:
        g.stamp(9)
        A("s_waitcnt lgkmcnt(0)")
        if hd[0] == "A":
            A("s_sleep 40")
            A(f"buffer_load_dword v{vT+1}, v{vT+6}, {srd(SWS)}, 0 offen offset:1024 sc1"); A("s_waitcnt vmcnt(0)")
            A(f"v_readfirstlane_b32 s{sT0}, v{vT+1}"); A("s_nop 3")
        else: A(f"s_sub_u32 s{sT0}, s{80+2*hd[3]}, s{80+2*hd[2]}")
        A(f"s_mul_i32 s{sT0}, s{sT0}, {hd[4]}"); A(f"s_add_u32 s{sT0}, s{sT0}, 300"); A(f"s_min_u32 s{sT0}, s{sT0}, 20000")
        g.lab("L_hd2")
        A("s_memrealtime s[80:81]"); A("s_waitcnt lgkmcnt(0)"); A("s_sub_u32 s80, s80, s98"); A(f"s_cmp_lt_u32 s80, s{sT0}"); A("s_cbranch_scc1 L_hd2")
    if p.get("diag"):
        A("s_memrealtime s[92:93]")
        A(f"v_lshlrev_b32 v{vT}, 7, v{vL}")
        A(f"buffer_load_dword v{vT+1}, v{vT}, {srd(SWS)}, 0 offen offset:1024 sc1"); A("s_waitcnt vmcnt(0) lgkmcnt(0)")
        for k in range(8): A(f"v_readlane_b32 s{80+k}, v{vT+1}, {k}")
        A("s_nop 3")
        for k in range(8): A(f"s_sub_u32 s{80+k}, s92, s{80+k}")
        A("s_mov_b32 s88, s80"); A("s_mov_b32 s89, s80")
        for k in range(1, 8): A(f"s_max_u32 s88, s88, s{80+k}"); A(f"s_min_u32 s89, s89, s{80+k}")
        d = p["diag"]
        if d == "skew": A("s_sub_u32 s88, s88, s89"); A("s_mul_i32 s88, s88, 10")
        elif d == "total": A("s_mul_i32 s88, s88, 4")
        elif d == "last": A("s_mul_i32 s88, s89, 4")
        elif d == "zero": A("s_mov_b32 s88, 0")
        elif d == "a0": A("s_sub_u32 s88, s96, s90"); A("s_mul_i32 s88, s88, 20")
        elif d == "touch": A("s_sub_u32 s88, s98, s96"); A("s_mul_i32 s88, s88, 20")
        A("s_min_u32 s88, s88, 20000")
        g.lab("L_dg2")
        A("s_memrealtime s[94:95]"); A("s_waitcnt lgkmcnt(0)"); A("s_sub_u32 s94, s94, s92"); A("s_cmp_lt_u32 s94, s88"); A("s_cbranch_scc1 L_dg2")
    A("s_mov_b64 exec, 1")
    A(f"v_mov_b32 v{vT+7}, s{sTAG}")
    A(f"buffer_store_dword v{vT+7}, v{vT+6}, {srd(SWS)}, 0 offen offset:{EPOCH}")
    g.lab("L_fin")
    if p["stamps"] and not hd:
        A("s_mov_b64 exec, -1")
        A("s_waitcnt vmcnt(0)")
        g.stamp(9)
        A("s_waitcnt lgkmcnt(0)")
        A(f"s_lshl_b32 s{sT0}, s2, 4"); A(f"s_add_u32 s{sT0}, s{sT0}, s{sW}"); A(f"s_lshl_b32 s{sT0}, s{sT0}, 6"); A(f"s_add_u32 s{sT0}, s{sT0}, {STB}")
        for k in range(10): A(f"v_mov_b32 v{vK+k}, s{80+2*k}")
        A(f"v_mov_b32 v{vK+10}, s{sSPIN}"); A(f"v_mov_b32 v{vK+11}, s{sTAG}")
        A(f"v_mov_b32 v{vT}, 0"); A("s_mov_b64 exec, 1")
        for k in range(3): A(f"buffer_store_dwordx4 {v4(vK+4*k)}, v{vT}, {srd(SWS)}, s{sT0} offen offset:{16*k}")
    g.lab("L_end")
    A("s_endpgm")
    if True:
        g.lab("L_m1")
        for t in range(dissued, 8):
            A(f"s_waitcnt vmcnt(1)")
            A(f"buffer_load_dwordx4 {v4(greg('D',t))}, v{vOD}, {srd(S3)}, s{sOO} offen {nt}")
            if t < 7: A(f"s_add_u32 s{sOO}, s{sOO}, 9216")
        A(f"s_lshl_b32 s{sT0}, s{sW}, 9")
        A(f"s_and_b32 s{sT1}, s{sU}, 0x78"); A(f"s_lshl1_add_u32 s{sT1}, s{sW}, s{sT1}"); A(f"s_lshl_b32 s{sT1}, s{sT1}, 8")
        A(f"s_add_u32 s{sT1}, s{sT1}, {HB - 10*256}")
        A(f"v_add_u32 v{vT+3}, s{sT0}, v{vOV}")
        A(f"s_mov_b32 s{sSPIN}, {SPIN}")
        tagsel(g)
        A("s_mov_b32 exec_hi, 0")
        g.lab("L_hpoll")
        A(f"s_sleep {p['hsleep']}")
        A(f"buffer_load_dwordx4 {v4(vA)}, v{vOV}, {srd(SWS)}, s{sT1} offen sc1")
        A(f"s_sub_u32 s{sSPIN}, s{sSPIN}, 1"); A("s_cbranch_scc1 L_hpoll_end")
        A("s_waitcnt vmcnt(0)")
        tagcheck(g, vA, vT+4)
        A(f"v_cmp_ne_u32 vcc, s{sTAG}, v{vT+4}")
        A("s_cbranch_vccnz L_hpoll")
        g.lab("L_hpoll_end")
        A(f"ds_write_b128 v{vT+3}, {v4(vA)} offset:{L_O}")
        A("s_mov_b64 exec, -1")
        A("s_branch L_barE")
        g.lab("L_help")
        A(f"s_lshl_b32 s{sPI}, s{sHK}, 8"); A(f"s_add_u32 s{sPI}, s{sPI}, {HB}")
        fpublish(g, vACC, acopy=False)
        g.stamp(4)
        A("s_branch L_fin")
    out += g.L
    out += ['.section .rodata,"a"', ".p2align 6", f".amdhsa_kernel {NAME}", f"  .amdhsa_next_free_vgpr {NV}",
            f"  .amdhsa_next_free_sgpr {100 if (p['stamps'] or p.get('diag')) else 80}", f"  .amdhsa_accum_offset {NV}", "  .amdhsa_group_segment_fixed_size 0",
            "  .amdhsa_kernarg_size 104", "  .amdhsa_user_sgpr_count 2", "  .amdhsa_user_sgpr_kernarg_segment_ptr 1",
            "  .amdhsa_system_sgpr_workgroup_id_x 1", ".end_amdhsa_kernel"]
    return "\n".join(out) + "\n"

if __name__ == "__main__":
    kw = {}
    for a in sys.argv[2:]:
        k, v = a.split("="); kw[k] = eval(v)
    open(sys.argv[1], "w").write(gen(**kw))
```

```python
import sys, struct
NAME = "gated_mix__sliding_block_cached__swiglu_ffn__decode_kernel"
HDR = open("gated_mix__sliding_block_cached__swiglu_ffn__decode.s.ref").read().split("; Override launch")[0]
def f2u(f): return struct.unpack("<I", struct.pack("<f", f))[0]

EPOCH = 0
HB = 4096
QB = HB + 72*256
OB = QB + 256*256
FB = OB + 256*2048
AOFF = 2 << 20
FROW = 2304
assert FB + 256*FROW <= AOFF
WS_USED = 2*AOFF
STB = 8 << 20
L_QP = 0; L_Q = 4608; L_M = 5120; L_L = 5184; L_Z = 5248; L_C = 5312
L_CNT = 5504; L_O = 5632; L_H = L_O + 9*1024; L_R = L_H + 9*256
LDS_BYTES = L_R + 640
OOB = 0x40000000

class G:
    def __init__(s, **kw):
        s.L = []; s.p = dict(WA=4, WF=3, N0=2, c2=1, b3=1, olate=1, rfirst=1, stamps=False, nt="nt", qsleep=8, spin=200000, apolls=300, bpos=1, rsleep=0, radapt=12, dmix=5,
                             prio=1, align=True, touch=0, pretouch=0, cpf=0, nmid=4, helper=1, hsleep=8)
        s.p.update(kw); s.vm = []
    def A(s, x):
        if s.p.get("pnt") and x.startswith("buffer_load") and x.endswith(" sc1"): x += " nt"
        if s.p.get("xnt") and (x.startswith("buffer_load_dword v") or x.startswith("buffer_load_ushort") or x.startswith("global_load_dword v")) and " nt" not in x: x += " nt"
        s.L.append("    " + x)
    def lab(s, x): s.L.append(x + ":")
    def vissue(s, name): s.vm.append(name)
    def vwait(s, name):
        i = s.vm.index(name); s.A(f"s_waitcnt vmcnt({len(s.vm)-1-i})")
    def stamp(s, k, prog=False):
        if s.p.get("prof") and not prog and 3 <= k <= 8 and k != 5: return
        if prog and s.p.get("prof") != int(prog): return
        if s.p["stamps"]: s.A(f"s_memrealtime s[{80+2*k}:{81+2*k}]")

sW=3
SX=8; SWQ=12; SWS=16; S1=20; S2=24; S3=28; SGW=32; SOUT=36
sE=40; sSTEP=41; sTAG=42
sXCD=44; sJ=45; sHK=46; sSLOT=47; sQI=48; sT0=49; sT1=50; sT2=51; sRUN=52; sBIAS=53; sSPIN=54
sKO=55; sOO=56; sSEL0=57; sSEL1=58; sPI=59; sC=60; sU=61
sM0=62; sEX=70; sAM=72; sWE=74; sT3=75; sT4=76; sMODE=77; sFF=78; sNOS=79; sST2=43
def srd(b): return f"s[{b}:{b+3}]"
vL=1; vM=2; vOT=6; vOK=7; vOV=8; vOWQ=9; vLT=10; vX0=11; vOU=12; vOD=13; vTB=14
vXG=16; vGW=17; vT=18
vA=32; vACC=40; vP=48; vOKL=60; vOVL=61; vR3=62; vOFP=63
vK=64; vV=112; NV=160
def v4(b): return f"v[{b}:{b+3}]"
def v2(b): return f"v[{b}:{b+1}]"
DPP = "row_mask:0xf bank_mask:0xf"
MF = "v_mfma_f32_16x16x32_bf16"

def build_A(g, dst, rep):
    for j in range(4): g.A(f"v_and_b32 v{dst+j}, v{rep}, v{vM+j}")
def rowred(g, op, regs):
    need = max(0, 2 - (len(regs) - 1))
    for r in (8, 4, 2, 1):
        if need: g.A(f"s_nop {need-1}")
        for x in regs: g.A(f"{op}_dpp v{x}, v{x}, v{x} row_ror:{r} {DPP}")
def crossrow(g, op, x, t):
    for sw in ("v_permlane16_swap_b32", "v_permlane32_swap_b32"):
        g.A(f"v_mov_b32 v{t}, v{x}"); g.A("s_nop 1"); g.A(f"{sw} v{x}, v{t}"); g.A("s_nop 1"); g.A(f"{op} v{x}, v{x}, v{t}")
def bf16r(g, d, s_):
    g.A(f"v_cvt_pk_bf16_f32 v{d}, v{s_}, v{s_}"); g.A(f"v_and_b32 v{d}, 0xffff0000, v{d}")
def setexec(g, lo, hi):
    g.A(f"s_mov_b32 exec_lo, {lo:#x}"); g.A(f"s_mov_b32 exec_hi, {hi:#x}")

def fpub_consts(g):
    A = g.A
    A(f"s_mul_i32 s{sPI}, s{sPI}, 9"); A(f"s_add_u32 s{sPI}, s{sPI}, s{sW}"); A(f"s_lshl_b32 s{sPI}, s{sPI}, 8"); A(f"s_add_u32 s{sPI}, s{sPI}, {FB}")
    A(f"s_lshl_b32 s{sT0}, s{sW}, 8"); A(f"s_mul_i32 s{sT1}, s{sXCD}, {72*4}"); A(f"s_sub_u32 s{sT0}, s{sT0}, s{sT1}")
    A(f"v_add_u32 v{vT}, s{sT0}, v{vOFP}")
    A(f"v_cmp_gt_u32 vcc, {72*4}, v{vT}")
    A(f"v_lshrrev_b32 v{vT}, 1, v{vL}"); A(f"v_and_b32 v{vT}, 16, v{vT}")
    A(f"v_lshrrev_b32 v{vTB}, v{vT}, s{sTAG}" if False else f"v_mov_b32 v{vTB}, s{sTAG}")
    A(f"v_lshrrev_b32 v{vTB}, v{vT}, v{vTB}")
    A(f"s_and_b32 s{sAM}, vcc_lo, 0x00ff00ff"); A(f"s_and_b32 s{sAM+1}, vcc_hi, 0x00ff00ff")
    A(f"v_lshrrev_b32 v{vTB+1}, 8, v{vTB}")
    A(f"s_movk_i32 s{sFF}, 0xff")

def tagcheck(g, d, t):
    g.A(f"v_perm_b32 v{t}, v{d+1}, v{d}, s{sSEL0}"); g.A(f"v_perm_b32 v{t+1}, v{d+3}, v{d+2}, s{sSEL1}")
    g.A(f"v_or_b32 v{t}, v{t}, v{t+1}")
def tagsel(g):
    g.A(f"s_mov_b32 s{sSEL0}, 0x0c0c0400"); g.A(f"s_mov_b32 s{sSEL1}, 0x04000c0c")

PROG = {"K3": 3, "K7": 4, "K11": 6, "V3": 7, "V7": 8}
uid = [0]
def fpublish(g, acc, acopy=True):
    g.A(f"s_add_u32 s{sT0}, s{sPI}, {AOFF}")
    g.A("s_nop 6")
    g.A(f"v_permlane32_swap_b32 v{acc}, v{acc+2}")
    g.A(f"v_permlane32_swap_b32 v{acc+1}, v{acc+3}")
    g.A("s_nop 0")
    g.A(f"v_add_f32_dpp v{acc}, v{acc+2}, v{acc} row_ror:8 {DPP}")
    g.A(f"v_add_f32_dpp v{acc+1}, v{acc+3}, v{acc+1} row_ror:8 {DPP}")
    setexec(g, 0x00ff00ff, 0x00ff00ff)
    g.A(f"v_bfi_b32 v{acc}, s{sFF}, v{vTB}, v{acc}"); g.A(f"v_bfi_b32 v{acc+1}, s{sFF}, v{vTB+1}, v{acc+1}")
    g.A(f"buffer_store_dwordx2 {v2(acc)}, v{vOFP}, {srd(SWS)}, s{sPI} offen {g.p.get('fst','sc1')}")
    if acopy:
        uid[0] += 1
        g.A(f"s_mov_b64 exec, s[{sAM}:{sAM+1}]"); g.A(f"s_cbranch_execz L_na{uid[0]}")
        g.A(f"buffer_store_dwordx2 {v2(acc)}, v{vOFP}, {srd(SWS)}, s{sT0} offen")
        g.lab(f"L_na{uid[0]}")
    g.A("s_mov_b64 exec, -1")

def gen(**kw):
    g = G(**kw); A = g.A; p = g.p; nt = p["nt"]; WA = p["WA"]; WF = p["WF"]
    SPIN = p["spin"]; SW = max(SPIN - p["apolls"], 0)
    NPRO = min(WA, WF)
    out = [HDR.rstrip("\n")]
    out.append(f"; @launch grid=(256,1,1) block=({640 if p.get('w9') else 576},1,1) lds={LDS_BYTES}")
    out += ['.amdgcn_target "amdgcn-amd-amdhsa--gfx950"', ".text"]
    if p["align"]: out += [".p2align 12", ".fill 832, 4, 0xbf800000"]
    out += [f".globl {NAME}", ".p2align 8", f".type {NAME},@function", f"{NAME}:"]
    g.stamp(0)
    if p.get("diag"): A("s_memrealtime s[90:91]")
    A("s_cmp_ge_u32 s2, 0x100"); A("s_cbranch_scc1 L_end")
    if p.get("w9"):
        A("v_cmp_gt_u32 vcc, 576, v0"); A("s_cbranch_vccnz L_go")
        A("s_cmp_lt_u32 s2, 176"); A("s_cbranch_scc1 L_warmA"); A("s_branch L_warmF")
        g.lab("L_go")
    A(f"s_load_dwordx2 s[{SWQ}:{SWQ+1}], s[0:1], 24")
    A(f"s_load_dwordx2 s[{SX}:{SX+1}], s[0:1], 0")
    A(f"s_lshr_b32 s{sJ}, s2, 3")
    A(f"s_cmp_lt_u32 s{sJ}, 22")
    A(f"s_cselect_b32 s{sT0}, 8, 48"); A(f"s_cselect_b32 s{sT2}, 32, 64")
    A(f"s_load_dwordx4 s[4:7], s[0:1], s{sT0}")
    A(f"s_load_dwordx2 s[{S3}:{S3+1}], s[0:1], s{sT2}")
    A(f"s_load_dwordx2 s[{SGW}:{SGW+1}], s[0:1], 72")
    A(f"s_load_dwordx2 s[{SOUT}:{SOUT+1}], s[0:1], 80")
    A(f"s_load_dwordx2 s[{SWS}:{SWS+1}], s[0:1], 96")
    A(f"v_lshrrev_b32 v{vT}, 6, v0")
    A(f"v_and_b32 v{vL}, 63, v0")
    A(f"v_readfirstlane_b32 s{sW}, v{vT}")
    A(f"s_and_b32 s{sXCD}, s2, 7")
    A(f"v_lshrrev_b32 v{vR3}, 3, v{vL}")
    A(f"v_and_b32 v{vT+1}, 7, v{vL}")
    A(f"v_lshlrev_b32 v{vT+2}, 4, v{vT+1}")
    A(f"v_lshl_add_u32 v{vOWQ}, v{vR3}, 14, v{vT+2}")
    A(f"v_lshlrev_b32 v{vT+3}, 2, v{vR3}")
    A(f"s_bfe_u32 s{sT0}, s{sJ}, 0x20002"); A(f"s_mul_i32 s{sT0}, s{sT0}, 9"); A(f"s_add_u32 s{sT0}, s{sT0}, s{sW}")
    A(f"s_lshr_b32 s{sT1}, s{sJ}, 4"); A(f"s_lshl1_add_u32 s{sT1}, s{sXCD}, s{sT1}")
    A(f"s_and_b32 s{sT2}, s{sJ}, 3"); A(f"s_lshl2_add_u32 s{sT1}, s{sT1}, s{sT2}"); A(f"s_lshl_b32 s{sT1}, s{sT1}, 7")
    A(f"s_lshl_b32 s{sT2}, s{sT0}, 17"); A(f"s_add_u32 s{sT1}, s{sT1}, s{sT2}")
    A(f"s_add_u32 s{sT2}, s{sT1}, 8192")
    A(f"s_lshl_b32 s{sT0}, s{sT0}, 5")
    A(f"s_mov_b32 s{SWQ+2}, 4718592"); A(f"s_mov_b32 s{SWQ+3}, 0x20000")
    A(f"s_movk_i32 s{SX+2}, 1152"); A(f"s_mov_b32 s{SX+3}, s{SWQ+3}")
    vWQ = vV + 40
    A(f"v_mov_b32 v{vT+4}, 0")
    A(f"ds_write_b32 v{vT+4}, v{vT+4} offset:{L_CNT}")
    A("s_waitcnt lgkmcnt(0)")
    g.stamp(1)
    A(f"buffer_load_dwordx4 {v4(vWQ)}, v{vOWQ}, {srd(SWQ)}, s{sT1} offen {nt}"); g.vissue("wq0")
    A(f"buffer_load_dwordx4 {v4(vWQ+4)}, v{vOWQ}, {srd(SWQ)}, s{sT2} offen {nt}"); g.vissue("wq1")
    A(f"buffer_load_dword v{vX0}, v{vT+3}, {srd(SX)}, s{sT0} offen"); g.vissue("x0")
    A(f"s_load_dword s{sE}, s[{SWS}:{SWS+1}], {EPOCH}")
    g.stamp(3, 2)
    A("s_barrier")
    g.stamp(4, 2)
    if p.get("diag"): A("s_memrealtime s[96:97]")
    A(f"s_mov_b64 s[{S1}:{S1+1}], s[4:5]"); A(f"s_mov_b64 s[{S2}:{S2+1}], s[6:7]")
    A(f"s_mov_b32 s{S1+3}, s{SWQ+3}")
    A(f"v_lshlrev_b32 v{vOV}, 4, v{vL}")
    A(f"s_cmp_ge_u32 s{sJ}, 22"); A("s_cbranch_scc1 L_setF")
    A(f"s_mov_b32 s{S1+2}, 0x10000000"); A(f"s_mov_b32 s{S3+2}, s{SWQ+2}")
    A(f"s_cmp_ge_u32 s{sJ}, 11"); A(f"s_cselect_b32 s{sT0}, 1, 0"); A(f"s_cselect_b32 s{sT1}, 8, 0")
    A(f"s_lshl1_add_u32 s{sHK}, s{sXCD}, s{sT0}")
    A(f"s_cmp_ge_u32 s{sJ}, 19"); A(f"s_cselect_b32 s{sT1}, 19, s{sT1}")
    A(f"s_sub_u32 s{sSLOT}, s{sJ}, s{sT1}")
    A(f"s_min_u32 s{sT0}, s{sSLOT}, 2"); A(f"s_mul_i32 s{sT1}, s{sSLOT}, 94"); A(f"s_add_u32 s{sT0}, s{sT0}, s{sT1}")
    A(f"s_lshr_b32 s{sT1}, s{sSLOT}, 2"); A(f"s_mul_i32 s{sT1}, s{sT1}, 6"); A(f"s_sub_u32 s{sT0}, s{sT0}, s{sT1}")
    if p.get("sweep"):
        A(f"s_mul_i32 s{sT1}, s{sSLOT}, 96"); A(f"s_sub_u32 s{sST2}, s{sT0}, s{sT1}"); A(f"s_add_u32 s{sST2}, s{sST2}, 88"); A(f"s_lshl_b32 s{sST2}, s{sST2}, 10")
        A(f"s_lshl_b32 s{sT0}, s{sSLOT}, 3")
    A(f"s_add_u32 s{sT0}, s{sT0}, s{sW}"); A(f"s_lshl_b32 s{sT0}, s{sT0}, 10")
    A(f"s_lshl_b32 s{sKO}, s{sHK}, 24"); A(f"s_add_u32 s{sKO}, s{sKO}, s{sT0}")
    A(f"s_add_u32 s{sKO}, s{sKO}, {61440*256}")
    A(f"s_mov_b32 s{sSTEP}, {88*1024}" if p.get("sweep") else f"s_movk_i32 s{sSTEP}, 8192")
    A(f"v_bfe_u32 v{vT}, v{vL}, 2, 2"); A(f"v_lshrrev_b32 v{vT+1}, 4, v{vL}"); A(f"v_and_b32 v{vT+3}, 3, v{vL}")
    A(f"v_lshlrev_b32 v{vOK}, 8, v{vT}"); A(f"v_lshl_add_u32 v{vOK}, v{vT+1}, 6, v{vOK}"); A(f"v_lshl_add_u32 v{vOK}, v{vT+3}, 4, v{vOK}")
    A(f"s_cmp_eq_u32 s{sW}, 8"); A(f"s_cselect_b32 s{sNOS}, 1, 0")
    A("s_branch L_set_done")
    g.lab("L_setF")
    A(f"s_mov_b32 s{S1+2}, 5308416"); A(f"s_mov_b32 s{S3+2}, s{S1+2}")
    A(f"s_mul_i32 s{sU}, s{sXCD}, 9"); A(f"s_mov_b32 s{sWE}, s{sW}")
    A(f"s_cmp_eq_u32 s{sJ}, 31"); A("s_cbranch_scc0 L_setF1")
    A(f"s_add_u32 s{sHK}, s{sU}, s{sW}")
    A(f"s_and_b32 s{sU}, s{sHK}, 0x78"); A(f"s_sub_u32 s{sU}, s{sU}, {9-3}")
    A(f"s_bfe_u32 s{sWE}, s{sHK}, 0x20001"); A(f"s_add_u32 s{sWE}, s{sWE}, 5")
    A(f"s_bitcmp1_b32 s{sHK}, 0"); A(f"s_cselect_b64 s[{S1}:{S1+1}], s[6:7], s[4:5]")
    g.lab("L_setF1")
    A(f"s_add_u32 s{sU}, s{sU}, s{sJ}"); A(f"s_sub_u32 s{sU}, s{sU}, 22")
    A(f"s_movk_i32 s{sT0}, 9216"); A(f"v_mad_u32_u24 v{vOK}, v{vR3}, s{sT0}, v{vT+2}")
    A(f"s_mul_i32 s{sKO}, s{sWE}, {8*9216}"); A(f"s_lshl_b32 s{sT0}, s{sU}, 7"); A(f"s_add_u32 s{sKO}, s{sKO}, s{sT0}")
    A(f"s_mov_b32 s{sSTEP}, {72*9216}")
    A(f"s_and_b32 s{sT0}, s{sU}, 7"); A(f"s_cmp_eq_u32 s{sT0}, 3"); A(f"s_cselect_b32 s{sT0}, s{sW}, 0")
    A(f"s_cmp_ge_u32 s{sT0}, {5 if p['helper'] else 99}"); A(f"s_cselect_b32 s{sMODE}, 1, 0")
    A(f"s_cmp_eq_u32 s{sJ}, 31"); A(f"s_cselect_b32 s{sMODE}, 2, s{sMODE}")
    A(f"s_cmp_eq_u32 s{sMODE}, {1 if p['helper'] else 2}")
    A(f"s_cselect_b32 s{sT0}, {OOB:#x}, 0")
    A(f"v_add_u32 v{vOK}, s{sT0}, v{vOK}")
    A(f"s_mov_b32 s{sNOS}, 0")
    g.lab("L_set_done")
    A(f"s_mov_b32 s{sRUN}, s{sKO}")
    def s1_issue(i):
        A(f"buffer_load_dwordx4 {v4(vK+4*i)}, v{vOK}, {srd(S1)}, s{sRUN} offen {nt}"); g.vissue(f"K{i}")
        A(f"s_add_u32 s{sRUN}, s{sRUN}, s{sSTEP}")
    N0 = min(p.get("N0", 2), NPRO)
    A(f"s_cmp_eq_u32 s{sNOS}, 1"); A("s_cbranch_scc1 " + "L_touched")
    for i in range(N0): s1_issue(i)
    g.lab("L_touched")
    g.stamp(6, 2)
    if p.get("diag"): A("s_memrealtime s[98:99]")
    A(f"s_mov_b64 s[{S2+2}:{S2+3}], s[{S1+2}:{S1+3}]"); A(f"s_mov_b32 s{S3+3}, s{SWQ+3}")
    A(f"s_mov_b32 s{SWS+2}, {(16<<20) if p['stamps'] else WS_USED}"); A(f"s_mov_b32 s{SWS+3}, s{SWQ+3}")
    A(f"v_and_b32 v{vT}, 1, v{vL}"); A(f"v_lshlrev_b32 v{vT}, 4, v{vT}")
    A(f"v_mov_b32 v{vT+1}, 0xffff"); A(f"v_lshlrev_b32 v{vT}, v{vT}, v{vT+1}")
    A(f"v_bfe_u32 v{vT+1}, v{vL}, 1, 2")
    for j in range(4): A(f"v_cmp_eq_u32 s[{sM0+2*j}:{sM0+2*j+1}], {j}, v{vT+1}")
    A(f"s_mov_b32 s{sSEL0}, 0x01000100"); A(f"s_mov_b32 s{sSEL1}, 0x03020302")
    for j in range(4): A(f"v_cndmask_b32 v{vM+j}, 0, v{vT}, s[{sM0+2*j}:{sM0+2*j+1}]")
    A(f"v_lshrrev_b32 v{vT}, 5, v{vL}"); A(f"v_and_b32 v{vT+3}, 16, v{vL}")
    A(f"v_lshl_add_u32 v{vLT}, v{vT+2}, 1, v{vT+3}")
    A(f"v_lshl_add_u32 v{vOFP}, v{vT}, 3, v{vLT}")
    A(f"v_lshl_add_u32 v{vLT}, v{vT}, 8, v{vLT}")
    A(f"s_movk_i32 s{sT0}, 1152"); A(f"v_mad_u32_u24 v{vOT}, v{vR3}, s{sT0}, v{vT+2}")
    A(f"s_lshl_b32 s{sT0}, s{sW}, 9"); A(f"v_add_u32 v{vT+2}, s{sT0}, v{vLT}")
    g.stamp(7, 2)
    A(f"s_cmp_eq_u32 s{sNOS}, 1"); A("s_cbranch_scc0 L_w1")
    A("s_waitcnt vmcnt(0)")
    g.lab("L_w1")
    g.vwait("x0")
    g.stamp(2)
    A(f"v_perm_b32 v{vT}, v{vX0}, v{vX0}, s{sSEL0}"); A(f"v_perm_b32 v{vT+1}, v{vX0}, v{vX0}, s{sSEL1}")
    build_A(g, vA, vT); build_A(g, vA+4, vT+1)
    A("s_cbranch_scc1 L_w2")
    for i in range(N0, NPRO): s1_issue(i)
    g.lab("L_w2")
    A(f"v_mov_b32 v{vT+5}, 1")
    A(f"{MF} {v4(vACC)}, {v4(vA)}, {v4(vWQ)}, 0")
    A(f"{MF} {v4(vACC)}, {v4(vA+4)}, {v4(vWQ+4)}, {v4(vACC)}")
    setexec(g, 0x00ff00ff, 0xff00ff00)
    A("s_waitcnt lgkmcnt(0)")
    A(f"s_mul_i32 s{sTAG}, s{sE}, 0x9e3779b1"); A(f"s_add_u32 s{sTAG}, s{sTAG}, 0x7f4a7c15")
    A(f"s_lshl_b32 s{sOO}, s{sW}, 7")
    A("s_nop 1")
    A(f"ds_write_b128 v{vT+2}, {v4(vACC)} offset:{L_QP}")
    A("s_mov_b64 exec, 1")
    A(f"ds_add_u32 v{vT+4}, v{vT+5} offset:{L_CNT}")
    A("s_mov_b64 exec, -1")
    A(f"s_cmp_lg_u32 s{sW}, 8"); A("s_cbranch_scc1 L_nopub")
    base = vV
    A(f"v_lshlrev_b32 v{vT}, 2, v{vL}")
    A(f"s_lshl_b32 s{sT0}, s{sXCD}, 5"); A(f"s_add_u32 s{sT0}, s{sT0}, s{sJ}")
    A(f"s_lshl_b32 s{sT0}, s{sT0}, 8"); A(f"s_add_u32 s{sT0}, s{sT0}, {QB}"); A(f"s_add_u32 s{sT1}, s{sT0}, {AOFF}")
    A(f"v_and_b32 v{vT+1}, 3, v{vL}"); A(f"v_lshlrev_b32 v{vT+1}, 3, v{vT+1}"); A(f"v_mov_b32 v{vT+6}, s{sTAG}")
    A(f"v_lshrrev_b32 v{vT+1}, v{vT+1}, v{vT+6}"); A(f"s_movk_i32 s{sFF}, 0xff")
    g.lab("L_cnt")
    A(f"ds_read_b32 v{vT+6}, v{vT+4} offset:{L_CNT}")
    A("s_waitcnt lgkmcnt(0)")
    A(f"v_cmp_ne_u32 vcc, 9, v{vT+6}")
    A("s_cbranch_vccnz L_cnt")
    for k in range(9): A(f"ds_read2st64_b32 {v2(base+2*k)}, v{vT} offset0:{2*k} offset1:{2*k+1}")
    A("s_waitcnt lgkmcnt(0)")
    for a, b in ((0,1),(2,3),(4,5),(6,7),(0,2),(4,6),(0,4),(0,8)):
        A(f"v_pk_add_f32 {v2(base+2*a)}, {v2(base+2*a)}, {v2(base+2*b)}")
    A(f"v_add_f32 v{vT+8}, v{base}, v{base+1}")
    A(f"v_bfi_b32 v{vT+8}, s{sFF}, v{vT+1}, v{vT+8}")
    A(f"buffer_store_dword v{vT+8}, v{vT}, {srd(SWS)}, s{sT1} offen")
    A(f"buffer_store_dword v{vT+8}, v{vT}, {srd(SWS)}, s{sT0} offen sc1")
    g.stamp(3)
    A(f"s_cmp_lt_u32 s{sJ}, 22"); A("s_cbranch_scc1 L_attn8")
    g.lab("L_nopub")
    A(f"s_cmp_ge_u32 s{sJ}, 22"); A("s_cbranch_scc1 L_notattn")
    pre = list(g.vm)
    def attn_consts():
        A(f"s_lshl_b32 s{sT0}, s{sHK}, 5"); A(f"s_add_u32 s{sT0}, s{sT0}, s{sSLOT}"); A(f"s_mul_i32 s{sT0}, s{sT0}, 9216")
        A(f"s_add_u32 s{sOO}, s{sOO}, s{sT0}")
        A(f"s_mul_i32 s{sPI}, s{sHK}, 11"); A(f"s_add_u32 s{sPI}, s{sPI}, s{sSLOT}")
        fpub_consts(g)
        A(f"s_cmp_lt_u32 s{sSLOT}, 10"); A(f"s_cselect_b32 s{sT0}, 0, {OOB:#x}")
        A(f"v_add_u32 v{vOD}, s{sT0}, v{vOT}")
        A(f"v_and_b32 v{vT}, 15, v{vL}"); A(f"v_lshrrev_b32 v{vT+1}, 4, v{vL}")
        A(f"v_lshlrev_b32 v{vOU}, 11, v{vT}"); A(f"v_lshl_add_u32 v{vOU}, v{vT+1}, 4, v{vOU}")
    for i in range(NPRO, WA): s1_issue(i)
    A(f"s_cmp_lt_u32 s{sSLOT}, 2"); A(f"s_cselect_b32 s{sT0}, 7, 6")
    A(f"s_and_b32 s{sT1}, s{sSLOT}, 3"); A(f"s_cmp_eq_u32 s{sT1}, 3"); A(f"s_cselect_b32 s{sT0}, 0, s{sT0}")
    A(f"s_cmp_lt_u32 s{sW}, s{sT0}"); A(f"s_cselect_b32 s{sT0}, 0, {OOB:#x}"); A(f"s_cselect_b32 s{sBIAS}, 0, {f2u(-1e30):#x}")
    A(f"v_add_u32 v{vOKL}, s{sT0}, v{vOK}"); A(f"v_add_u32 v{vOVL}, s{sT0}, v{vOV}")
    seq = [("K", i) for i in range(12)] + [("V", i) for i in range(12)] + [("O", i) for i in range(3 - p.get("olate", 0))]
    def late_o():
        for i in range(3 - p.get("olate", 0), 3):
            A(f"buffer_load_dwordx4 {v4(vV+4*i)}, v{vOD if i == 2 else vOT}, {srd(S3)}, s{sOO} offen {nt}")
            if i < 2: A(f"s_add_u32 s{sOO}, s{sOO}, {11*9216}")
    pos = [max(NPRO, WA)]; land = [0]; vdone = [-1]
    def can_issue():
        if pos[0] >= len(seq): return False
        kind, i = seq[pos[0]]
        return kind != "O" or i <= vdone[0]
    def issue():
        kind, i = seq[pos[0]]; pos[0] += 1
        if kind == "O":
            A(f"buffer_load_dwordx4 {v4(vV+4*i)}, v{vOD if i == 2 else vOT}, {srd(S3)}, s{sOO} offen {nt}")
            if i < 2: A(f"s_add_u32 s{sOO}, s{sOO}, {11*9216}")
        else:
            off = {("K", True): vOKL, ("K", False): vOK, ("V", True): vOVL, ("V", False): vOV}[(kind, i == 11)]
            A(f"buffer_load_dwordx4 {v4((vK if kind == 'K' else vV)+4*i)}, v{off}, {srd(S1 if kind == 'K' else S2)}, s{sRUN} offen {nt}")
            if i < 11: A(f"s_add_u32 s{sRUN}, s{sRUN}, s{sST2 if (i == 10 and p.get('sweep')) else sSTEP}")
            elif kind == "K": A(f"s_mov_b32 s{sRUN}, s{sKO}")
        g.vissue(f"{kind}{i}")
    def refill():
        while pos[0] - land[0] < WA and can_issue(): issue()
    def step():
        kind, i = seq[land[0]]; land[0] += 1
        g.vwait(f"{kind}{i}")
        if f"{kind}{i}" in PROG: g.stamp(PROG[f"{kind}{i}"], True)
        refill()
        if p.get("gate") == f"{kind}{i}":
            A(f"s_lshl4_add_u32 s{sT0}, s{sJ}, s{sW}"); A(f"s_cmp_lg_u32 s{sT0}, {p.get('gsrc', 5)*16+7}"); A("s_cbranch_scc1 L_nogate")
            A(f"s_lshl_b32 s{sT0}, s{sXCD}, 7"); A(f"v_mov_b32 v{vT+8}, s{sTAG}"); A(f"v_mov_b32 v{vT+9}, 0"); A("s_mov_b64 exec, 1")
            A(f"buffer_store_dword v{vT+8}, v{vT+9}, {srd(SWS)}, s{sT0} offen offset:2048 sc1"); A("s_mov_b64 exec, -1")
            g.lab("L_nogate")
    nmid = [p["nmid"]]
    def mid():
        if nmid[0] > 0 and can_issue(): issue(); nmid[0] -= 1; return True
        return False
    refill()
    g.stamp(8, 2)
    step(); attn_consts()
    while land[0] < 12 + p["bpos"] + 1: step()
    g.stamp(3)
    A(f"v_and_b32 v{vT}, 0xf0, v{vOK}"); A(f"v_and_b32 v{vT+1}, 1, v{vR3}")
    A(f"v_lshl_add_u32 v{vT}, v{vT+1}, 8, v{vT}")
    A("s_barrier")
    A(f"ds_read_b128 {v4(vA)}, v{vT} offset:{L_Q}")
    A(f"s_mov_b32 s{sC}, {f2u(128**-0.5 * 1.4426950408889634):#x}")
    A(f"v_lshlrev_b32 v{vT+1}, 5, v{vT+1}"); A(f"s_lshl_b32 s{sT0}, s{sW}, 2"); A(f"v_add_u32 v{vT+3}, s{sT0}, v{vT+1}")
    A("s_waitcnt lgkmcnt(0)")
    for i in range(12): A(f"{MF} {v4(vK+4*i)}, {v4(vK+4*i)}, {v4(vA)}, 0")
    for i in range(12): A(f"v_mov_b32_dpp v{vP+i}, v{vK+4*i} quad_perm:[0,0,0,0] {DPP}")
    for r in (1, 2, 3):
        if r == 2: mid()
        for i in range(12): A(f"v_add_f32_dpp v{vP+i}, v{vK+4*i+r}, v{vP+i} quad_perm:[{r},{r},{r},{r}] {DPP}")
    A(f"v_add_f32 v{vP+11}, s{sBIAS}, v{vP+11}")
    A(f"v_max3_f32 v{vT}, v{vP}, v{vP+1}, v{vP+2}")
    for i in range(3, 11, 2): A(f"v_max3_f32 v{vT}, v{vT}, v{vP+i}, v{vP+i+1}")
    A(f"v_max_f32 v{vT}, v{vT}, v{vP+11}")
    crossrow(g, "v_max_f32", vT, vT+2)
    setexec(g, 0x101, 0)
    A(f"ds_write_b32 v{vT+3}, v{vT} offset:{L_M}")
    A("s_mov_b64 exec, -1")
    mid()
    A("s_waitcnt lgkmcnt(0)")
    A("s_barrier")
    A(f"ds_read_b128 {v4(vA)}, v{vT+1} offset:{L_M}"); A(f"ds_read_b128 {v4(vA+4)}, v{vT+1} offset:{L_M+16}")
    A(f"v_and_b32 v{vT+5}, 15, v{vL}"); A(f"v_lshlrev_b32 v{vT+5}, 5, v{vT+5}")
    A(f"v_and_b32 v{vT+6}, 16, v{vL}"); A(f"v_add_u32 v{vT+5}, v{vT+5}, v{vT+6}")
    A(f"v_lshrrev_b32 v{vT+6}, 5, v{vL}"); A(f"v_lshl_add_u32 v{vT+5}, v{vT+6}, 9, v{vT+5}")
    A(f"s_lshl_b32 s{sT0}, s{sW}, 10"); A(f"v_add_u32 v{vT+5}, s{sT0}, v{vT+5}")
    A("s_waitcnt lgkmcnt(0)")
    A(f"v_max3_f32 v{vT}, v{vA}, v{vA+1}, v{vA+2}"); A(f"v_max3_f32 v{vT}, v{vT}, v{vA+3}, v{vA+4}")
    A(f"v_max3_f32 v{vT}, v{vT}, v{vA+5}, v{vA+6}"); A(f"v_max_f32 v{vT}, v{vT}, v{vA+7}")
    A(f"v_mul_f32 v{vT}, s{sC}, v{vT}")
    for i in range(12): A(f"v_fma_f32 v{vP+i}, v{vP+i}, s{sC}, -v{vT}")
    for i in range(12): A(f"v_exp_f32 v{vP+i}, v{vP+i}")
    if not mid(): A("s_nop 0")
    A(f"v_add_f32 v{vT+4}, v{vP}, v{vP+1}")
    for i in range(2, 12): A(f"v_add_f32 v{vT+4}, v{vT+4}, v{vP+i}")
    for i in range(12): A(f"v_cvt_pk_bf16_f32 v{vP+i}, v{vP+i}, v{vP+i}")
    crossrow(g, "v_add_f32", vT+4, vT+2)
    setexec(g, 0x101, 0)
    A(f"ds_write_b32 v{vT+3}, v{vT+4} offset:{L_L}")
    A("s_mov_b64 exec, -1")
    mid()
    for i in range(12): build_A(g, vK+4*i, vP+i)
    A("s_waitcnt lgkmcnt(0)")
    A("s_barrier")
    A(f"s_cmp_lt_u32 s{sW}, 6"); A("s_cbranch_scc1 L_nolse")
    A(f"s_sub_u32 s{sT0}, s{sW}, 6")
    A(f"s_lshl_b32 s{sT1}, s{sT0}, 5"); A(f"v_mov_b32 v{vT+1}, s{sT1}")
    A(f"ds_read_b128 {v4(vA)}, v{vT+1} offset:{L_L}"); A(f"ds_read_b128 {v4(vA+4)}, v{vT+1} offset:{L_L+16}")
    A(f"ds_read_b128 {v4(vP)}, v{vT+1} offset:{L_M}"); A(f"ds_read_b128 {v4(vP+4)}, v{vT+1} offset:{L_M+16}")
    A(f"s_lshl_b32 s{sT1}, s{sT0}, 9"); A(f"v_lshl_add_u32 v{vT+2}, v{vL}, 3, s{sT1}")
    A(f"s_lshl4_add_u32 s{sT3}, s{sHK}, s{sSLOT}"); A(f"s_lshl1_add_u32 s{sT3}, s{sT3}, s{sT0}"); A(f"s_lshl_b32 s{sT3}, s{sT3}, 10")
    A(f"s_add_u32 s{sT3}, s{sT3}, {OB}"); A(f"s_add_u32 s{sT4}, s{sT3}, {AOFF}")
    A("s_waitcnt lgkmcnt(0)")
    A(f"v_pk_add_f32 {v2(vA)}, {v2(vA)}, {v2(vA+2)}"); A(f"v_pk_add_f32 {v2(vA+4)}, {v2(vA+4)}, {v2(vA+6)}")
    A(f"v_max3_f32 v{vT}, v{vP}, v{vP+1}, v{vP+2}")
    A(f"v_pk_add_f32 {v2(vA)}, {v2(vA)}, {v2(vA+4)}")
    A(f"v_max3_f32 v{vT}, v{vT}, v{vP+3}, v{vP+4}")
    A(f"v_add_f32 v{vA}, v{vA}, v{vA+1}")
    A(f"v_max3_f32 v{vT}, v{vT}, v{vP+5}, v{vP+6}")
    A(f"v_rcp_f32 v{vA+2}, v{vA}"); A(f"v_log_f32 v{vA+4}, v{vA}")
    A(f"v_max_f32 v{vT}, v{vT}, v{vP+7}")
    A(f"v_mov_b32 v{vP+11}, s{sTAG}")
    A(f"v_fma_f32 v{vP+10}, v{vT}, s{sC}, v{vA+4}")
    g.lab("L_nolse")
    g.stamp(4)
    for i in range(12):
        if land[0] <= 12 + i:
            land[0] += 1; g.vwait(f"V{i}")
            if f"V{i}" in PROG: g.stamp(PROG[f"V{i}"], True)
        A(f"{MF} {v4(vACC)}, {v4(vK+4*i)}, {v4(vV+4*i)}, {'0' if i == 0 else v4(vACC)}")
        vdone[0] = i
        refill()
    assert pos[0] == len(seq)
    g.stamp(5)
    A("s_nop 7")
    A(f"ds_write_b128 v{vT+5}, {v4(vACC)} offset:{L_O}")
    A("s_waitcnt lgkmcnt(0)")
    A("s_branch L_barC")
    g.L.append(".p2align 12")
    if p.get("w9"):
        g.lab("L_warmA"); A("s_endpgm")
    g.lab("L_attn8")
    if p["prio"]: A("s_setprio 3")
    A(f"s_mov_b32 s{sNOS}, 0")
    attn_consts()
    A(f"s_lshl_b32 s{sT2}, s{sHK}, 12"); A(f"s_add_u32 s{sT2}, s{sT2}, {QB}"); A(f"s_add_u32 s{sT0}, s{sT2}, {AOFF}")
    A(f"s_mov_b32 s{sSPIN}, {SPIN}")
    tagsel(g)
    g.lab("L_qpoll")
    A(f"s_sleep {p['qsleep']}")
    for rg in range(4):
        A(f"buffer_load_dwordx4 {v4(vK+4*rg)}, v{vOV}, {srd(SWS)}, s{sT0} offen offset:{rg*1024} sc1")
    A(f"s_sub_u32 s{sSPIN}, s{sSPIN}, 1"); A("s_cbranch_scc1 L_qpoll_end")
    A(f"s_cmp_eq_u32 s{sSPIN}, {max(SPIN-p['apolls']//4,0)}"); A(f"s_cselect_b32 s{sT0}, s{sT2}, s{sT0}")
    A("s_waitcnt vmcnt(0)")
    for rg in range(4): tagcheck(g, vK+4*rg, vT+2*rg)
    for rg in range(4): A(f"v_xor_b32 v{vT+2*rg}, s{sTAG}, v{vT+2*rg}")
    A(f"v_or3_b32 v{vT}, v{vT}, v{vT+2}, v{vT+4}"); A(f"v_or_b32 v{vT}, v{vT}, v{vT+6}")
    A(f"v_cmp_ne_u32 vcc, 0, v{vT}")
    A("s_cbranch_vccnz L_qpoll")
    g.lab("L_qpoll_end")
    for k in (0, 2):
        A(f"v_pk_add_f32 {v2(vK+k)}, {v2(vK+k)}, {v2(vK+4+k)}"); A(f"v_pk_add_f32 {v2(vK+8+k)}, {v2(vK+8+k)}, {v2(vK+12+k)}")
    for k in (0, 2): A(f"v_pk_add_f32 {v2(vK+k)}, {v2(vK+k)}, {v2(vK+8+k)}")
    A(f"v_cvt_pk_bf16_f32 v{vK}, v{vK}, v{vK+1}"); A(f"v_cvt_pk_bf16_f32 v{vK+1}, v{vK+2}, v{vK+3}")
    A(f"v_lshlrev_b32 v{vT}, 3, v{vL}")
    A(f"ds_write_b64 v{vT}, {v2(vK)} offset:{L_Q}")
    A("s_waitcnt lgkmcnt(0)")
    if p.get("gate"):
        A(f"v_lshlrev_b32 v{vT}, 7, v{vL}")
        A(f"s_lshl_b32 s{sT0}, 1, s{sXCD}"); A(f"s_xor_b32 exec_lo, s{sT0}, 0xff"); A("s_mov_b32 exec_hi, 0")
        g.lab("L_gpoll")
        A(f"s_sleep {p.get('gsleep', 2)}")
        A(f"buffer_load_dword v{vT+1}, v{vT}, {srd(SWS)}, 0 offen offset:2048 sc1")
        A(f"s_sub_u32 s{sSPIN}, s{sSPIN}, 1"); A("s_cbranch_scc1 L_gpoll_end")
        A("s_waitcnt vmcnt(0)")
        A(f"v_cmpx_ne_u32 vcc, s{sTAG}, v{vT+1}")
        A("s_cbranch_execnz L_gpoll")
        g.lab("L_gpoll_end")
        A("s_mov_b64 exec, -1")
    g.stamp(4)
    A("s_barrier")
    if p["pretouch"]:
        A(f"s_lshl4_add_u32 s{sT1}, s{sHK}, s{sSLOT}"); A(f"s_lshl_b32 s{sT1}, s{sT1}, 11"); A(f"s_add_u32 s{sT1}, s{sT1}, {OB+AOFF}")
        A(f"v_lshlrev_b32 v{vT}, 7, v{vL}")
        setexec(g, 0xffff, 0)
        A(f"buffer_load_dword v{vT+1}, v{vT}, {srd(SWS)}, s{sT1} offen sc1")
        A("s_mov_b64 exec, -1")
    A("s_barrier")
    for i in range(3 - p.get("olate", 0)):
        A(f"buffer_load_dwordx4 {v4(vV+4*i)}, v{vOD if i == 2 else vOT}, {srd(S3)}, s{sOO} offen {nt}")
        if i < 2: A(f"s_add_u32 s{sOO}, s{sOO}, {11*9216}")
    A("s_barrier")
    g.lab("L_barC")
    A("s_barrier")
    A(f"s_cmp_lt_u32 s{sW}, 3"); A("s_cbranch_scc1 L_ogather")
    A(f"s_sub_u32 s{sT0}, s{sW}, 6"); A(f"s_cmp_lt_u32 s{sT0}, 2"); A("s_cbranch_scc0 " + ("L_barC2" if p.get("c2") else "L_barD"))
    for w in range(8): A(f"ds_read_b64 {v2(vK+2*w)}, v{vT+2} offset:{L_O+1024*w}")
    A("s_waitcnt lgkmcnt(4)")
    for a, b in ((0,1),(2,3),(0,2)): A(f"v_pk_add_f32 {v2(vK+2*a)}, {v2(vK+2*a)}, {v2(vK+2*b)}")
    A("s_waitcnt lgkmcnt(0)")
    for a, b in ((4,5),(6,7),(0,4),(0,6)): A(f"v_pk_add_f32 {v2(vK+2*a)}, {v2(vK+2*a)}, {v2(vK+2*b)}")
    A(f"v_mul_f32 v{vP+8}, v{vK}, v{vA+2}"); A(f"v_mul_f32 v{vP+9}, v{vK+1}, v{vA+2}")
    A(f"buffer_store_dwordx4 {v4(vP+8)}, v{vOV}, {srd(SWS)}, s{sT4} offen")
    g.stamp(6)
    A("s_barrier")
    late_o()
    A(f"buffer_store_dwordx4 {v4(vP+8)}, v{vOV}, {srd(SWS)}, s{sT3} offen sc1")
    A(f"s_mov_b32 s{sNOS}, 1")
    A("s_branch L_barD")
    if p.get("c2"):
        g.lab("L_barC2"); A("s_barrier"); late_o(); A("s_branch L_barD")
    g.lab("L_ogather")
    A(f"s_mul_i32 s{sT0}, s{sW}, 11"); A(f"s_add_u32 s{sT0}, s{sT0}, s{sSLOT}")
    A(f"s_lshl_b32 s{sT1}, s{sHK}, 15"); A(f"s_lshl_b32 s{sT2}, s{sT0}, 6"); A(f"s_add_u32 s{sT1}, s{sT1}, s{sT2}"); A(f"s_add_u32 s{sT2}, s{sT1}, {OB}")
    A(f"s_add_u32 s{sT1}, s{sT2}, {AOFF}")
    A(f"v_mov_b32 v{vA}, 0"); A(f"v_mov_b32 v{vA+1}, 0"); A(f"v_mov_b32 v{vA+2}, {f2u(-1e30):#x}")
    A(f"v_lshrrev_b32 v{vT+1}, 4, v{vL}")
    A(f"s_lshl_b32 s{sT3}, s{sW}, 5"); A(f"v_lshl_add_u32 v{vT+3}, v{vT+1}, 3, s{sT3}")
    A(f"s_mov_b32 s{sSPIN}, {SPIN}")
    if p.get("olate"):
        A(f"s_cmp_ge_u32 s{sT0}, 32"); A("s_cbranch_scc0 L_op0")
        A("s_barrier"); late_o(); A("s_branch L_owrite")
        g.lab("L_op0")
        setexec(g, 0x07ff07ff, 0x07ff07ff)
        A("s_setprio 3")
        A("s_barrier")
        A(f"buffer_load_dwordx4 {v4(vA)}, v{vOU}, {srd(SWS)}, s{sT1} offen sc1")
        A("s_mov_b64 exec, -1")
        late_o()
        setexec(g, 0x07ff07ff, 0x07ff07ff)
        A(f"s_waitcnt vmcnt({p['olate']})")
        A(f"v_cmpx_ne_u32 vcc, s{sTAG}, v{vA+3}")
        A("s_cbranch_execz L_opoll_end")
    else:
        A("s_barrier")
        A(f"s_cmp_ge_u32 s{sT0}, 32"); A("s_cbranch_scc1 L_owrite")
        setexec(g, 0x07ff07ff, 0x07ff07ff)
    g.lab("L_opoll")
    A(f"buffer_load_dwordx4 {v4(vA)}, v{vOU}, {srd(SWS)}, s{sT1} offen sc1")
    A(f"s_sub_u32 s{sSPIN}, s{sSPIN}, 1"); A("s_cbranch_scc1 L_opoll_end")
    A(f"s_cmp_eq_u32 s{sSPIN}, {SW}"); A(f"s_cselect_b32 s{sT1}, s{sT2}, s{sT1}")
    A("s_waitcnt vmcnt(0)")
    A(f"v_cmpx_ne_u32 vcc, s{sTAG}, v{vA+3}")
    A("s_cbranch_execnz L_opoll")
    g.lab("L_opoll_end")
    A("s_mov_b64 exec, -1")
    g.stamp(6)
    A(f"v_mov_b32 v{vT+4}, v{vA+2}")
    A("s_nop 1")
    rowred(g, "v_max_f32", [vT+4])
    A(f"v_sub_f32 v{vA+2}, v{vA+2}, v{vT+4}")
    A(f"v_exp_f32 v{vA+2}, v{vA+2}")
    A("s_nop 0")
    A(f"v_mul_f32 v{vA}, v{vA}, v{vA+2}"); A(f"v_mul_f32 v{vA+1}, v{vA+1}, v{vA+2}")
    A("s_nop 0")
    rowred(g, "v_add_f32", [vA+2, vA, vA+1])
    A(f"v_rcp_f32 v{vA+2}, v{vA+2}")
    A("s_nop 0")
    A(f"v_mul_f32 v{vA}, v{vA}, v{vA+2}"); A(f"v_mul_f32 v{vA+1}, v{vA+1}, v{vA+2}")
    A(f"v_cvt_pk_bf16_f32 v{vA}, v{vA}, v{vA}"); A(f"v_cvt_pk_bf16_f32 v{vA+1}, v{vA+1}, v{vA+1}")
    g.lab("L_owrite")
    setexec(g, 0x00010001, 0x00010001)
    A(f"ds_write_b64 v{vT+3}, {v2(vA)} offset:{L_C}")
    A("s_mov_b64 exec, -1")
    g.lab("L_barD")
    A(f"v_lshlrev_b32 v{vT}, 2, v{vR3}")
    A("s_waitcnt lgkmcnt(0)")
    A("s_barrier")
    g.stamp(8)
    for i in range(3): A(f"ds_read_b32 v{vP+i}, v{vT} offset:{L_C+32*i}")
    A(f"s_cmp_eq_u32 s{sNOS}, 1")
    A("s_waitcnt lgkmcnt(0)")
    for i in range(3): build_A(g, vK+4*i, vP+i)
    A("s_waitcnt vmcnt(1)")
    A("s_cbranch_scc1 L_wo")
    A("s_waitcnt vmcnt(0)")
    g.lab("L_wo")
    for i in range(3): A(f"{MF} {v4(vACC+4)}, {v4(vK+4*i)}, {v4(vV+4*i)}, {'0' if i == 0 else v4(vACC+4)}")
    hd = p.get("hd")
    if hd and hd[0] == "A":
        g.stamp(9)
        A(f"s_cmp_eq_u32 s2, {p.get('hdwg', 43)}"); A("s_cbranch_scc0 L_hd1"); A(f"s_cmp_eq_u32 s{sW}, {hd[1]}"); A("s_cbranch_scc0 L_hd1")
        A("s_waitcnt lgkmcnt(0)"); A(f"s_sub_u32 s{sT0}, s{80+2*hd[3]}, s{80+2*hd[2]}")
        A(f"v_mov_b32 v{vT}, s{sT0}"); A(f"v_mov_b32 v{vT+1}, 0"); A("s_mov_b64 exec, 1")
        A(f"buffer_store_dword v{vT}, v{vT+1}, {srd(SWS)}, 0 offen offset:1024 sc1"); A("s_mov_b64 exec, -1")
        g.lab("L_hd1")
    fpublish(g, vACC+4)
    g.stamp(7)
    A("s_endpgm" if not p["stamps"] else "s_branch L_fin")
    g.L.append(".p2align 12")
    if p.get("w9"):
        g.lab("L_warmF"); A("s_endpgm")
    g.lab("L_notattn")
    if not p["helper"]:
        A(f"s_cmp_eq_u32 s{sJ}, 31"); A("s_cbranch_scc1 L_fin")
    g.vm = list(pre)
    if p.get("diag"):
        A(f"s_cmp_eq_u32 s{sJ}, 22"); A("s_cbranch_scc0 L_dg1"); A(f"s_cmp_eq_u32 s{sW}, 0"); A("s_cbranch_scc0 L_dg1")
        A(f"v_mov_b32 v{vT}, s90"); A(f"v_mov_b32 v{vT+1}, 0"); A(f"s_lshl_b32 s{sT0}, s{sXCD}, 7"); A("s_mov_b64 exec, 1")
        A(f"buffer_store_dword v{vT}, v{vT+1}, {srd(SWS)}, s{sT0} offen offset:1024 sc1"); A("s_mov_b64 exec, -1")
        g.lab("L_dg1")
    A(f"v_and_b32 v{vT+1}, 7, v{vL}"); A(f"v_mad_u32_u24 v{vT}, v{vR3}, 64, v{vT+1}"); A(f"v_lshl_add_u32 v{vT}, v{vR3}, 3, v{vT}")
    A(f"v_lshlrev_b32 v{vT}, 1, v{vT}"); A(f"s_lshl_b32 s{sT0}, s{sWE}, 4")
    A(f"s_mov_b64 s[{SGW+2}:{SGW+3}], s[{SX+2}:{SX+3}]"); A(f"s_mov_b64 s[{SOUT+2}:{SOUT+3}], s[{SX+2}:{SX+3}]")
    A(f"buffer_load_ushort v{vXG}, v{vT}, {srd(SX)}, s{sT0} offen"); g.vissue("xg")
    A(f"buffer_load_ushort v{vGW}, v{vT}, {srd(SGW)}, s{sT0} offen"); g.vissue("gw")
    A(f"s_cmp_eq_u32 s{sMODE}, 2"); A(f"s_cselect_b32 s{sT0}, {OOB:#x}, 0")
    A(f"v_or_b32 v{vOU}, s{sT0}, v{vOK}"); A(f"v_or_b32 v{vOD}, s{sT0}, v{vOT}")
    dm = p["dmix"]
    fseq = [("K", t) for t in range(8)] + [("U", t) for t in range(8)]
    if dm:
        o = []; di = 0
        for idx, e in enumerate(fseq):
            o.append(e)
            if idx >= NPRO and (idx % 2 == 1) and di < dm: o.append(("D", di)); di += 1
        fseq = o + [("D", t) for t in range(di, 8)]
    else: fseq += [("D", t) for t in range(8)]
    def greg(kind, t): return {"K": vK+4*t, "U": vK+32+4*t, "D": vV+16+4*t}[kind]
    fpos = [NPRO]
    def fissue():
        kind, t = fseq[fpos[0]]; fpos[0] += 1
        if kind == "D":
            A(f"buffer_load_dwordx4 {v4(greg(kind,t))}, v{vOD}, {srd(S3)}, s{sOO} offen {nt}")
            if t < 7: A(f"s_add_u32 s{sOO}, s{sOO}, 9216")
        else:
            A(f"buffer_load_dwordx4 {v4(greg(kind,t))}, v{vOK if kind == 'K' else vOU}, {srd(S1 if kind == 'K' else S2)}, s{sRUN} offen {nt}")
            if t < 7: A(f"s_add_u32 s{sRUN}, s{sRUN}, s{sSTEP}")
            elif kind == "K": A(f"s_mov_b32 s{sRUN}, s{sKO}")
        g.vissue(f"{kind}{t}")
    A(f"s_mul_i32 s{sT0}, s{sU}, {64*1152}"); A(f"s_add_u32 s{sOO}, s{sOO}, s{sT0}")
    A(f"s_add_u32 s{sPI}, s{sU}, 176")
    fpub_consts(g)
    fl = 0
    while fpos[0] < WF: fissue()
    for idx in range(NPRO):
        g.vwait(f"K{idx}"); fl = idx + 1
        while fpos[0] - fl < WF: fissue()
    g.vwait("gw")
    A(f"v_lshl_or_b32 v{vT+4}, v{vXG}, 16, v{vXG}")
    A(f"v_lshlrev_b32 v{vT+5}, 2, v{vR3}")
    for t in range(8): A(f"ds_bpermute_b32 v{vP+t}, v{vT+5}, v{vT+4} offset:{32*t}")
    A(f"v_lshlrev_b32 v{vXG}, 16, v{vXG}"); A(f"v_lshlrev_b32 v{vGW}, 16, v{vGW}")
    A(f"v_mul_f32 v{vXG}, v{vXG}, v{vGW}")
    bf16r(g, vXG, vXG)
    rowred(g, "v_add_f32", [vXG]); crossrow(g, "v_add_f32", vXG, vT)
    A(f"s_lshl_b32 s{sT0}, s{sW}, 2"); A(f"v_mov_b32 v{vT+3}, s{sT0}")
    A("s_mov_b64 exec, 1")
    A(f"ds_write_b32 v{vT+3}, v{vXG} offset:{L_Z}")
    A("s_mov_b64 exec, -1")
    A("s_waitcnt lgkmcnt(0)")
    vRO, vRB, vRL = vOKL, vOVL, vOWQ
    A(f"v_and_b32 v{vT}, 31, v{vL}"); A(f"v_lshrrev_b32 v{vT+1}, 5, v{vL}")
    A(f"v_mul_u32_u24 v{vRB}, {FROW}, v{vT}"); A(f"v_lshl_add_u32 v{vRB}, v{vT+1}, 4, v{vRB}")
    A(f"s_mul_i32 s{sBIAS}, s{sW}, {32*FROW}"); A(f"s_lshl_b32 s{sT1}, s{sU}, 5"); A(f"s_add_u32 s{sBIAS}, s{sBIAS}, s{sT1}")
    A(f"s_add_u32 s{sBIAS}, s{sBIAS}, {FB}")
    A(f"s_lshl_b32 s{sT2}, s{sW}, 5"); A(f"v_add_u32 v{vT+10}, s{sT2}, v{vT}")
    A(f"s_movk_i32 s{sT3}, 248")
    A(f"v_cmp_gt_u32 s[{sM0}:{sM0+1}], s{sT3}, v{vT+10}")
    A(f"v_lshlrev_b32 v{vRL}, 1, v{vT+10}"); A(f"v_lshl_add_u32 v{vRL}, v{vT+1}, 4, v{vRL}")
    A(f"s_mul_i32 s{sT2}, s{sXCD}, 22"); A(f"s_mul_i32 s{sT3}, s{sXCD}, 9"); A(f"s_add_u32 s{sT3}, s{sT3}, 176")
    A(f"v_subrev_u32 v{vT+11}, s{sT2}, v{vT+10}"); A(f"v_subrev_u32 v{vT+12}, s{sT3}, v{vT+10}")
    A(f"v_cmp_gt_u32 s[{sM0+2}:{sM0+3}], 22, v{vT+11}")
    A(f"v_cmp_gt_u32 vcc, 9, v{vT+12}")
    A(f"v_mov_b32 v{vT+4}, {AOFF}")
    A(f"s_or_b64 vcc, s[{sM0+2}:{sM0+3}], vcc")
    tagsel(g)
    A(f"v_cndmask_b32 v{vRO}, 0, v{vT+4}, vcc")
    A(f"v_add_u32 v{vRO}, v{vRO}, v{vRB}")
    dissued = sum(1 for e in fseq[:fpos[0]] if e[0] == "D")
    A(f"s_cmp_eq_u32 s{sMODE}, 1"); A("s_cbranch_scc1 L_m1")
    ng = 0
    for idx, (kind, t) in enumerate(fseq):
        if ng == 16: break
        if ng == 8 and kind == "U" and t == 0:
            A(f"s_cmp_eq_u32 s{sMODE}, 2"); A("s_cbranch_scc1 L_help")
        if kind != "D": build_A(g, vA+4*(ng & 1), vP+t)
        k = 0
        if idx >= fl:
            g.vwait(f"{kind}{t}"); fl = idx + 1; k = 1
            Wn = p.get("WF1", WF) if idx < p.get("wf1n", 0) else WF
            while fpos[0] - fl < Wn and fpos[0] < len(fseq): fissue(); k += 1
        if kind != "D":
            if k < 2: A(f"s_nop {1-k}")
            acc = vACC if kind == "K" else vACC+4
            A(f"{MF} {v4(acc)}, {v4(vA+4*(ng&1))}, {v4(greg(kind,t))}, {'0' if t == 0 else v4(acc)}")
            ng += 1
    g.stamp(4)
    assert fpos[0] == len(fseq), "all down tiles must be issued before barrier E"
    A("s_nop 1")
    A(f"s_lshl_b32 s{sT0}, s{sW}, 9"); A(f"v_add_u32 v{vT+2}, s{sT0}, v{vOFP}")
    A(f"v_permlane32_swap_b32 v{vACC}, v{vACC+2}"); A(f"v_permlane32_swap_b32 v{vACC+1}, v{vACC+3}")
    A("s_nop 1")
    A(f"v_add_f32_dpp v{vACC}, v{vACC+2}, v{vACC} row_ror:8 {DPP}"); A(f"v_add_f32_dpp v{vACC+1}, v{vACC+3}, v{vACC+1} row_ror:8 {DPP}")
    A(f"v_permlane32_swap_b32 v{vACC+4}, v{vACC+6}"); A(f"v_permlane32_swap_b32 v{vACC+5}, v{vACC+7}")
    A("s_nop 0")
    A(f"v_add_f32_dpp v{vACC+4}, v{vACC+6}, v{vACC+4} row_ror:8 {DPP}"); A(f"v_add_f32_dpp v{vACC+5}, v{vACC+7}, v{vACC+5} row_ror:8 {DPP}")
    setexec(g, 0x00ff00ff, 0x00ff00ff)
    A(f"ds_write_b64 v{vT+2}, {v2(vACC)} offset:{L_O}")
    A(f"ds_write_b64 v{vT+2}, {v2(vACC+4)} offset:{L_O+256}")
    A("s_mov_b64 exec, -1")
    g.lab("L_barE")
    A(f"v_lshlrev_b32 v{vT}, 3, v{vL}")
    A(f"v_lshrrev_b32 v{vT+1}, 1, v{vR3}"); A(f"v_and_b32 v{vT+2}, 1, v{vR3}"); A(f"v_lshlrev_b32 v{vT+1}, 2, v{vT+1}")
    A(f"v_lshl_add_u32 v{vT+1}, v{vT+2}, 7, v{vT+1}")
    A("s_waitcnt lgkmcnt(0)")
    A("s_barrier")
    for w in range(9): A(f"ds_read_b64 {v2(vK+2*w)}, v{vT} offset:{L_O+512*w}")
    if fpos[0] < len(fseq): fissue()
    A("s_waitcnt lgkmcnt(0)")
    for a, b in ((0,1),(2,3),(4,5),(6,7),(0,2),(4,6),(0,4),(0,8)):
        A(f"v_pk_add_f32 {v2(vK+2*a)}, {v2(vK+2*a)}, {v2(vK+2*b)}")
    A("s_nop 1")
    A(f"v_permlane32_swap_b32 v{vK}, v{vK+1}")
    A("s_nop 0")
    A(f"v_cvt_pk_bf16_f32 v{vK+2}, v{vK}, v{vK+1}")
    A(f"v_lshlrev_b32 v{vK}, 16, v{vK+2}"); A(f"v_and_b32 v{vK+1}, 0xffff0000, v{vK+2}")
    A(f"v_mul_f32 v{vK+2}, {f2u(-1.4426950408889634):#x}, v{vK}")
    A(f"v_exp_f32 v{vK+2}, v{vK+2}"); A("s_nop 0")
    A(f"v_add_f32 v{vK+2}, 1.0, v{vK+2}")
    A(f"v_rcp_f32 v{vK+2}, v{vK+2}"); A("s_nop 0")
    A(f"v_mul_f32 v{vK}, v{vK}, v{vK+2}")
    bf16r(g, vK, vK)
    A(f"v_mul_f32 v{vK}, v{vK}, v{vK+1}")
    A(f"v_cvt_pk_bf16_f32 v{vK}, v{vK}, v{vK}")
    for t in range(8): A(f"ds_bpermute_b32 v{vP+t}, v{vT+1}, v{vK} offset:{16*t}")
    while fpos[0] < len(fseq): fissue()
    A("s_waitcnt lgkmcnt(0)")
    for t in range(8): build_A(g, vK+16+4*t, vP+t)
    g.stamp(5)
    for t in range(8):
        g.vwait(f"D{t}")
        A(f"{MF} {v4(vACC)}, {v4(vK+16+4*t)}, {v4(greg('D',t))}, {'0' if t == 0 else v4(vACC)}")
    g.stamp(6)
    fpublish(g, vACC)
    g.stamp(7)
    A(f"s_cmp_eq_u32 s{sW}, 8"); A("s_cbranch_scc1 L_fin8")
    for r in range(4): A(f"v_mov_b32 v{vK+r}, 0")
    A(f"s_mov_b32 s{sSPIN}, {SPIN}")
    if p.get("lgate"):
        A("s_barrier")
    A(f"s_mov_b64 exec, s[{sM0}:{sM0+1}]")
    if p.get("rfirst"): A("s_branch L_fsleep")
    g.lab("L_fpoll")
    A(f"buffer_load_dwordx4 {v4(vK)}, v{vRO}, {srd(SWS)}, s{sBIAS} offen {p.get('fld','sc1')}")
    A(f"s_sub_u32 s{sSPIN}, s{sSPIN}, 1"); A("s_cbranch_scc1 L_fpoll_end")
    A(f"s_cmp_eq_u32 s{sSPIN}, {SW}"); A("s_cbranch_scc0 L_fp1")
    A(f"v_mov_b32 v{vRO}, v{vRB}")
    g.lab("L_fp1")
    A("s_waitcnt vmcnt(0)")
    tagcheck(g, vK, vT+12)
    A(f"v_cmpx_ne_u32 vcc, s{sTAG}, v{vT+12}")
    A(f"s_cmp_eq_u64 exec, s[{sM0}:{sM0+1}]"); A("s_cbranch_scc1 L_fsleep")
    A("s_cbranch_execnz L_fpoll")
    g.lab("L_fpoll_end")
    A("s_mov_b64 exec, -1")
    g.stamp(8)
    A("s_nop 0")
    rowred(g, "v_add_f32", [vK, vK+1, vK+2, vK+3])
    setexec(g, 0x00010001, 0x00010001)
    A(f"ds_write_b128 v{vRL}, {v4(vK)} offset:{L_R}")
    A("s_mov_b64 exec, -1")
    A("s_waitcnt lgkmcnt(0)")
    A("s_barrier")
    A(f"s_or_b32 s{sT0}, s{sU}, s{sW}"); A("s_cbranch_scc1 L_fin")
    A("s_mov_b64 exec, 1")
    A(f"v_mov_b32 v{vT+7}, s{sTAG}")
    A(f"buffer_store_dword v{vT+7}, v{vOV}, {srd(SWS)}, 0 offen offset:{EPOCH}")
    A("s_endpgm" if not p["stamps"] else "s_branch L_fin")
    g.lab("L_fsleep")
    A(f"s_sleep {p['radapt']}")
    A("s_branch L_fpoll")
    g.lab("L_fin8")
    if p.get("lgate"):
        A(f"s_mul_i32 s{sT0}, s{sXCD}, {22*FROW}"); A(f"s_lshl_b32 s{sT1}, s{sU}, 5"); A(f"s_add_u32 s{sT0}, s{sT0}, s{sT1}"); A(f"s_add_u32 s{sT0}, s{sT0}, {FB+AOFF}")
        A(f"s_movk_i32 s{sSPIN}, {p['apolls']}")
        setexec(g, (1 << 22) - 1, 0)
        g.lab("L_lpoll")
        A(f"s_sleep {p.get('lsleep', 2)}")
        A(f"buffer_load_dwordx4 {v4(vK)}, v{vRB}, {srd(SWS)}, s{sT0} offen sc1")
        A(f"s_sub_u32 s{sSPIN}, s{sSPIN}, 1"); A("s_cbranch_scc1 L_lpoll_end")
        A("s_waitcnt vmcnt(0)")
        tagcheck(g, vK, vT+12)
        A(f"v_cmpx_ne_u32 vcc, s{sTAG}, v{vT+12}")
        A(f"s_bcnt1_i32_b64 s{sT1}, exec"); A(f"s_cmp_gt_u32 s{sT1}, {22 - p['lgate']}"); A("s_cbranch_scc1 L_lpoll")
        g.lab("L_lpoll_end")
        A("s_mov_b64 exec, -1")
        A("s_barrier")
    A(f"v_mov_b32 v{vT+6}, 0")
    A(f"ds_read_b128 {v4(vA)}, v{vT+6} offset:{L_Z}"); A(f"ds_read_b128 {v4(vA+4)}, v{vT+6} offset:{L_Z+16}"); A(f"ds_read_b32 v{vT+7}, v{vT+6} offset:{L_Z+32}")
    A("s_waitcnt lgkmcnt(0)")
    A(f"v_pk_add_f32 {v2(vA)}, {v2(vA)}, {v2(vA+2)}"); A(f"v_pk_add_f32 {v2(vA+4)}, {v2(vA+4)}, {v2(vA+6)}")
    A(f"v_pk_add_f32 {v2(vA)}, {v2(vA)}, {v2(vA+4)}")
    A(f"v_add_f32 v{vA}, v{vA}, v{vA+1}"); A(f"v_add_f32 v{vA}, v{vA}, v{vT+7}")
    bf16r(g, vA, vA)
    A(f"v_mul_f32 v{vA}, {f2u(-1.4426950408889634):#x}, v{vA}")
    A(f"v_exp_f32 v{vA}, v{vA}"); A("s_nop 0")
    A(f"v_add_f32 v{vA}, 1.0, v{vA}"); A(f"v_rcp_f32 v{vA}, v{vA}"); A("s_nop 0")
    bf16r(g, vA, vA)
    A(f"v_sub_f32 v{vA+1}, 1.0, v{vA}"); bf16r(g, vA+1, vA+1)
    A(f"v_and_b32 v{vT+9}, 7, v{vL}"); A(f"v_lshlrev_b32 v{vT+8}, 2, v{vT+9}"); A(f"v_lshlrev_b32 v{vT+9}, 1, v{vT+9}")
    A(f"v_add_u32 v{vT+8}, {L_R}, v{vT+8}")
    A(f"s_lshl_b32 s{sKO}, s{sU}, 4")
    A("s_barrier")
    g.stamp(8)
    for k in range(8): A(f"ds_read2_b32 {v2(vK+2*k)}, v{vT+8} offset0:{16*k} offset1:{16*k+8}")
    A("s_waitcnt lgkmcnt(0)")
    A(f"v_pk_add_f32 {v2(vK)}, {v2(vK)}, {v2(vK+2)}"); A(f"v_pk_add_f32 {v2(vK+4)}, {v2(vK+4)}, {v2(vK+6)}")
    A(f"v_pk_add_f32 {v2(vK+12)}, {v2(vK+12)}, {v2(vK+14)}")
    A(f"v_pk_add_f32 {v2(vK)}, {v2(vK)}, {v2(vK+8)}")
    A(f"v_add_f32 v{vK+12}, v{vK+12}, v{vK+13}")
    A(f"v_pk_add_f32 {v2(vK)}, {v2(vK)}, {v2(vK+4)}")
    A(f"v_add_f32 v{vK+11}, v{vK+11}, v{vK+12}")
    A(f"v_add_f32 v{vK}, v{vK}, v{vK+1}"); A(f"v_add_f32 v{vK+10}, v{vK}, v{vK+10}")
    A(f"v_cvt_pk_bf16_f32 v{vK}, v{vK+10}, v{vK+11}")
    A(f"v_lshlrev_b32 v{vK+10}, 16, v{vK}"); A(f"v_and_b32 v{vK+11}, 0xffff0000, v{vK}")
    A(f"v_pk_mul_f32 {v2(vK+10)}, {v2(vK+10)}, {v2(vA)}")
    A(f"v_cvt_pk_bf16_f32 v{vK}, v{vK+10}, v{vK+11}")
    A(f"v_lshlrev_b32 v{vK+10}, 16, v{vK}"); A(f"v_and_b32 v{vK+11}, 0xffff0000, v{vK}")
    A(f"v_add_f32 v{vK}, v{vK+10}, v{vK+11}")
    A(f"v_cvt_pk_bf16_f32 v{vK}, v{vK}, v{vK}")
    setexec(g, 0xff, 0)
    A(f"buffer_store_short v{vK}, v{vT+9}, {srd(SOUT)}, s{sKO} offen {p.get('ost','')}")
    if hd or p.get("diag"): A(f"s_cmp_lg_u32 s{sU}, 0"); A("s_cbranch_scc1 L_fin")
    if hd:
        g.stamp(9)
        A("s_waitcnt lgkmcnt(0)")
        if hd[0] == "A":
            A("s_sleep 40")
            A(f"buffer_load_dword v{vT+1}, v{vT+6}, {srd(SWS)}, 0 offen offset:1024 sc1"); A("s_waitcnt vmcnt(0)")
            A(f"v_readfirstlane_b32 s{sT0}, v{vT+1}"); A("s_nop 3")
        else: A(f"s_sub_u32 s{sT0}, s{80+2*hd[3]}, s{80+2*hd[2]}")
        A(f"s_mul_i32 s{sT0}, s{sT0}, {hd[4]}"); A(f"s_add_u32 s{sT0}, s{sT0}, 300"); A(f"s_min_u32 s{sT0}, s{sT0}, 20000")
        g.lab("L_hd2")
        A("s_memrealtime s[80:81]"); A("s_waitcnt lgkmcnt(0)"); A("s_sub_u32 s80, s80, s98"); A(f"s_cmp_lt_u32 s80, s{sT0}"); A("s_cbranch_scc1 L_hd2")
    if p.get("diag"):
        A("s_memrealtime s[92:93]")
        A(f"v_lshlrev_b32 v{vT}, 7, v{vL}")
        A(f"buffer_load_dword v{vT+1}, v{vT}, {srd(SWS)}, 0 offen offset:1024 sc1"); A("s_waitcnt vmcnt(0) lgkmcnt(0)")
        for k in range(8): A(f"v_readlane_b32 s{80+k}, v{vT+1}, {k}")
        A("s_nop 3")
        for k in range(8): A(f"s_sub_u32 s{80+k}, s92, s{80+k}")
        A("s_mov_b32 s88, s80"); A("s_mov_b32 s89, s80")
        for k in range(1, 8): A(f"s_max_u32 s88, s88, s{80+k}"); A(f"s_min_u32 s89, s89, s{80+k}")
        d = p["diag"]
        if d == "skew": A("s_sub_u32 s88, s88, s89"); A("s_mul_i32 s88, s88, 10")
        elif d == "total": A("s_mul_i32 s88, s88, 4")
        elif d == "last": A("s_mul_i32 s88, s89, 4")
        elif d == "zero": A("s_mov_b32 s88, 0")
        elif d == "a0": A("s_sub_u32 s88, s96, s90"); A("s_mul_i32 s88, s88, 20")
        elif d == "touch": A("s_sub_u32 s88, s98, s96"); A("s_mul_i32 s88, s88, 20")
        A("s_min_u32 s88, s88, 20000")
        g.lab("L_dg2")
        A("s_memrealtime s[94:95]"); A("s_waitcnt lgkmcnt(0)"); A("s_sub_u32 s94, s94, s92"); A("s_cmp_lt_u32 s94, s88"); A("s_cbranch_scc1 L_dg2")
    g.lab("L_fin")
    if p["stamps"] and not hd:
        A("s_mov_b64 exec, -1")
        A("s_waitcnt vmcnt(0)")
        g.stamp(9)
        A("s_waitcnt lgkmcnt(0)")
        A(f"s_lshl_b32 s{sT0}, s2, 4"); A(f"s_add_u32 s{sT0}, s{sT0}, s{sW}"); A(f"s_lshl_b32 s{sT0}, s{sT0}, 6"); A(f"s_add_u32 s{sT0}, s{sT0}, {STB}")
        for k in range(10): A(f"v_mov_b32 v{vK+k}, s{80+2*k}")
        A(f"v_mov_b32 v{vK+10}, s{sSPIN}"); A(f"v_mov_b32 v{vK+11}, s{sTAG}")
        A(f"v_mov_b32 v{vT}, 0"); A("s_mov_b64 exec, 1")
        for k in range(3): A(f"buffer_store_dwordx4 {v4(vK+4*k)}, v{vT}, {srd(SWS)}, s{sT0} offen offset:{16*k}")
    g.lab("L_end")
    A("s_endpgm")
    if True:
        g.lab("L_m1")
        for t in range(dissued, 8):
            A(f"s_waitcnt vmcnt(1)")
            A(f"buffer_load_dwordx4 {v4(greg('D',t))}, v{vOD}, {srd(S3)}, s{sOO} offen {nt}")
            if t < 7: A(f"s_add_u32 s{sOO}, s{sOO}, 9216")
        A(f"s_lshl_b32 s{sT0}, s{sW}, 9")
        A(f"s_and_b32 s{sT1}, s{sU}, 0x78"); A(f"s_lshl1_add_u32 s{sT1}, s{sW}, s{sT1}"); A(f"s_lshl_b32 s{sT1}, s{sT1}, 8")
        A(f"s_add_u32 s{sT1}, s{sT1}, {HB - 10*256}")
        A(f"v_add_u32 v{vT+3}, s{sT0}, v{vOV}")
        A(f"s_mov_b32 s{sSPIN}, {SPIN}")
        tagsel(g)
        A("s_mov_b32 exec_hi, 0")
        g.lab("L_hpoll")
        A(f"s_sleep {p['hsleep']}")
        A(f"buffer_load_dwordx4 {v4(vA)}, v{vOV}, {srd(SWS)}, s{sT1} offen sc1")
        A(f"s_sub_u32 s{sSPIN}, s{sSPIN}, 1"); A("s_cbranch_scc1 L_hpoll_end")
        A("s_waitcnt vmcnt(0)")
        tagcheck(g, vA, vT+4)
        A(f"v_cmp_ne_u32 vcc, s{sTAG}, v{vT+4}")
        A("s_cbranch_vccnz L_hpoll")
        g.lab("L_hpoll_end")
        A(f"ds_write_b128 v{vT+3}, {v4(vA)} offset:{L_O}")
        A("s_mov_b64 exec, -1")
        A("s_branch L_barE")
        g.lab("L_help")
        A(f"s_lshl_b32 s{sPI}, s{sHK}, 8"); A(f"s_add_u32 s{sPI}, s{sPI}, {HB}")
        fpublish(g, vACC, acopy=False)
        g.stamp(4)
        A("s_branch L_fin")
    out += g.L
    out += ['.section .rodata,"a"', ".p2align 6", f".amdhsa_kernel {NAME}", f"  .amdhsa_next_free_vgpr {NV}",
            f"  .amdhsa_next_free_sgpr {100 if (p['stamps'] or p.get('diag')) else 80}", f"  .amdhsa_accum_offset {NV}", "  .amdhsa_group_segment_fixed_size 0",
            "  .amdhsa_kernarg_size 104", "  .amdhsa_user_sgpr_count 2", "  .amdhsa_user_sgpr_kernarg_segment_ptr 1",
            "  .amdhsa_system_sgpr_workgroup_id_x 1", ".end_amdhsa_kernel"]
    return "\n".join(out) + "\n"

if __name__ == "__main__":
    kw = {}
    for a in sys.argv[2:]:
        k, v = a.split("="); kw[k] = eval(v)
    open(sys.argv[1], "w").write(gen(**kw))
```

```python
import sys, struct
NAME = "gated_mix__sliding_block_cached__swiglu_ffn__decode_kernel"
HDR = open("gated_mix__sliding_block_cached__swiglu_ffn__decode.s.ref").read().split("; Override launch")[0]
def f2u(f): return struct.unpack("<I", struct.pack("<f", f))[0]

EPOCH = 0
HB = 4096
H2 = HB + 72*256
QB = H2 + 72*256
OB = QB + 256*256
FB = OB + 256*2048
AOFF = 2 << 20
FROW = 2304
assert FB + 256*FROW <= AOFF
WS_USED = 2*AOFF
STB = 8 << 20
L_H = 0; L_QP = 0; L_Q = 5376; L_M = 5888; L_L = 5952; L_Z = 6016; L_C = 6080
L_CNT = 6272; L_O = 6400; L_R = L_O + 8*1024
LDS_BYTES = L_R + 640
OOB = 0x40000000

class G:
    def __init__(s, **kw):
        s.L = []; s.p = dict(WA=4, WF=3, N0=2, c2=1, b3=1, olate=1, rfirst=1, hpos=1, WF1=2, wf1n=8, stamps=False, nt="nt", qsleep=8, spin=200000, apolls=300, bpos=1, rsleep=0, radapt=12, dmix=5,
                             prio=1, align=True, touch=0, pretouch=0, cpf=0, nmid=4, helper=1, hsleep=4)
        s.p.update(kw); s.vm = []
    def A(s, x):
        if s.p.get("pnt") and x.startswith("buffer_load") and x.endswith(" sc1"): x += " nt"
        if s.p.get("xnt") and (x.startswith("buffer_load_dword v") or x.startswith("buffer_load_ushort") or x.startswith("global_load_dword v")) and " nt" not in x: x += " nt"
        s.L.append("    " + x)
    def lab(s, x): s.L.append(x + ":")
    def vissue(s, name): s.vm.append(name)
    def vwait(s, name):
        i = s.vm.index(name); s.A(f"s_waitcnt vmcnt({len(s.vm)-1-i})")
    def stamp(s, k, prog=False):
        if s.p.get("prof") and not prog and 3 <= k <= 8 and k != 5: return
        if prog and s.p.get("prof") != int(prog): return
        if s.p["stamps"]: s.A(f"s_memrealtime s[{80+2*k}:{81+2*k}]")

sW=3
SX=8; SWQ=12; SWS=16; S1=20; S2=24; S3=28; SGW=32; SOUT=36
sE=40; sSTEP=41; sTAG=42
sXCD=44; sJ=45; sHK=46; sSLOT=47; sQI=48; sT0=49; sT1=50; sT2=51; sRUN=52; sBIAS=53; sSPIN=54
sKO=55; sOO=56; sSEL0=57; sSEL1=58; sPI=59; sC=60; sU=61
sM0=62; sEX=70; sAM=72; sWE=74; sT3=75; sT4=76; sMODE=77; sFF=78; sNOS=79; sST2=43; sDO=48; sGOT=40; SD=4
def srd(b): return f"s[{b}:{b+3}]"
vL=1; vM=2; vOT=6; vOK=7; vOV=8; vOWQ=9; vLT=10; vX0=11; vOU=12; vOD=13; vTB=14
vXG=16; vGW=17; vT=18
vA=32; vACC=40; vP=48; vOKL=60; vOVL=61; vR3=62; vOFP=63
vK=64; vV=112; NV=160
def v4(b): return f"v[{b}:{b+3}]"
def v2(b): return f"v[{b}:{b+1}]"
DPP = "row_mask:0xf bank_mask:0xf"
MF = "v_mfma_f32_16x16x32_bf16"

def build_A(g, dst, rep):
    for j in range(4): g.A(f"v_and_b32 v{dst+j}, v{rep}, v{vM+j}")
def rowred(g, op, regs):
    need = max(0, 2 - (len(regs) - 1))
    for r in (8, 4, 2, 1):
        if need: g.A(f"s_nop {need-1}")
        for x in regs: g.A(f"{op}_dpp v{x}, v{x}, v{x} row_ror:{r} {DPP}")
def crossrow(g, op, x, t):
    for sw in ("v_permlane16_swap_b32", "v_permlane32_swap_b32"):
        g.A(f"v_mov_b32 v{t}, v{x}"); g.A("s_nop 1"); g.A(f"{sw} v{x}, v{t}"); g.A("s_nop 1"); g.A(f"{op} v{x}, v{x}, v{t}")
def bf16r(g, d, s_):
    g.A(f"v_cvt_pk_bf16_f32 v{d}, v{s_}, v{s_}"); g.A(f"v_and_b32 v{d}, 0xffff0000, v{d}")
def setexec(g, lo, hi):
    g.A(f"s_mov_b32 exec_lo, {lo:#x}"); g.A(f"s_mov_b32 exec_hi, {hi:#x}")

def fpub_consts(g, sblk, ffn=False):
    A = g.A
    A(f"s_mul_i32 s{sPI}, s{sPI}, 9"); A(f"s_add_u32 s{sPI}, s{sPI}, {sblk}"); A(f"s_lshl_b32 s{sPI}, s{sPI}, 8"); A(f"s_add_u32 s{sPI}, s{sPI}, {FB}")
    A(f"v_lshrrev_b32 v{vT}, 5, v{vOFP}")
    A(f"v_cmp_eq_u32 vcc, s{sXCD}, v{vT}")
    A(f"v_lshrrev_b32 v{vT}, 1, v{vL}"); A(f"v_and_b32 v{vT}, 16, v{vT}")
    A(f"v_mov_b32 v{vTB}, s{sTAG}")
    A(f"v_lshrrev_b32 v{vTB}, v{vT}, v{vTB}")
    A(f"s_cmp_eq_u32 {sblk}, 8"); A(f"s_cselect_b64 s[{sAM}:{sAM+1}], vcc, 0")
    A(f"s_cmp_eq_u32 {sblk}, s{sXCD}"); A(f"s_cselect_b64 s[{sAM}:{sAM+1}], -1, s[{sAM}:{sAM+1}]")
    A(f"s_and_b32 s{sAM}, s{sAM}, 0x00ff00ff"); A(f"s_and_b32 s{sAM+1}, s{sAM+1}, 0x00ff00ff")
    A(f"v_lshrrev_b32 v{vTB+1}, 8, v{vTB}")
    A(f"s_movk_i32 s{sFF}, 0xff")
    na = g.p.get("na", 2)
    if not ffn:
        A(f"s_mul_i32 s{sST2}, s{sJ}, {na}"); A(f"s_add_u32 s{sST2}, s{sST2}, s{sW}"); A(f"s_sub_u32 s{sST2}, s{sST2}, 4")
    else:
        nf = {2: 2, 1: 4}[na]; nh = 64 - 22*na - 9*nf
        A(f"s_mul_i32 s{sST2}, s{sJ}, {nf}"); A(f"s_add_u32 s{sST2}, s{sST2}, s{sW}"); A(f"s_sub_u32 s{sST2}, s{sST2}, {22*nf - 22*na}")
        A(f"s_cmp_eq_u32 s{sJ}, 31"); A(f"s_cselect_b32 s{sSLOT}, {nh}, {nf}")
    A(f"s_mul_i32 s{sDO}, s{sST2}, {72*1152}")
    A(f"s_lshl_b32 s{sT0}, s{sXCD}, 7"); A(f"s_add_u32 s{sDO}, s{sDO}, s{sT0}")
    A(f"s_mov_b32 s{SD+2}, 5308416"); A(f"s_mov_b32 s{SD+3}, s{SWQ+3}")

def tagcheck(g, d, t):
    g.A(f"v_perm_b32 v{t}, v{d+1}, v{d}, s{sSEL0}"); g.A(f"v_perm_b32 v{t+1}, v{d+3}, v{d+2}, s{sSEL1}")
    g.A(f"v_or_b32 v{t}, v{t}, v{t+1}")
def tagsel(g):
    g.A(f"s_mov_b32 s{sSEL0}, 0x0c0c0400"); g.A(f"s_mov_b32 s{sSEL1}, 0x04000c0c")

PROG = {"K3": 3, "K7": 4, "K11": 6, "V3": 7, "V7": 8}
uid = [0]
def fpublish(g, acc, acopy=True):
    g.A(f"s_add_u32 s{sT0}, s{sPI}, {AOFF}")
    g.A("s_nop 6")
    g.A(f"v_permlane32_swap_b32 v{acc}, v{acc+2}")
    g.A(f"v_permlane32_swap_b32 v{acc+1}, v{acc+3}")
    g.A("s_nop 0")
    g.A(f"v_add_f32_dpp v{acc}, v{acc+2}, v{acc} row_ror:8 {DPP}")
    g.A(f"v_add_f32_dpp v{acc+1}, v{acc+3}, v{acc+1} row_ror:8 {DPP}")
    g.A(f"v_bfi_b32 v{acc}, s{sFF}, v{vTB}, v{acc}"); g.A(f"v_bfi_b32 v{acc+1}, s{sFF}, v{vTB+1}, v{acc+1}")
    if acopy:
        uid[0] += 1
        g.A(f"s_mov_b64 exec, s[{sAM}:{sAM+1}]"); g.A(f"s_cbranch_execz L_na{uid[0]}")
        g.A(f"buffer_store_dwordx2 {v2(acc)}, v{vOFP}, {srd(SWS)}, s{sT0} offen")
        g.lab(f"L_na{uid[0]}")
    setexec(g, 0x00ff00ff, 0x00ff00ff)
    g.A(f"buffer_store_dwordx2 {v2(acc)}, v{vOFP}, {srd(SWS)}, s{sPI} offen sc1")
    g.A("s_mov_b64 exec, -1")

vD = vV + 12
def is45(g, other, ffn=False):
    if ffn: g.A(f"s_cmp_lt_u32 s{sW}, s{sSLOT}")
    else: g.A(f"s_sub_u32 s{sT0}, s{sW}, 4"); g.A(f"s_cmp_lt_u32 s{sT0}, {g.p.get('na', 2)}")
    g.A(f"s_cbranch_scc0 {other}")
def dissue(g):
    for t in range(9):
        g.A(f"buffer_load_dwordx4 {v4(vD+4*t)}, v{vOT}, {srd(SD)}, s{sDO} offen {g.p['nt']}")
        if t < 8: g.A(f"s_add_u32 s{sDO}, s{sDO}, 9216")

vH = vK + 28
def hsetup(g):
    A = g.A
    A(f"s_mul_i32 s{sGOT}, s{sST2}, 288"); A(f"s_add_u32 s{sGOT}, s{sGOT}, {H2}")
    tagsel(g)
    A(f"s_mul_i32 s{sT2}, s{sW}, 288")
    A(f"v_add_u32 v{vT+6}, s{sT2}, v{vOV}"); A(f"v_lshl_add_u32 v{vT+7}, v{vR3}, 2, s{sT2}")
def hload(g): g.A(f"buffer_load_dwordx4 {v4(vH)}, v{vOV}, {srd(SWS)}, s{sGOT} offen sc1")
def hgather(g, sfx, budget, sleep, loaded):
    A = g.A
    A(f"s_mov_b32 s{sSPIN}, {budget}")
    setexec(g, 0x3ffff, 0)
    if loaded: A(f"s_branch L_hc{sfx}")
    g.lab(f"L_hg{sfx}")
    A(f"s_sub_u32 s{sSPIN}, s{sSPIN}, 1"); A(f"s_cbranch_scc1 L_hge{sfx}")
    A(f"s_sleep {sleep}")
    hload(g)
    A("s_waitcnt vmcnt(0)")
    g.lab(f"L_hc{sfx}")
    tagcheck(g, vH, vT+4)
    A(f"v_cmp_ne_u32 vcc, s{sTAG}, v{vT+4}")
    A(f"s_cbranch_vccnz L_hg{sfx}")
    g.lab(f"L_hge{sfx}")
    A(f"s_mov_b32 s{sT1}, 0x03020302")
    for r in range(4): A(f"v_perm_b32 v{vH+r}, v{vH+r}, v{vH+r}, s{sT1}")
    A(f"ds_write_b128 v{vT+6}, {v4(vH)} offset:{L_H}")
    A("s_mov_b64 exec, -1")
    for t in range(0, 8, 2): A(f"ds_read2_b32 {v2(vK+16+t)}, v{vT+7} offset0:{L_H//4+8*t} offset1:{L_H//4+8*t+8}")
    A(f"ds_read_b32 v{vK+24}, v{vT+7} offset:{L_H+256}")

def dshare(g, nyoung):
    A = g.A
    A(f"s_add_u32 s{sPI}, s{sST2}, 176"); A(f"s_mul_i32 s{sPI}, s{sPI}, 9"); A(f"s_add_u32 s{sPI}, s{sPI}, s{sXCD}")
    A(f"s_lshl_b32 s{sPI}, s{sPI}, 8"); A(f"s_add_u32 s{sPI}, s{sPI}, {FB}")
    A(f"s_mov_b32 s{sAM}, 0x00ff00ff"); A(f"s_mov_b32 s{sAM+1}, s{sAM}")
    if g.p.get("dprof"): g.stamp(3)
    A("s_waitcnt lgkmcnt(0)")
    for t in range(9):
        build_A(g, vA+4*(t & 1), vK+16+t)
        A(f"s_waitcnt vmcnt({8-t+nyoung})"); A("s_nop 0")
        if g.p.get("dprof") and t in (0, 8): g.stamp(4 if t == 0 else 6)
        A(f"{MF} {v4(vACC)}, {v4(vA+4*(t&1))}, {v4(vD+4*t)}, {'0' if t == 0 else v4(vACC)}")
    fpublish(g, vACC)

def gen(**kw):
    g = G(**kw); A = g.A; p = g.p; nt = p["nt"]; WA = p["WA"]; WF = p["WF"]
    SPIN = p["spin"]; SW = max(SPIN - p["apolls"], 0)
    NPRO = min(WA, WF)
    out = [HDR.rstrip("\n")]
    out.append(f"; @launch grid=(256,1,1) block=({640 if p.get('w9') else 576},1,1) lds={LDS_BYTES}")
    out += ['.amdgcn_target "amdgcn-amd-amdhsa--gfx950"', ".text"]
    if p["align"]: out += [".p2align 12", ".fill 832, 4, 0xbf800000"]
    out += [f".globl {NAME}", ".p2align 8", f".type {NAME},@function", f"{NAME}:"]
    g.stamp(0)
    if p.get("diag"): A("s_memrealtime s[90:91]")
    A("s_cmp_ge_u32 s2, 0x100"); A("s_cbranch_scc1 L_end")
    if p.get("w9"):
        A("v_cmp_gt_u32 vcc, 576, v0"); A("s_cbranch_vccnz L_go")
        A("s_cmp_lt_u32 s2, 176"); A("s_cbranch_scc1 L_warmA"); A("s_branch L_warmF")
        g.lab("L_go")
    A(f"s_load_dwordx2 s[{SWQ}:{SWQ+1}], s[0:1], 24")
    A(f"s_load_dwordx2 s[{SX}:{SX+1}], s[0:1], 0")
    A(f"s_lshr_b32 s{sJ}, s2, 3")
    A(f"s_cmp_lt_u32 s{sJ}, 22")
    A(f"s_cselect_b32 s{sT0}, 8, 48")
    A(f"s_load_dwordx4 s[64:67], s[0:1], s{sT0}")
    A(f"s_load_dwordx2 s[{S3}:{S3+1}], s[0:1], 32")
    A(f"s_load_dwordx2 s[{SD}:{SD+1}], s[0:1], 64")
    A(f"s_load_dwordx2 s[{SGW}:{SGW+1}], s[0:1], 72")
    A(f"s_load_dwordx2 s[{SOUT}:{SOUT+1}], s[0:1], 80")
    A(f"s_load_dwordx2 s[{SWS}:{SWS+1}], s[0:1], 96")
    A(f"v_lshrrev_b32 v{vT}, 6, v0")
    A(f"v_and_b32 v{vL}, 63, v0")
    A(f"v_readfirstlane_b32 s{sW}, v{vT}")
    A(f"s_and_b32 s{sXCD}, s2, 7")
    A(f"v_lshrrev_b32 v{vR3}, 3, v{vL}")
    A(f"v_and_b32 v{vT+1}, 7, v{vL}")
    A(f"v_lshlrev_b32 v{vT+2}, 4, v{vT+1}")
    A(f"v_lshl_add_u32 v{vOWQ}, v{vR3}, 14, v{vT+2}")
    A(f"v_lshlrev_b32 v{vT+3}, 2, v{vR3}")
    A(f"s_bfe_u32 s{sT0}, s{sJ}, 0x20002"); A(f"s_mul_i32 s{sT0}, s{sT0}, 9"); A(f"s_add_u32 s{sT0}, s{sT0}, s{sW}")
    A(f"s_lshr_b32 s{sT1}, s{sJ}, 4"); A(f"s_lshl1_add_u32 s{sT1}, s{sXCD}, s{sT1}")
    A(f"s_and_b32 s{sT2}, s{sJ}, 3"); A(f"s_lshl2_add_u32 s{sT1}, s{sT1}, s{sT2}"); A(f"s_lshl_b32 s{sT1}, s{sT1}, 7")
    A(f"s_lshl_b32 s{sT2}, s{sT0}, 17"); A(f"s_add_u32 s{sT1}, s{sT1}, s{sT2}")
    A(f"s_add_u32 s{sT2}, s{sT1}, 8192")
    A(f"s_lshl_b32 s{sT0}, s{sT0}, 5")
    A(f"s_mov_b32 s{SWQ+2}, 4718592"); A(f"s_mov_b32 s{SWQ+3}, 0x20000")
    A(f"s_movk_i32 s{SX+2}, 1152"); A(f"s_mov_b32 s{SX+3}, s{SWQ+3}")
    vWQ = vV + 40
    A(f"v_mov_b32 v{vT+4}, 0")
    A(f"ds_write_b32 v{vT+3}, v{vT+4} offset:{L_CNT}")
    A("s_waitcnt lgkmcnt(0)")
    g.stamp(1)
    A(f"buffer_load_dwordx4 {v4(vWQ)}, v{vOWQ}, {srd(SWQ)}, s{sT1} offen {nt}"); g.vissue("wq0")
    A(f"buffer_load_dwordx4 {v4(vWQ+4)}, v{vOWQ}, {srd(SWQ)}, s{sT2} offen {nt}"); g.vissue("wq1")
    A(f"buffer_load_dword v{vX0}, v{vT+3}, {srd(SX)}, s{sT0} offen"); g.vissue("x0")
    A(f"s_load_dword s{sE}, s[{SWS}:{SWS+1}], {EPOCH}")
    g.stamp(3, 2)
    A("s_barrier")
    g.stamp(4, 2)
    if p.get("diag"): A("s_memrealtime s[96:97]")
    A(f"s_mov_b64 s[{S1}:{S1+1}], s[64:65]"); A(f"s_mov_b64 s[{S2}:{S2+1}], s[66:67]")
    A(f"s_mov_b32 s{S1+3}, s{SWQ+3}")
    A(f"v_lshlrev_b32 v{vOV}, 4, v{vL}")
    A(f"s_cmp_ge_u32 s{sJ}, 22"); A("s_cbranch_scc1 L_setF")
    A(f"s_mov_b32 s{S1+2}, 0x10000000"); A(f"s_mov_b32 s{S3+2}, s{SWQ+2}")
    A(f"s_cmp_ge_u32 s{sJ}, 11"); A(f"s_cselect_b32 s{sT0}, 1, 0"); A(f"s_cselect_b32 s{sT1}, 8, 0")
    A(f"s_lshl1_add_u32 s{sHK}, s{sXCD}, s{sT0}")
    A(f"s_cmp_ge_u32 s{sJ}, 19"); A(f"s_cselect_b32 s{sT1}, 19, s{sT1}")
    A(f"s_sub_u32 s{sSLOT}, s{sJ}, s{sT1}")
    A(f"s_min_u32 s{sT0}, s{sSLOT}, 2"); A(f"s_mul_i32 s{sT1}, s{sSLOT}, 94"); A(f"s_add_u32 s{sT0}, s{sT0}, s{sT1}")
    A(f"s_lshr_b32 s{sT1}, s{sSLOT}, 2"); A(f"s_mul_i32 s{sT1}, s{sT1}, 6"); A(f"s_sub_u32 s{sT0}, s{sT0}, s{sT1}")
    if p.get("sweep"):
        A(f"s_mul_i32 s{sT1}, s{sSLOT}, 96"); A(f"s_sub_u32 s{sST2}, s{sT0}, s{sT1}"); A(f"s_add_u32 s{sST2}, s{sST2}, 88"); A(f"s_lshl_b32 s{sST2}, s{sST2}, 10")
        A(f"s_lshl_b32 s{sT0}, s{sSLOT}, 3")
    A(f"s_add_u32 s{sT0}, s{sT0}, s{sW}"); A(f"s_lshl_b32 s{sT0}, s{sT0}, 10")
    A(f"s_lshl_b32 s{sKO}, s{sHK}, 24"); A(f"s_add_u32 s{sKO}, s{sKO}, s{sT0}")
    A(f"s_add_u32 s{sKO}, s{sKO}, {61440*256}")
    A(f"s_mov_b32 s{sSTEP}, {88*1024}" if p.get("sweep") else f"s_movk_i32 s{sSTEP}, 8192")
    A(f"v_bfe_u32 v{vT}, v{vL}, 2, 2"); A(f"v_lshrrev_b32 v{vT+1}, 4, v{vL}"); A(f"v_and_b32 v{vT+3}, 3, v{vL}")
    A(f"v_lshlrev_b32 v{vOK}, 8, v{vT}"); A(f"v_lshl_add_u32 v{vOK}, v{vT+1}, 6, v{vOK}"); A(f"v_lshl_add_u32 v{vOK}, v{vT+3}, 4, v{vOK}")
    A(f"s_cmp_eq_u32 s{sW}, 8"); A(f"s_cselect_b32 s{sNOS}, 1, 0")
    A("s_branch L_set_done")
    g.lab("L_setF")
    A(f"s_mov_b32 s{S1+2}, 5308416"); A(f"s_mov_b32 s{S3+2}, s{S1+2}")
    A(f"s_mul_i32 s{sU}, s{sXCD}, 9"); A(f"s_mov_b32 s{sWE}, s{sW}")
    A(f"s_cmp_eq_u32 s{sJ}, 31"); A("s_cbranch_scc0 L_setF1")
    A(f"s_add_u32 s{sHK}, s{sU}, s{sW}")
    A(f"s_and_b32 s{sU}, s{sHK}, 0x78"); A(f"s_sub_u32 s{sU}, s{sU}, {9-3}")
    A(f"s_bfe_u32 s{sWE}, s{sHK}, 0x20001"); A(f"s_add_u32 s{sWE}, s{sWE}, 5")
    A(f"s_bitcmp1_b32 s{sHK}, 0"); A(f"s_cselect_b64 s[{S1}:{S1+1}], s[66:67], s[64:65]")
    g.lab("L_setF1")
    A(f"s_add_u32 s{sU}, s{sU}, s{sJ}"); A(f"s_sub_u32 s{sU}, s{sU}, 22")
    A(f"s_movk_i32 s{sT0}, 9216"); A(f"v_mad_u32_u24 v{vOK}, v{vR3}, s{sT0}, v{vT+2}")
    A(f"s_mul_i32 s{sKO}, s{sWE}, {8*9216}"); A(f"s_lshl_b32 s{sT0}, s{sU}, 7"); A(f"s_add_u32 s{sKO}, s{sKO}, s{sT0}")
    A(f"s_mov_b32 s{sSTEP}, {72*9216}")
    A(f"s_and_b32 s{sT0}, s{sU}, 7"); A(f"s_cmp_eq_u32 s{sT0}, 3"); A(f"s_cselect_b32 s{sT0}, s{sW}, 0")
    A(f"s_cmp_ge_u32 s{sT0}, {5 if p['helper'] else 99}"); A(f"s_cselect_b32 s{sMODE}, 1, 0")
    A(f"s_cmp_eq_u32 s{sJ}, 31"); A(f"s_cselect_b32 s{sMODE}, 2, s{sMODE}")
    A(f"s_cmp_eq_u32 s{sMODE}, {1 if p['helper'] else 2}")
    A(f"s_cselect_b32 s{sT0}, {OOB:#x}, 0")
    A(f"v_add_u32 v{vOK}, s{sT0}, v{vOK}")
    A(f"s_mov_b32 s{sNOS}, 0")
    g.lab("L_set_done")
    A(f"s_mov_b32 s{sRUN}, s{sKO}")
    def s1_issue(i):
        A(f"buffer_load_dwordx4 {v4(vK+4*i)}, v{vOK}, {srd(S1)}, s{sRUN} offen {nt}"); g.vissue(f"K{i}")
        A(f"s_add_u32 s{sRUN}, s{sRUN}, s{sSTEP}")
    N0 = min(p.get("N0", 2), NPRO)
    A(f"s_cmp_eq_u32 s{sNOS}, 1"); A("s_cbranch_scc1 " + "L_touched")
    for i in range(N0): s1_issue(i)
    g.lab("L_touched")
    g.stamp(6, 2)
    if p.get("diag"): A("s_memrealtime s[98:99]")
    A(f"s_mov_b64 s[{S2+2}:{S2+3}], s[{S1+2}:{S1+3}]"); A(f"s_mov_b32 s{S3+3}, s{SWQ+3}")
    A(f"s_mov_b32 s{SWS+2}, {(16<<20) if p['stamps'] else WS_USED}"); A(f"s_mov_b32 s{SWS+3}, s{SWQ+3}")
    A(f"v_and_b32 v{vT}, 1, v{vL}"); A(f"v_lshlrev_b32 v{vT}, 4, v{vT}")
    A(f"v_mov_b32 v{vT+1}, 0xffff"); A(f"v_lshlrev_b32 v{vT}, v{vT}, v{vT+1}")
    A(f"v_bfe_u32 v{vT+1}, v{vL}, 1, 2")
    for j in range(4): A(f"v_cmp_eq_u32 s[{sM0+2*j}:{sM0+2*j+1}], {j}, v{vT+1}")
    A(f"s_mov_b32 s{sSEL0}, 0x01000100"); A(f"s_mov_b32 s{sSEL1}, 0x03020302")
    for j in range(4): A(f"v_cndmask_b32 v{vM+j}, 0, v{vT}, s[{sM0+2*j}:{sM0+2*j+1}]")
    A(f"v_lshrrev_b32 v{vT}, 5, v{vL}"); A(f"v_and_b32 v{vT+3}, 16, v{vL}")
    A(f"v_lshl_add_u32 v{vLT}, v{vT+2}, 1, v{vT+3}")
    A(f"v_lshl_add_u32 v{vOFP}, v{vT}, 3, v{vLT}")
    A(f"v_lshl_add_u32 v{vLT}, v{vT}, 8, v{vLT}")
    A(f"s_movk_i32 s{sT0}, 1152"); A(f"v_mad_u32_u24 v{vOT}, v{vR3}, s{sT0}, v{vT+2}")
    A(f"s_lshl_b32 s{sT0}, s{sW}, 9"); A(f"v_add_u32 v{vT+2}, s{sT0}, v{vLT}")
    g.stamp(7, 2)
    A(f"s_cmp_eq_u32 s{sNOS}, 1"); A("s_cbranch_scc0 L_w1")
    A("s_waitcnt vmcnt(0)")
    g.lab("L_w1")
    g.vwait("x0")
    g.stamp(2)
    A(f"v_perm_b32 v{vT}, v{vX0}, v{vX0}, s{sSEL0}"); A(f"v_perm_b32 v{vT+1}, v{vX0}, v{vX0}, s{sSEL1}")
    build_A(g, vA, vT); build_A(g, vA+4, vT+1)
    A("s_cbranch_scc1 L_w2")
    for i in range(N0, NPRO): s1_issue(i)
    g.lab("L_w2")
    A(f"v_mov_b32 v{vT+5}, 1")
    A(f"{MF} {v4(vACC)}, {v4(vA)}, {v4(vWQ)}, 0")
    A(f"{MF} {v4(vACC)}, {v4(vA+4)}, {v4(vWQ+4)}, {v4(vACC)}")
    setexec(g, 0x00ff00ff, 0xff00ff00)
    A("s_waitcnt lgkmcnt(0)")
    A(f"s_mul_i32 s{sTAG}, s{sE}, 0x9e3779b1"); A(f"s_add_u32 s{sTAG}, s{sTAG}, 0x7f4a7c15")
    A(f"s_lshl_b32 s{sOO}, s{sW}, 7")
    A("s_nop 1")
    A(f"ds_write_b128 v{vT+2}, {v4(vACC)} offset:{L_QP}")
    A("s_mov_b64 exec, 1")
    A(f"ds_add_u32 v{vT+4}, v{vT+5} offset:{L_CNT}")
    A("s_mov_b64 exec, -1")
    A(f"s_cmp_lg_u32 s{sW}, 8"); A("s_cbranch_scc1 L_nopub")
    base = vV
    A(f"v_lshlrev_b32 v{vT}, 2, v{vL}")
    A(f"s_lshl_b32 s{sT0}, s{sXCD}, 5"); A(f"s_add_u32 s{sT0}, s{sT0}, s{sJ}")
    A(f"s_lshl_b32 s{sT0}, s{sT0}, 8"); A(f"s_add_u32 s{sT0}, s{sT0}, {QB}"); A(f"s_add_u32 s{sT1}, s{sT0}, {AOFF}")
    A(f"v_and_b32 v{vT+1}, 3, v{vL}"); A(f"v_lshlrev_b32 v{vT+1}, 3, v{vT+1}"); A(f"v_mov_b32 v{vT+6}, s{sTAG}")
    A(f"v_lshrrev_b32 v{vT+1}, v{vT+1}, v{vT+6}"); A(f"s_movk_i32 s{sFF}, 0xff")
    g.lab("L_cnt")
    A(f"ds_read_b32 v{vT+6}, v{vT+4} offset:{L_CNT}")
    A("s_waitcnt lgkmcnt(0)")
    A(f"v_cmp_ne_u32 vcc, 9, v{vT+6}")
    A("s_cbranch_vccnz L_cnt")
    for k in range(9): A(f"ds_read2st64_b32 {v2(base+2*k)}, v{vT} offset0:{L_QP//256+2*k} offset1:{L_QP//256+2*k+1}")
    A("s_waitcnt lgkmcnt(0)")
    for a, b in ((0,1),(2,3),(4,5),(6,7),(0,2),(4,6),(0,4),(0,8)):
        A(f"v_pk_add_f32 {v2(base+2*a)}, {v2(base+2*a)}, {v2(base+2*b)}")
    A(f"v_add_f32 v{vT+8}, v{base}, v{base+1}")
    A(f"v_bfi_b32 v{vT+8}, s{sFF}, v{vT+1}, v{vT+8}")
    A(f"buffer_store_dword v{vT+8}, v{vT}, {srd(SWS)}, s{sT1} offen")
    A(f"buffer_store_dword v{vT+8}, v{vT}, {srd(SWS)}, s{sT0} offen sc1")
    g.stamp(3)
    A(f"s_cmp_lt_u32 s{sJ}, 22"); A("s_cbranch_scc1 L_attn8")
    g.lab("L_nopub")
    A(f"s_cmp_ge_u32 s{sJ}, 22"); A("s_cbranch_scc1 L_notattn")
    pre = list(g.vm)
    def attn_consts():
        A(f"s_lshl_b32 s{sT0}, s{sHK}, 5"); A(f"s_add_u32 s{sT0}, s{sT0}, s{sSLOT}"); A(f"s_mul_i32 s{sT0}, s{sT0}, 9216")
        A(f"s_add_u32 s{sOO}, s{sOO}, s{sT0}")
        A(f"s_mul_i32 s{sPI}, s{sHK}, 11"); A(f"s_add_u32 s{sPI}, s{sPI}, s{sSLOT}")
        fpub_consts(g, f"s{sW}")
        A(f"s_cmp_lt_u32 s{sSLOT}, 10"); A(f"s_cselect_b32 s{sT0}, 0, {OOB:#x}")
        A(f"v_add_u32 v{vOD}, s{sT0}, v{vOT}")
        A(f"v_and_b32 v{vT}, 15, v{vL}"); A(f"v_lshrrev_b32 v{vT+1}, 4, v{vL}")
        A(f"v_lshlrev_b32 v{vOU}, 11, v{vT}"); A(f"v_lshl_add_u32 v{vOU}, v{vT+1}, 4, v{vOU}")
    for i in range(NPRO, WA): s1_issue(i)
    A(f"s_cmp_lt_u32 s{sSLOT}, 2"); A(f"s_cselect_b32 s{sT0}, 7, 6")
    A(f"s_and_b32 s{sT1}, s{sSLOT}, 3"); A(f"s_cmp_eq_u32 s{sT1}, 3"); A(f"s_cselect_b32 s{sT0}, 0, s{sT0}")
    A(f"s_cmp_lt_u32 s{sW}, s{sT0}"); A(f"s_cselect_b32 s{sT0}, 0, {OOB:#x}"); A(f"s_cselect_b32 s{sBIAS}, 0, {f2u(-1e30):#x}")
    A(f"v_add_u32 v{vOKL}, s{sT0}, v{vOK}"); A(f"v_add_u32 v{vOVL}, s{sT0}, v{vOV}")
    seq = [("K", i) for i in range(12)] + [("V", i) for i in range(12)] + [("O", i) for i in range(3 - p.get("olate", 0))]
    def late_o():
        for i in range(3 - p.get("olate", 0), 3):
            A(f"buffer_load_dwordx4 {v4(vV+4*i)}, v{vOD if i == 2 else vOT}, {srd(S3)}, s{sOO} offen {nt}")
            if i < 2: A(f"s_add_u32 s{sOO}, s{sOO}, {11*9216}")
    pos = [max(NPRO, WA)]; land = [0]; vdone = [-1]
    def can_issue():
        if pos[0] >= len(seq): return False
        kind, i = seq[pos[0]]
        return kind != "O" or i <= vdone[0]
    def issue():
        kind, i = seq[pos[0]]; pos[0] += 1
        if kind == "O":
            A(f"buffer_load_dwordx4 {v4(vV+4*i)}, v{vOD if i == 2 else vOT}, {srd(S3)}, s{sOO} offen {nt}")
            if i < 2: A(f"s_add_u32 s{sOO}, s{sOO}, {11*9216}")
        else:
            off = {("K", True): vOKL, ("K", False): vOK, ("V", True): vOVL, ("V", False): vOV}[(kind, i == 11)]
            A(f"buffer_load_dwordx4 {v4((vK if kind == 'K' else vV)+4*i)}, v{off}, {srd(S1 if kind == 'K' else S2)}, s{sRUN} offen {nt}")
            if i < 11: A(f"s_add_u32 s{sRUN}, s{sRUN}, s{sST2 if (i == 10 and p.get('sweep')) else sSTEP}")
            elif kind == "K": A(f"s_mov_b32 s{sRUN}, s{sKO}")
        g.vissue(f"{kind}{i}")
    def refill():
        while pos[0] - land[0] < WA and can_issue(): issue()
    def step():
        kind, i = seq[land[0]]; land[0] += 1
        g.vwait(f"{kind}{i}")
        if f"{kind}{i}" in PROG: g.stamp(PROG[f"{kind}{i}"], True)
        refill()
        if p.get("gate") == f"{kind}{i}":
            A(f"s_lshl4_add_u32 s{sT0}, s{sJ}, s{sW}"); A(f"s_cmp_lg_u32 s{sT0}, {p.get('gsrc', 5)*16+7}"); A("s_cbranch_scc1 L_nogate")
            A(f"s_lshl_b32 s{sT0}, s{sXCD}, 7"); A(f"v_mov_b32 v{vT+8}, s{sTAG}"); A(f"v_mov_b32 v{vT+9}, 0"); A("s_mov_b64 exec, 1")
            A(f"buffer_store_dword v{vT+8}, v{vT+9}, {srd(SWS)}, s{sT0} offen offset:2048 sc1"); A("s_mov_b64 exec, -1")
            g.lab("L_nogate")
    nmid = [p["nmid"]]
    def mid():
        if nmid[0] > 0 and can_issue(): issue(); nmid[0] -= 1; return True
        return False
    refill()
    g.stamp(8, 2)
    step(); attn_consts()
    while land[0] < 12 + p["bpos"] + 1: step()
    g.stamp(3)
    A(f"v_and_b32 v{vT}, 0xf0, v{vOK}"); A(f"v_and_b32 v{vT+1}, 1, v{vR3}")
    A(f"v_lshl_add_u32 v{vT}, v{vT+1}, 8, v{vT}")
    A("s_barrier")
    A(f"ds_read_b128 {v4(vA)}, v{vT} offset:{L_Q}")
    A(f"s_mov_b32 s{sC}, {f2u(128**-0.5 * 1.4426950408889634):#x}")
    A(f"v_lshlrev_b32 v{vT+1}, 5, v{vT+1}"); A(f"s_lshl_b32 s{sT0}, s{sW}, 2"); A(f"v_add_u32 v{vT+3}, s{sT0}, v{vT+1}")
    A("s_waitcnt lgkmcnt(0)")
    for i in range(12): A(f"{MF} {v4(vK+4*i)}, {v4(vK+4*i)}, {v4(vA)}, 0")
    for i in range(12): A(f"v_mov_b32_dpp v{vP+i}, v{vK+4*i} quad_perm:[0,0,0,0] {DPP}")
    for r in (1, 2, 3):
        if r == 2: mid()
        for i in range(12): A(f"v_add_f32_dpp v{vP+i}, v{vK+4*i+r}, v{vP+i} quad_perm:[{r},{r},{r},{r}] {DPP}")
    A(f"v_add_f32 v{vP+11}, s{sBIAS}, v{vP+11}")
    A(f"v_max3_f32 v{vT}, v{vP}, v{vP+1}, v{vP+2}")
    for i in range(3, 11, 2): A(f"v_max3_f32 v{vT}, v{vT}, v{vP+i}, v{vP+i+1}")
    A(f"v_max_f32 v{vT}, v{vT}, v{vP+11}")
    crossrow(g, "v_max_f32", vT, vT+2)
    setexec(g, 0x101, 0)
    A(f"ds_write_b32 v{vT+3}, v{vT} offset:{L_M}")
    A("s_mov_b64 exec, -1")
    mid()
    A("s_waitcnt lgkmcnt(0)")
    A("s_barrier")
    A(f"ds_read_b128 {v4(vA)}, v{vT+1} offset:{L_M}"); A(f"ds_read_b128 {v4(vA+4)}, v{vT+1} offset:{L_M+16}")
    A(f"v_and_b32 v{vT+5}, 15, v{vL}"); A(f"v_lshlrev_b32 v{vT+5}, 5, v{vT+5}")
    A(f"v_and_b32 v{vT+6}, 16, v{vL}"); A(f"v_add_u32 v{vT+5}, v{vT+5}, v{vT+6}")
    A(f"v_lshrrev_b32 v{vT+6}, 5, v{vL}"); A(f"v_lshl_add_u32 v{vT+5}, v{vT+6}, 9, v{vT+5}")
    A(f"s_lshl_b32 s{sT0}, s{sW}, 10"); A(f"v_add_u32 v{vT+5}, s{sT0}, v{vT+5}")
    A("s_waitcnt lgkmcnt(0)")
    A(f"v_max3_f32 v{vT}, v{vA}, v{vA+1}, v{vA+2}"); A(f"v_max3_f32 v{vT}, v{vT}, v{vA+3}, v{vA+4}")
    A(f"v_max3_f32 v{vT}, v{vT}, v{vA+5}, v{vA+6}"); A(f"v_max_f32 v{vT}, v{vT}, v{vA+7}")
    A(f"v_mul_f32 v{vT}, s{sC}, v{vT}")
    for i in range(12): A(f"v_fma_f32 v{vP+i}, v{vP+i}, s{sC}, -v{vT}")
    for i in range(12): A(f"v_exp_f32 v{vP+i}, v{vP+i}")
    if not mid(): A("s_nop 0")
    A(f"v_add_f32 v{vT+4}, v{vP}, v{vP+1}")
    for i in range(2, 12): A(f"v_add_f32 v{vT+4}, v{vT+4}, v{vP+i}")
    for i in range(12): A(f"v_cvt_pk_bf16_f32 v{vP+i}, v{vP+i}, v{vP+i}")
    crossrow(g, "v_add_f32", vT+4, vT+2)
    setexec(g, 0x101, 0)
    A(f"ds_write_b32 v{vT+3}, v{vT+4} offset:{L_L}")
    A("s_mov_b64 exec, -1")
    mid()
    for i in range(12): build_A(g, vK+4*i, vP+i)
    A("s_waitcnt lgkmcnt(0)")
    A("s_barrier")
    A(f"s_cmp_lt_u32 s{sW}, 6"); A("s_cbranch_scc1 L_nolse")
    A(f"s_sub_u32 s{sT0}, s{sW}, 6")
    A(f"s_lshl_b32 s{sT1}, s{sT0}, 5"); A(f"v_mov_b32 v{vT+1}, s{sT1}")
    A(f"ds_read_b128 {v4(vA)}, v{vT+1} offset:{L_L}"); A(f"ds_read_b128 {v4(vA+4)}, v{vT+1} offset:{L_L+16}")
    A(f"ds_read_b128 {v4(vP)}, v{vT+1} offset:{L_M}"); A(f"ds_read_b128 {v4(vP+4)}, v{vT+1} offset:{L_M+16}")
    A(f"s_lshl_b32 s{sT1}, s{sT0}, 9"); A(f"v_lshl_add_u32 v{vT+2}, v{vL}, 3, s{sT1}")
    A(f"s_lshl4_add_u32 s{sT3}, s{sHK}, s{sSLOT}"); A(f"s_lshl1_add_u32 s{sT3}, s{sT3}, s{sT0}"); A(f"s_lshl_b32 s{sT3}, s{sT3}, 10")
    A(f"s_add_u32 s{sT3}, s{sT3}, {OB}"); A(f"s_add_u32 s{sT4}, s{sT3}, {AOFF}")
    A("s_waitcnt lgkmcnt(0)")
    A(f"v_pk_add_f32 {v2(vA)}, {v2(vA)}, {v2(vA+2)}"); A(f"v_pk_add_f32 {v2(vA+4)}, {v2(vA+4)}, {v2(vA+6)}")
    A(f"v_max3_f32 v{vT}, v{vP}, v{vP+1}, v{vP+2}")
    A(f"v_pk_add_f32 {v2(vA)}, {v2(vA)}, {v2(vA+4)}")
    A(f"v_max3_f32 v{vT}, v{vT}, v{vP+3}, v{vP+4}")
    A(f"v_add_f32 v{vA}, v{vA}, v{vA+1}")
    A(f"v_max3_f32 v{vT}, v{vT}, v{vP+5}, v{vP+6}")
    A(f"v_rcp_f32 v{vA+2}, v{vA}"); A(f"v_log_f32 v{vA+4}, v{vA}")
    A(f"v_max_f32 v{vT}, v{vT}, v{vP+7}")
    A(f"v_mov_b32 v{vP+11}, s{sTAG}")
    A(f"v_fma_f32 v{vP+10}, v{vT}, s{sC}, v{vA+4}")
    g.lab("L_nolse")
    g.stamp(4)
    for i in range(12):
        if land[0] <= 12 + i:
            land[0] += 1; g.vwait(f"V{i}")
            if f"V{i}" in PROG: g.stamp(PROG[f"V{i}"], True)
        A(f"{MF} {v4(vACC)}, {v4(vK+4*i)}, {v4(vV+4*i)}, {'0' if i == 0 else v4(vACC)}")
        vdone[0] = i
        refill()
    assert pos[0] == len(seq)
    g.stamp(5)
    A("s_nop 7")
    A(f"ds_write_b128 v{vT+5}, {v4(vACC)} offset:{L_O}")
    A("s_waitcnt lgkmcnt(0)")
    A("s_branch L_barC")
    g.L.append(".p2align 12")
    if p.get("w9"):
        g.lab("L_warmA"); A("s_endpgm")
    g.lab("L_attn8")
    if p["prio"]: A("s_setprio 3")
    A(f"s_mov_b32 s{sNOS}, 0")
    attn_consts()
    A(f"s_lshl_b32 s{sT2}, s{sHK}, 12"); A(f"s_add_u32 s{sT2}, s{sT2}, {QB}"); A(f"s_add_u32 s{sT0}, s{sT2}, {AOFF}")
    A(f"s_mov_b32 s{sSPIN}, {SPIN}")
    tagsel(g)
    g.lab("L_qpoll")
    A(f"s_sleep {p['qsleep']}")
    for rg in range(4):
        A(f"buffer_load_dwordx4 {v4(vK+4*rg)}, v{vOV}, {srd(SWS)}, s{sT0} offen offset:{rg*1024} sc1")
    A(f"s_sub_u32 s{sSPIN}, s{sSPIN}, 1"); A("s_cbranch_scc1 L_qpoll_end")
    A(f"s_cmp_eq_u32 s{sSPIN}, {max(SPIN-p['apolls']//4,0)}"); A(f"s_cselect_b32 s{sT0}, s{sT2}, s{sT0}")
    A("s_waitcnt vmcnt(0)")
    for rg in range(4): tagcheck(g, vK+4*rg, vT+2*rg)
    for rg in range(4): A(f"v_xor_b32 v{vT+2*rg}, s{sTAG}, v{vT+2*rg}")
    A(f"v_or3_b32 v{vT}, v{vT}, v{vT+2}, v{vT+4}"); A(f"v_or_b32 v{vT}, v{vT}, v{vT+6}")
    A(f"v_cmp_ne_u32 vcc, 0, v{vT}")
    A("s_cbranch_vccnz L_qpoll")
    g.lab("L_qpoll_end")
    for k in (0, 2):
        A(f"v_pk_add_f32 {v2(vK+k)}, {v2(vK+k)}, {v2(vK+4+k)}"); A(f"v_pk_add_f32 {v2(vK+8+k)}, {v2(vK+8+k)}, {v2(vK+12+k)}")
    for k in (0, 2): A(f"v_pk_add_f32 {v2(vK+k)}, {v2(vK+k)}, {v2(vK+8+k)}")
    A(f"v_cvt_pk_bf16_f32 v{vK}, v{vK}, v{vK+1}"); A(f"v_cvt_pk_bf16_f32 v{vK+1}, v{vK+2}, v{vK+3}")
    A(f"v_lshlrev_b32 v{vT}, 3, v{vL}")
    A(f"ds_write_b64 v{vT}, {v2(vK)} offset:{L_Q}")
    A("s_waitcnt lgkmcnt(0)")
    if p.get("gate"):
        A(f"v_lshlrev_b32 v{vT}, 7, v{vL}")
        A(f"s_lshl_b32 s{sT0}, 1, s{sXCD}"); A(f"s_xor_b32 exec_lo, s{sT0}, 0xff"); A("s_mov_b32 exec_hi, 0")
        g.lab("L_gpoll")
        A(f"s_sleep {p.get('gsleep', 2)}")
        A(f"buffer_load_dword v{vT+1}, v{vT}, {srd(SWS)}, 0 offen offset:2048 sc1")
        A(f"s_sub_u32 s{sSPIN}, s{sSPIN}, 1"); A("s_cbranch_scc1 L_gpoll_end")
        A("s_waitcnt vmcnt(0)")
        A(f"v_cmpx_ne_u32 vcc, s{sTAG}, v{vT+1}")
        A("s_cbranch_execnz L_gpoll")
        g.lab("L_gpoll_end")
        A("s_mov_b64 exec, -1")
    g.stamp(4)
    A("s_barrier")
    if p["pretouch"]:
        A(f"s_lshl4_add_u32 s{sT1}, s{sHK}, s{sSLOT}"); A(f"s_lshl_b32 s{sT1}, s{sT1}, 11"); A(f"s_add_u32 s{sT1}, s{sT1}, {OB+AOFF}")
        A(f"v_lshlrev_b32 v{vT}, 7, v{vL}")
        setexec(g, 0xffff, 0)
        A(f"buffer_load_dword v{vT+1}, v{vT}, {srd(SWS)}, s{sT1} offen sc1")
        A("s_mov_b64 exec, -1")
    A("s_barrier")
    for i in range(3 - p.get("olate", 0)):
        A(f"buffer_load_dwordx4 {v4(vV+4*i)}, v{vOD if i == 2 else vOT}, {srd(S3)}, s{sOO} offen {nt}")
        if i < 2: A(f"s_add_u32 s{sOO}, s{sOO}, {11*9216}")
    A("s_barrier")
    if p.get("warm", 1): A("s_branch L_warmT")
    g.lab("L_barC")
    A("s_barrier")
    A(f"s_cmp_lt_u32 s{sW}, 3"); A("s_cbranch_scc1 L_ogather")
    A(f"s_sub_u32 s{sT0}, s{sW}, 6"); A(f"s_cmp_lt_u32 s{sT0}, 2"); A("s_cbranch_scc0 " + ("L_barC2" if p.get("c2") else "L_barD"))
    for w in range(8): A(f"ds_read_b64 {v2(vK+2*w)}, v{vT+2} offset:{L_O+1024*w}")
    A("s_waitcnt lgkmcnt(4)")
    for a, b in ((0,1),(2,3),(0,2)): A(f"v_pk_add_f32 {v2(vK+2*a)}, {v2(vK+2*a)}, {v2(vK+2*b)}")
    A("s_waitcnt lgkmcnt(0)")
    for a, b in ((4,5),(6,7),(0,4),(0,6)): A(f"v_pk_add_f32 {v2(vK+2*a)}, {v2(vK+2*a)}, {v2(vK+2*b)}")
    A(f"v_mul_f32 v{vP+8}, v{vK}, v{vA+2}"); A(f"v_mul_f32 v{vP+9}, v{vK+1}, v{vA+2}")
    A(f"buffer_store_dwordx4 {v4(vP+8)}, v{vOV}, {srd(SWS)}, s{sT4} offen")
    g.stamp(6)
    A("s_barrier")
    late_o()
    A(f"buffer_store_dwordx4 {v4(vP+8)}, v{vOV}, {srd(SWS)}, s{sT3} offen sc1")
    A(f"s_mov_b32 s{sNOS}, 1")
    A("s_branch L_barD0")
    if p.get("c2"):
        g.lab("L_barC2")
        is45(g, "L_barC3")
        hsetup(g)
        A(f"s_mov_b32 s{sNOS}, 2")
        A("s_barrier")
        late_o()
        if p.get("hpos", 0) == 0:
            setexec(g, 0x3ffff, 0); hload(g); A("s_mov_b64 exec, -1")
        A("s_barrier")
        if p.get("hpos", 0) == 1:
            setexec(g, 0x3ffff, 0); hload(g); A("s_mov_b64 exec, -1")
        dissue(g)
        A("s_branch L_barD")
        g.lab("L_barC3"); A("s_barrier"); late_o()
        g.lab("L_barD0"); A("s_barrier"); A("s_branch L_barD")
    g.lab("L_ogather")
    A(f"s_mul_i32 s{sT0}, s{sW}, 11"); A(f"s_add_u32 s{sT0}, s{sT0}, s{sSLOT}")
    A(f"s_lshl_b32 s{sT1}, s{sHK}, 15"); A(f"s_lshl_b32 s{sT2}, s{sT0}, 6"); A(f"s_add_u32 s{sT1}, s{sT1}, s{sT2}"); A(f"s_add_u32 s{sT2}, s{sT1}, {OB}")
    A(f"s_add_u32 s{sT1}, s{sT2}, {AOFF}")
    A(f"v_mov_b32 v{vA}, 0"); A(f"v_mov_b32 v{vA+1}, 0"); A(f"v_mov_b32 v{vA+2}, {f2u(-1e30):#x}")
    A(f"v_lshrrev_b32 v{vT+1}, 4, v{vL}")
    A(f"s_lshl_b32 s{sT3}, s{sW}, 5"); A(f"v_lshl_add_u32 v{vT+3}, v{vT+1}, 3, s{sT3}")
    A(f"s_mov_b32 s{sSPIN}, {SPIN}")
    if p.get("olate"):
        A(f"s_cmp_ge_u32 s{sT0}, 32"); A("s_cbranch_scc0 L_op0")
        A("s_barrier"); late_o(); A("s_barrier"); A("s_branch L_owrite")
        g.lab("L_op0")
        setexec(g, 0x07ff07ff, 0x07ff07ff)
        A("s_setprio 3")
        A("s_barrier")
        A(f"buffer_load_dwordx4 {v4(vA)}, v{vOU}, {srd(SWS)}, s{sT1} offen sc1")
        A("s_mov_b64 exec, -1")
        late_o()
        setexec(g, 0x07ff07ff, 0x07ff07ff)
        A(f"s_waitcnt vmcnt({p['olate']})")
        A(f"v_cmpx_ne_u32 vcc, s{sTAG}, v{vA+3}")
        A("s_cbranch_execz L_opoll_end")
    else:
        A("s_barrier")
        A(f"s_cmp_ge_u32 s{sT0}, 32"); A("s_cbranch_scc1 L_owrite")
        setexec(g, 0x07ff07ff, 0x07ff07ff)
    g.lab("L_opoll")
    A(f"buffer_load_dwordx4 {v4(vA)}, v{vOU}, {srd(SWS)}, s{sT1} offen sc1")
    A(f"s_sub_u32 s{sSPIN}, s{sSPIN}, 1"); A("s_cbranch_scc1 L_opoll_end")
    A(f"s_cmp_eq_u32 s{sSPIN}, {SW}"); A(f"s_cselect_b32 s{sT1}, s{sT2}, s{sT1}")
    A("s_waitcnt vmcnt(0)")
    A(f"v_cmpx_ne_u32 vcc, s{sTAG}, v{vA+3}")
    A("s_cbranch_execnz L_opoll")
    g.lab("L_opoll_end")
    A("s_barrier")
    A("s_mov_b64 exec, -1")
    g.stamp(6)
    A(f"v_mov_b32 v{vT+4}, v{vA+2}")
    A("s_nop 1")
    rowred(g, "v_max_f32", [vT+4])
    A(f"v_sub_f32 v{vA+2}, v{vA+2}, v{vT+4}")
    A(f"v_exp_f32 v{vA+2}, v{vA+2}")
    A("s_nop 0")
    A(f"v_mul_f32 v{vA}, v{vA}, v{vA+2}"); A(f"v_mul_f32 v{vA+1}, v{vA+1}, v{vA+2}")
    A("s_nop 0")
    rowred(g, "v_add_f32", [vA+2, vA, vA+1])
    A(f"v_rcp_f32 v{vA+2}, v{vA+2}")
    A("s_nop 0")
    A(f"v_mul_f32 v{vA}, v{vA}, v{vA+2}"); A(f"v_mul_f32 v{vA+1}, v{vA+1}, v{vA+2}")
    A(f"v_cvt_pk_bf16_f32 v{vA}, v{vA}, v{vA}"); A(f"v_cvt_pk_bf16_f32 v{vA+1}, v{vA+1}, v{vA+1}")
    if p.get("warm", 1):
        A("s_branch L_owrite")
        g.lab("L_warmT"); A("s_branch L_barC")
    g.lab("L_owrite")
    setexec(g, 0x00010001, 0x00010001)
    A(f"ds_write_b64 v{vT+3}, {v2(vA)} offset:{L_C}")
    A("s_mov_b64 exec, -1")
    g.lab("L_barD")
    A(f"v_lshlrev_b32 v{vT}, 2, v{vR3}")
    A("s_waitcnt lgkmcnt(0)")
    A("s_barrier")
    g.stamp(8)
    for i in range(3): A(f"ds_read_b32 v{vP+i}, v{vT} offset:{L_C+32*i}")
    A(f"s_cmp_eq_u32 s{sNOS}, 2")
    A("s_waitcnt lgkmcnt(0)")
    for i in range(3): build_A(g, vK+4*i, vP+i)
    A("s_waitcnt vmcnt(10)")
    A("s_cbranch_scc1 L_wo")
    A(f"s_cmp_eq_u32 s{sNOS}, 1")
    A("s_waitcnt vmcnt(1)")
    A("s_cbranch_scc1 L_wo")
    A("s_waitcnt vmcnt(0)")
    g.lab("L_wo")
    for i in range(3): A(f"{MF} {v4(vACC+4)}, {v4(vK+4*i)}, {v4(vV+4*i)}, {'0' if i == 0 else v4(vACC+4)}")
    hd = p.get("hd")
    if hd and hd[0] == "A":
        g.stamp(9)
        A(f"s_cmp_eq_u32 s2, {p.get('hdwg', 43)}"); A("s_cbranch_scc0 L_hd1"); A(f"s_cmp_eq_u32 s{sW}, {hd[1]}"); A("s_cbranch_scc0 L_hd1")
        A("s_waitcnt lgkmcnt(0)"); A(f"s_sub_u32 s{sT0}, s{80+2*hd[3]}, s{80+2*hd[2]}")
        A(f"v_mov_b32 v{vT}, s{sT0}"); A(f"v_mov_b32 v{vT+1}, 0"); A("s_mov_b64 exec, 1")
        A(f"buffer_store_dword v{vT}, v{vT+1}, {srd(SWS)}, 0 offen offset:1024 sc1"); A("s_mov_b64 exec, -1")
        g.lab("L_hd1")
    fpublish(g, vACC+4)
    g.stamp(7)
    A(f"s_cmp_eq_u32 s{sNOS}, 2"); A("s_cbranch_scc0 L_aend")
    A("s_waitcnt vmcnt(10)")
    hgather(g, "a", SPIN, 1, True)
    dshare(g, 1)
    g.stamp(2)
    g.lab("L_aend")
    A("s_endpgm" if not p["stamps"] else "s_branch L_fin")
    g.L.append(".p2align 12")
    if p.get("w9"):
        g.lab("L_warmF"); A("s_endpgm")
    g.lab("L_notattn")
    if not p["helper"]:
        A(f"s_cmp_eq_u32 s{sJ}, 31"); A("s_cbranch_scc1 L_fin")
    g.vm = list(pre)
    if p.get("diag"):
        A(f"s_cmp_eq_u32 s{sJ}, 22"); A("s_cbranch_scc0 L_dg1"); A(f"s_cmp_eq_u32 s{sW}, 0"); A("s_cbranch_scc0 L_dg1")
        A(f"v_mov_b32 v{vT}, s90"); A(f"v_mov_b32 v{vT+1}, 0"); A(f"s_lshl_b32 s{sT0}, s{sXCD}, 7"); A("s_mov_b64 exec, 1")
        A(f"buffer_store_dword v{vT}, v{vT+1}, {srd(SWS)}, s{sT0} offen offset:1024 sc1"); A("s_mov_b64 exec, -1")
        g.lab("L_dg1")
    A(f"v_and_b32 v{vT+1}, 7, v{vL}"); A(f"v_mad_u32_u24 v{vT}, v{vR3}, 64, v{vT+1}"); A(f"v_lshl_add_u32 v{vT}, v{vR3}, 3, v{vT}")
    A(f"v_lshlrev_b32 v{vT}, 1, v{vT}"); A(f"s_lshl_b32 s{sT0}, s{sWE}, 4")
    A(f"s_mov_b64 s[{SGW+2}:{SGW+3}], s[{SX+2}:{SX+3}]"); A(f"s_mov_b64 s[{SOUT+2}:{SOUT+3}], s[{SX+2}:{SX+3}]")
    A(f"buffer_load_ushort v{vXG}, v{vT}, {srd(SX)}, s{sT0} offen"); g.vissue("xg")
    A(f"buffer_load_ushort v{vGW}, v{vT}, {srd(SGW)}, s{sT0} offen"); g.vissue("gw")
    A(f"s_cmp_eq_u32 s{sMODE}, 2"); A(f"s_cselect_b32 s{sT0}, {OOB:#x}, 0")
    A(f"v_or_b32 v{vOU}, s{sT0}, v{vOK}")
    fseq = [("K", t) for t in range(8)] + [("U", t) for t in range(8)]
    def greg(kind, t): return {"K": vK+4*t, "U": vK+32+4*t, "D": vK+32+4*t}[kind]
    fpos = [NPRO]
    def fissue():
        kind, t = fseq[fpos[0]]; fpos[0] += 1
        if True:
            A(f"buffer_load_dwordx4 {v4(greg(kind,t))}, v{vOK if kind == 'K' else vOU}, {srd(S1 if kind == 'K' else S2)}, s{sRUN} offen {nt}")
            if t < 7: A(f"s_add_u32 s{sRUN}, s{sRUN}, s{sSTEP}")
            elif kind == "K": A(f"s_mov_b32 s{sRUN}, s{sKO}")
        g.vissue(f"{kind}{t}")
    A(f"s_mul_i32 s{sOO}, s{sU}, {64*1152}"); A(f"s_add_u32 s{sOO}, s{sOO}, 1024")
    A(f"s_add_u32 s{sPI}, s{sU}, 176")
    fpub_consts(g, "8", True)
    fl = 0
    while fpos[0] < WF: fissue()
    for idx in range(NPRO):
        g.vwait(f"K{idx}"); fl = idx + 1
        while fpos[0] - fl < WF: fissue()
    g.vwait("gw")
    A(f"v_lshl_or_b32 v{vT+4}, v{vXG}, 16, v{vXG}")
    A(f"v_lshlrev_b32 v{vT+5}, 2, v{vR3}")
    for t in range(8): A(f"ds_bpermute_b32 v{vP+t}, v{vT+5}, v{vT+4} offset:{32*t}")
    A(f"v_lshlrev_b32 v{vXG}, 16, v{vXG}"); A(f"v_lshlrev_b32 v{vGW}, 16, v{vGW}")
    A(f"v_mul_f32 v{vXG}, v{vXG}, v{vGW}")
    bf16r(g, vXG, vXG)
    rowred(g, "v_add_f32", [vXG]); crossrow(g, "v_add_f32", vXG, vT)
    A(f"s_lshl_b32 s{sT0}, s{sW}, 2"); A(f"v_mov_b32 v{vT+3}, s{sT0}")
    A("s_mov_b64 exec, 1")
    A(f"ds_write_b32 v{vT+3}, v{vXG} offset:{L_Z}")
    A("s_mov_b64 exec, -1")
    A("s_waitcnt lgkmcnt(0)")
    vRO, vRB, vRL = vOKL, vOVL, vOWQ
    A(f"v_and_b32 v{vT}, 31, v{vL}"); A(f"v_lshrrev_b32 v{vT+1}, 5, v{vL}")
    A(f"v_mul_u32_u24 v{vRB}, {FROW}, v{vT}"); A(f"v_lshl_add_u32 v{vRB}, v{vT+1}, 4, v{vRB}")
    A(f"s_lshl3_add_u32 s{sC}, s{sXCD}, s{sJ}"); A(f"s_sub_u32 s{sC}, s{sC}, 22"); A(f"s_add_u32 s{sT1}, s{sXCD}, 64")
    A(f"s_cmp_eq_u32 s{sJ}, 30"); A(f"s_cselect_b32 s{sC}, s{sT1}, s{sC}")
    A(f"s_mul_i32 s{sBIAS}, s{sW}, {32*FROW}"); A(f"s_lshl_b32 s{sT1}, s{sC}, 5"); A(f"s_add_u32 s{sBIAS}, s{sBIAS}, s{sT1}")
    A(f"s_add_u32 s{sBIAS}, s{sBIAS}, {FB}")
    A(f"s_lshl_b32 s{sT2}, s{sW}, 5"); A(f"v_add_u32 v{vT+10}, s{sT2}, v{vT}")
    A(f"s_movk_i32 s{sT3}, 240"); A(f"s_cmp_eq_u32 s{sJ}, 30"); A(f"s_cselect_b32 s{sT3}, 248, s{sT3}"); A(f"s_cselect_b32 s{sT4}, 9, 64"); A(f"s_cselect_b32 s{sT1}, s{sXCD}, 0")
    A(f"v_cmp_gt_u32 s[{sM0}:{sM0+1}], s{sT3}, v{vT+10}")
    A(f"v_lshlrev_b32 v{vRL}, 1, v{vT+10}"); A(f"v_lshl_add_u32 v{vRL}, v{vT+1}, 4, v{vRL}")
    A(f"s_mul_i32 s{sT2}, s{sXCD}, 22"); A(f"s_mul_i32 s{sT3}, s{sT1}, 9"); A(f"s_add_u32 s{sT3}, s{sT3}, 176")
    A(f"v_subrev_u32 v{vT+11}, s{sT2}, v{vT+10}"); A(f"v_subrev_u32 v{vT+12}, s{sT3}, v{vT+10}")
    A(f"v_cmp_gt_u32 s[{sM0+2}:{sM0+3}], 22, v{vT+11}")
    A(f"v_cmp_gt_u32 vcc, s{sT4}, v{vT+12}")
    A(f"v_mov_b32 v{vT+4}, {AOFF}")
    A(f"s_or_b64 vcc, s[{sM0+2}:{sM0+3}], vcc")
    tagsel(g)
    A(f"v_cndmask_b32 v{vRO}, 0, v{vT+4}, vcc")
    A(f"v_add_u32 v{vRO}, v{vRO}, v{vRB}")
    A(f"s_cmp_eq_u32 s{sMODE}, 1"); A("s_cbranch_scc1 L_m1")
    ng = 0
    for idx, (kind, t) in enumerate(fseq):
        if ng == 16: break
        if ng == 8 and kind == "U" and t == 0:
            A(f"s_cmp_eq_u32 s{sMODE}, 2"); A("s_cbranch_scc1 L_help")
        if kind != "D": build_A(g, vA+4*(ng & 1), vP+t)
        k = 0
        if idx >= fl:
            g.vwait(f"{kind}{t}"); fl = idx + 1; k = 1
            Wn = p.get("WF1", WF) if idx < p.get("wf1n", 0) else WF
            while fpos[0] - fl < Wn and fpos[0] < len(fseq): fissue(); k += 1
        if kind != "D":
            if k < 2: A(f"s_nop {1-k}")
            acc = vACC if kind == "K" else vACC+4
            A(f"{MF} {v4(acc)}, {v4(vA+4*(ng&1))}, {v4(greg(kind,t))}, {'0' if t == 0 else v4(acc)}")
            ng += 1
    g.stamp(4)
    A("s_nop 1")
    A(f"s_lshl_b32 s{sT0}, s{sW}, 9"); A(f"v_add_u32 v{vT+2}, s{sT0}, v{vOFP}")
    A(f"v_permlane32_swap_b32 v{vACC}, v{vACC+2}"); A(f"v_permlane32_swap_b32 v{vACC+1}, v{vACC+3}")
    A("s_nop 1")
    A(f"v_add_f32_dpp v{vACC}, v{vACC+2}, v{vACC} row_ror:8 {DPP}"); A(f"v_add_f32_dpp v{vACC+1}, v{vACC+3}, v{vACC+1} row_ror:8 {DPP}")
    A(f"v_permlane32_swap_b32 v{vACC+4}, v{vACC+6}"); A(f"v_permlane32_swap_b32 v{vACC+5}, v{vACC+7}")
    A("s_nop 0")
    A(f"v_add_f32_dpp v{vACC+4}, v{vACC+6}, v{vACC+4} row_ror:8 {DPP}"); A(f"v_add_f32_dpp v{vACC+5}, v{vACC+7}, v{vACC+5} row_ror:8 {DPP}")
    setexec(g, 0x00ff00ff, 0x00ff00ff)
    A(f"ds_write_b64 v{vT+2}, {v2(vACC)} offset:{L_O}")
    A(f"ds_write_b64 v{vT+2}, {v2(vACC+4)} offset:{L_O+256}")
    A("s_mov_b64 exec, -1")
    g.lab("L_barE")
    A(f"s_cmp_eq_u32 s{sW}, 7"); A("s_cbranch_scc1 L_h7")
    A("s_waitcnt lgkmcnt(0)")
    A("s_barrier")
    g.lab("L_hw")
    is45(g, "L_fds2", True)
    if not p.get("fdlate"): dissue(g)
    hsetup(g); hgather(g, "f", SPIN, p["hsleep"], False)
    if p.get("fdlate"): dissue(g)
    dshare(g, 0)
    A("s_branch L_fds2")
    g.lab("L_h7")
    for t in range(8):
        A(f"buffer_load_dwordx4 {v4(greg('D',t))}, v{vOT}, {srd(SD)}, s{sOO} offen {nt}")
        if t < 7: A(f"s_add_u32 s{sOO}, s{sOO}, 9216")
    A(f"v_lshlrev_b32 v{vT}, 3, v{vL}")
    A(f"v_lshrrev_b32 v{vT+1}, 1, v{vR3}"); A(f"v_and_b32 v{vT+2}, 1, v{vR3}"); A(f"v_lshlrev_b32 v{vT+1}, 2, v{vT+1}")
    A(f"v_lshl_add_u32 v{vT+1}, v{vT+2}, 7, v{vT+1}")
    A(f"v_and_b32 v{vT+2}, 31, v{vL}"); A(f"v_lshrrev_b32 v{vT+3}, 5, v{vL}"); A(f"v_lshl_add_u32 v{vT+2}, v{vT+2}, 1, v{vT+3}")
    A(f"v_and_b32 v{vT+3}, 3, v{vT+2}"); A(f"v_lshlrev_b32 v{vT+3}, 3, v{vT+3}"); A(f"v_mov_b32 v{vT+4}, s{sTAG}")
    A(f"v_lshrrev_b32 v{vT+3}, v{vT+3}, v{vT+4}"); A(f"v_lshlrev_b32 v{vT+2}, 2, v{vT+2}")
    A(f"s_lshl_b32 s{sT1}, s{sU}, 8"); A(f"s_add_u32 s{sT1}, s{sT1}, {H2}")
    A("s_waitcnt lgkmcnt(0)")
    A("s_barrier")
    for w in range(9): A(f"ds_read_b64 {v2(vK+2*w)}, v{vT} offset:{L_O+512*w}")
    A("s_waitcnt lgkmcnt(0)")
    for a, b in ((0,1),(2,3),(4,5),(6,7),(0,2),(4,6),(0,4),(0,8)):
        A(f"v_pk_add_f32 {v2(vK+2*a)}, {v2(vK+2*a)}, {v2(vK+2*b)}")
    A("s_nop 1")
    A(f"v_permlane32_swap_b32 v{vK}, v{vK+1}")
    A("s_nop 0")
    A(f"v_cvt_pk_bf16_f32 v{vK+2}, v{vK}, v{vK+1}")
    A(f"v_lshlrev_b32 v{vK}, 16, v{vK+2}"); A(f"v_and_b32 v{vK+1}, 0xffff0000, v{vK+2}")
    A(f"v_mul_f32 v{vK+2}, {f2u(-1.4426950408889634):#x}, v{vK}")
    A(f"v_exp_f32 v{vK+2}, v{vK+2}"); A("s_nop 0")
    A(f"v_add_f32 v{vK+2}, 1.0, v{vK+2}")
    A(f"v_rcp_f32 v{vK+2}, v{vK+2}"); A("s_nop 0")
    A(f"v_mul_f32 v{vK}, v{vK}, v{vK+2}")
    bf16r(g, vK, vK)
    A(f"v_mul_f32 v{vK}, v{vK}, v{vK+1}")
    A(f"v_cvt_pk_bf16_f32 v{vK}, v{vK}, v{vK}")
    A(f"v_bfi_b32 v{vK+1}, s{sFF}, v{vT+3}, v{vK}")
    A(f"buffer_store_dword v{vK+1}, v{vT+2}, {srd(SWS)}, s{sT1} offen sc1")
    g.stamp(5)
    for t in range(8): A(f"ds_bpermute_b32 v{vP+t}, v{vT+1}, v{vK} offset:{16*t}")
    A("s_waitcnt lgkmcnt(0)")
    for t in range(8):
        build_A(g, vA+4*(t & 1), vP+t)
        A(f"s_waitcnt vmcnt({8-t})"); A("s_nop 0")
        A(f"{MF} {v4(vACC+4)}, {v4(vA+4*(t&1))}, {v4(greg('D',t))}, {'0' if t == 0 else v4(vACC+4)}")
    fpublish(g, vACC+4)
    g.stamp(6)
    g.lab("L_fds2")
    g.stamp(7)
    A(f"s_cmp_eq_u32 s{sMODE}, 2"); A("s_cbranch_scc1 L_fin")
    tagsel(g)
    A(f"s_cmp_eq_u32 s{sW}, 8"); A("s_cbranch_scc1 L_fin8")
    for r in range(4): A(f"v_mov_b32 v{vK+r}, 0")
    A(f"s_mov_b32 s{sSPIN}, {SPIN}")
    if p.get("lgate"):
        A("s_barrier")
    A(f"s_mov_b64 exec, s[{sM0}:{sM0+1}]"); A("s_cbranch_execz L_fpoll_end")
    if p.get("rfirst"): A("s_branch L_fsleep")
    g.lab("L_fpoll")
    A(f"buffer_load_dwordx4 {v4(vK)}, v{vRO}, {srd(SWS)}, s{sBIAS} offen {p.get('fld','sc1')}")
    A(f"s_sub_u32 s{sSPIN}, s{sSPIN}, 1"); A("s_cbranch_scc1 L_fpoll_end")
    A(f"s_cmp_eq_u32 s{sSPIN}, {SW}"); A("s_cbranch_scc0 L_fp1")
    A(f"v_mov_b32 v{vRO}, v{vRB}")
    g.lab("L_fp1")
    A("s_waitcnt vmcnt(0)")
    tagcheck(g, vK, vT+12)
    A(f"v_cmpx_ne_u32 vcc, s{sTAG}, v{vT+12}")
    A(f"s_cmp_eq_u64 exec, s[{sM0}:{sM0+1}]"); A("s_cbranch_scc1 L_fsleep")
    A("s_cbranch_execnz L_fpoll")
    g.lab("L_fpoll_end")
    A("s_mov_b64 exec, -1")
    g.stamp(8)
    A("s_nop 0")
    rowred(g, "v_add_f32", [vK, vK+1, vK+2, vK+3])
    setexec(g, 0x00010001, 0x00010001)
    A(f"ds_write_b128 v{vRL}, {v4(vK)} offset:{L_R}")
    A("s_mov_b64 exec, -1")
    A("s_waitcnt lgkmcnt(0)")
    A("s_barrier")
    A(f"s_or_b32 s{sT0}, s{sU}, s{sW}"); A("s_cbranch_scc1 L_fin")
    A("s_mov_b64 exec, 1")
    A(f"v_mov_b32 v{vT+7}, s{sTAG}")
    A(f"buffer_store_dword v{vT+7}, v{vOV}, {srd(SWS)}, 0 offen offset:{EPOCH}")
    A("s_endpgm" if not p["stamps"] else "s_branch L_fin")
    g.lab("L_fsleep")
    A(f"s_sleep {p['radapt']}")
    A("s_branch L_fpoll")
    g.lab("L_fin8")
    if p.get("lgate"):
        A(f"s_mul_i32 s{sT0}, s{sXCD}, {22*FROW}"); A(f"s_lshl_b32 s{sT1}, s{sU}, 5"); A(f"s_add_u32 s{sT0}, s{sT0}, s{sT1}"); A(f"s_add_u32 s{sT0}, s{sT0}, {FB+AOFF}")
        A(f"s_movk_i32 s{sSPIN}, {p['apolls']}")
        setexec(g, (1 << 22) - 1, 0)
        g.lab("L_lpoll")
        A(f"s_sleep {p.get('lsleep', 2)}")
        A(f"buffer_load_dwordx4 {v4(vK)}, v{vRB}, {srd(SWS)}, s{sT0} offen sc1")
        A(f"s_sub_u32 s{sSPIN}, s{sSPIN}, 1"); A("s_cbranch_scc1 L_lpoll_end")
        A("s_waitcnt vmcnt(0)")
        tagcheck(g, vK, vT+12)
        A(f"v_cmpx_ne_u32 vcc, s{sTAG}, v{vT+12}")
        A(f"s_bcnt1_i32_b64 s{sT1}, exec"); A(f"s_cmp_gt_u32 s{sT1}, {22 - p['lgate']}"); A("s_cbranch_scc1 L_lpoll")
        g.lab("L_lpoll_end")
        A("s_mov_b64 exec, -1")
        A("s_barrier")
    A(f"v_mov_b32 v{vT+6}, 0")
    A(f"ds_read_b128 {v4(vA)}, v{vT+6} offset:{L_Z}"); A(f"ds_read_b128 {v4(vA+4)}, v{vT+6} offset:{L_Z+16}"); A(f"ds_read_b32 v{vT+7}, v{vT+6} offset:{L_Z+32}")
    A("s_waitcnt lgkmcnt(0)")
    A(f"v_pk_add_f32 {v2(vA)}, {v2(vA)}, {v2(vA+2)}"); A(f"v_pk_add_f32 {v2(vA+4)}, {v2(vA+4)}, {v2(vA+6)}")
    A(f"v_pk_add_f32 {v2(vA)}, {v2(vA)}, {v2(vA+4)}")
    A(f"v_add_f32 v{vA}, v{vA}, v{vA+1}"); A(f"v_add_f32 v{vA}, v{vA}, v{vT+7}")
    bf16r(g, vA, vA)
    A(f"v_mul_f32 v{vA}, {f2u(-1.4426950408889634):#x}, v{vA}")
    A(f"v_exp_f32 v{vA}, v{vA}"); A("s_nop 0")
    A(f"v_add_f32 v{vA}, 1.0, v{vA}"); A(f"v_rcp_f32 v{vA}, v{vA}"); A("s_nop 0")
    bf16r(g, vA, vA)
    A(f"v_sub_f32 v{vA+1}, 1.0, v{vA}"); bf16r(g, vA+1, vA+1)
    A(f"v_and_b32 v{vT+9}, 7, v{vL}"); A(f"v_lshlrev_b32 v{vT+8}, 2, v{vT+9}"); A(f"v_lshlrev_b32 v{vT+9}, 1, v{vT+9}")
    A(f"v_add_u32 v{vT+8}, {L_R}, v{vT+8}")
    A(f"s_lshl_b32 s{sKO}, s{sC}, 4")
    A("s_barrier")
    g.stamp(8)
    for k in range(8): A(f"ds_read2_b32 {v2(vK+2*k)}, v{vT+8} offset0:{16*k} offset1:{16*k+8}")
    A("s_waitcnt lgkmcnt(0)")
    A(f"v_pk_add_f32 {v2(vK)}, {v2(vK)}, {v2(vK+2)}"); A(f"v_pk_add_f32 {v2(vK+4)}, {v2(vK+4)}, {v2(vK+6)}")
    A(f"v_pk_add_f32 {v2(vK+12)}, {v2(vK+12)}, {v2(vK+14)}")
    A(f"v_pk_add_f32 {v2(vK)}, {v2(vK)}, {v2(vK+8)}")
    A(f"v_add_f32 v{vK+12}, v{vK+12}, v{vK+13}")
    A(f"v_pk_add_f32 {v2(vK)}, {v2(vK)}, {v2(vK+4)}")
    A(f"v_add_f32 v{vK+11}, v{vK+11}, v{vK+12}")
    A(f"v_add_f32 v{vK}, v{vK}, v{vK+1}"); A(f"v_add_f32 v{vK+10}, v{vK}, v{vK+10}")
    A(f"v_cvt_pk_bf16_f32 v{vK}, v{vK+10}, v{vK+11}")
    A(f"v_lshlrev_b32 v{vK+10}, 16, v{vK}"); A(f"v_and_b32 v{vK+11}, 0xffff0000, v{vK}")
    A(f"v_pk_mul_f32 {v2(vK+10)}, {v2(vK+10)}, {v2(vA)}")
    A(f"v_cvt_pk_bf16_f32 v{vK}, v{vK+10}, v{vK+11}")
    A(f"v_lshlrev_b32 v{vK+10}, 16, v{vK}"); A(f"v_and_b32 v{vK+11}, 0xffff0000, v{vK}")
    A(f"v_add_f32 v{vK}, v{vK+10}, v{vK+11}")
    A(f"v_cvt_pk_bf16_f32 v{vK}, v{vK}, v{vK}")
    setexec(g, 0xff, 0)
    A(f"buffer_store_short v{vK}, v{vT+9}, {srd(SOUT)}, s{sKO} offen {p.get('ost','')}")
    if hd or p.get("diag"): A(f"s_cmp_lg_u32 s{sU}, 0"); A("s_cbranch_scc1 L_fin")
    if hd:
        g.stamp(9)
        A("s_waitcnt lgkmcnt(0)")
        if hd[0] == "A":
            A("s_sleep 40")
            A(f"buffer_load_dword v{vT+1}, v{vT+6}, {srd(SWS)}, 0 offen offset:1024 sc1"); A("s_waitcnt vmcnt(0)")
            A(f"v_readfirstlane_b32 s{sT0}, v{vT+1}"); A("s_nop 3")
        else: A(f"s_sub_u32 s{sT0}, s{80+2*hd[3]}, s{80+2*hd[2]}")
        A(f"s_mul_i32 s{sT0}, s{sT0}, {hd[4]}"); A(f"s_add_u32 s{sT0}, s{sT0}, 300"); A(f"s_min_u32 s{sT0}, s{sT0}, 20000")
        g.lab("L_hd2")
        A("s_memrealtime s[80:81]"); A("s_waitcnt lgkmcnt(0)"); A("s_sub_u32 s80, s80, s98"); A(f"s_cmp_lt_u32 s80, s{sT0}"); A("s_cbranch_scc1 L_hd2")
    if p.get("diag"):
        A("s_memrealtime s[92:93]")
        A(f"v_lshlrev_b32 v{vT}, 7, v{vL}")
        A(f"buffer_load_dword v{vT+1}, v{vT}, {srd(SWS)}, 0 offen offset:1024 sc1"); A("s_waitcnt vmcnt(0) lgkmcnt(0)")
        for k in range(8): A(f"v_readlane_b32 s{80+k}, v{vT+1}, {k}")
        A("s_nop 3")
        for k in range(8): A(f"s_sub_u32 s{80+k}, s92, s{80+k}")
        A("s_mov_b32 s88, s80"); A("s_mov_b32 s89, s80")
        for k in range(1, 8): A(f"s_max_u32 s88, s88, s{80+k}"); A(f"s_min_u32 s89, s89, s{80+k}")
        d = p["diag"]
        if d == "skew": A("s_sub_u32 s88, s88, s89"); A("s_mul_i32 s88, s88, 10")
        elif d == "total": A("s_mul_i32 s88, s88, 4")
        elif d == "last": A("s_mul_i32 s88, s89, 4")
        elif d == "zero": A("s_mov_b32 s88, 0")
        elif d == "a0": A("s_sub_u32 s88, s96, s90"); A("s_mul_i32 s88, s88, 20")
        elif d == "touch": A("s_sub_u32 s88, s98, s96"); A("s_mul_i32 s88, s88, 20")
        A("s_min_u32 s88, s88, 20000")
        g.lab("L_dg2")
        A("s_memrealtime s[94:95]"); A("s_waitcnt lgkmcnt(0)"); A("s_sub_u32 s94, s94, s92"); A("s_cmp_lt_u32 s94, s88"); A("s_cbranch_scc1 L_dg2")
    g.lab("L_fin")
    if p["stamps"] and not hd:
        A("s_mov_b64 exec, -1")
        A("s_waitcnt vmcnt(0)")
        g.stamp(9)
        A("s_waitcnt lgkmcnt(0)")
        A("s_sleep 127"); A("s_sleep 127")
        A(f"s_lshl_b32 s{sT0}, s2, 4"); A(f"s_add_u32 s{sT0}, s{sT0}, s{sW}"); A(f"s_lshl_b32 s{sT0}, s{sT0}, 6"); A(f"s_add_u32 s{sT0}, s{sT0}, {STB}")
        for k in range(10): A(f"v_mov_b32 v{vK+k}, s{80+2*k}")
        A(f"v_mov_b32 v{vK+10}, s{sSPIN}"); A(f"v_mov_b32 v{vK+11}, s{sTAG}")
        A(f"v_mov_b32 v{vT}, 0"); A("s_mov_b64 exec, 1")
        for k in range(3): A(f"buffer_store_dwordx4 {v4(vK+4*k)}, v{vT}, {srd(SWS)}, s{sT0} offen offset:{16*k}")
    g.lab("L_end")
    A("s_endpgm")
    if True:
        g.lab("L_m1")
        A(f"s_lshl_b32 s{sT0}, s{sW}, 9")
        A(f"s_and_b32 s{sT1}, s{sU}, 0x78"); A(f"s_lshl1_add_u32 s{sT1}, s{sW}, s{sT1}"); A(f"s_lshl_b32 s{sT1}, s{sT1}, 8")
        A(f"s_add_u32 s{sT1}, s{sT1}, {HB - 10*256}")
        A(f"v_add_u32 v{vT+3}, s{sT0}, v{vOV}")
        A(f"s_mov_b32 s{sSPIN}, {SPIN}")
        tagsel(g)
        A("s_mov_b32 exec_hi, 0")
        g.lab("L_hpoll")
        A(f"s_sleep {p['hsleep']}")
        A(f"buffer_load_dwordx4 {v4(vA)}, v{vOV}, {srd(SWS)}, s{sT1} offen sc1")
        A(f"s_sub_u32 s{sSPIN}, s{sSPIN}, 1"); A("s_cbranch_scc1 L_hpoll_end")
        A("s_waitcnt vmcnt(0)")
        tagcheck(g, vA, vT+4)
        A(f"v_cmp_ne_u32 vcc, s{sTAG}, v{vT+4}")
        A("s_cbranch_vccnz L_hpoll")
        g.lab("L_hpoll_end")
        A(f"ds_write_b128 v{vT+3}, {v4(vA)} offset:{L_O}")
        A("s_mov_b64 exec, -1")
        A("s_branch L_barE")
        g.lab("L_help")
        A(f"s_lshl_b32 s{sPI}, s{sHK}, 8"); A(f"s_add_u32 s{sPI}, s{sPI}, {HB}")
        fpublish(g, vACC, acopy=False)
        g.stamp(4)
        A("s_branch L_hw")
    out += g.L
    out += ['.section .rodata,"a"', ".p2align 6", f".amdhsa_kernel {NAME}", f"  .amdhsa_next_free_vgpr {NV}",
            f"  .amdhsa_next_free_sgpr {100 if (p['stamps'] or p.get('diag')) else 80}", f"  .amdhsa_accum_offset {NV}", "  .amdhsa_group_segment_fixed_size 0",
            "  .amdhsa_kernarg_size 104", "  .amdhsa_user_sgpr_count 2", "  .amdhsa_user_sgpr_kernarg_segment_ptr 1",
            "  .amdhsa_system_sgpr_workgroup_id_x 1", ".end_amdhsa_kernel"]
    return "\n".join(out) + "\n"

if __name__ == "__main__":
    kw = {}
    for a in sys.argv[2:]:
        k, v = a.split("="); kw[k] = eval(v)
    open(sys.argv[1], "w").write(gen(**kw))
```

```python
import sys, struct
NAME = "gated_mix__sliding_block_cached__swiglu_ffn__decode_kernel"
HDR = open("gated_mix__sliding_block_cached__swiglu_ffn__decode.s.ref").read().split("; Override launch")[0]
def f2u(f): return struct.unpack("<I", struct.pack("<f", f))[0]

EPOCH = 0
HB = 4096
H2 = HB + 72*256
QB = H2 + 72*256
OB = QB + 256*256
FB = OB + 256*2048
AOFF = 2 << 20
FROW = 2304
assert FB + 256*FROW <= AOFF
WS_USED = 2*AOFF
STB = 8 << 20
L_H = 0; L_QP = 0; L_Q = 5376; L_M = 5888; L_L = 5952; L_Z = 6016; L_C = 6080
L_CNT = 6272; L_O = 6400; L_R = L_O + 8*1024
LDS_BYTES = L_R + 640
OOB = 0x40000000

class G:
    def __init__(s, **kw):
        s.L = []; s.p = dict(WA=4, WF=3, N0=2, c2=1, b3=1, olate=1, rfirst=0, lgate=1, lsleep=4, hpos=1, WF1=2, wf1n=8, stamps=False, nt="nt", qsleep=8, spin=200000, apolls=300, bpos=1, rsleep=0, radapt=6, dmix=5,
                             prio=1, align=True, touch=0, pretouch=0, cpf=0, nmid=4, helper=1, hsleep=4)
        s.p.update(kw); s.vm = []
    def A(s, x):
        if s.p.get("pnt") and x.startswith("buffer_load") and x.endswith(" sc1"): x += " nt"
        if s.p.get("xnt") and (x.startswith("buffer_load_dword v") or x.startswith("buffer_load_ushort") or x.startswith("global_load_dword v")) and " nt" not in x: x += " nt"
        s.L.append("    " + x)
    def lab(s, x): s.L.append(x + ":")
    def vissue(s, name): s.vm.append(name)
    def vwait(s, name):
        i = s.vm.index(name); s.A(f"s_waitcnt vmcnt({len(s.vm)-1-i})")
    def stamp(s, k, prog=False):
        if s.p.get("prof") and not prog and 3 <= k <= 8 and k != 5: return
        if prog and s.p.get("prof") != int(prog): return
        if s.p["stamps"]: s.A(f"s_memrealtime s[{80+2*k}:{81+2*k}]")

sW=3
SX=8; SWQ=12; SWS=16; S1=20; S2=24; S3=28; SGW=32; SOUT=36
sE=40; sSTEP=41; sTAG=42
sXCD=44; sJ=45; sHK=46; sSLOT=47; sQI=48; sT0=49; sT1=50; sT2=51; sRUN=52; sBIAS=53; sSPIN=54
sKO=55; sOO=56; sSEL0=57; sSEL1=58; sPI=59; sC=60; sU=61
sM0=62; sEX=70; sAM=72; sWE=74; sT3=75; sT4=76; sMODE=77; sFF=78; sNOS=79; sST2=43; sDO=48; sGOT=40; SD=4
def srd(b): return f"s[{b}:{b+3}]"
vL=1; vM=2; vOT=6; vOK=7; vOV=8; vOWQ=9; vLT=10; vX0=11; vOU=12; vOD=13; vTB=14
vXG=16; vGW=17; vT=18
vA=32; vACC=40; vP=48; vOKL=60; vOVL=61; vR3=62; vOFP=63
vK=64; vV=112; NV=160
def v4(b): return f"v[{b}:{b+3}]"
def v2(b): return f"v[{b}:{b+1}]"
DPP = "row_mask:0xf bank_mask:0xf"
MF = "v_mfma_f32_16x16x32_bf16"

def build_A(g, dst, rep):
    for j in range(4): g.A(f"v_and_b32 v{dst+j}, v{rep}, v{vM+j}")
def rowred(g, op, regs):
    need = max(0, 2 - (len(regs) - 1))
    for r in (8, 4, 2, 1):
        if need: g.A(f"s_nop {need-1}")
        for x in regs: g.A(f"{op}_dpp v{x}, v{x}, v{x} row_ror:{r} {DPP}")
def crossrow(g, op, x, t):
    for sw in ("v_permlane16_swap_b32", "v_permlane32_swap_b32"):
        g.A(f"v_mov_b32 v{t}, v{x}"); g.A("s_nop 1"); g.A(f"{sw} v{x}, v{t}"); g.A("s_nop 1"); g.A(f"{op} v{x}, v{x}, v{t}")
def bf16r(g, d, s_):
    g.A(f"v_cvt_pk_bf16_f32 v{d}, v{s_}, v{s_}"); g.A(f"v_and_b32 v{d}, 0xffff0000, v{d}")
def setexec(g, lo, hi):
    g.A(f"s_mov_b32 exec_lo, {lo:#x}"); g.A(f"s_mov_b32 exec_hi, {hi:#x}")

def fpub_consts(g, sblk, ffn=False):
    A = g.A
    A(f"s_mul_i32 s{sPI}, s{sPI}, 9"); A(f"s_add_u32 s{sPI}, s{sPI}, {sblk}"); A(f"s_lshl_b32 s{sPI}, s{sPI}, 8"); A(f"s_add_u32 s{sPI}, s{sPI}, {FB}")
    A(f"v_lshrrev_b32 v{vT}, 5, v{vOFP}")
    A(f"v_cmp_eq_u32 vcc, s{sXCD}, v{vT}")
    A(f"v_lshrrev_b32 v{vT}, 1, v{vL}"); A(f"v_and_b32 v{vT}, 16, v{vT}")
    A(f"v_mov_b32 v{vTB}, s{sTAG}")
    A(f"v_lshrrev_b32 v{vTB}, v{vT}, v{vTB}")
    A(f"s_cmp_eq_u32 {sblk}, 8"); A(f"s_cselect_b64 s[{sAM}:{sAM+1}], vcc, 0")
    A(f"s_cmp_eq_u32 {sblk}, s{sXCD}"); A(f"s_cselect_b64 s[{sAM}:{sAM+1}], -1, s[{sAM}:{sAM+1}]")
    A(f"s_and_b32 s{sAM}, s{sAM}, 0x00ff00ff"); A(f"s_and_b32 s{sAM+1}, s{sAM+1}, 0x00ff00ff")
    A(f"v_lshrrev_b32 v{vTB+1}, 8, v{vTB}")
    A(f"s_movk_i32 s{sFF}, 0xff")
    na = g.p.get("na", 2)
    if not ffn:
        A(f"s_mul_i32 s{sST2}, s{sJ}, {na}"); A(f"s_add_u32 s{sST2}, s{sST2}, s{sW}"); A(f"s_sub_u32 s{sST2}, s{sST2}, 4")
    else:
        nf = {2: 2, 1: 4}[na]; nh = 64 - 22*na - 9*nf
        A(f"s_mul_i32 s{sST2}, s{sJ}, {nf}"); A(f"s_add_u32 s{sST2}, s{sST2}, s{sW}"); A(f"s_sub_u32 s{sST2}, s{sST2}, {22*nf - 22*na}")
        A(f"s_cmp_eq_u32 s{sJ}, 31"); A(f"s_cselect_b32 s{sSLOT}, {nh}, {nf}")
    A(f"s_mul_i32 s{sDO}, s{sST2}, {72*1152}")
    A(f"s_lshl_b32 s{sT0}, s{sXCD}, 7"); A(f"s_add_u32 s{sDO}, s{sDO}, s{sT0}")
    A(f"s_mov_b32 s{SD+2}, 5308416"); A(f"s_mov_b32 s{SD+3}, s{SWQ+3}")

def tagcheck(g, d, t):
    g.A(f"v_perm_b32 v{t}, v{d+1}, v{d}, s{sSEL0}"); g.A(f"v_perm_b32 v{t+1}, v{d+3}, v{d+2}, s{sSEL1}")
    g.A(f"v_or_b32 v{t}, v{t}, v{t+1}")
def tagsel(g):
    g.A(f"s_mov_b32 s{sSEL0}, 0x0c0c0400"); g.A(f"s_mov_b32 s{sSEL1}, 0x04000c0c")

PROG = {"K3": 3, "K7": 4, "K11": 6, "V3": 7, "V7": 8}
uid = [0]
def fpublish(g, acc, acopy=True):
    g.A(f"s_add_u32 s{sT0}, s{sPI}, {AOFF}")
    g.A("s_nop 6")
    g.A(f"v_permlane32_swap_b32 v{acc}, v{acc+2}")
    g.A(f"v_permlane32_swap_b32 v{acc+1}, v{acc+3}")
    g.A("s_nop 0")
    g.A(f"v_add_f32_dpp v{acc}, v{acc+2}, v{acc} row_ror:8 {DPP}")
    g.A(f"v_add_f32_dpp v{acc+1}, v{acc+3}, v{acc+1} row_ror:8 {DPP}")
    g.A(f"v_bfi_b32 v{acc}, s{sFF}, v{vTB}, v{acc}"); g.A(f"v_bfi_b32 v{acc+1}, s{sFF}, v{vTB+1}, v{acc+1}")
    if acopy:
        uid[0] += 1
        g.A(f"s_mov_b64 exec, s[{sAM}:{sAM+1}]"); g.A(f"s_cbranch_execz L_na{uid[0]}")
        g.A(f"buffer_store_dwordx2 {v2(acc)}, v{vOFP}, {srd(SWS)}, s{sT0} offen")
        g.lab(f"L_na{uid[0]}")
    setexec(g, 0x00ff00ff, 0x00ff00ff)
    g.A(f"buffer_store_dwordx2 {v2(acc)}, v{vOFP}, {srd(SWS)}, s{sPI} offen sc1")
    g.A("s_mov_b64 exec, -1")

vD = vV + 12
def is45(g, other, ffn=False):
    if ffn: g.A(f"s_cmp_lt_u32 s{sW}, s{sSLOT}")
    else: g.A(f"s_sub_u32 s{sT0}, s{sW}, 4"); g.A(f"s_cmp_lt_u32 s{sT0}, {g.p.get('na', 2)}")
    g.A(f"s_cbranch_scc0 {other}")
def dissue(g):
    for t in range(9):
        g.A(f"buffer_load_dwordx4 {v4(vD+4*t)}, v{vOT}, {srd(SD)}, s{sDO} offen {g.p['nt']}")
        if t < 8: g.A(f"s_add_u32 s{sDO}, s{sDO}, 9216")

vH = vK + 28
def hsetup(g):
    A = g.A
    A(f"s_mul_i32 s{sGOT}, s{sST2}, 288"); A(f"s_add_u32 s{sGOT}, s{sGOT}, {H2}")
    tagsel(g)
    A(f"s_mul_i32 s{sT2}, s{sW}, 288")
    A(f"v_add_u32 v{vT+6}, s{sT2}, v{vOV}"); A(f"v_lshl_add_u32 v{vT+7}, v{vR3}, 2, s{sT2}")
def hload(g): g.A(f"buffer_load_dwordx4 {v4(vH)}, v{vOV}, {srd(SWS)}, s{sGOT} offen sc1")
def hgather(g, sfx, budget, sleep, loaded):
    A = g.A
    A(f"s_mov_b32 s{sSPIN}, {budget}")
    setexec(g, 0x3ffff, 0)
    if loaded: A(f"s_branch L_hc{sfx}")
    g.lab(f"L_hg{sfx}")
    A(f"s_sub_u32 s{sSPIN}, s{sSPIN}, 1"); A(f"s_cbranch_scc1 L_hge{sfx}")
    A(f"s_sleep {sleep}")
    hload(g)
    A("s_waitcnt vmcnt(0)")
    g.lab(f"L_hc{sfx}")
    tagcheck(g, vH, vT+4)
    A(f"v_cmp_ne_u32 vcc, s{sTAG}, v{vT+4}")
    A(f"s_cbranch_vccnz L_hg{sfx}")
    g.lab(f"L_hge{sfx}")
    A(f"s_mov_b32 s{sT1}, 0x03020302")
    for r in range(4): A(f"v_perm_b32 v{vH+r}, v{vH+r}, v{vH+r}, s{sT1}")
    A(f"ds_write_b128 v{vT+6}, {v4(vH)} offset:{L_H}")
    A("s_mov_b64 exec, -1")
    for t in range(0, 8, 2): A(f"ds_read2_b32 {v2(vK+16+t)}, v{vT+7} offset0:{L_H//4+8*t} offset1:{L_H//4+8*t+8}")
    A(f"ds_read_b32 v{vK+24}, v{vT+7} offset:{L_H+256}")

def dshare(g, nyoung):
    A = g.A
    A(f"s_add_u32 s{sPI}, s{sST2}, 176"); A(f"s_mul_i32 s{sPI}, s{sPI}, 9"); A(f"s_add_u32 s{sPI}, s{sPI}, s{sXCD}")
    A(f"s_lshl_b32 s{sPI}, s{sPI}, 8"); A(f"s_add_u32 s{sPI}, s{sPI}, {FB}")
    A(f"s_mov_b32 s{sAM}, 0x00ff00ff"); A(f"s_mov_b32 s{sAM+1}, s{sAM}")
    if g.p.get("dprof"): g.stamp(3)
    A("s_waitcnt lgkmcnt(0)")
    for t in range(9):
        build_A(g, vA+4*(t & 1), vK+16+t)
        A(f"s_waitcnt vmcnt({8-t+nyoung})"); A("s_nop 0")
        if g.p.get("dprof") and t in (0, 8): g.stamp(4 if t == 0 else 6)
        A(f"{MF} {v4(vACC)}, {v4(vA+4*(t&1))}, {v4(vD+4*t)}, {'0' if t == 0 else v4(vACC)}")
    fpublish(g, vACC)

def gen(**kw):
    g = G(**kw); A = g.A; p = g.p; nt = p["nt"]; WA = p["WA"]; WF = p["WF"]
    SPIN = p["spin"]; SW = max(SPIN - p["apolls"], 0)
    NPRO = min(WA, WF)
    out = [HDR.rstrip("\n")]
    out.append(f"; @launch grid=(256,1,1) block=({640 if p.get('w9') else 576},1,1) lds={LDS_BYTES}")
    out += ['.amdgcn_target "amdgcn-amd-amdhsa--gfx950"', ".text"]
    if p["align"]: out += [".p2align 12", ".fill 832, 4, 0xbf800000"]
    out += [f".globl {NAME}", ".p2align 8", f".type {NAME},@function", f"{NAME}:"]
    g.stamp(0)
    if p.get("diag"): A("s_memrealtime s[90:91]")
    A("s_cmp_ge_u32 s2, 0x100"); A("s_cbranch_scc1 L_end")
    if p.get("w9"):
        A("v_cmp_gt_u32 vcc, 576, v0"); A("s_cbranch_vccnz L_go")
        A("s_cmp_lt_u32 s2, 176"); A("s_cbranch_scc1 L_warmA"); A("s_branch L_warmF")
        g.lab("L_go")
    A(f"s_load_dwordx2 s[{SWQ}:{SWQ+1}], s[0:1], 24")
    A(f"s_load_dwordx2 s[{SX}:{SX+1}], s[0:1], 0")
    A(f"s_lshr_b32 s{sJ}, s2, 3")
    A(f"s_cmp_lt_u32 s{sJ}, 22")
    A(f"s_cselect_b32 s{sT0}, 8, 48")
    A(f"s_load_dwordx4 s[64:67], s[0:1], s{sT0}")
    A(f"s_load_dwordx2 s[{S3}:{S3+1}], s[0:1], 32")
    A(f"s_load_dwordx2 s[{SD}:{SD+1}], s[0:1], 64")
    A(f"s_load_dwordx2 s[{SGW}:{SGW+1}], s[0:1], 72")
    A(f"s_load_dwordx2 s[{SOUT}:{SOUT+1}], s[0:1], 80")
    A(f"s_load_dwordx2 s[{SWS}:{SWS+1}], s[0:1], 96")
    A(f"v_lshrrev_b32 v{vT}, 6, v0")
    A(f"v_and_b32 v{vL}, 63, v0")
    A(f"v_readfirstlane_b32 s{sW}, v{vT}")
    A(f"s_and_b32 s{sXCD}, s2, 7")
    A(f"v_lshrrev_b32 v{vR3}, 3, v{vL}")
    A(f"v_and_b32 v{vT+1}, 7, v{vL}")
    A(f"v_lshlrev_b32 v{vT+2}, 4, v{vT+1}")
    A(f"v_lshl_add_u32 v{vOWQ}, v{vR3}, 14, v{vT+2}")
    A(f"v_lshlrev_b32 v{vT+3}, 2, v{vR3}")
    A(f"s_bfe_u32 s{sT0}, s{sJ}, 0x20002"); A(f"s_mul_i32 s{sT0}, s{sT0}, 9"); A(f"s_add_u32 s{sT0}, s{sT0}, s{sW}")
    A(f"s_lshr_b32 s{sT1}, s{sJ}, 4"); A(f"s_lshl1_add_u32 s{sT1}, s{sXCD}, s{sT1}")
    A(f"s_and_b32 s{sT2}, s{sJ}, 3"); A(f"s_lshl2_add_u32 s{sT1}, s{sT1}, s{sT2}"); A(f"s_lshl_b32 s{sT1}, s{sT1}, 7")
    A(f"s_lshl_b32 s{sT2}, s{sT0}, 17"); A(f"s_add_u32 s{sT1}, s{sT1}, s{sT2}")
    A(f"s_add_u32 s{sT2}, s{sT1}, 8192")
    A(f"s_lshl_b32 s{sT0}, s{sT0}, 5")
    A(f"s_mov_b32 s{SWQ+2}, 4718592"); A(f"s_mov_b32 s{SWQ+3}, 0x20000")
    A(f"s_movk_i32 s{SX+2}, 1152"); A(f"s_mov_b32 s{SX+3}, s{SWQ+3}")
    vWQ = vV + 40
    A(f"v_mov_b32 v{vT+4}, 0")
    A(f"ds_write_b32 v{vT+3}, v{vT+4} offset:{L_CNT}")
    A("s_waitcnt lgkmcnt(0)")
    g.stamp(1)
    A(f"buffer_load_dwordx4 {v4(vWQ)}, v{vOWQ}, {srd(SWQ)}, s{sT1} offen {nt}"); g.vissue("wq0")
    A(f"buffer_load_dwordx4 {v4(vWQ+4)}, v{vOWQ}, {srd(SWQ)}, s{sT2} offen {nt}"); g.vissue("wq1")
    A(f"buffer_load_dword v{vX0}, v{vT+3}, {srd(SX)}, s{sT0} offen"); g.vissue("x0")
    A(f"s_load_dword s{sE}, s[{SWS}:{SWS+1}], {EPOCH}")
    g.stamp(3, 2)
    A("s_barrier")
    g.stamp(4, 2)
    if p.get("diag"): A("s_memrealtime s[96:97]")
    A(f"s_mov_b64 s[{S1}:{S1+1}], s[64:65]"); A(f"s_mov_b64 s[{S2}:{S2+1}], s[66:67]")
    A(f"s_mov_b32 s{S1+3}, s{SWQ+3}")
    A(f"v_lshlrev_b32 v{vOV}, 4, v{vL}")
    A(f"s_cmp_ge_u32 s{sJ}, 22"); A("s_cbranch_scc1 L_setF")
    A(f"s_mov_b32 s{S1+2}, 0x10000000"); A(f"s_mov_b32 s{S3+2}, s{SWQ+2}")
    A(f"s_cmp_ge_u32 s{sJ}, 11"); A(f"s_cselect_b32 s{sT0}, 1, 0"); A(f"s_cselect_b32 s{sT1}, 8, 0")
    A(f"s_lshl1_add_u32 s{sHK}, s{sXCD}, s{sT0}")
    A(f"s_cmp_ge_u32 s{sJ}, 19"); A(f"s_cselect_b32 s{sT1}, 19, s{sT1}")
    A(f"s_sub_u32 s{sSLOT}, s{sJ}, s{sT1}")
    A(f"s_min_u32 s{sT0}, s{sSLOT}, 2"); A(f"s_mul_i32 s{sT1}, s{sSLOT}, 94"); A(f"s_add_u32 s{sT0}, s{sT0}, s{sT1}")
    A(f"s_lshr_b32 s{sT1}, s{sSLOT}, 2"); A(f"s_mul_i32 s{sT1}, s{sT1}, 6"); A(f"s_sub_u32 s{sT0}, s{sT0}, s{sT1}")
    if p.get("sweep"):
        A(f"s_mul_i32 s{sT1}, s{sSLOT}, 96"); A(f"s_sub_u32 s{sST2}, s{sT0}, s{sT1}"); A(f"s_add_u32 s{sST2}, s{sST2}, 88"); A(f"s_lshl_b32 s{sST2}, s{sST2}, 10")
        A(f"s_lshl_b32 s{sT0}, s{sSLOT}, 3")
    A(f"s_add_u32 s{sT0}, s{sT0}, s{sW}"); A(f"s_lshl_b32 s{sT0}, s{sT0}, 10")
    A(f"s_lshl_b32 s{sKO}, s{sHK}, 24"); A(f"s_add_u32 s{sKO}, s{sKO}, s{sT0}")
    A(f"s_add_u32 s{sKO}, s{sKO}, {61440*256}")
    A(f"s_mov_b32 s{sSTEP}, {88*1024}" if p.get("sweep") else f"s_movk_i32 s{sSTEP}, 8192")
    A(f"v_bfe_u32 v{vT}, v{vL}, 2, 2"); A(f"v_lshrrev_b32 v{vT+1}, 4, v{vL}"); A(f"v_and_b32 v{vT+3}, 3, v{vL}")
    A(f"v_lshlrev_b32 v{vOK}, 8, v{vT}"); A(f"v_lshl_add_u32 v{vOK}, v{vT+1}, 6, v{vOK}"); A(f"v_lshl_add_u32 v{vOK}, v{vT+3}, 4, v{vOK}")
    A(f"s_cmp_eq_u32 s{sW}, 8"); A(f"s_cselect_b32 s{sNOS}, 1, 0")
    A("s_branch L_set_done")
    g.lab("L_setF")
    A(f"s_mov_b32 s{S1+2}, 5308416"); A(f"s_mov_b32 s{S3+2}, s{S1+2}")
    A(f"s_mul_i32 s{sU}, s{sXCD}, 9"); A(f"s_mov_b32 s{sWE}, s{sW}")
    A(f"s_cmp_eq_u32 s{sJ}, 31"); A("s_cbranch_scc0 L_setF1")
    A(f"s_add_u32 s{sHK}, s{sU}, s{sW}")
    A(f"s_and_b32 s{sU}, s{sHK}, 0x78"); A(f"s_sub_u32 s{sU}, s{sU}, {9-3}")
    A(f"s_bfe_u32 s{sWE}, s{sHK}, 0x20001"); A(f"s_add_u32 s{sWE}, s{sWE}, 5")
    A(f"s_bitcmp1_b32 s{sHK}, 0"); A(f"s_cselect_b64 s[{S1}:{S1+1}], s[66:67], s[64:65]")
    g.lab("L_setF1")
    A(f"s_add_u32 s{sU}, s{sU}, s{sJ}"); A(f"s_sub_u32 s{sU}, s{sU}, 22")
    A(f"s_movk_i32 s{sT0}, 9216"); A(f"v_mad_u32_u24 v{vOK}, v{vR3}, s{sT0}, v{vT+2}")
    A(f"s_mul_i32 s{sKO}, s{sWE}, {8*9216}"); A(f"s_lshl_b32 s{sT0}, s{sU}, 7"); A(f"s_add_u32 s{sKO}, s{sKO}, s{sT0}")
    A(f"s_mov_b32 s{sSTEP}, {72*9216}")
    A(f"s_and_b32 s{sT0}, s{sU}, 7"); A(f"s_cmp_eq_u32 s{sT0}, 3"); A(f"s_cselect_b32 s{sT0}, s{sW}, 0")
    A(f"s_cmp_ge_u32 s{sT0}, {5 if p['helper'] else 99}"); A(f"s_cselect_b32 s{sMODE}, 1, 0")
    A(f"s_cmp_eq_u32 s{sJ}, 31"); A(f"s_cselect_b32 s{sMODE}, 2, s{sMODE}")
    A(f"s_cmp_eq_u32 s{sMODE}, {1 if p['helper'] else 2}")
    A(f"s_cselect_b32 s{sT0}, {OOB:#x}, 0")
    A(f"v_add_u32 v{vOK}, s{sT0}, v{vOK}")
    A(f"s_mov_b32 s{sNOS}, 0")
    g.lab("L_set_done")
    A(f"s_mov_b32 s{sRUN}, s{sKO}")
    def s1_issue(i):
        A(f"buffer_load_dwordx4 {v4(vK+4*i)}, v{vOK}, {srd(S1)}, s{sRUN} offen {nt}"); g.vissue(f"K{i}")
        A(f"s_add_u32 s{sRUN}, s{sRUN}, s{sSTEP}")
    N0 = min(p.get("N0", 2), NPRO)
    A(f"s_cmp_eq_u32 s{sNOS}, 1"); A("s_cbranch_scc1 " + "L_touched")
    for i in range(N0): s1_issue(i)
    g.lab("L_touched")
    g.stamp(6, 2)
    if p.get("diag"): A("s_memrealtime s[98:99]")
    A(f"s_mov_b64 s[{S2+2}:{S2+3}], s[{S1+2}:{S1+3}]"); A(f"s_mov_b32 s{S3+3}, s{SWQ+3}")
    A(f"s_mov_b32 s{SWS+2}, {(16<<20) if p['stamps'] else WS_USED}"); A(f"s_mov_b32 s{SWS+3}, s{SWQ+3}")
    A(f"v_and_b32 v{vT}, 1, v{vL}"); A(f"v_lshlrev_b32 v{vT}, 4, v{vT}")
    A(f"v_mov_b32 v{vT+1}, 0xffff"); A(f"v_lshlrev_b32 v{vT}, v{vT}, v{vT+1}")
    A(f"v_bfe_u32 v{vT+1}, v{vL}, 1, 2")
    for j in range(4): A(f"v_cmp_eq_u32 s[{sM0+2*j}:{sM0+2*j+1}], {j}, v{vT+1}")
    A(f"s_mov_b32 s{sSEL0}, 0x01000100"); A(f"s_mov_b32 s{sSEL1}, 0x03020302")
    for j in range(4): A(f"v_cndmask_b32 v{vM+j}, 0, v{vT}, s[{sM0+2*j}:{sM0+2*j+1}]")
    A(f"v_lshrrev_b32 v{vT}, 5, v{vL}"); A(f"v_and_b32 v{vT+3}, 16, v{vL}")
    A(f"v_lshl_add_u32 v{vLT}, v{vT+2}, 1, v{vT+3}")
    A(f"v_lshl_add_u32 v{vOFP}, v{vT}, 3, v{vLT}")
    A(f"v_lshl_add_u32 v{vLT}, v{vT}, 8, v{vLT}")
    A(f"s_movk_i32 s{sT0}, 1152"); A(f"v_mad_u32_u24 v{vOT}, v{vR3}, s{sT0}, v{vT+2}")
    A(f"s_lshl_b32 s{sT0}, s{sW}, 9"); A(f"v_add_u32 v{vT+2}, s{sT0}, v{vLT}")
    g.stamp(7, 2)
    A(f"s_cmp_eq_u32 s{sNOS}, 1"); A("s_cbranch_scc0 L_w1")
    A("s_waitcnt vmcnt(0)")
    g.lab("L_w1")
    g.vwait("x0")
    g.stamp(2)
    A(f"v_perm_b32 v{vT}, v{vX0}, v{vX0}, s{sSEL0}"); A(f"v_perm_b32 v{vT+1}, v{vX0}, v{vX0}, s{sSEL1}")
    build_A(g, vA, vT); build_A(g, vA+4, vT+1)
    A("s_cbranch_scc1 L_w2")
    for i in range(N0, NPRO): s1_issue(i)
    g.lab("L_w2")
    A(f"v_mov_b32 v{vT+5}, 1")
    A(f"{MF} {v4(vACC)}, {v4(vA)}, {v4(vWQ)}, 0")
    A(f"{MF} {v4(vACC)}, {v4(vA+4)}, {v4(vWQ+4)}, {v4(vACC)}")
    setexec(g, 0x00ff00ff, 0xff00ff00)
    A("s_waitcnt lgkmcnt(0)")
    A(f"s_mul_i32 s{sTAG}, s{sE}, 0x9e3779b1"); A(f"s_add_u32 s{sTAG}, s{sTAG}, 0x7f4a7c15")
    A(f"s_lshl_b32 s{sOO}, s{sW}, 7")
    A("s_nop 1")
    A(f"ds_write_b128 v{vT+2}, {v4(vACC)} offset:{L_QP}")
    A("s_mov_b64 exec, 1")
    A(f"ds_add_u32 v{vT+4}, v{vT+5} offset:{L_CNT}")
    A("s_mov_b64 exec, -1")
    A(f"s_cmp_lg_u32 s{sW}, 8"); A("s_cbranch_scc1 L_nopub")
    base = vV
    A(f"v_lshlrev_b32 v{vT}, 2, v{vL}")
    A(f"s_lshl_b32 s{sT0}, s{sXCD}, 5"); A(f"s_add_u32 s{sT0}, s{sT0}, s{sJ}")
    A(f"s_lshl_b32 s{sT0}, s{sT0}, 8"); A(f"s_add_u32 s{sT0}, s{sT0}, {QB}"); A(f"s_add_u32 s{sT1}, s{sT0}, {AOFF}")
    A(f"v_and_b32 v{vT+1}, 3, v{vL}"); A(f"v_lshlrev_b32 v{vT+1}, 3, v{vT+1}"); A(f"v_mov_b32 v{vT+6}, s{sTAG}")
    A(f"v_lshrrev_b32 v{vT+1}, v{vT+1}, v{vT+6}"); A(f"s_movk_i32 s{sFF}, 0xff")
    g.lab("L_cnt")
    A(f"ds_read_b32 v{vT+6}, v{vT+4} offset:{L_CNT}")
    A("s_waitcnt lgkmcnt(0)")
    A(f"v_cmp_ne_u32 vcc, 9, v{vT+6}")
    A("s_cbranch_vccnz L_cnt")
    for k in range(9): A(f"ds_read2st64_b32 {v2(base+2*k)}, v{vT} offset0:{L_QP//256+2*k} offset1:{L_QP//256+2*k+1}")
    A("s_waitcnt lgkmcnt(0)")
    for a, b in ((0,1),(2,3),(4,5),(6,7),(0,2),(4,6),(0,4),(0,8)):
        A(f"v_pk_add_f32 {v2(base+2*a)}, {v2(base+2*a)}, {v2(base+2*b)}")
    A(f"v_add_f32 v{vT+8}, v{base}, v{base+1}")
    A(f"v_bfi_b32 v{vT+8}, s{sFF}, v{vT+1}, v{vT+8}")
    A(f"buffer_store_dword v{vT+8}, v{vT}, {srd(SWS)}, s{sT1} offen")
    A(f"buffer_store_dword v{vT+8}, v{vT}, {srd(SWS)}, s{sT0} offen sc1")
    g.stamp(3)
    A(f"s_cmp_lt_u32 s{sJ}, 22"); A("s_cbranch_scc1 L_attn8")
    g.lab("L_nopub")
    A(f"s_cmp_ge_u32 s{sJ}, 22"); A("s_cbranch_scc1 L_notattn")
    pre = list(g.vm)
    def attn_consts():
        A(f"s_lshl_b32 s{sT0}, s{sHK}, 5"); A(f"s_add_u32 s{sT0}, s{sT0}, s{sSLOT}"); A(f"s_mul_i32 s{sT0}, s{sT0}, 9216")
        A(f"s_add_u32 s{sOO}, s{sOO}, s{sT0}")
        A(f"s_mul_i32 s{sPI}, s{sHK}, 11"); A(f"s_add_u32 s{sPI}, s{sPI}, s{sSLOT}")
        fpub_consts(g, f"s{sW}")
        A(f"s_cmp_lt_u32 s{sSLOT}, 10"); A(f"s_cselect_b32 s{sT0}, 0, {OOB:#x}")
        A(f"v_add_u32 v{vOD}, s{sT0}, v{vOT}")
        A(f"v_and_b32 v{vT}, 15, v{vL}"); A(f"v_lshrrev_b32 v{vT+1}, 4, v{vL}")
        A(f"v_lshlrev_b32 v{vOU}, 11, v{vT}"); A(f"v_lshl_add_u32 v{vOU}, v{vT+1}, 4, v{vOU}")
    for i in range(NPRO, WA): s1_issue(i)
    A(f"s_cmp_lt_u32 s{sSLOT}, 2"); A(f"s_cselect_b32 s{sT0}, 7, 6")
    A(f"s_and_b32 s{sT1}, s{sSLOT}, 3"); A(f"s_cmp_eq_u32 s{sT1}, 3"); A(f"s_cselect_b32 s{sT0}, 0, s{sT0}")
    A(f"s_cmp_lt_u32 s{sW}, s{sT0}"); A(f"s_cselect_b32 s{sT0}, 0, {OOB:#x}"); A(f"s_cselect_b32 s{sBIAS}, 0, {f2u(-1e30):#x}")
    A(f"v_add_u32 v{vOKL}, s{sT0}, v{vOK}"); A(f"v_add_u32 v{vOVL}, s{sT0}, v{vOV}")
    seq = [("K", i) for i in range(12)] + [("V", i) for i in range(12)] + [("O", i) for i in range(3 - p.get("olate", 0))]
    def late_o():
        for i in range(3 - p.get("olate", 0), 3):
            A(f"buffer_load_dwordx4 {v4(vV+4*i)}, v{vOD if i == 2 else vOT}, {srd(S3)}, s{sOO} offen {nt}")
            if i < 2: A(f"s_add_u32 s{sOO}, s{sOO}, {11*9216}")
    pos = [max(NPRO, WA)]; land = [0]; vdone = [-1]
    def can_issue():
        if pos[0] >= len(seq): return False
        kind, i = seq[pos[0]]
        return kind != "O" or i <= vdone[0]
    def issue():
        kind, i = seq[pos[0]]; pos[0] += 1
        if kind == "O":
            A(f"buffer_load_dwordx4 {v4(vV+4*i)}, v{vOD if i == 2 else vOT}, {srd(S3)}, s{sOO} offen {nt}")
            if i < 2: A(f"s_add_u32 s{sOO}, s{sOO}, {11*9216}")
        else:
            off = {("K", True): vOKL, ("K", False): vOK, ("V", True): vOVL, ("V", False): vOV}[(kind, i == 11)]
            A(f"buffer_load_dwordx4 {v4((vK if kind == 'K' else vV)+4*i)}, v{off}, {srd(S1 if kind == 'K' else S2)}, s{sRUN} offen {nt}")
            if i < 11: A(f"s_add_u32 s{sRUN}, s{sRUN}, s{sST2 if (i == 10 and p.get('sweep')) else sSTEP}")
            elif kind == "K": A(f"s_mov_b32 s{sRUN}, s{sKO}")
        g.vissue(f"{kind}{i}")
    def refill():
        while pos[0] - land[0] < WA and can_issue(): issue()
    def step():
        kind, i = seq[land[0]]; land[0] += 1
        g.vwait(f"{kind}{i}")
        if f"{kind}{i}" in PROG: g.stamp(PROG[f"{kind}{i}"], True)
        refill()
        if p.get("gate") == f"{kind}{i}":
            A(f"s_lshl4_add_u32 s{sT0}, s{sJ}, s{sW}"); A(f"s_cmp_lg_u32 s{sT0}, {p.get('gsrc', 5)*16+7}"); A("s_cbranch_scc1 L_nogate")
            A(f"s_lshl_b32 s{sT0}, s{sXCD}, 7"); A(f"v_mov_b32 v{vT+8}, s{sTAG}"); A(f"v_mov_b32 v{vT+9}, 0"); A("s_mov_b64 exec, 1")
            A(f"buffer_store_dword v{vT+8}, v{vT+9}, {srd(SWS)}, s{sT0} offen offset:2048 sc1"); A("s_mov_b64 exec, -1")
            g.lab("L_nogate")
    nmid = [p["nmid"]]
    def mid():
        if nmid[0] > 0 and can_issue(): issue(); nmid[0] -= 1; return True
        return False
    refill()
    g.stamp(8, 2)
    step(); attn_consts()
    while land[0] < 12 + p["bpos"] + 1: step()
    g.stamp(3)
    A(f"v_and_b32 v{vT}, 0xf0, v{vOK}"); A(f"v_and_b32 v{vT+1}, 1, v{vR3}")
    A(f"v_lshl_add_u32 v{vT}, v{vT+1}, 8, v{vT}")
    A("s_barrier")
    A(f"ds_read_b128 {v4(vA)}, v{vT} offset:{L_Q}")
    A(f"s_mov_b32 s{sC}, {f2u(128**-0.5 * 1.4426950408889634):#x}")
    A(f"v_lshlrev_b32 v{vT+1}, 5, v{vT+1}"); A(f"s_lshl_b32 s{sT0}, s{sW}, 2"); A(f"v_add_u32 v{vT+3}, s{sT0}, v{vT+1}")
    A("s_waitcnt lgkmcnt(0)")
    for i in range(12): A(f"{MF} {v4(vK+4*i)}, {v4(vK+4*i)}, {v4(vA)}, 0")
    for i in range(12): A(f"v_mov_b32_dpp v{vP+i}, v{vK+4*i} quad_perm:[0,0,0,0] {DPP}")
    for r in (1, 2, 3):
        if r == 2: mid()
        for i in range(12): A(f"v_add_f32_dpp v{vP+i}, v{vK+4*i+r}, v{vP+i} quad_perm:[{r},{r},{r},{r}] {DPP}")
    A(f"v_add_f32 v{vP+11}, s{sBIAS}, v{vP+11}")
    A(f"v_max3_f32 v{vT}, v{vP}, v{vP+1}, v{vP+2}")
    for i in range(3, 11, 2): A(f"v_max3_f32 v{vT}, v{vT}, v{vP+i}, v{vP+i+1}")
    A(f"v_max_f32 v{vT}, v{vT}, v{vP+11}")
    crossrow(g, "v_max_f32", vT, vT+2)
    setexec(g, 0x101, 0)
    A(f"ds_write_b32 v{vT+3}, v{vT} offset:{L_M}")
    A("s_mov_b64 exec, -1")
    mid()
    A("s_waitcnt lgkmcnt(0)")
    A("s_barrier")
    A(f"ds_read_b128 {v4(vA)}, v{vT+1} offset:{L_M}"); A(f"ds_read_b128 {v4(vA+4)}, v{vT+1} offset:{L_M+16}")
    A(f"v_and_b32 v{vT+5}, 15, v{vL}"); A(f"v_lshlrev_b32 v{vT+5}, 5, v{vT+5}")
    A(f"v_and_b32 v{vT+6}, 16, v{vL}"); A(f"v_add_u32 v{vT+5}, v{vT+5}, v{vT+6}")
    A(f"v_lshrrev_b32 v{vT+6}, 5, v{vL}"); A(f"v_lshl_add_u32 v{vT+5}, v{vT+6}, 9, v{vT+5}")
    A(f"s_lshl_b32 s{sT0}, s{sW}, 10"); A(f"v_add_u32 v{vT+5}, s{sT0}, v{vT+5}")
    A("s_waitcnt lgkmcnt(0)")
    A(f"v_max3_f32 v{vT}, v{vA}, v{vA+1}, v{vA+2}"); A(f"v_max3_f32 v{vT}, v{vT}, v{vA+3}, v{vA+4}")
    A(f"v_max3_f32 v{vT}, v{vT}, v{vA+5}, v{vA+6}"); A(f"v_max_f32 v{vT}, v{vT}, v{vA+7}")
    A(f"v_mul_f32 v{vT}, s{sC}, v{vT}")
    for i in range(12): A(f"v_fma_f32 v{vP+i}, v{vP+i}, s{sC}, -v{vT}")
    for i in range(12): A(f"v_exp_f32 v{vP+i}, v{vP+i}")
    if not mid(): A("s_nop 0")
    A(f"v_add_f32 v{vT+4}, v{vP}, v{vP+1}")
    for i in range(2, 12): A(f"v_add_f32 v{vT+4}, v{vT+4}, v{vP+i}")
    for i in range(12): A(f"v_cvt_pk_bf16_f32 v{vP+i}, v{vP+i}, v{vP+i}")
    crossrow(g, "v_add_f32", vT+4, vT+2)
    setexec(g, 0x101, 0)
    A(f"ds_write_b32 v{vT+3}, v{vT+4} offset:{L_L}")
    A("s_mov_b64 exec, -1")
    mid()
    for i in range(12): build_A(g, vK+4*i, vP+i)
    A("s_waitcnt lgkmcnt(0)")
    A("s_barrier")
    A(f"s_cmp_lt_u32 s{sW}, 6"); A("s_cbranch_scc1 L_nolse")
    A(f"s_sub_u32 s{sT0}, s{sW}, 6")
    A(f"s_lshl_b32 s{sT1}, s{sT0}, 5"); A(f"v_mov_b32 v{vT+1}, s{sT1}")
    A(f"ds_read_b128 {v4(vA)}, v{vT+1} offset:{L_L}"); A(f"ds_read_b128 {v4(vA+4)}, v{vT+1} offset:{L_L+16}")
    A(f"ds_read_b128 {v4(vP)}, v{vT+1} offset:{L_M}"); A(f"ds_read_b128 {v4(vP+4)}, v{vT+1} offset:{L_M+16}")
    A(f"s_lshl_b32 s{sT1}, s{sT0}, 9"); A(f"v_lshl_add_u32 v{vT+2}, v{vL}, 3, s{sT1}")
    A(f"s_lshl4_add_u32 s{sT3}, s{sHK}, s{sSLOT}"); A(f"s_lshl1_add_u32 s{sT3}, s{sT3}, s{sT0}"); A(f"s_lshl_b32 s{sT3}, s{sT3}, 10")
    A(f"s_add_u32 s{sT3}, s{sT3}, {OB}"); A(f"s_add_u32 s{sT4}, s{sT3}, {AOFF}")
    A("s_waitcnt lgkmcnt(0)")
    A(f"v_pk_add_f32 {v2(vA)}, {v2(vA)}, {v2(vA+2)}"); A(f"v_pk_add_f32 {v2(vA+4)}, {v2(vA+4)}, {v2(vA+6)}")
    A(f"v_max3_f32 v{vT}, v{vP}, v{vP+1}, v{vP+2}")
    A(f"v_pk_add_f32 {v2(vA)}, {v2(vA)}, {v2(vA+4)}")
    A(f"v_max3_f32 v{vT}, v{vT}, v{vP+3}, v{vP+4}")
    A(f"v_add_f32 v{vA}, v{vA}, v{vA+1}")
    A(f"v_max3_f32 v{vT}, v{vT}, v{vP+5}, v{vP+6}")
    A(f"v_rcp_f32 v{vA+2}, v{vA}"); A(f"v_log_f32 v{vA+4}, v{vA}")
    A(f"v_max_f32 v{vT}, v{vT}, v{vP+7}")
    A(f"v_mov_b32 v{vP+11}, s{sTAG}")
    A(f"v_fma_f32 v{vP+10}, v{vT}, s{sC}, v{vA+4}")
    g.lab("L_nolse")
    g.stamp(4)
    for i in range(12):
        if land[0] <= 12 + i:
            land[0] += 1; g.vwait(f"V{i}")
            if f"V{i}" in PROG: g.stamp(PROG[f"V{i}"], True)
        A(f"{MF} {v4(vACC)}, {v4(vK+4*i)}, {v4(vV+4*i)}, {'0' if i == 0 else v4(vACC)}")
        vdone[0] = i
        refill()
    assert pos[0] == len(seq)
    g.stamp(5)
    A("s_nop 7")
    A(f"ds_write_b128 v{vT+5}, {v4(vACC)} offset:{L_O}")
    A("s_waitcnt lgkmcnt(0)")
    A("s_branch L_barC")
    g.L.append(".p2align 12")
    if p.get("w9"):
        g.lab("L_warmA"); A("s_endpgm")
    g.lab("L_attn8")
    if p["prio"]: A("s_setprio 3")
    A(f"s_mov_b32 s{sNOS}, 0")
    attn_consts()
    A(f"s_lshl_b32 s{sT2}, s{sHK}, 12"); A(f"s_add_u32 s{sT2}, s{sT2}, {QB}"); A(f"s_add_u32 s{sT0}, s{sT2}, {AOFF}")
    A(f"s_mov_b32 s{sSPIN}, {SPIN}")
    tagsel(g)
    g.lab("L_qpoll")
    A(f"s_sleep {p['qsleep']}")
    for rg in range(4):
        A(f"buffer_load_dwordx4 {v4(vK+4*rg)}, v{vOV}, {srd(SWS)}, s{sT0} offen offset:{rg*1024} sc1")
    A(f"s_sub_u32 s{sSPIN}, s{sSPIN}, 1"); A("s_cbranch_scc1 L_qpoll_end")
    A(f"s_cmp_eq_u32 s{sSPIN}, {max(SPIN-p['apolls']//4,0)}"); A(f"s_cselect_b32 s{sT0}, s{sT2}, s{sT0}")
    A("s_waitcnt vmcnt(0)")
    for rg in range(4): tagcheck(g, vK+4*rg, vT+2*rg)
    for rg in range(4): A(f"v_xor_b32 v{vT+2*rg}, s{sTAG}, v{vT+2*rg}")
    A(f"v_or3_b32 v{vT}, v{vT}, v{vT+2}, v{vT+4}"); A(f"v_or_b32 v{vT}, v{vT}, v{vT+6}")
    A(f"v_cmp_ne_u32 vcc, 0, v{vT}")
    A("s_cbranch_vccnz L_qpoll")
    g.lab("L_qpoll_end")
    for k in (0, 2):
        A(f"v_pk_add_f32 {v2(vK+k)}, {v2(vK+k)}, {v2(vK+4+k)}"); A(f"v_pk_add_f32 {v2(vK+8+k)}, {v2(vK+8+k)}, {v2(vK+12+k)}")
    for k in (0, 2): A(f"v_pk_add_f32 {v2(vK+k)}, {v2(vK+k)}, {v2(vK+8+k)}")
    A(f"v_cvt_pk_bf16_f32 v{vK}, v{vK}, v{vK+1}"); A(f"v_cvt_pk_bf16_f32 v{vK+1}, v{vK+2}, v{vK+3}")
    A(f"v_lshlrev_b32 v{vT}, 3, v{vL}")
    A(f"ds_write_b64 v{vT}, {v2(vK)} offset:{L_Q}")
    A("s_waitcnt lgkmcnt(0)")
    if p.get("gate"):
        A(f"v_lshlrev_b32 v{vT}, 7, v{vL}")
        A(f"s_lshl_b32 s{sT0}, 1, s{sXCD}"); A(f"s_xor_b32 exec_lo, s{sT0}, 0xff"); A("s_mov_b32 exec_hi, 0")
        g.lab("L_gpoll")
        A(f"s_sleep {p.get('gsleep', 2)}")
        A(f"buffer_load_dword v{vT+1}, v{vT}, {srd(SWS)}, 0 offen offset:2048 sc1")
        A(f"s_sub_u32 s{sSPIN}, s{sSPIN}, 1"); A("s_cbranch_scc1 L_gpoll_end")
        A("s_waitcnt vmcnt(0)")
        A(f"v_cmpx_ne_u32 vcc, s{sTAG}, v{vT+1}")
        A("s_cbranch_execnz L_gpoll")
        g.lab("L_gpoll_end")
        A("s_mov_b64 exec, -1")
    g.stamp(4)
    A("s_barrier")
    if p["pretouch"]:
        A(f"s_lshl4_add_u32 s{sT1}, s{sHK}, s{sSLOT}"); A(f"s_lshl_b32 s{sT1}, s{sT1}, 11"); A(f"s_add_u32 s{sT1}, s{sT1}, {OB+AOFF}")
        A(f"v_lshlrev_b32 v{vT}, 7, v{vL}")
        setexec(g, 0xffff, 0)
        A(f"buffer_load_dword v{vT+1}, v{vT}, {srd(SWS)}, s{sT1} offen sc1")
        A("s_mov_b64 exec, -1")
    A("s_barrier")
    for i in range(3 - p.get("olate", 0)):
        A(f"buffer_load_dwordx4 {v4(vV+4*i)}, v{vOD if i == 2 else vOT}, {srd(S3)}, s{sOO} offen {nt}")
        if i < 2: A(f"s_add_u32 s{sOO}, s{sOO}, {11*9216}")
    A("s_barrier")
    if p.get("warm", 1): A("s_branch L_warmT")
    g.lab("L_barC")
    A("s_barrier")
    A(f"s_cmp_lt_u32 s{sW}, 3"); A("s_cbranch_scc1 L_ogather")
    A(f"s_sub_u32 s{sT0}, s{sW}, 6"); A(f"s_cmp_lt_u32 s{sT0}, 2"); A("s_cbranch_scc0 " + ("L_barC2" if p.get("c2") else "L_barD"))
    for w in range(8): A(f"ds_read_b64 {v2(vK+2*w)}, v{vT+2} offset:{L_O+1024*w}")
    A("s_waitcnt lgkmcnt(4)")
    for a, b in ((0,1),(2,3),(0,2)): A(f"v_pk_add_f32 {v2(vK+2*a)}, {v2(vK+2*a)}, {v2(vK+2*b)}")
    A("s_waitcnt lgkmcnt(0)")
    for a, b in ((4,5),(6,7),(0,4),(0,6)): A(f"v_pk_add_f32 {v2(vK+2*a)}, {v2(vK+2*a)}, {v2(vK+2*b)}")
    A(f"v_mul_f32 v{vP+8}, v{vK}, v{vA+2}"); A(f"v_mul_f32 v{vP+9}, v{vK+1}, v{vA+2}")
    A(f"buffer_store_dwordx4 {v4(vP+8)}, v{vOV}, {srd(SWS)}, s{sT4} offen")
    g.stamp(6)
    A("s_barrier")
    late_o()
    A(f"buffer_store_dwordx4 {v4(vP+8)}, v{vOV}, {srd(SWS)}, s{sT3} offen sc1")
    A(f"s_mov_b32 s{sNOS}, 1")
    A("s_branch L_barD0")
    if p.get("c2"):
        g.lab("L_barC2")
        is45(g, "L_barC3")
        hsetup(g)
        A(f"s_mov_b32 s{sNOS}, 2")
        A("s_barrier")
        late_o()
        if p.get("hpos", 0) == 0:
            setexec(g, 0x3ffff, 0); hload(g); A("s_mov_b64 exec, -1")
        A("s_barrier")
        if p.get("hpos", 0) == 1:
            setexec(g, 0x3ffff, 0); hload(g); A("s_mov_b64 exec, -1")
        dissue(g)
        A("s_branch L_barD")
        g.lab("L_barC3"); A("s_barrier"); late_o()
        g.lab("L_barD0"); A("s_barrier"); A("s_branch L_barD")
    g.lab("L_ogather")
    A(f"s_mul_i32 s{sT0}, s{sW}, 11"); A(f"s_add_u32 s{sT0}, s{sT0}, s{sSLOT}")
    A(f"s_lshl_b32 s{sT1}, s{sHK}, 15"); A(f"s_lshl_b32 s{sT2}, s{sT0}, 6"); A(f"s_add_u32 s{sT1}, s{sT1}, s{sT2}"); A(f"s_add_u32 s{sT2}, s{sT1}, {OB}")
    A(f"s_add_u32 s{sT1}, s{sT2}, {AOFF}")
    A(f"v_mov_b32 v{vA}, 0"); A(f"v_mov_b32 v{vA+1}, 0"); A(f"v_mov_b32 v{vA+2}, {f2u(-1e30):#x}")
    A(f"v_lshrrev_b32 v{vT+1}, 4, v{vL}")
    A(f"s_lshl_b32 s{sT3}, s{sW}, 5"); A(f"v_lshl_add_u32 v{vT+3}, v{vT+1}, 3, s{sT3}")
    A(f"s_mov_b32 s{sSPIN}, {SPIN}")
    if p.get("olate"):
        A(f"s_cmp_ge_u32 s{sT0}, 32"); A("s_cbranch_scc0 L_op0")
        A("s_barrier"); late_o(); A("s_barrier"); A("s_branch L_owrite")
        g.lab("L_op0")
        setexec(g, 0x07ff07ff, 0x07ff07ff)
        A("s_setprio 3")
        A("s_barrier")
        A(f"buffer_load_dwordx4 {v4(vA)}, v{vOU}, {srd(SWS)}, s{sT1} offen sc1")
        A("s_mov_b64 exec, -1")
        late_o()
        setexec(g, 0x07ff07ff, 0x07ff07ff)
        A(f"s_waitcnt vmcnt({p['olate']})")
        A(f"v_cmpx_ne_u32 vcc, s{sTAG}, v{vA+3}")
        A("s_cbranch_execz L_opoll_end")
    else:
        A("s_barrier")
        A(f"s_cmp_ge_u32 s{sT0}, 32"); A("s_cbranch_scc1 L_owrite")
        setexec(g, 0x07ff07ff, 0x07ff07ff)
    g.lab("L_opoll")
    A(f"buffer_load_dwordx4 {v4(vA)}, v{vOU}, {srd(SWS)}, s{sT1} offen sc1")
    A(f"s_sub_u32 s{sSPIN}, s{sSPIN}, 1"); A("s_cbranch_scc1 L_opoll_end")
    A(f"s_cmp_eq_u32 s{sSPIN}, {SW}"); A(f"s_cselect_b32 s{sT1}, s{sT2}, s{sT1}")
    A("s_waitcnt vmcnt(0)")
    A(f"v_cmpx_ne_u32 vcc, s{sTAG}, v{vA+3}")
    A("s_cbranch_execnz L_opoll")
    g.lab("L_opoll_end")
    A("s_barrier")
    A("s_mov_b64 exec, -1")
    g.stamp(6)
    A(f"v_mov_b32 v{vT+4}, v{vA+2}")
    A("s_nop 1")
    rowred(g, "v_max_f32", [vT+4])
    A(f"v_sub_f32 v{vA+2}, v{vA+2}, v{vT+4}")
    A(f"v_exp_f32 v{vA+2}, v{vA+2}")
    A("s_nop 0")
    A(f"v_mul_f32 v{vA}, v{vA}, v{vA+2}"); A(f"v_mul_f32 v{vA+1}, v{vA+1}, v{vA+2}")
    A("s_nop 0")
    rowred(g, "v_add_f32", [vA+2, vA, vA+1])
    A(f"v_rcp_f32 v{vA+2}, v{vA+2}")
    A("s_nop 0")
    A(f"v_mul_f32 v{vA}, v{vA}, v{vA+2}"); A(f"v_mul_f32 v{vA+1}, v{vA+1}, v{vA+2}")
    A(f"v_cvt_pk_bf16_f32 v{vA}, v{vA}, v{vA}"); A(f"v_cvt_pk_bf16_f32 v{vA+1}, v{vA+1}, v{vA+1}")
    if p.get("warm", 1):
        A("s_branch L_owrite")
        g.lab("L_warmT"); A("s_branch L_barC")
    g.lab("L_owrite")
    setexec(g, 0x00010001, 0x00010001)
    A(f"ds_write_b64 v{vT+3}, {v2(vA)} offset:{L_C}")
    A("s_mov_b64 exec, -1")
    g.lab("L_barD")
    A(f"v_lshlrev_b32 v{vT}, 2, v{vR3}")
    A("s_waitcnt lgkmcnt(0)")
    A("s_barrier")
    g.stamp(8)
    for i in range(3): A(f"ds_read_b32 v{vP+i}, v{vT} offset:{L_C+32*i}")
    A(f"s_cmp_eq_u32 s{sNOS}, 2")
    A("s_waitcnt lgkmcnt(0)")
    for i in range(3): build_A(g, vK+4*i, vP+i)
    A("s_waitcnt vmcnt(10)")
    A("s_cbranch_scc1 L_wo")
    A(f"s_cmp_eq_u32 s{sNOS}, 1")
    A("s_waitcnt vmcnt(1)")
    A("s_cbranch_scc1 L_wo")
    A("s_waitcnt vmcnt(0)")
    g.lab("L_wo")
    for i in range(3): A(f"{MF} {v4(vACC+4)}, {v4(vK+4*i)}, {v4(vV+4*i)}, {'0' if i == 0 else v4(vACC+4)}")
    hd = p.get("hd")
    if hd and hd[0] == "A":
        g.stamp(9)
        A(f"s_cmp_eq_u32 s2, {p.get('hdwg', 43)}"); A("s_cbranch_scc0 L_hd1"); A(f"s_cmp_eq_u32 s{sW}, {hd[1]}"); A("s_cbranch_scc0 L_hd1")
        A("s_waitcnt lgkmcnt(0)"); A(f"s_sub_u32 s{sT0}, s{80+2*hd[3]}, s{80+2*hd[2]}")
        A(f"v_mov_b32 v{vT}, s{sT0}"); A(f"v_mov_b32 v{vT+1}, 0"); A("s_mov_b64 exec, 1")
        A(f"buffer_store_dword v{vT}, v{vT+1}, {srd(SWS)}, 0 offen offset:1024 sc1"); A("s_mov_b64 exec, -1")
        g.lab("L_hd1")
    fpublish(g, vACC+4)
    g.stamp(7)
    A(f"s_cmp_eq_u32 s{sNOS}, 2"); A("s_cbranch_scc0 L_aend")
    A("s_waitcnt vmcnt(10)")
    hgather(g, "a", SPIN, p["hsleep"], True)
    dshare(g, 1)
    A(f"s_cmp_lt_u32 s{sJ}, 22"); A("s_cbranch_scc0 L_fds2")
    g.stamp(2)
    g.lab("L_aend")
    A("s_endpgm" if not p["stamps"] else "s_branch L_fin")
    g.L.append(".p2align 12")
    if p.get("w9"):
        g.lab("L_warmF"); A("s_endpgm")
    g.lab("L_notattn")
    if not p["helper"]:
        A(f"s_cmp_eq_u32 s{sJ}, 31"); A("s_cbranch_scc1 L_fin")
    g.vm = list(pre)
    if p.get("diag"):
        A(f"s_cmp_eq_u32 s{sJ}, 22"); A("s_cbranch_scc0 L_dg1"); A(f"s_cmp_eq_u32 s{sW}, 0"); A("s_cbranch_scc0 L_dg1")
        A(f"v_mov_b32 v{vT}, s90"); A(f"v_mov_b32 v{vT+1}, 0"); A(f"s_lshl_b32 s{sT0}, s{sXCD}, 7"); A("s_mov_b64 exec, 1")
        A(f"buffer_store_dword v{vT}, v{vT+1}, {srd(SWS)}, s{sT0} offen offset:1024 sc1"); A("s_mov_b64 exec, -1")
        g.lab("L_dg1")
    A(f"v_and_b32 v{vT+1}, 7, v{vL}"); A(f"v_mad_u32_u24 v{vT}, v{vR3}, 64, v{vT+1}"); A(f"v_lshl_add_u32 v{vT}, v{vR3}, 3, v{vT}")
    A(f"v_lshlrev_b32 v{vT}, 1, v{vT}"); A(f"s_lshl_b32 s{sT0}, s{sWE}, 4")
    A(f"s_mov_b64 s[{SGW+2}:{SGW+3}], s[{SX+2}:{SX+3}]"); A(f"s_mov_b64 s[{SOUT+2}:{SOUT+3}], s[{SX+2}:{SX+3}]")
    A(f"buffer_load_ushort v{vXG}, v{vT}, {srd(SX)}, s{sT0} offen"); g.vissue("xg")
    A(f"buffer_load_ushort v{vGW}, v{vT}, {srd(SGW)}, s{sT0} offen"); g.vissue("gw")
    A(f"s_cmp_eq_u32 s{sMODE}, 2"); A(f"s_cselect_b32 s{sT0}, {OOB:#x}, 0")
    A(f"v_or_b32 v{vOU}, s{sT0}, v{vOK}")
    fseq = [("K", t) for t in range(8)] + [("U", t) for t in range(8)]
    def greg(kind, t): return {"K": vK+4*t, "U": vK+32+4*t, "D": vK+32+4*t}[kind]
    fpos = [NPRO]
    def fissue():
        kind, t = fseq[fpos[0]]; fpos[0] += 1
        if True:
            A(f"buffer_load_dwordx4 {v4(greg(kind,t))}, v{vOK if kind == 'K' else vOU}, {srd(S1 if kind == 'K' else S2)}, s{sRUN} offen {nt}")
            if t < 7: A(f"s_add_u32 s{sRUN}, s{sRUN}, s{sSTEP}")
            elif kind == "K": A(f"s_mov_b32 s{sRUN}, s{sKO}")
        g.vissue(f"{kind}{t}")
    A(f"s_mul_i32 s{sOO}, s{sU}, {64*1152}"); A(f"s_add_u32 s{sOO}, s{sOO}, 1024")
    A(f"s_add_u32 s{sPI}, s{sU}, 176")
    fpub_consts(g, "8", True)
    fl = 0
    while fpos[0] < WF: fissue()
    for idx in range(NPRO):
        g.vwait(f"K{idx}"); fl = idx + 1
        while fpos[0] - fl < WF: fissue()
    g.vwait("gw")
    A(f"v_lshl_or_b32 v{vT+4}, v{vXG}, 16, v{vXG}")
    A(f"v_lshlrev_b32 v{vT+5}, 2, v{vR3}")
    for t in range(8): A(f"ds_bpermute_b32 v{vP+t}, v{vT+5}, v{vT+4} offset:{32*t}")
    A(f"v_lshlrev_b32 v{vXG}, 16, v{vXG}"); A(f"v_lshlrev_b32 v{vGW}, 16, v{vGW}")
    A(f"v_mul_f32 v{vXG}, v{vXG}, v{vGW}")
    bf16r(g, vXG, vXG)
    rowred(g, "v_add_f32", [vXG]); crossrow(g, "v_add_f32", vXG, vT)
    A(f"s_lshl_b32 s{sT0}, s{sW}, 2"); A(f"v_mov_b32 v{vT+3}, s{sT0}")
    A("s_mov_b64 exec, 1")
    A(f"ds_write_b32 v{vT+3}, v{vXG} offset:{L_Z}")
    A("s_mov_b64 exec, -1")
    A("s_waitcnt lgkmcnt(0)")
    vRO, vRB, vRL = vOKL, vOVL, vOWQ
    A(f"v_and_b32 v{vT}, 31, v{vL}"); A(f"v_lshrrev_b32 v{vT+1}, 5, v{vL}")
    A(f"v_mul_u32_u24 v{vRB}, {FROW}, v{vT}"); A(f"v_lshl_add_u32 v{vRB}, v{vT+1}, 4, v{vRB}")
    A(f"s_lshl3_add_u32 s{sC}, s{sXCD}, s{sJ}"); A(f"s_sub_u32 s{sC}, s{sC}, 22"); A(f"s_add_u32 s{sT1}, s{sXCD}, 64")
    A(f"s_cmp_eq_u32 s{sJ}, 30"); A(f"s_cselect_b32 s{sC}, s{sT1}, s{sC}")
    A(f"s_mul_i32 s{sBIAS}, s{sW}, {32*FROW}"); A(f"s_lshl_b32 s{sT1}, s{sC}, 5"); A(f"s_add_u32 s{sBIAS}, s{sBIAS}, s{sT1}")
    A(f"s_add_u32 s{sBIAS}, s{sBIAS}, {FB}")
    A(f"s_lshl_b32 s{sT2}, s{sW}, 5"); A(f"v_add_u32 v{vT+10}, s{sT2}, v{vT}")
    A(f"s_movk_i32 s{sT3}, 240"); A(f"s_cmp_eq_u32 s{sJ}, 30"); A(f"s_cselect_b32 s{sT3}, 248, s{sT3}"); A(f"s_cselect_b32 s{sT4}, 9, 64"); A(f"s_cselect_b32 s{sT1}, s{sXCD}, 0")
    A(f"v_cmp_gt_u32 s[{sM0}:{sM0+1}], s{sT3}, v{vT+10}")
    A(f"v_lshlrev_b32 v{vRL}, 1, v{vT+10}"); A(f"v_lshl_add_u32 v{vRL}, v{vT+1}, 4, v{vRL}")
    A(f"s_mul_i32 s{sT2}, s{sXCD}, 22"); A(f"s_mul_i32 s{sT3}, s{sT1}, 9"); A(f"s_add_u32 s{sT3}, s{sT3}, 176")
    A(f"v_subrev_u32 v{vT+11}, s{sT2}, v{vT+10}"); A(f"v_subrev_u32 v{vT+12}, s{sT3}, v{vT+10}")
    A(f"v_cmp_gt_u32 s[{sM0+2}:{sM0+3}], 22, v{vT+11}")
    A(f"v_cmp_gt_u32 vcc, s{sT4}, v{vT+12}")
    A(f"v_mov_b32 v{vT+4}, {AOFF}")
    A(f"s_or_b64 vcc, s[{sM0+2}:{sM0+3}], vcc")
    tagsel(g)
    A(f"v_cndmask_b32 v{vRO}, 0, v{vT+4}, vcc")
    A(f"v_add_u32 v{vRO}, v{vRO}, v{vRB}")
    A(f"s_cmp_eq_u32 s{sMODE}, 1"); A("s_cbranch_scc0 L_m0")
    if True:
        A(f"s_lshl_b32 s{sT0}, s{sW}, 9")
        A(f"s_and_b32 s{sT1}, s{sU}, 0x78"); A(f"s_lshl1_add_u32 s{sT1}, s{sW}, s{sT1}"); A(f"s_lshl_b32 s{sT1}, s{sT1}, 8")
        A(f"s_add_u32 s{sT1}, s{sT1}, {HB - 10*256}")
        A(f"v_add_u32 v{vT+3}, s{sT0}, v{vOV}")
        A(f"s_mov_b32 s{sSPIN}, {SPIN}")
        tagsel(g)
        A("s_mov_b32 exec_hi, 0")
        g.lab("L_hpoll")
        A(f"s_sleep {p['hsleep']}")
        A(f"buffer_load_dwordx4 {v4(vA)}, v{vOV}, {srd(SWS)}, s{sT1} offen sc1")
        A(f"s_sub_u32 s{sSPIN}, s{sSPIN}, 1"); A("s_cbranch_scc1 L_hpoll_end")
        A("s_waitcnt vmcnt(0)")
        tagcheck(g, vA, vT+4)
        A(f"v_cmp_ne_u32 vcc, s{sTAG}, v{vT+4}")
        A("s_cbranch_vccnz L_hpoll")
        g.lab("L_hpoll_end")
        A(f"ds_write_b128 v{vT+3}, {v4(vA)} offset:{L_O}")
        A("s_mov_b64 exec, -1")
        A("s_branch L_barE")
    g.lab("L_m0")
    ng = 0
    for idx, (kind, t) in enumerate(fseq):
        if ng == 16: break
        if ng == 8 and kind == "U" and t == 0:
            A(f"s_cmp_eq_u32 s{sMODE}, 2"); A("s_cbranch_scc0 L_nohelp")
            A(f"s_lshl_b32 s{sPI}, s{sHK}, 8"); A(f"s_add_u32 s{sPI}, s{sPI}, {HB}")
            fpublish(g, vACC, acopy=False)
            g.stamp(4)
            A("s_branch L_hw")
            g.lab("L_nohelp")
        if kind != "D": build_A(g, vA+4*(ng & 1), vP+t)
        k = 0
        if idx >= fl:
            g.vwait(f"{kind}{t}"); fl = idx + 1; k = 1
            Wn = p.get("WF1", WF) if idx < p.get("wf1n", 0) else WF
            while fpos[0] - fl < Wn and fpos[0] < len(fseq): fissue(); k += 1
        if kind != "D":
            if k < 2: A(f"s_nop {1-k}")
            acc = vACC if kind == "K" else vACC+4
            A(f"{MF} {v4(acc)}, {v4(vA+4*(ng&1))}, {v4(greg(kind,t))}, {'0' if t == 0 else v4(acc)}")
            ng += 1
    g.stamp(4)
    A("s_nop 1")
    A(f"s_lshl_b32 s{sT0}, s{sW}, 9"); A(f"v_add_u32 v{vT+2}, s{sT0}, v{vOFP}")
    A(f"v_permlane32_swap_b32 v{vACC}, v{vACC+2}"); A(f"v_permlane32_swap_b32 v{vACC+1}, v{vACC+3}")
    A("s_nop 1")
    A(f"v_add_f32_dpp v{vACC}, v{vACC+2}, v{vACC} row_ror:8 {DPP}"); A(f"v_add_f32_dpp v{vACC+1}, v{vACC+3}, v{vACC+1} row_ror:8 {DPP}")
    A(f"v_permlane32_swap_b32 v{vACC+4}, v{vACC+6}"); A(f"v_permlane32_swap_b32 v{vACC+5}, v{vACC+7}")
    A("s_nop 0")
    A(f"v_add_f32_dpp v{vACC+4}, v{vACC+6}, v{vACC+4} row_ror:8 {DPP}"); A(f"v_add_f32_dpp v{vACC+5}, v{vACC+7}, v{vACC+5} row_ror:8 {DPP}")
    setexec(g, 0x00ff00ff, 0x00ff00ff)
    A(f"ds_write_b64 v{vT+2}, {v2(vACC)} offset:{L_O}")
    A(f"ds_write_b64 v{vT+2}, {v2(vACC+4)} offset:{L_O+256}")
    A("s_mov_b64 exec, -1")
    g.lab("L_barE")
    A(f"s_cmp_eq_u32 s{sW}, 7"); A("s_cbranch_scc1 L_h7")
    A("s_waitcnt lgkmcnt(0)")
    A("s_barrier")
    g.lab("L_hw")
    is45(g, "L_fds2", True)
    hsetup(g)
    dissue(g)
    A(f"s_mov_b32 s{sSPIN}, {SPIN}")
    setexec(g, 0x3ffff, 0)
    A("s_branch L_hga")
    g.lab("L_h7")
    for t in range(8):
        A(f"buffer_load_dwordx4 {v4(greg('D',t))}, v{vOT}, {srd(SD)}, s{sOO} offen {nt}")
        if t < 7: A(f"s_add_u32 s{sOO}, s{sOO}, 9216")
    A(f"v_lshlrev_b32 v{vT}, 3, v{vL}")
    A(f"v_lshrrev_b32 v{vT+1}, 1, v{vR3}"); A(f"v_and_b32 v{vT+2}, 1, v{vR3}"); A(f"v_lshlrev_b32 v{vT+1}, 2, v{vT+1}")
    A(f"v_lshl_add_u32 v{vT+1}, v{vT+2}, 7, v{vT+1}")
    A(f"v_and_b32 v{vT+2}, 31, v{vL}"); A(f"v_lshrrev_b32 v{vT+3}, 5, v{vL}"); A(f"v_lshl_add_u32 v{vT+2}, v{vT+2}, 1, v{vT+3}")
    A(f"v_and_b32 v{vT+3}, 3, v{vT+2}"); A(f"v_lshlrev_b32 v{vT+3}, 3, v{vT+3}"); A(f"v_mov_b32 v{vT+4}, s{sTAG}")
    A(f"v_lshrrev_b32 v{vT+3}, v{vT+3}, v{vT+4}"); A(f"v_lshlrev_b32 v{vT+2}, 2, v{vT+2}")
    A(f"s_lshl_b32 s{sT1}, s{sU}, 8"); A(f"s_add_u32 s{sT1}, s{sT1}, {H2}")
    A("s_waitcnt lgkmcnt(0)")
    A("s_barrier")
    for w in range(9): A(f"ds_read_b64 {v2(vK+2*w)}, v{vT} offset:{L_O+512*w}")
    A("s_waitcnt lgkmcnt(0)")
    for a, b in ((0,1),(2,3),(4,5),(6,7),(0,2),(4,6),(0,4),(0,8)):
        A(f"v_pk_add_f32 {v2(vK+2*a)}, {v2(vK+2*a)}, {v2(vK+2*b)}")
    A("s_nop 1")
    A(f"v_permlane32_swap_b32 v{vK}, v{vK+1}")
    A("s_nop 0")
    A(f"v_cvt_pk_bf16_f32 v{vK+2}, v{vK}, v{vK+1}")
    A(f"v_lshlrev_b32 v{vK}, 16, v{vK+2}"); A(f"v_and_b32 v{vK+1}, 0xffff0000, v{vK+2}")
    A(f"v_mul_f32 v{vK+2}, {f2u(-1.4426950408889634):#x}, v{vK}")
    A(f"v_exp_f32 v{vK+2}, v{vK+2}"); A("s_nop 0")
    A(f"v_add_f32 v{vK+2}, 1.0, v{vK+2}")
    A(f"v_rcp_f32 v{vK+2}, v{vK+2}"); A("s_nop 0")
    A(f"v_mul_f32 v{vK}, v{vK}, v{vK+2}")
    bf16r(g, vK, vK)
    A(f"v_mul_f32 v{vK}, v{vK}, v{vK+1}")
    A(f"v_cvt_pk_bf16_f32 v{vK}, v{vK}, v{vK}")
    A(f"v_bfi_b32 v{vK+1}, s{sFF}, v{vT+3}, v{vK}")
    A(f"buffer_store_dword v{vK+1}, v{vT+2}, {srd(SWS)}, s{sT1} offen sc1")
    g.stamp(5)
    for t in range(8): A(f"ds_bpermute_b32 v{vP+t}, v{vT+1}, v{vK} offset:{16*t}")
    A("s_waitcnt lgkmcnt(0)")
    for t in range(8):
        build_A(g, vA+4*(t & 1), vP+t)
        A(f"s_waitcnt vmcnt({8-t})"); A("s_nop 0")
        A(f"{MF} {v4(vACC+4)}, {v4(vA+4*(t&1))}, {v4(greg('D',t))}, {'0' if t == 0 else v4(vACC+4)}")
    fpublish(g, vACC+4)
    g.stamp(6)
    g.lab("L_fds2")
    g.stamp(7)
    A(f"s_cmp_eq_u32 s{sMODE}, 2"); A("s_cbranch_scc1 L_fin")
    tagsel(g)
    A(f"s_cmp_eq_u32 s{sW}, 8"); A("s_cbranch_scc1 L_fin8")
    for r in range(4): A(f"v_mov_b32 v{vK+r}, 0")
    A(f"s_mov_b32 s{sSPIN}, {SPIN}")
    if p.get("lgate"):
        A("s_barrier")
    A(f"s_mov_b64 exec, s[{sM0}:{sM0+1}]"); A("s_cbranch_execz L_fpoll_end")
    if p.get("rfirst"): A("s_branch L_fsleep")
    g.lab("L_fpoll")
    A(f"buffer_load_dwordx4 {v4(vK)}, v{vRO}, {srd(SWS)}, s{sBIAS} offen {p.get('fld','sc1')}")
    A(f"s_sub_u32 s{sSPIN}, s{sSPIN}, 1"); A("s_cbranch_scc1 L_fpoll_end")
    A(f"s_cmp_eq_u32 s{sSPIN}, {SW}"); A("s_cbranch_scc0 L_fp1")
    A(f"v_mov_b32 v{vRO}, v{vRB}")
    g.lab("L_fp1")
    A("s_waitcnt vmcnt(0)")
    tagcheck(g, vK, vT+12)
    A(f"v_cmpx_ne_u32 vcc, s{sTAG}, v{vT+12}")
    A(f"s_cmp_eq_u64 exec, s[{sM0}:{sM0+1}]"); A("s_cbranch_scc1 L_fsleep")
    A("s_cbranch_execnz L_fpoll")
    g.lab("L_fpoll_end")
    A("s_mov_b64 exec, -1")
    g.stamp(8)
    A("s_nop 0")
    rowred(g, "v_add_f32", [vK, vK+1, vK+2, vK+3])
    setexec(g, 0x00010001, 0x00010001)
    A(f"ds_write_b128 v{vRL}, {v4(vK)} offset:{L_R}")
    A("s_mov_b64 exec, -1")
    A("s_waitcnt lgkmcnt(0)")
    A("s_barrier")
    A(f"s_or_b32 s{sT0}, s{sU}, s{sW}"); A("s_cbranch_scc1 L_fin")
    A("s_mov_b64 exec, 1")
    A(f"v_mov_b32 v{vT+7}, s{sTAG}")
    A(f"buffer_store_dword v{vT+7}, v{vOV}, {srd(SWS)}, 0 offen offset:{EPOCH}")
    A("s_endpgm" if not p["stamps"] else "s_branch L_fin")
    g.lab("L_fsleep")
    A(f"s_sleep {p['radapt']}")
    A("s_branch L_fpoll")
    g.lab("L_fin8")
    if p.get("lgate"):
        A(f"s_mul_i32 s{sT0}, s{sXCD}, {22*FROW}"); A(f"s_lshl_b32 s{sT1}, s{sC}, 5"); A(f"s_add_u32 s{sT0}, s{sT0}, s{sT1}"); A(f"s_add_u32 s{sT0}, s{sT0}, {FB+AOFF}")
        A(f"s_movk_i32 s{sSPIN}, {p['apolls']}")
        setexec(g, (1 << 22) - 1, 0)
        g.lab("L_lpoll")
        A(f"s_sleep {p.get('lsleep', 2)}")
        A(f"buffer_load_dwordx4 {v4(vK)}, v{vRB}, {srd(SWS)}, s{sT0} offen sc1")
        A(f"s_sub_u32 s{sSPIN}, s{sSPIN}, 1"); A("s_cbranch_scc1 L_lpoll_end")
        A("s_waitcnt vmcnt(0)")
        tagcheck(g, vK, vT+12)
        A(f"v_cmpx_ne_u32 vcc, s{sTAG}, v{vT+12}")
        A(f"s_bcnt1_i32_b64 s{sT1}, exec"); A(f"s_cmp_gt_u32 s{sT1}, {22 - p['lgate']}"); A("s_cbranch_scc1 L_lpoll")
        g.lab("L_lpoll_end")
        A("s_mov_b64 exec, -1")
        A("s_barrier")
    A(f"v_mov_b32 v{vT+6}, 0")
    A(f"ds_read_b128 {v4(vA)}, v{vT+6} offset:{L_Z}"); A(f"ds_read_b128 {v4(vA+4)}, v{vT+6} offset:{L_Z+16}"); A(f"ds_read_b32 v{vT+7}, v{vT+6} offset:{L_Z+32}")
    A("s_waitcnt lgkmcnt(0)")
    A(f"v_pk_add_f32 {v2(vA)}, {v2(vA)}, {v2(vA+2)}"); A(f"v_pk_add_f32 {v2(vA+4)}, {v2(vA+4)}, {v2(vA+6)}")
    A(f"v_pk_add_f32 {v2(vA)}, {v2(vA)}, {v2(vA+4)}")
    A(f"v_add_f32 v{vA}, v{vA}, v{vA+1}"); A(f"v_add_f32 v{vA}, v{vA}, v{vT+7}")
    bf16r(g, vA, vA)
    A(f"v_mul_f32 v{vA}, {f2u(-1.4426950408889634):#x}, v{vA}")
    A(f"v_exp_f32 v{vA}, v{vA}"); A("s_nop 0")
    A(f"v_add_f32 v{vA}, 1.0, v{vA}"); A(f"v_rcp_f32 v{vA}, v{vA}"); A("s_nop 0")
    bf16r(g, vA, vA)
    A(f"v_sub_f32 v{vA+1}, 1.0, v{vA}"); bf16r(g, vA+1, vA+1)
    A(f"v_and_b32 v{vT+9}, 7, v{vL}"); A(f"v_lshlrev_b32 v{vT+8}, 2, v{vT+9}"); A(f"v_lshlrev_b32 v{vT+9}, 1, v{vT+9}")
    A(f"v_add_u32 v{vT+8}, {L_R}, v{vT+8}")
    A(f"s_lshl_b32 s{sKO}, s{sC}, 4")
    A("s_barrier")
    g.stamp(8)
    for k in range(8): A(f"ds_read2_b32 {v2(vK+2*k)}, v{vT+8} offset0:{16*k} offset1:{16*k+8}")
    A("s_waitcnt lgkmcnt(0)")
    A(f"v_pk_add_f32 {v2(vK)}, {v2(vK)}, {v2(vK+2)}"); A(f"v_pk_add_f32 {v2(vK+4)}, {v2(vK+4)}, {v2(vK+6)}")
    A(f"v_pk_add_f32 {v2(vK+12)}, {v2(vK+12)}, {v2(vK+14)}")
    A(f"v_pk_add_f32 {v2(vK)}, {v2(vK)}, {v2(vK+8)}")
    A(f"v_add_f32 v{vK+12}, v{vK+12}, v{vK+13}")
    A(f"v_pk_add_f32 {v2(vK)}, {v2(vK)}, {v2(vK+4)}")
    A(f"v_add_f32 v{vK+11}, v{vK+11}, v{vK+12}")
    A(f"v_add_f32 v{vK}, v{vK}, v{vK+1}"); A(f"v_add_f32 v{vK+10}, v{vK}, v{vK+10}")
    A(f"v_cvt_pk_bf16_f32 v{vK}, v{vK+10}, v{vK+11}")
    A(f"v_lshlrev_b32 v{vK+10}, 16, v{vK}"); A(f"v_and_b32 v{vK+11}, 0xffff0000, v{vK}")
    A(f"v_pk_mul_f32 {v2(vK+10)}, {v2(vK+10)}, {v2(vA)}")
    A(f"v_cvt_pk_bf16_f32 v{vK}, v{vK+10}, v{vK+11}")
    A(f"v_lshlrev_b32 v{vK+10}, 16, v{vK}"); A(f"v_and_b32 v{vK+11}, 0xffff0000, v{vK}")
    A(f"v_add_f32 v{vK}, v{vK+10}, v{vK+11}")
    A(f"v_cvt_pk_bf16_f32 v{vK}, v{vK}, v{vK}")
    setexec(g, 0xff, 0)
    A(f"buffer_store_short v{vK}, v{vT+9}, {srd(SOUT)}, s{sKO} offen {p.get('ost','')}")
    if hd or p.get("diag"): A(f"s_cmp_lg_u32 s{sU}, 0"); A("s_cbranch_scc1 L_fin")
    if hd:
        g.stamp(9)
        A("s_waitcnt lgkmcnt(0)")
        if hd[0] == "A":
            A("s_sleep 40")
            A(f"buffer_load_dword v{vT+1}, v{vT+6}, {srd(SWS)}, 0 offen offset:1024 sc1"); A("s_waitcnt vmcnt(0)")
            A(f"v_readfirstlane_b32 s{sT0}, v{vT+1}"); A("s_nop 3")
        else: A(f"s_sub_u32 s{sT0}, s{80+2*hd[3]}, s{80+2*hd[2]}")
        A(f"s_mul_i32 s{sT0}, s{sT0}, {hd[4]}"); A(f"s_add_u32 s{sT0}, s{sT0}, 300"); A(f"s_min_u32 s{sT0}, s{sT0}, 20000")
        g.lab("L_hd2")
        A("s_memrealtime s[80:81]"); A("s_waitcnt lgkmcnt(0)"); A("s_sub_u32 s80, s80, s98"); A(f"s_cmp_lt_u32 s80, s{sT0}"); A("s_cbranch_scc1 L_hd2")
    if p.get("diag"):
        A("s_memrealtime s[92:93]")
        A(f"v_lshlrev_b32 v{vT}, 7, v{vL}")
        A(f"buffer_load_dword v{vT+1}, v{vT}, {srd(SWS)}, 0 offen offset:1024 sc1"); A("s_waitcnt vmcnt(0) lgkmcnt(0)")
        for k in range(8): A(f"v_readlane_b32 s{80+k}, v{vT+1}, {k}")
        A("s_nop 3")
        for k in range(8): A(f"s_sub_u32 s{80+k}, s92, s{80+k}")
        A("s_mov_b32 s88, s80"); A("s_mov_b32 s89, s80")
        for k in range(1, 8): A(f"s_max_u32 s88, s88, s{80+k}"); A(f"s_min_u32 s89, s89, s{80+k}")
        d = p["diag"]
        if d == "skew": A("s_sub_u32 s88, s88, s89"); A("s_mul_i32 s88, s88, 10")
        elif d == "total": A("s_mul_i32 s88, s88, 4")
        elif d == "last": A("s_mul_i32 s88, s89, 4")
        elif d == "zero": A("s_mov_b32 s88, 0")
        elif d == "a0": A("s_sub_u32 s88, s96, s90"); A("s_mul_i32 s88, s88, 20")
        elif d == "touch": A("s_sub_u32 s88, s98, s96"); A("s_mul_i32 s88, s88, 20")
        A("s_min_u32 s88, s88, 20000")
        g.lab("L_dg2")
        A("s_memrealtime s[94:95]"); A("s_waitcnt lgkmcnt(0)"); A("s_sub_u32 s94, s94, s92"); A("s_cmp_lt_u32 s94, s88"); A("s_cbranch_scc1 L_dg2")
    g.lab("L_fin")
    if p["stamps"] and not hd:
        A("s_mov_b64 exec, -1")
        A("s_waitcnt vmcnt(0)")
        g.stamp(9)
        A("s_waitcnt lgkmcnt(0)")
        A("s_sleep 127"); A("s_sleep 127")
        A(f"s_lshl_b32 s{sT0}, s2, 4"); A(f"s_add_u32 s{sT0}, s{sT0}, s{sW}"); A(f"s_lshl_b32 s{sT0}, s{sT0}, 6"); A(f"s_add_u32 s{sT0}, s{sT0}, {STB}")
        for k in range(10): A(f"v_mov_b32 v{vK+k}, s{80+2*k}")
        A(f"v_mov_b32 v{vK+10}, s{sSPIN}"); A(f"v_mov_b32 v{vK+11}, s{sTAG}")
        A(f"v_mov_b32 v{vT}, 0"); A("s_mov_b64 exec, 1")
        for k in range(3): A(f"buffer_store_dwordx4 {v4(vK+4*k)}, v{vT}, {srd(SWS)}, s{sT0} offen offset:{16*k}")
    g.lab("L_end")
    A("s_endpgm")
    out += g.L
    out += ['.section .rodata,"a"', ".p2align 6", f".amdhsa_kernel {NAME}", f"  .amdhsa_next_free_vgpr {NV}",
            f"  .amdhsa_next_free_sgpr {100 if (p['stamps'] or p.get('diag')) else 80}", f"  .amdhsa_accum_offset {NV}", "  .amdhsa_group_segment_fixed_size 0",
            "  .amdhsa_kernarg_size 104", "  .amdhsa_user_sgpr_count 2", "  .amdhsa_user_sgpr_kernarg_segment_ptr 1",
            "  .amdhsa_system_sgpr_workgroup_id_x 1", ".end_amdhsa_kernel"]
    return "\n".join(out) + "\n"

if __name__ == "__main__":
    kw = {}
    for a in sys.argv[2:]:
        k, v = a.split("="); kw[k] = eval(v)
    open(sys.argv[1], "w").write(gen(**kw))
```

```python
import sys, struct
NAME = "gated_mix__sliding_block_cached__swiglu_ffn__decode_kernel"
HDR = open("gated_mix__sliding_block_cached__swiglu_ffn__decode.s.ref").read().split("; Override launch")[0]
def f2u(f): return struct.unpack("<I", struct.pack("<f", f))[0]

EPOCH = 0
HB = 4096
H2 = HB + 72*256
QB = H2 + 72*256
OB = QB + 256*256
FB = OB + 256*2048
AOFF = 2 << 20
FROW = 2304
assert FB + 256*FROW <= AOFF
WS_USED = 2*AOFF
STB = 8 << 20
L_H = 0; L_QP = 0; L_Q = 5376; L_M = 5888; L_L = 5952; L_Z = 6016; L_C = 6080
L_CNT = 6272; L_O = 6400; L_R = L_O + 8*1024
LDS_BYTES = L_R + 640
OOB = 0x40000000

class G:
    def __init__(s, **kw):
        s.L = []; s.p = dict(WA=4, WF=3, N0=2, c2=1, b3=1, olate=1, rfirst=0, lgate=1, lsleep=4, hpos=1, WF1=2, wf1n=8, stamps=False, nt="nt", qsleep=8, spin=200000, apolls=300, bpos=1, rsleep=0, radapt=6, dmix=5,
                             prio=1, align=True, touch=0, pretouch=0, cpf=0, nmid=4, helper=1, hsleep=4)
        s.p.update(kw); s.vm = []
    def A(s, x):
        if s.p.get("pnt") and x.startswith("buffer_load") and x.endswith(" sc1"): x += " nt"
        if s.p.get("xnt") and (x.startswith("buffer_load_dword v") or x.startswith("buffer_load_ushort") or x.startswith("global_load_dword v")) and " nt" not in x: x += " nt"
        if s.p.get("nob") and x.startswith("buffer_store") and x.endswith("sc1 nt"): x = "s_nop 0"
        s.L.append("    " + x)
    def lab(s, x): s.L.append(x + ":")
    def vissue(s, name): s.vm.append(name)
    def vwait(s, name):
        i = s.vm.index(name); s.A(f"s_waitcnt vmcnt({len(s.vm)-1-i})")
    def stamp(s, k, prog=False):
        if s.p.get("prof") and not prog and 3 <= k <= 8 and k != 5: return
        if prog and s.p.get("prof") != int(prog): return
        if s.p["stamps"]: s.A(f"s_memrealtime s[{80+2*k}:{81+2*k}]")

sW=3
SX=8; SWQ=12; SWS=16; S1=20; S2=24; S3=28; SGW=32; SOUT=36
sE=40; sSTEP=41; sTAG=42
sXCD=44; sJ=45; sHK=46; sSLOT=47; sQI=48; sT0=49; sT1=50; sT2=51; sRUN=52; sBIAS=53; sSPIN=54
sKO=55; sOO=56; sSEL0=57; sSEL1=58; sPI=59; sC=60; sU=61
sM0=62; sEX=70; sAM=72; sWE=74; sT3=75; sT4=76; sMODE=77; sFF=78; sNOS=79; sST2=43; sDO=48; sGOT=40; SD=4
def srd(b): return f"s[{b}:{b+3}]"
vL=1; vM=2; vOT=6; vOK=7; vOV=8; vOWQ=9; vLT=10; vX0=11; vOU=12; vOD=13; vTB=14
vXG=16; vGW=17; vT=18
vA=32; vACC=40; vP=48; vOKL=60; vOVL=61; vR3=62; vOFP=63
vK=64; vV=112; NV=160
def v4(b): return f"v[{b}:{b+3}]"
def v2(b): return f"v[{b}:{b+1}]"
DPP = "row_mask:0xf bank_mask:0xf"
MF = "v_mfma_f32_16x16x32_bf16"

def build_A(g, dst, rep):
    for j in range(4): g.A(f"v_and_b32 v{dst+j}, v{rep}, v{vM+j}")
def rowred(g, op, regs):
    need = max(0, 2 - (len(regs) - 1))
    for r in (8, 4, 2, 1):
        if need: g.A(f"s_nop {need-1}")
        for x in regs: g.A(f"{op}_dpp v{x}, v{x}, v{x} row_ror:{r} {DPP}")
def crossrow(g, op, x, t):
    for sw in ("v_permlane16_swap_b32", "v_permlane32_swap_b32"):
        g.A(f"v_mov_b32 v{t}, v{x}"); g.A("s_nop 1"); g.A(f"{sw} v{x}, v{t}"); g.A("s_nop 1"); g.A(f"{op} v{x}, v{x}, v{t}")
def bf16r(g, d, s_):
    g.A(f"v_cvt_pk_bf16_f32 v{d}, v{s_}, v{s_}"); g.A(f"v_and_b32 v{d}, 0xffff0000, v{d}")
def setexec(g, lo, hi):
    g.A(f"s_mov_b32 exec_lo, {lo:#x}"); g.A(f"s_mov_b32 exec_hi, {hi:#x}")

def fpub_consts(g, sblk, ffn=False):
    A = g.A
    A(f"s_mul_i32 s{sPI}, s{sPI}, 9"); A(f"s_add_u32 s{sPI}, s{sPI}, {sblk}"); A(f"s_lshl_b32 s{sPI}, s{sPI}, 8"); A(f"s_add_u32 s{sPI}, s{sPI}, {FB}")
    A(f"v_lshrrev_b32 v{vT}, 5, v{vOFP}")
    A(f"v_cmp_eq_u32 vcc, s{sXCD}, v{vT}")
    A(f"v_lshrrev_b32 v{vT}, 1, v{vL}"); A(f"v_and_b32 v{vT}, 16, v{vT}")
    A(f"v_mov_b32 v{vTB}, s{sTAG}")
    A(f"v_lshrrev_b32 v{vTB}, v{vT}, v{vTB}")
    A(f"s_cmp_eq_u32 {sblk}, 8"); A(f"s_cselect_b64 s[{sAM}:{sAM+1}], vcc, 0")
    A(f"s_cmp_eq_u32 {sblk}, s{sXCD}"); A(f"s_cselect_b64 s[{sAM}:{sAM+1}], -1, s[{sAM}:{sAM+1}]")
    A(f"s_and_b32 s{sAM}, s{sAM}, 0x00ff00ff"); A(f"s_and_b32 s{sAM+1}, s{sAM+1}, 0x00ff00ff")
    A(f"v_lshrrev_b32 v{vTB+1}, 8, v{vTB}")
    A(f"s_movk_i32 s{sFF}, 0xff")
    na = g.p.get("na", 2)
    if not ffn:
        A(f"s_mul_i32 s{sST2}, s{sJ}, {na}"); A(f"s_add_u32 s{sST2}, s{sST2}, s{sW}"); A(f"s_sub_u32 s{sST2}, s{sST2}, 4")
    else:
        nf = {2: 2, 1: 4}[na]; nh = 64 - 22*na - 9*nf
        A(f"s_mul_i32 s{sST2}, s{sJ}, {nf}"); A(f"s_add_u32 s{sST2}, s{sST2}, s{sW}"); A(f"s_sub_u32 s{sST2}, s{sST2}, {22*nf - 22*na}")
        A(f"s_cmp_eq_u32 s{sJ}, 31"); A(f"s_cselect_b32 s{sSLOT}, {nh}, {nf}")
    A(f"s_mul_i32 s{sDO}, s{sST2}, {72*1152}")
    A(f"s_lshl_b32 s{sT0}, s{sXCD}, 7"); A(f"s_add_u32 s{sDO}, s{sDO}, s{sT0}")
    A(f"s_mov_b32 s{SD+2}, 5308416"); A(f"s_mov_b32 s{SD+3}, s{SWQ+3}")

def tagcheck(g, d, t):
    g.A(f"v_perm_b32 v{t}, v{d+1}, v{d}, s{sSEL0}"); g.A(f"v_perm_b32 v{t+1}, v{d+3}, v{d+2}, s{sSEL1}")
    g.A(f"v_or_b32 v{t}, v{t}, v{t+1}")
def tagsel(g):
    g.A(f"s_mov_b32 s{sSEL0}, 0x0c0c0400"); g.A(f"s_mov_b32 s{sSEL1}, 0x04000c0c")

PROG = {"K3": 3, "K7": 4, "K11": 6, "V3": 7, "V7": 8}
uid = [0]
def fpublish(g, acc, acopy=True, fb=False):
    g.A(f"s_add_u32 s{sT0}, s{sPI}, {AOFF}")
    g.A("s_nop 6")
    g.A(f"v_permlane32_swap_b32 v{acc}, v{acc+2}")
    g.A(f"v_permlane32_swap_b32 v{acc+1}, v{acc+3}")
    g.A("s_nop 0")
    g.A(f"v_add_f32_dpp v{acc}, v{acc+2}, v{acc} row_ror:8 {DPP}")
    g.A(f"v_add_f32_dpp v{acc+1}, v{acc+3}, v{acc+1} row_ror:8 {DPP}")
    g.A(f"v_bfi_b32 v{acc}, s{sFF}, v{vTB}, v{acc}"); g.A(f"v_bfi_b32 v{acc+1}, s{sFF}, v{vTB+1}, v{acc+1}")
    if acopy:
        uid[0] += 1
        g.A(f"s_mov_b64 exec, s[{sAM}:{sAM+1}]"); g.A(f"s_cbranch_execz L_na{uid[0]}")
        g.A(f"buffer_store_dwordx2 {v2(acc)}, v{vOFP}, {srd(SWS)}, s{sT0} offen")
        g.lab(f"L_na{uid[0]}")
    setexec(g, 0x00ff00ff, 0x00ff00ff)
    g.A(f"buffer_store_dwordx2 {v2(acc)}, v{vOFP}, {srd(SWS)}, s{sPI} offen sc1{' nt' if (fb and g.p.get('bnt')) else ''}")
    g.A("s_mov_b64 exec, -1")

vD = vV + 12
def is45(g, other, ffn=False):
    if ffn: g.A(f"s_cmp_lt_u32 s{sW}, s{sSLOT}")
    else: g.A(f"s_sub_u32 s{sT0}, s{sW}, 4"); g.A(f"s_cmp_lt_u32 s{sT0}, {g.p.get('na', 2)}")
    g.A(f"s_cbranch_scc0 {other}")
def dissue(g):
    for t in range(9):
        g.A(f"buffer_load_dwordx4 {v4(vD+4*t)}, v{vOT}, {srd(SD)}, s{sDO} offen {g.p['nt']}")
        if t < 8: g.A(f"s_add_u32 s{sDO}, s{sDO}, 9216")

vH = vK + 28
def hsetup(g):
    A = g.A
    A(f"s_mul_i32 s{sGOT}, s{sST2}, 288"); A(f"s_add_u32 s{sGOT}, s{sGOT}, {H2}")
    tagsel(g)
    A(f"s_mul_i32 s{sT2}, s{sW}, 288")
    A(f"v_add_u32 v{vT+6}, s{sT2}, v{vOV}"); A(f"v_lshl_add_u32 v{vT+7}, v{vR3}, 2, s{sT2}")
def hload(g): g.A(f"buffer_load_dwordx4 {v4(vH)}, v{vOV}, {srd(SWS)}, s{sGOT} offen sc1")
def hgather(g, sfx, budget, sleep, loaded):
    A = g.A
    A(f"s_mov_b32 s{sSPIN}, {budget}")
    setexec(g, 0x3ffff, 0)
    if loaded: A(f"s_branch L_hc{sfx}")
    g.lab(f"L_hg{sfx}")
    A(f"s_sub_u32 s{sSPIN}, s{sSPIN}, 1"); A(f"s_cbranch_scc1 L_hge{sfx}")
    A(f"s_sleep {sleep}")
    hload(g)
    A("s_waitcnt vmcnt(0)")
    g.lab(f"L_hc{sfx}")
    tagcheck(g, vH, vT+4)
    A(f"v_cmp_ne_u32 vcc, s{sTAG}, v{vT+4}")
    A(f"s_cbranch_vccnz L_hg{sfx}")
    g.lab(f"L_hge{sfx}")
    A(f"s_mov_b32 s{sT1}, 0x03020302")
    for r in range(4): A(f"v_perm_b32 v{vH+r}, v{vH+r}, v{vH+r}, s{sT1}")
    A(f"ds_write_b128 v{vT+6}, {v4(vH)} offset:{L_H}")
    A("s_mov_b64 exec, -1")
    for t in range(0, 8, 2): A(f"ds_read2_b32 {v2(vK+16+t)}, v{vT+7} offset0:{L_H//4+8*t} offset1:{L_H//4+8*t+8}")
    A(f"ds_read_b32 v{vK+24}, v{vT+7} offset:{L_H+256}")

def dshare(g, nyoung):
    A = g.A
    A(f"s_add_u32 s{sPI}, s{sST2}, 176"); A(f"s_mul_i32 s{sPI}, s{sPI}, 9"); A(f"s_add_u32 s{sPI}, s{sPI}, s{sXCD}")
    A(f"s_lshl_b32 s{sPI}, s{sPI}, 8"); A(f"s_add_u32 s{sPI}, s{sPI}, {FB}")
    A(f"s_mov_b32 s{sAM}, 0x00ff00ff"); A(f"s_mov_b32 s{sAM+1}, s{sAM}")
    if g.p.get("dprof"): g.stamp(3)
    A("s_waitcnt lgkmcnt(0)")
    for t in range(9):
        build_A(g, vA+4*(t & 1), vK+16+t)
        A(f"s_waitcnt vmcnt({8-t+nyoung})"); A("s_nop 0")
        if g.p.get("dprof") and t in (0, 8): g.stamp(4 if t == 0 else 6)
        A(f"{MF} {v4(vACC)}, {v4(vA+4*(t&1))}, {v4(vD+4*t)}, {'0' if t == 0 else v4(vACC)}")
    fpublish(g, vACC, fb=True)

def gen(**kw):
    g = G(**kw); A = g.A; p = g.p; nt = p["nt"]; WA = p["WA"]; WF = p["WF"]
    SPIN = p["spin"]; SW = max(SPIN - p["apolls"], 0)
    NPRO = min(WA, WF)
    out = [HDR.rstrip("\n")]
    out.append(f"; @launch grid=(256,1,1) block=({640 if p.get('w9') else 576},1,1) lds={LDS_BYTES}")
    out += ['.amdgcn_target "amdgcn-amd-amdhsa--gfx950"', ".text"]
    if p["align"]: out += [".p2align 12", ".fill 832, 4, 0xbf800000"]
    out += [f".globl {NAME}", ".p2align 8", f".type {NAME},@function", f"{NAME}:"]
    g.stamp(0)
    if p.get("diag"): A("s_memrealtime s[90:91]")
    A("s_cmp_ge_u32 s2, 0x100"); A("s_cbranch_scc1 L_end")
    if p.get("w9"):
        A("v_cmp_gt_u32 vcc, 576, v0"); A("s_cbranch_vccnz L_go")
        A("s_cmp_lt_u32 s2, 176"); A("s_cbranch_scc1 L_warmA"); A("s_branch L_warmF")
        g.lab("L_go")
    A(f"s_load_dwordx2 s[{SWQ}:{SWQ+1}], s[0:1], 24")
    A(f"s_load_dwordx2 s[{SX}:{SX+1}], s[0:1], 0")
    A(f"s_lshr_b32 s{sJ}, s2, 3")
    A(f"s_cmp_lt_u32 s{sJ}, 22")
    A(f"s_cselect_b32 s{sT0}, 8, 48")
    A(f"s_load_dwordx4 s[64:67], s[0:1], s{sT0}")
    A(f"s_load_dwordx2 s[{S3}:{S3+1}], s[0:1], 32")
    A(f"s_load_dwordx2 s[{SD}:{SD+1}], s[0:1], 64")
    A(f"s_load_dwordx2 s[{SGW}:{SGW+1}], s[0:1], 72")
    A(f"s_load_dwordx2 s[{SOUT}:{SOUT+1}], s[0:1], 80")
    A(f"s_load_dwordx2 s[{SWS}:{SWS+1}], s[0:1], 96")
    A(f"v_lshrrev_b32 v{vT}, 6, v0")
    A(f"v_and_b32 v{vL}, 63, v0")
    A(f"v_readfirstlane_b32 s{sW}, v{vT}")
    A(f"s_and_b32 s{sXCD}, s2, 7")
    A(f"v_lshrrev_b32 v{vR3}, 3, v{vL}")
    A(f"v_and_b32 v{vT+1}, 7, v{vL}")
    A(f"v_lshlrev_b32 v{vT+2}, 4, v{vT+1}")
    A(f"v_lshl_add_u32 v{vOWQ}, v{vR3}, 14, v{vT+2}")
    A(f"v_lshlrev_b32 v{vT+3}, 2, v{vR3}")
    A(f"s_bfe_u32 s{sT0}, s{sJ}, 0x20002"); A(f"s_mul_i32 s{sT0}, s{sT0}, 9"); A(f"s_add_u32 s{sT0}, s{sT0}, s{sW}")
    A(f"s_lshr_b32 s{sT1}, s{sJ}, 4"); A(f"s_lshl1_add_u32 s{sT1}, s{sXCD}, s{sT1}")
    A(f"s_and_b32 s{sT2}, s{sJ}, 3"); A(f"s_lshl2_add_u32 s{sT1}, s{sT1}, s{sT2}"); A(f"s_lshl_b32 s{sT1}, s{sT1}, 7")
    A(f"s_lshl_b32 s{sT2}, s{sT0}, 17"); A(f"s_add_u32 s{sT1}, s{sT1}, s{sT2}")
    A(f"s_add_u32 s{sT2}, s{sT1}, 8192")
    A(f"s_lshl_b32 s{sT0}, s{sT0}, 5")
    A(f"s_mov_b32 s{SWQ+2}, 4718592"); A(f"s_mov_b32 s{SWQ+3}, 0x20000")
    A(f"s_movk_i32 s{SX+2}, 1152"); A(f"s_mov_b32 s{SX+3}, s{SWQ+3}")
    vWQ = vV + 40
    A(f"v_mov_b32 v{vT+4}, 0")
    A(f"ds_write_b32 v{vT+3}, v{vT+4} offset:{L_CNT}")
    A("s_waitcnt lgkmcnt(0)")
    g.stamp(1)
    A(f"buffer_load_dwordx4 {v4(vWQ)}, v{vOWQ}, {srd(SWQ)}, s{sT1} offen {nt}"); g.vissue("wq0")
    A(f"buffer_load_dwordx4 {v4(vWQ+4)}, v{vOWQ}, {srd(SWQ)}, s{sT2} offen {nt}"); g.vissue("wq1")
    A(f"buffer_load_dword v{vX0}, v{vT+3}, {srd(SX)}, s{sT0} offen"); g.vissue("x0")
    A(f"s_load_dword s{sE}, s[{SWS}:{SWS+1}], {EPOCH}")
    g.stamp(3, 2)
    A("s_barrier")
    g.stamp(4, 2)
    if p.get("diag"): A("s_memrealtime s[96:97]")
    A(f"s_mov_b64 s[{S1}:{S1+1}], s[64:65]"); A(f"s_mov_b64 s[{S2}:{S2+1}], s[66:67]")
    A(f"s_mov_b32 s{S1+3}, s{SWQ+3}")
    A(f"v_lshlrev_b32 v{vOV}, 4, v{vL}")
    A(f"s_cmp_ge_u32 s{sJ}, 22"); A("s_cbranch_scc1 L_setF")
    A(f"s_mov_b32 s{S1+2}, 0x10000000"); A(f"s_mov_b32 s{S3+2}, s{SWQ+2}")
    A(f"s_cmp_ge_u32 s{sJ}, 11"); A(f"s_cselect_b32 s{sT0}, 1, 0"); A(f"s_cselect_b32 s{sT1}, 8, 0")
    A(f"s_lshl1_add_u32 s{sHK}, s{sXCD}, s{sT0}")
    A(f"s_cmp_ge_u32 s{sJ}, 19"); A(f"s_cselect_b32 s{sT1}, 19, s{sT1}")
    A(f"s_sub_u32 s{sSLOT}, s{sJ}, s{sT1}")
    A(f"s_min_u32 s{sT0}, s{sSLOT}, 2"); A(f"s_mul_i32 s{sT1}, s{sSLOT}, 94"); A(f"s_add_u32 s{sT0}, s{sT0}, s{sT1}")
    A(f"s_lshr_b32 s{sT1}, s{sSLOT}, 2"); A(f"s_mul_i32 s{sT1}, s{sT1}, 6"); A(f"s_sub_u32 s{sT0}, s{sT0}, s{sT1}")
    if p.get("sweep"):
        A(f"s_mul_i32 s{sT1}, s{sSLOT}, 96"); A(f"s_sub_u32 s{sST2}, s{sT0}, s{sT1}"); A(f"s_add_u32 s{sST2}, s{sST2}, 88"); A(f"s_lshl_b32 s{sST2}, s{sST2}, 10")
        A(f"s_lshl_b32 s{sT0}, s{sSLOT}, 3")
    A(f"s_add_u32 s{sT0}, s{sT0}, s{sW}"); A(f"s_lshl_b32 s{sT0}, s{sT0}, 10")
    A(f"s_lshl_b32 s{sKO}, s{sHK}, 24"); A(f"s_add_u32 s{sKO}, s{sKO}, s{sT0}")
    A(f"s_add_u32 s{sKO}, s{sKO}, {61440*256}")
    A(f"s_mov_b32 s{sSTEP}, {88*1024}" if p.get("sweep") else f"s_movk_i32 s{sSTEP}, 8192")
    A(f"v_bfe_u32 v{vT}, v{vL}, 2, 2"); A(f"v_lshrrev_b32 v{vT+1}, 4, v{vL}"); A(f"v_and_b32 v{vT+3}, 3, v{vL}")
    A(f"v_lshlrev_b32 v{vOK}, 8, v{vT}"); A(f"v_lshl_add_u32 v{vOK}, v{vT+1}, 6, v{vOK}"); A(f"v_lshl_add_u32 v{vOK}, v{vT+3}, 4, v{vOK}")
    A(f"s_cmp_eq_u32 s{sW}, 8"); A(f"s_cselect_b32 s{sNOS}, 1, 0")
    A("s_branch L_set_done")
    g.lab("L_setF")
    A(f"s_mov_b32 s{S1+2}, 5308416"); A(f"s_mov_b32 s{S3+2}, s{S1+2}")
    A(f"s_mul_i32 s{sU}, s{sXCD}, 9"); A(f"s_mov_b32 s{sWE}, s{sW}")
    A(f"s_cmp_eq_u32 s{sJ}, 31"); A("s_cbranch_scc0 L_setF1")
    A(f"s_add_u32 s{sHK}, s{sU}, s{sW}")
    A(f"s_and_b32 s{sU}, s{sHK}, 0x78"); A(f"s_sub_u32 s{sU}, s{sU}, {9-3}")
    A(f"s_bfe_u32 s{sWE}, s{sHK}, 0x20001"); A(f"s_add_u32 s{sWE}, s{sWE}, 5")
    A(f"s_bitcmp1_b32 s{sHK}, 0"); A(f"s_cselect_b64 s[{S1}:{S1+1}], s[66:67], s[64:65]")
    g.lab("L_setF1")
    A(f"s_add_u32 s{sU}, s{sU}, s{sJ}"); A(f"s_sub_u32 s{sU}, s{sU}, 22")
    A(f"s_movk_i32 s{sT0}, 9216"); A(f"v_mad_u32_u24 v{vOK}, v{vR3}, s{sT0}, v{vT+2}")
    A(f"s_mul_i32 s{sKO}, s{sWE}, {8*9216}"); A(f"s_lshl_b32 s{sT0}, s{sU}, 7"); A(f"s_add_u32 s{sKO}, s{sKO}, s{sT0}")
    A(f"s_mov_b32 s{sSTEP}, {72*9216}")
    A(f"s_and_b32 s{sT0}, s{sU}, 7"); A(f"s_cmp_eq_u32 s{sT0}, 3"); A(f"s_cselect_b32 s{sT0}, s{sW}, 0")
    A(f"s_cmp_ge_u32 s{sT0}, {5 if p['helper'] else 99}"); A(f"s_cselect_b32 s{sMODE}, 1, 0")
    A(f"s_cmp_eq_u32 s{sJ}, 31"); A(f"s_cselect_b32 s{sMODE}, 2, s{sMODE}")
    A(f"s_cmp_eq_u32 s{sMODE}, {1 if p['helper'] else 2}")
    A(f"s_cselect_b32 s{sT0}, {OOB:#x}, 0")
    A(f"v_add_u32 v{vOK}, s{sT0}, v{vOK}")
    A(f"s_mov_b32 s{sNOS}, 0")
    g.lab("L_set_done")
    A(f"s_mov_b32 s{sRUN}, s{sKO}")
    def s1_issue(i):
        A(f"buffer_load_dwordx4 {v4(vK+4*i)}, v{vOK}, {srd(S1)}, s{sRUN} offen {nt}"); g.vissue(f"K{i}")
        A(f"s_add_u32 s{sRUN}, s{sRUN}, s{sSTEP}")
    N0 = min(p.get("N0", 2), NPRO)
    A(f"s_cmp_eq_u32 s{sNOS}, 1"); A("s_cbranch_scc1 " + "L_touched")
    for i in range(N0): s1_issue(i)
    g.lab("L_touched")
    g.stamp(6, 2)
    if p.get("diag"): A("s_memrealtime s[98:99]")
    A(f"s_mov_b64 s[{S2+2}:{S2+3}], s[{S1+2}:{S1+3}]"); A(f"s_mov_b32 s{S3+3}, s{SWQ+3}")
    A(f"s_mov_b32 s{SWS+2}, {(16<<20) if p['stamps'] else WS_USED}"); A(f"s_mov_b32 s{SWS+3}, s{SWQ+3}")
    A(f"v_and_b32 v{vT}, 1, v{vL}"); A(f"v_lshlrev_b32 v{vT}, 4, v{vT}")
    A(f"v_mov_b32 v{vT+1}, 0xffff"); A(f"v_lshlrev_b32 v{vT}, v{vT}, v{vT+1}")
    A(f"v_bfe_u32 v{vT+1}, v{vL}, 1, 2")
    for j in range(4): A(f"v_cmp_eq_u32 s[{sM0+2*j}:{sM0+2*j+1}], {j}, v{vT+1}")
    A(f"s_mov_b32 s{sSEL0}, 0x01000100"); A(f"s_mov_b32 s{sSEL1}, 0x03020302")
    for j in range(4): A(f"v_cndmask_b32 v{vM+j}, 0, v{vT}, s[{sM0+2*j}:{sM0+2*j+1}]")
    A(f"v_lshrrev_b32 v{vT}, 5, v{vL}"); A(f"v_and_b32 v{vT+3}, 16, v{vL}")
    A(f"v_lshl_add_u32 v{vLT}, v{vT+2}, 1, v{vT+3}")
    A(f"v_lshl_add_u32 v{vOFP}, v{vT}, 3, v{vLT}")
    A(f"v_lshl_add_u32 v{vLT}, v{vT}, 8, v{vLT}")
    A(f"s_movk_i32 s{sT0}, 1152"); A(f"v_mad_u32_u24 v{vOT}, v{vR3}, s{sT0}, v{vT+2}")
    A(f"s_lshl_b32 s{sT0}, s{sW}, 9"); A(f"v_add_u32 v{vT+2}, s{sT0}, v{vLT}")
    g.stamp(7, 2)
    A(f"s_cmp_eq_u32 s{sNOS}, 1"); A("s_cbranch_scc0 L_w1")
    A("s_waitcnt vmcnt(0)")
    g.lab("L_w1")
    g.vwait("x0")
    g.stamp(2)
    A(f"v_perm_b32 v{vT}, v{vX0}, v{vX0}, s{sSEL0}"); A(f"v_perm_b32 v{vT+1}, v{vX0}, v{vX0}, s{sSEL1}")
    build_A(g, vA, vT); build_A(g, vA+4, vT+1)
    A("s_cbranch_scc1 L_w2")
    for i in range(N0, NPRO): s1_issue(i)
    g.lab("L_w2")
    A(f"v_mov_b32 v{vT+5}, 1")
    A(f"{MF} {v4(vACC)}, {v4(vA)}, {v4(vWQ)}, 0")
    A(f"{MF} {v4(vACC)}, {v4(vA+4)}, {v4(vWQ+4)}, {v4(vACC)}")
    setexec(g, 0x00ff00ff, 0xff00ff00)
    A("s_waitcnt lgkmcnt(0)")
    A(f"s_mul_i32 s{sTAG}, s{sE}, 0x9e3779b1"); A(f"s_add_u32 s{sTAG}, s{sTAG}, 0x7f4a7c15")
    A(f"s_lshl_b32 s{sOO}, s{sW}, 7")
    A("s_nop 1")
    A(f"ds_write_b128 v{vT+2}, {v4(vACC)} offset:{L_QP}")
    A("s_mov_b64 exec, 1")
    A(f"ds_add_u32 v{vT+4}, v{vT+5} offset:{L_CNT}")
    A("s_mov_b64 exec, -1")
    A(f"s_cmp_lg_u32 s{sW}, 8"); A("s_cbranch_scc1 L_nopub")
    base = vV
    A(f"v_lshlrev_b32 v{vT}, 2, v{vL}")
    A(f"s_lshl_b32 s{sT0}, s{sXCD}, 5"); A(f"s_add_u32 s{sT0}, s{sT0}, s{sJ}")
    A(f"s_lshl_b32 s{sT0}, s{sT0}, 8"); A(f"s_add_u32 s{sT0}, s{sT0}, {QB}"); A(f"s_add_u32 s{sT1}, s{sT0}, {AOFF}")
    A(f"v_and_b32 v{vT+1}, 3, v{vL}"); A(f"v_lshlrev_b32 v{vT+1}, 3, v{vT+1}"); A(f"v_mov_b32 v{vT+6}, s{sTAG}")
    A(f"v_lshrrev_b32 v{vT+1}, v{vT+1}, v{vT+6}"); A(f"s_movk_i32 s{sFF}, 0xff")
    g.lab("L_cnt")
    A(f"ds_read_b32 v{vT+6}, v{vT+4} offset:{L_CNT}")
    A("s_waitcnt lgkmcnt(0)")
    A(f"v_cmp_ne_u32 vcc, 9, v{vT+6}")
    A("s_cbranch_vccnz L_cnt")
    for k in range(9): A(f"ds_read2st64_b32 {v2(base+2*k)}, v{vT} offset0:{L_QP//256+2*k} offset1:{L_QP//256+2*k+1}")
    A("s_waitcnt lgkmcnt(0)")
    for a, b in ((0,1),(2,3),(4,5),(6,7),(0,2),(4,6),(0,4),(0,8)):
        A(f"v_pk_add_f32 {v2(base+2*a)}, {v2(base+2*a)}, {v2(base+2*b)}")
    A(f"v_add_f32 v{vT+8}, v{base}, v{base+1}")
    A(f"v_bfi_b32 v{vT+8}, s{sFF}, v{vT+1}, v{vT+8}")
    A(f"buffer_store_dword v{vT+8}, v{vT}, {srd(SWS)}, s{sT1} offen")
    A(f"buffer_store_dword v{vT+8}, v{vT}, {srd(SWS)}, s{sT0} offen sc1{' nt' if p.get('bnt') else ''}")
    g.stamp(3)
    A(f"s_cmp_lt_u32 s{sJ}, 22"); A("s_cbranch_scc1 L_attn8")
    g.lab("L_nopub")
    A(f"s_cmp_ge_u32 s{sJ}, 22"); A("s_cbranch_scc1 L_notattn")
    pre = list(g.vm)
    def attn_consts():
        A(f"s_lshl_b32 s{sT0}, s{sHK}, 5"); A(f"s_add_u32 s{sT0}, s{sT0}, s{sSLOT}"); A(f"s_mul_i32 s{sT0}, s{sT0}, 9216")
        A(f"s_add_u32 s{sOO}, s{sOO}, s{sT0}")
        A(f"s_mul_i32 s{sPI}, s{sHK}, 11"); A(f"s_add_u32 s{sPI}, s{sPI}, s{sSLOT}")
        fpub_consts(g, f"s{sW}")
        A(f"s_cmp_lt_u32 s{sSLOT}, 10"); A(f"s_cselect_b32 s{sT0}, 0, {OOB:#x}")
        A(f"v_add_u32 v{vOD}, s{sT0}, v{vOT}")
        A(f"v_and_b32 v{vT}, 15, v{vL}"); A(f"v_lshrrev_b32 v{vT+1}, 4, v{vL}")
        A(f"v_lshlrev_b32 v{vOU}, 11, v{vT}"); A(f"v_lshl_add_u32 v{vOU}, v{vT+1}, 4, v{vOU}")
    for i in range(NPRO, WA): s1_issue(i)
    A(f"s_cmp_lt_u32 s{sSLOT}, 2"); A(f"s_cselect_b32 s{sT0}, 7, 6")
    A(f"s_and_b32 s{sT1}, s{sSLOT}, 3"); A(f"s_cmp_eq_u32 s{sT1}, 3"); A(f"s_cselect_b32 s{sT0}, 0, s{sT0}")
    A(f"s_cmp_lt_u32 s{sW}, s{sT0}"); A(f"s_cselect_b32 s{sT0}, 0, {OOB:#x}"); A(f"s_cselect_b32 s{sBIAS}, 0, {f2u(-1e30):#x}")
    A(f"v_add_u32 v{vOKL}, s{sT0}, v{vOK}"); A(f"v_add_u32 v{vOVL}, s{sT0}, v{vOV}")
    seq = [("K", i) for i in range(12)] + [("V", i) for i in range(12)] + [("O", i) for i in range(3 - p.get("olate", 0))]
    def late_o():
        for i in range(3 - p.get("olate", 0), 3):
            A(f"buffer_load_dwordx4 {v4(vV+4*i)}, v{vOD if i == 2 else vOT}, {srd(S3)}, s{sOO} offen {nt}")
            if i < 2: A(f"s_add_u32 s{sOO}, s{sOO}, {11*9216}")
    pos = [max(NPRO, WA)]; land = [0]; vdone = [-1]
    def can_issue():
        if pos[0] >= len(seq): return False
        kind, i = seq[pos[0]]
        return kind != "O" or i <= vdone[0]
    def issue():
        kind, i = seq[pos[0]]; pos[0] += 1
        if kind == "O":
            A(f"buffer_load_dwordx4 {v4(vV+4*i)}, v{vOD if i == 2 else vOT}, {srd(S3)}, s{sOO} offen {nt}")
            if i < 2: A(f"s_add_u32 s{sOO}, s{sOO}, {11*9216}")
        else:
            off = {("K", True): vOKL, ("K", False): vOK, ("V", True): vOVL, ("V", False): vOV}[(kind, i == 11)]
            A(f"buffer_load_dwordx4 {v4((vK if kind == 'K' else vV)+4*i)}, v{off}, {srd(S1 if kind == 'K' else S2)}, s{sRUN} offen {nt}")
            if i < 11: A(f"s_add_u32 s{sRUN}, s{sRUN}, s{sST2 if (i == 10 and p.get('sweep')) else sSTEP}")
            elif kind == "K": A(f"s_mov_b32 s{sRUN}, s{sKO}")
        g.vissue(f"{kind}{i}")
    def refill():
        while pos[0] - land[0] < WA and can_issue(): issue()
    def step():
        kind, i = seq[land[0]]; land[0] += 1
        g.vwait(f"{kind}{i}")
        if f"{kind}{i}" in PROG: g.stamp(PROG[f"{kind}{i}"], True)
        refill()
        if p.get("gate") == f"{kind}{i}":
            A(f"s_lshl4_add_u32 s{sT0}, s{sJ}, s{sW}"); A(f"s_cmp_lg_u32 s{sT0}, {p.get('gsrc', 5)*16+7}"); A("s_cbranch_scc1 L_nogate")
            A(f"s_lshl_b32 s{sT0}, s{sXCD}, 7"); A(f"v_mov_b32 v{vT+8}, s{sTAG}"); A(f"v_mov_b32 v{vT+9}, 0"); A("s_mov_b64 exec, 1")
            A(f"buffer_store_dword v{vT+8}, v{vT+9}, {srd(SWS)}, s{sT0} offen offset:2048 sc1"); A("s_mov_b64 exec, -1")
            g.lab("L_nogate")
    nmid = [p["nmid"]]
    def mid():
        if nmid[0] > 0 and can_issue(): issue(); nmid[0] -= 1; return True
        return False
    refill()
    g.stamp(8, 2)
    step(); attn_consts()
    while land[0] < 12 + p["bpos"] + 1: step()
    g.stamp(3)
    A(f"v_and_b32 v{vT}, 0xf0, v{vOK}"); A(f"v_and_b32 v{vT+1}, 1, v{vR3}")
    A(f"v_lshl_add_u32 v{vT}, v{vT+1}, 8, v{vT}")
    A("s_barrier")
    A(f"ds_read_b128 {v4(vA)}, v{vT} offset:{L_Q}")
    A(f"s_mov_b32 s{sC}, {f2u(128**-0.5 * 1.4426950408889634):#x}")
    A(f"v_lshlrev_b32 v{vT+1}, 5, v{vT+1}"); A(f"s_lshl_b32 s{sT0}, s{sW}, 2"); A(f"v_add_u32 v{vT+3}, s{sT0}, v{vT+1}")
    A("s_waitcnt lgkmcnt(0)")
    for i in range(12): A(f"{MF} {v4(vK+4*i)}, {v4(vK+4*i)}, {v4(vA)}, 0")
    for i in range(12): A(f"v_mov_b32_dpp v{vP+i}, v{vK+4*i} quad_perm:[0,0,0,0] {DPP}")
    for r in (1, 2, 3):
        if r == 2: mid()
        for i in range(12): A(f"v_add_f32_dpp v{vP+i}, v{vK+4*i+r}, v{vP+i} quad_perm:[{r},{r},{r},{r}] {DPP}")
    A(f"v_add_f32 v{vP+11}, s{sBIAS}, v{vP+11}")
    A(f"v_max3_f32 v{vT}, v{vP}, v{vP+1}, v{vP+2}")
    for i in range(3, 11, 2): A(f"v_max3_f32 v{vT}, v{vT}, v{vP+i}, v{vP+i+1}")
    A(f"v_max_f32 v{vT}, v{vT}, v{vP+11}")
    crossrow(g, "v_max_f32", vT, vT+2)
    setexec(g, 0x101, 0)
    A(f"ds_write_b32 v{vT+3}, v{vT} offset:{L_M}")
    A("s_mov_b64 exec, -1")
    mid()
    A("s_waitcnt lgkmcnt(0)")
    A("s_barrier")
    A(f"ds_read_b128 {v4(vA)}, v{vT+1} offset:{L_M}"); A(f"ds_read_b128 {v4(vA+4)}, v{vT+1} offset:{L_M+16}")
    A(f"v_and_b32 v{vT+5}, 15, v{vL}"); A(f"v_lshlrev_b32 v{vT+5}, 5, v{vT+5}")
    A(f"v_and_b32 v{vT+6}, 16, v{vL}"); A(f"v_add_u32 v{vT+5}, v{vT+5}, v{vT+6}")
    A(f"v_lshrrev_b32 v{vT+6}, 5, v{vL}"); A(f"v_lshl_add_u32 v{vT+5}, v{vT+6}, 9, v{vT+5}")
    A(f"s_lshl_b32 s{sT0}, s{sW}, 10"); A(f"v_add_u32 v{vT+5}, s{sT0}, v{vT+5}")
    A("s_waitcnt lgkmcnt(0)")
    A(f"v_max3_f32 v{vT}, v{vA}, v{vA+1}, v{vA+2}"); A(f"v_max3_f32 v{vT}, v{vT}, v{vA+3}, v{vA+4}")
    A(f"v_max3_f32 v{vT}, v{vT}, v{vA+5}, v{vA+6}"); A(f"v_max_f32 v{vT}, v{vT}, v{vA+7}")
    A(f"v_mul_f32 v{vT}, s{sC}, v{vT}")
    for i in range(12): A(f"v_fma_f32 v{vP+i}, v{vP+i}, s{sC}, -v{vT}")
    for i in range(12): A(f"v_exp_f32 v{vP+i}, v{vP+i}")
    if not mid(): A("s_nop 0")
    A(f"v_add_f32 v{vT+4}, v{vP}, v{vP+1}")
    for i in range(2, 12): A(f"v_add_f32 v{vT+4}, v{vT+4}, v{vP+i}")
    for i in range(12): A(f"v_cvt_pk_bf16_f32 v{vP+i}, v{vP+i}, v{vP+i}")
    crossrow(g, "v_add_f32", vT+4, vT+2)
    setexec(g, 0x101, 0)
    A(f"ds_write_b32 v{vT+3}, v{vT+4} offset:{L_L}")
    A("s_mov_b64 exec, -1")
    mid()
    for i in range(12): build_A(g, vK+4*i, vP+i)
    A("s_waitcnt lgkmcnt(0)")
    A("s_barrier")
    A(f"s_cmp_lt_u32 s{sW}, 6"); A("s_cbranch_scc1 L_nolse")
    A(f"s_sub_u32 s{sT0}, s{sW}, 6")
    A(f"s_lshl_b32 s{sT1}, s{sT0}, 5"); A(f"v_mov_b32 v{vT+1}, s{sT1}")
    A(f"ds_read_b128 {v4(vA)}, v{vT+1} offset:{L_L}"); A(f"ds_read_b128 {v4(vA+4)}, v{vT+1} offset:{L_L+16}")
    A(f"ds_read_b128 {v4(vP)}, v{vT+1} offset:{L_M}"); A(f"ds_read_b128 {v4(vP+4)}, v{vT+1} offset:{L_M+16}")
    A(f"s_lshl_b32 s{sT1}, s{sT0}, 9"); A(f"v_lshl_add_u32 v{vT+2}, v{vL}, 3, s{sT1}")
    A(f"s_lshl4_add_u32 s{sT3}, s{sHK}, s{sSLOT}"); A(f"s_lshl1_add_u32 s{sT3}, s{sT3}, s{sT0}"); A(f"s_lshl_b32 s{sT3}, s{sT3}, 10")
    A(f"s_add_u32 s{sT3}, s{sT3}, {OB}"); A(f"s_add_u32 s{sT4}, s{sT3}, {AOFF}")
    A("s_waitcnt lgkmcnt(0)")
    A(f"v_pk_add_f32 {v2(vA)}, {v2(vA)}, {v2(vA+2)}"); A(f"v_pk_add_f32 {v2(vA+4)}, {v2(vA+4)}, {v2(vA+6)}")
    A(f"v_max3_f32 v{vT}, v{vP}, v{vP+1}, v{vP+2}")
    A(f"v_pk_add_f32 {v2(vA)}, {v2(vA)}, {v2(vA+4)}")
    A(f"v_max3_f32 v{vT}, v{vT}, v{vP+3}, v{vP+4}")
    A(f"v_add_f32 v{vA}, v{vA}, v{vA+1}")
    A(f"v_max3_f32 v{vT}, v{vT}, v{vP+5}, v{vP+6}")
    A(f"v_rcp_f32 v{vA+2}, v{vA}"); A(f"v_log_f32 v{vA+4}, v{vA}")
    A(f"v_max_f32 v{vT}, v{vT}, v{vP+7}")
    A(f"v_mov_b32 v{vP+11}, s{sTAG}")
    A(f"v_fma_f32 v{vP+10}, v{vT}, s{sC}, v{vA+4}")
    g.lab("L_nolse")
    g.stamp(4)
    for i in range(12):
        if land[0] <= 12 + i:
            land[0] += 1; g.vwait(f"V{i}")
            if f"V{i}" in PROG: g.stamp(PROG[f"V{i}"], True)
        A(f"{MF} {v4(vACC)}, {v4(vK+4*i)}, {v4(vV+4*i)}, {'0' if i == 0 else v4(vACC)}")
        vdone[0] = i
        refill()
    assert pos[0] == len(seq)
    g.stamp(5)
    A("s_nop 7")
    A(f"ds_write_b128 v{vT+5}, {v4(vACC)} offset:{L_O}")
    A("s_waitcnt lgkmcnt(0)")
    A("s_branch L_barC")
    g.L.append(".p2align 12")
    if p.get("w9"):
        g.lab("L_warmA"); A("s_endpgm")
    g.lab("L_attn8")
    if p["prio"]: A("s_setprio 3")
    A(f"s_mov_b32 s{sNOS}, 0")
    attn_consts()
    A(f"s_lshl_b32 s{sT2}, s{sHK}, 12"); A(f"s_add_u32 s{sT2}, s{sT2}, {QB}"); A(f"s_add_u32 s{sT0}, s{sT2}, {AOFF}")
    A(f"s_mov_b32 s{sSPIN}, {SPIN}")
    tagsel(g)
    g.lab("L_qpoll")
    A(f"s_sleep {p['qsleep']}")
    for rg in range(4):
        A(f"buffer_load_dwordx4 {v4(vK+4*rg)}, v{vOV}, {srd(SWS)}, s{sT0} offen offset:{rg*1024} sc1{' nt' if p.get('ant') else ''}")
    A(f"s_sub_u32 s{sSPIN}, s{sSPIN}, 1"); A("s_cbranch_scc1 L_qpoll_end")
    A(f"s_cmp_eq_u32 s{sSPIN}, {max(SPIN-p['apolls']//4,0)}"); A(f"s_cselect_b32 s{sT0}, s{sT2}, s{sT0}")
    A("s_waitcnt vmcnt(0)")
    for rg in range(4): tagcheck(g, vK+4*rg, vT+2*rg)
    for rg in range(4): A(f"v_xor_b32 v{vT+2*rg}, s{sTAG}, v{vT+2*rg}")
    A(f"v_or3_b32 v{vT}, v{vT}, v{vT+2}, v{vT+4}"); A(f"v_or_b32 v{vT}, v{vT}, v{vT+6}")
    A(f"v_cmp_ne_u32 vcc, 0, v{vT}")
    A("s_cbranch_vccnz L_qpoll")
    g.lab("L_qpoll_end")
    for k in (0, 2):
        A(f"v_pk_add_f32 {v2(vK+k)}, {v2(vK+k)}, {v2(vK+4+k)}"); A(f"v_pk_add_f32 {v2(vK+8+k)}, {v2(vK+8+k)}, {v2(vK+12+k)}")
    for k in (0, 2): A(f"v_pk_add_f32 {v2(vK+k)}, {v2(vK+k)}, {v2(vK+8+k)}")
    A(f"v_cvt_pk_bf16_f32 v{vK}, v{vK}, v{vK+1}"); A(f"v_cvt_pk_bf16_f32 v{vK+1}, v{vK+2}, v{vK+3}")
    A(f"v_lshlrev_b32 v{vT}, 3, v{vL}")
    A(f"ds_write_b64 v{vT}, {v2(vK)} offset:{L_Q}")
    A("s_waitcnt lgkmcnt(0)")
    if p.get("gate"):
        A(f"v_lshlrev_b32 v{vT}, 7, v{vL}")
        A(f"s_lshl_b32 s{sT0}, 1, s{sXCD}"); A(f"s_xor_b32 exec_lo, s{sT0}, 0xff"); A("s_mov_b32 exec_hi, 0")
        g.lab("L_gpoll")
        A(f"s_sleep {p.get('gsleep', 2)}")
        A(f"buffer_load_dword v{vT+1}, v{vT}, {srd(SWS)}, 0 offen offset:2048 sc1")
        A(f"s_sub_u32 s{sSPIN}, s{sSPIN}, 1"); A("s_cbranch_scc1 L_gpoll_end")
        A("s_waitcnt vmcnt(0)")
        A(f"v_cmpx_ne_u32 vcc, s{sTAG}, v{vT+1}")
        A("s_cbranch_execnz L_gpoll")
        g.lab("L_gpoll_end")
        A("s_mov_b64 exec, -1")
    g.stamp(4)
    A("s_barrier")
    if p["pretouch"]:
        A(f"s_lshl4_add_u32 s{sT1}, s{sHK}, s{sSLOT}"); A(f"s_lshl_b32 s{sT1}, s{sT1}, 11"); A(f"s_add_u32 s{sT1}, s{sT1}, {OB+AOFF}")
        A(f"v_lshlrev_b32 v{vT}, 7, v{vL}")
        setexec(g, 0xffff, 0)
        A(f"buffer_load_dword v{vT+1}, v{vT}, {srd(SWS)}, s{sT1} offen sc1")
        A("s_mov_b64 exec, -1")
    A("s_barrier")
    for i in range(3 - p.get("olate", 0)):
        A(f"buffer_load_dwordx4 {v4(vV+4*i)}, v{vOD if i == 2 else vOT}, {srd(S3)}, s{sOO} offen {nt}")
        if i < 2: A(f"s_add_u32 s{sOO}, s{sOO}, {11*9216}")
    A("s_barrier")
    if p.get("warm", 1): A("s_branch L_warmT")
    g.lab("L_barC")
    A("s_barrier")
    A(f"s_cmp_lt_u32 s{sW}, 3"); A("s_cbranch_scc1 L_ogather")
    A(f"s_sub_u32 s{sT0}, s{sW}, 6"); A(f"s_cmp_lt_u32 s{sT0}, 2"); A("s_cbranch_scc0 " + ("L_barC2" if p.get("c2") else "L_barD"))
    for w in range(8): A(f"ds_read_b64 {v2(vK+2*w)}, v{vT+2} offset:{L_O+1024*w}")
    A("s_waitcnt lgkmcnt(4)")
    for a, b in ((0,1),(2,3),(0,2)): A(f"v_pk_add_f32 {v2(vK+2*a)}, {v2(vK+2*a)}, {v2(vK+2*b)}")
    A("s_waitcnt lgkmcnt(0)")
    for a, b in ((4,5),(6,7),(0,4),(0,6)): A(f"v_pk_add_f32 {v2(vK+2*a)}, {v2(vK+2*a)}, {v2(vK+2*b)}")
    A(f"v_mul_f32 v{vP+8}, v{vK}, v{vA+2}"); A(f"v_mul_f32 v{vP+9}, v{vK+1}, v{vA+2}")
    A(f"buffer_store_dwordx4 {v4(vP+8)}, v{vOV}, {srd(SWS)}, s{sT4} offen")
    g.stamp(6)
    A("s_barrier")
    late_o()
    A(f"buffer_store_dwordx4 {v4(vP+8)}, v{vOV}, {srd(SWS)}, s{sT3} offen sc1{' nt' if p.get('bnt') else ''}")
    A(f"s_mov_b32 s{sNOS}, 1")
    A("s_branch L_barD0")
    if p.get("c2"):
        g.lab("L_barC2")
        is45(g, "L_barC3")
        hsetup(g)
        A(f"s_mov_b32 s{sNOS}, 2")
        A("s_barrier")
        late_o()
        if p.get("hpos", 0) == 0:
            setexec(g, 0x3ffff, 0); hload(g); A("s_mov_b64 exec, -1")
        A("s_barrier")
        if p.get("hpos", 0) == 1:
            setexec(g, 0x3ffff, 0); hload(g); A("s_mov_b64 exec, -1")
        dissue(g)
        A("s_branch L_barD")
        g.lab("L_barC3"); A("s_barrier"); late_o()
        g.lab("L_barD0"); A("s_barrier"); A("s_branch L_barD")
    g.lab("L_ogather")
    A(f"s_mul_i32 s{sT0}, s{sW}, 11"); A(f"s_add_u32 s{sT0}, s{sT0}, s{sSLOT}")
    A(f"s_lshl_b32 s{sT1}, s{sHK}, 15"); A(f"s_lshl_b32 s{sT2}, s{sT0}, 6"); A(f"s_add_u32 s{sT1}, s{sT1}, s{sT2}"); A(f"s_add_u32 s{sT2}, s{sT1}, {OB}")
    A(f"s_add_u32 s{sT1}, s{sT2}, {AOFF}")
    A(f"v_mov_b32 v{vA}, 0"); A(f"v_mov_b32 v{vA+1}, 0"); A(f"v_mov_b32 v{vA+2}, {f2u(-1e30):#x}")
    A(f"v_lshrrev_b32 v{vT+1}, 4, v{vL}")
    A(f"s_lshl_b32 s{sT3}, s{sW}, 5"); A(f"v_lshl_add_u32 v{vT+3}, v{vT+1}, 3, s{sT3}")
    A(f"s_mov_b32 s{sSPIN}, {SPIN}")
    if p.get("olate"):
        A(f"s_cmp_ge_u32 s{sT0}, 32"); A("s_cbranch_scc0 L_op0")
        A("s_barrier"); late_o(); A("s_barrier"); A("s_branch L_owrite")
        g.lab("L_op0")
        setexec(g, 0x07ff07ff, 0x07ff07ff)
        A("s_setprio 3")
        A("s_barrier")
        A(f"buffer_load_dwordx4 {v4(vA)}, v{vOU}, {srd(SWS)}, s{sT1} offen sc1{' nt' if p.get('ant') else ''}")
        A("s_mov_b64 exec, -1")
        late_o()
        setexec(g, 0x07ff07ff, 0x07ff07ff)
        A(f"s_waitcnt vmcnt({p['olate']})")
        A(f"v_cmpx_ne_u32 vcc, s{sTAG}, v{vA+3}")
        A("s_cbranch_execz L_opoll_end")
    else:
        A("s_barrier")
        A(f"s_cmp_ge_u32 s{sT0}, 32"); A("s_cbranch_scc1 L_owrite")
        setexec(g, 0x07ff07ff, 0x07ff07ff)
    g.lab("L_opoll")
    A(f"buffer_load_dwordx4 {v4(vA)}, v{vOU}, {srd(SWS)}, s{sT1} offen sc1{' nt' if p.get('ant') else ''}")
    A(f"s_sub_u32 s{sSPIN}, s{sSPIN}, 1"); A("s_cbranch_scc1 L_opoll_end")
    A(f"s_cmp_eq_u32 s{sSPIN}, {SW}"); A(f"s_cselect_b32 s{sT1}, s{sT2}, s{sT1}")
    A("s_waitcnt vmcnt(0)")
    A(f"v_cmpx_ne_u32 vcc, s{sTAG}, v{vA+3}")
    A("s_cbranch_execnz L_opoll")
    g.lab("L_opoll_end")
    A("s_barrier")
    A("s_mov_b64 exec, -1")
    g.stamp(6)
    A(f"v_mov_b32 v{vT+4}, v{vA+2}")
    A("s_nop 1")
    rowred(g, "v_max_f32", [vT+4])
    A(f"v_sub_f32 v{vA+2}, v{vA+2}, v{vT+4}")
    A(f"v_exp_f32 v{vA+2}, v{vA+2}")
    A("s_nop 0")
    A(f"v_mul_f32 v{vA}, v{vA}, v{vA+2}"); A(f"v_mul_f32 v{vA+1}, v{vA+1}, v{vA+2}")
    A("s_nop 0")
    rowred(g, "v_add_f32", [vA+2, vA, vA+1])
    A(f"v_rcp_f32 v{vA+2}, v{vA+2}")
    A("s_nop 0")
    A(f"v_mul_f32 v{vA}, v{vA}, v{vA+2}"); A(f"v_mul_f32 v{vA+1}, v{vA+1}, v{vA+2}")
    A(f"v_cvt_pk_bf16_f32 v{vA}, v{vA}, v{vA}"); A(f"v_cvt_pk_bf16_f32 v{vA+1}, v{vA+1}, v{vA+1}")
    if p.get("warm", 1):
        A("s_branch L_owrite")
        g.lab("L_warmT"); A("s_branch L_barC")
    g.lab("L_owrite")
    setexec(g, 0x00010001, 0x00010001)
    A(f"ds_write_b64 v{vT+3}, {v2(vA)} offset:{L_C}")
    A("s_mov_b64 exec, -1")
    g.lab("L_barD")
    A(f"v_lshlrev_b32 v{vT}, 2, v{vR3}")
    A("s_waitcnt lgkmcnt(0)")
    A("s_barrier")
    g.stamp(8)
    for i in range(3): A(f"ds_read_b32 v{vP+i}, v{vT} offset:{L_C+32*i}")
    A(f"s_cmp_eq_u32 s{sNOS}, 2")
    A("s_waitcnt lgkmcnt(0)")
    for i in range(3): build_A(g, vK+4*i, vP+i)
    A("s_waitcnt vmcnt(10)")
    A("s_cbranch_scc1 L_wo")
    A(f"s_cmp_eq_u32 s{sNOS}, 1")
    A("s_waitcnt vmcnt(1)")
    A("s_cbranch_scc1 L_wo")
    A("s_waitcnt vmcnt(0)")
    g.lab("L_wo")
    for i in range(3): A(f"{MF} {v4(vACC+4)}, {v4(vK+4*i)}, {v4(vV+4*i)}, {'0' if i == 0 else v4(vACC+4)}")
    hd = p.get("hd")
    if hd and hd[0] == "A":
        g.stamp(9)
        A(f"s_cmp_eq_u32 s2, {p.get('hdwg', 43)}"); A("s_cbranch_scc0 L_hd1"); A(f"s_cmp_eq_u32 s{sW}, {hd[1]}"); A("s_cbranch_scc0 L_hd1")
        A("s_waitcnt lgkmcnt(0)"); A(f"s_sub_u32 s{sT0}, s{80+2*hd[3]}, s{80+2*hd[2]}")
        A(f"v_mov_b32 v{vT}, s{sT0}"); A(f"v_mov_b32 v{vT+1}, 0"); A("s_mov_b64 exec, 1")
        A(f"buffer_store_dword v{vT}, v{vT+1}, {srd(SWS)}, 0 offen offset:1024 sc1"); A("s_mov_b64 exec, -1")
        g.lab("L_hd1")
    fpublish(g, vACC+4)
    g.stamp(7)
    A(f"s_cmp_eq_u32 s{sNOS}, 2"); A("s_cbranch_scc0 L_aend")
    A("s_waitcnt vmcnt(10)")
    hgather(g, "a", SPIN, p["hsleep"], True)
    dshare(g, 1)
    A(f"s_cmp_lt_u32 s{sJ}, 22"); A("s_cbranch_scc0 L_fds2")
    g.stamp(2)
    g.lab("L_aend")
    A("s_endpgm" if not p["stamps"] else "s_branch L_fin")
    g.L.append(".p2align 12")
    if p.get("w9"):
        g.lab("L_warmF"); A("s_endpgm")
    g.lab("L_notattn")
    if not p["helper"]:
        A(f"s_cmp_eq_u32 s{sJ}, 31"); A("s_cbranch_scc1 L_fin")
    g.vm = list(pre)
    if p.get("diag"):
        A(f"s_cmp_eq_u32 s{sJ}, 22"); A("s_cbranch_scc0 L_dg1"); A(f"s_cmp_eq_u32 s{sW}, 0"); A("s_cbranch_scc0 L_dg1")
        A(f"v_mov_b32 v{vT}, s90"); A(f"v_mov_b32 v{vT+1}, 0"); A(f"s_lshl_b32 s{sT0}, s{sXCD}, 7"); A("s_mov_b64 exec, 1")
        A(f"buffer_store_dword v{vT}, v{vT+1}, {srd(SWS)}, s{sT0} offen offset:1024 sc1"); A("s_mov_b64 exec, -1")
        g.lab("L_dg1")
    A(f"v_and_b32 v{vT+1}, 7, v{vL}"); A(f"v_mad_u32_u24 v{vT}, v{vR3}, 64, v{vT+1}"); A(f"v_lshl_add_u32 v{vT}, v{vR3}, 3, v{vT}")
    A(f"v_lshlrev_b32 v{vT}, 1, v{vT}"); A(f"s_lshl_b32 s{sT0}, s{sWE}, 4")
    A(f"s_mov_b64 s[{SGW+2}:{SGW+3}], s[{SX+2}:{SX+3}]"); A(f"s_mov_b64 s[{SOUT+2}:{SOUT+3}], s[{SX+2}:{SX+3}]")
    A(f"buffer_load_ushort v{vXG}, v{vT}, {srd(SX)}, s{sT0} offen"); g.vissue("xg")
    A(f"buffer_load_ushort v{vGW}, v{vT}, {srd(SGW)}, s{sT0} offen"); g.vissue("gw")
    A(f"s_cmp_eq_u32 s{sMODE}, 2"); A(f"s_cselect_b32 s{sT0}, {OOB:#x}, 0")
    A(f"v_or_b32 v{vOU}, s{sT0}, v{vOK}")
    fseq = [("K", t) for t in range(8)] + [("U", t) for t in range(8)]
    def greg(kind, t): return {"K": vK+4*t, "U": vK+32+4*t, "D": vK+32+4*t}[kind]
    fpos = [NPRO]
    def fissue():
        kind, t = fseq[fpos[0]]; fpos[0] += 1
        if True:
            A(f"buffer_load_dwordx4 {v4(greg(kind,t))}, v{vOK if kind == 'K' else vOU}, {srd(S1 if kind == 'K' else S2)}, s{sRUN} offen {nt}")
            if t < 7: A(f"s_add_u32 s{sRUN}, s{sRUN}, s{sSTEP}")
            elif kind == "K": A(f"s_mov_b32 s{sRUN}, s{sKO}")
        g.vissue(f"{kind}{t}")
    A(f"s_mul_i32 s{sOO}, s{sU}, {64*1152}"); A(f"s_add_u32 s{sOO}, s{sOO}, 1024")
    A(f"s_add_u32 s{sPI}, s{sU}, 176")
    fpub_consts(g, "8", True)
    fl = 0
    while fpos[0] < WF: fissue()
    for idx in range(NPRO):
        g.vwait(f"K{idx}"); fl = idx + 1
        while fpos[0] - fl < WF: fissue()
    g.vwait("gw")
    A(f"v_lshl_or_b32 v{vT+4}, v{vXG}, 16, v{vXG}")
    A(f"v_lshlrev_b32 v{vT+5}, 2, v{vR3}")
    for t in range(8): A(f"ds_bpermute_b32 v{vP+t}, v{vT+5}, v{vT+4} offset:{32*t}")
    A(f"v_lshlrev_b32 v{vXG}, 16, v{vXG}"); A(f"v_lshlrev_b32 v{vGW}, 16, v{vGW}")
    A(f"v_mul_f32 v{vXG}, v{vXG}, v{vGW}")
    bf16r(g, vXG, vXG)
    rowred(g, "v_add_f32", [vXG]); crossrow(g, "v_add_f32", vXG, vT)
    A(f"s_lshl_b32 s{sT0}, s{sW}, 2"); A(f"v_mov_b32 v{vT+3}, s{sT0}")
    A("s_mov_b64 exec, 1")
    A(f"ds_write_b32 v{vT+3}, v{vXG} offset:{L_Z}")
    A("s_mov_b64 exec, -1")
    A("s_waitcnt lgkmcnt(0)")
    vRO, vRB, vRL = vOKL, vOVL, vOWQ
    A(f"v_and_b32 v{vT}, 31, v{vL}"); A(f"v_lshrrev_b32 v{vT+1}, 5, v{vL}")
    A(f"v_mul_u32_u24 v{vRB}, {FROW}, v{vT}"); A(f"v_lshl_add_u32 v{vRB}, v{vT+1}, 4, v{vRB}")
    A(f"s_lshl3_add_u32 s{sC}, s{sXCD}, s{sJ}"); A(f"s_sub_u32 s{sC}, s{sC}, 22"); A(f"s_add_u32 s{sT1}, s{sXCD}, 64")
    A(f"s_cmp_eq_u32 s{sJ}, 30"); A(f"s_cselect_b32 s{sC}, s{sT1}, s{sC}")
    A(f"s_mul_i32 s{sBIAS}, s{sW}, {32*FROW}"); A(f"s_lshl_b32 s{sT1}, s{sC}, 5"); A(f"s_add_u32 s{sBIAS}, s{sBIAS}, s{sT1}")
    A(f"s_add_u32 s{sBIAS}, s{sBIAS}, {FB}")
    A(f"s_lshl_b32 s{sT2}, s{sW}, 5"); A(f"v_add_u32 v{vT+10}, s{sT2}, v{vT}")
    A(f"s_movk_i32 s{sT3}, 240"); A(f"s_cmp_eq_u32 s{sJ}, 30"); A(f"s_cselect_b32 s{sT3}, 248, s{sT3}"); A(f"s_cselect_b32 s{sT4}, 9, 64"); A(f"s_cselect_b32 s{sT1}, s{sXCD}, 0")
    A(f"v_cmp_gt_u32 s[{sM0}:{sM0+1}], s{sT3}, v{vT+10}")
    A(f"v_lshlrev_b32 v{vRL}, 1, v{vT+10}"); A(f"v_lshl_add_u32 v{vRL}, v{vT+1}, 4, v{vRL}")
    A(f"s_mul_i32 s{sT2}, s{sXCD}, 22"); A(f"s_mul_i32 s{sT3}, s{sT1}, 9"); A(f"s_add_u32 s{sT3}, s{sT3}, 176")
    A(f"v_subrev_u32 v{vT+11}, s{sT2}, v{vT+10}"); A(f"v_subrev_u32 v{vT+12}, s{sT3}, v{vT+10}")
    A(f"v_cmp_gt_u32 s[{sM0+2}:{sM0+3}], 22, v{vT+11}")
    A(f"v_cmp_gt_u32 vcc, s{sT4}, v{vT+12}")
    A(f"v_mov_b32 v{vT+4}, {AOFF}")
    A(f"s_or_b64 vcc, s[{sM0+2}:{sM0+3}], vcc")
    tagsel(g)
    A(f"v_cndmask_b32 v{vRO}, 0, v{vT+4}, vcc")
    A(f"v_add_u32 v{vRO}, v{vRO}, v{vRB}")
    A(f"s_cmp_eq_u32 s{sMODE}, 1"); A("s_cbranch_scc0 L_m0")
    if True:
        A(f"s_lshl_b32 s{sT0}, s{sW}, 9")
        A(f"s_and_b32 s{sT1}, s{sU}, 0x78"); A(f"s_lshl1_add_u32 s{sT1}, s{sW}, s{sT1}"); A(f"s_lshl_b32 s{sT1}, s{sT1}, 8")
        A(f"s_add_u32 s{sT1}, s{sT1}, {HB - 10*256}")
        A(f"v_add_u32 v{vT+3}, s{sT0}, v{vOV}")
        A(f"s_mov_b32 s{sSPIN}, {SPIN}")
        tagsel(g)
        A("s_mov_b32 exec_hi, 0")
        g.lab("L_hpoll")
        A(f"s_sleep {p['hsleep']}")
        A(f"buffer_load_dwordx4 {v4(vA)}, v{vOV}, {srd(SWS)}, s{sT1} offen sc1")
        A(f"s_sub_u32 s{sSPIN}, s{sSPIN}, 1"); A("s_cbranch_scc1 L_hpoll_end")
        A("s_waitcnt vmcnt(0)")
        tagcheck(g, vA, vT+4)
        A(f"v_cmp_ne_u32 vcc, s{sTAG}, v{vT+4}")
        A("s_cbranch_vccnz L_hpoll")
        g.lab("L_hpoll_end")
        A(f"ds_write_b128 v{vT+3}, {v4(vA)} offset:{L_O}")
        A("s_mov_b64 exec, -1")
        A("s_branch L_barE")
    g.lab("L_m0")
    ng = 0
    for idx, (kind, t) in enumerate(fseq):
        if ng == 16: break
        if ng == 8 and kind == "U" and t == 0:
            A(f"s_cmp_eq_u32 s{sMODE}, 2"); A("s_cbranch_scc0 L_nohelp")
            A(f"s_lshl_b32 s{sPI}, s{sHK}, 8"); A(f"s_add_u32 s{sPI}, s{sPI}, {HB}")
            fpublish(g, vACC, acopy=False)
            g.stamp(4)
            A("s_branch L_hw")
            g.lab("L_nohelp")
        if kind != "D": build_A(g, vA+4*(ng & 1), vP+t)
        k = 0
        if idx >= fl:
            g.vwait(f"{kind}{t}"); fl = idx + 1; k = 1
            Wn = p.get("WF1", WF) if idx < p.get("wf1n", 0) else WF
            while fpos[0] - fl < Wn and fpos[0] < len(fseq): fissue(); k += 1
        if kind != "D":
            if k < 2: A(f"s_nop {1-k}")
            acc = vACC if kind == "K" else vACC+4
            A(f"{MF} {v4(acc)}, {v4(vA+4*(ng&1))}, {v4(greg(kind,t))}, {'0' if t == 0 else v4(acc)}")
            ng += 1
    g.stamp(4)
    A("s_nop 1")
    A(f"s_lshl_b32 s{sT0}, s{sW}, 9"); A(f"v_add_u32 v{vT+2}, s{sT0}, v{vOFP}")
    A(f"v_permlane32_swap_b32 v{vACC}, v{vACC+2}"); A(f"v_permlane32_swap_b32 v{vACC+1}, v{vACC+3}")
    A("s_nop 1")
    A(f"v_add_f32_dpp v{vACC}, v{vACC+2}, v{vACC} row_ror:8 {DPP}"); A(f"v_add_f32_dpp v{vACC+1}, v{vACC+3}, v{vACC+1} row_ror:8 {DPP}")
    A(f"v_permlane32_swap_b32 v{vACC+4}, v{vACC+6}"); A(f"v_permlane32_swap_b32 v{vACC+5}, v{vACC+7}")
    A("s_nop 0")
    A(f"v_add_f32_dpp v{vACC+4}, v{vACC+6}, v{vACC+4} row_ror:8 {DPP}"); A(f"v_add_f32_dpp v{vACC+5}, v{vACC+7}, v{vACC+5} row_ror:8 {DPP}")
    setexec(g, 0x00ff00ff, 0x00ff00ff)
    A(f"ds_write_b64 v{vT+2}, {v2(vACC)} offset:{L_O}")
    A(f"ds_write_b64 v{vT+2}, {v2(vACC+4)} offset:{L_O+256}")
    A("s_mov_b64 exec, -1")
    g.lab("L_barE")
    A(f"s_cmp_eq_u32 s{sW}, 7"); A("s_cbranch_scc1 L_h7")
    A("s_waitcnt lgkmcnt(0)")
    A("s_barrier")
    g.lab("L_hw")
    is45(g, "L_fds2", True)
    hsetup(g)
    dissue(g)
    A(f"s_mov_b32 s{sSPIN}, {SPIN}")
    setexec(g, 0x3ffff, 0)
    A("s_branch L_hga")
    g.lab("L_h7")
    for t in range(8):
        A(f"buffer_load_dwordx4 {v4(greg('D',t))}, v{vOT}, {srd(SD)}, s{sOO} offen {nt}")
        if t < 7: A(f"s_add_u32 s{sOO}, s{sOO}, 9216")
    A(f"v_lshlrev_b32 v{vT}, 3, v{vL}")
    A(f"v_lshrrev_b32 v{vT+1}, 1, v{vR3}"); A(f"v_and_b32 v{vT+2}, 1, v{vR3}"); A(f"v_lshlrev_b32 v{vT+1}, 2, v{vT+1}")
    A(f"v_lshl_add_u32 v{vT+1}, v{vT+2}, 7, v{vT+1}")
    A(f"v_and_b32 v{vT+2}, 31, v{vL}"); A(f"v_lshrrev_b32 v{vT+3}, 5, v{vL}"); A(f"v_lshl_add_u32 v{vT+2}, v{vT+2}, 1, v{vT+3}")
    A(f"v_and_b32 v{vT+3}, 3, v{vT+2}"); A(f"v_lshlrev_b32 v{vT+3}, 3, v{vT+3}"); A(f"v_mov_b32 v{vT+4}, s{sTAG}")
    A(f"v_lshrrev_b32 v{vT+3}, v{vT+3}, v{vT+4}"); A(f"v_lshlrev_b32 v{vT+2}, 2, v{vT+2}")
    A(f"s_lshl_b32 s{sT1}, s{sU}, 8"); A(f"s_add_u32 s{sT1}, s{sT1}, {H2}")
    A("s_waitcnt lgkmcnt(0)")
    A("s_barrier")
    for w in range(9): A(f"ds_read_b64 {v2(vK+2*w)}, v{vT} offset:{L_O+512*w}")
    A("s_waitcnt lgkmcnt(0)")
    for a, b in ((0,1),(2,3),(4,5),(6,7),(0,2),(4,6),(0,4),(0,8)):
        A(f"v_pk_add_f32 {v2(vK+2*a)}, {v2(vK+2*a)}, {v2(vK+2*b)}")
    A("s_nop 1")
    A(f"v_permlane32_swap_b32 v{vK}, v{vK+1}")
    A("s_nop 0")
    A(f"v_cvt_pk_bf16_f32 v{vK+2}, v{vK}, v{vK+1}")
    A(f"v_lshlrev_b32 v{vK}, 16, v{vK+2}"); A(f"v_and_b32 v{vK+1}, 0xffff0000, v{vK+2}")
    A(f"v_mul_f32 v{vK+2}, {f2u(-1.4426950408889634):#x}, v{vK}")
    A(f"v_exp_f32 v{vK+2}, v{vK+2}"); A("s_nop 0")
    A(f"v_add_f32 v{vK+2}, 1.0, v{vK+2}")
    A(f"v_rcp_f32 v{vK+2}, v{vK+2}"); A("s_nop 0")
    A(f"v_mul_f32 v{vK}, v{vK}, v{vK+2}")
    bf16r(g, vK, vK)
    A(f"v_mul_f32 v{vK}, v{vK}, v{vK+1}")
    A(f"v_cvt_pk_bf16_f32 v{vK}, v{vK}, v{vK}")
    A(f"v_bfi_b32 v{vK+1}, s{sFF}, v{vT+3}, v{vK}")
    A(f"buffer_store_dword v{vK+1}, v{vT+2}, {srd(SWS)}, s{sT1} offen sc1")
    g.stamp(5)
    for t in range(8): A(f"ds_bpermute_b32 v{vP+t}, v{vT+1}, v{vK} offset:{16*t}")
    A("s_waitcnt lgkmcnt(0)")
    for t in range(8):
        build_A(g, vA+4*(t & 1), vP+t)
        A(f"s_waitcnt vmcnt({8-t})"); A("s_nop 0")
        A(f"{MF} {v4(vACC+4)}, {v4(vA+4*(t&1))}, {v4(greg('D',t))}, {'0' if t == 0 else v4(vACC+4)}")
    fpublish(g, vACC+4)
    g.stamp(6)
    g.lab("L_fds2")
    g.stamp(7)
    A(f"s_cmp_eq_u32 s{sMODE}, 2"); A("s_cbranch_scc1 L_fin")
    tagsel(g)
    A(f"s_cmp_eq_u32 s{sW}, 8"); A("s_cbranch_scc1 L_fin8")
    for r in range(4): A(f"v_mov_b32 v{vK+r}, 0")
    A(f"s_mov_b32 s{sSPIN}, {SPIN}")
    if p.get("lgate"):
        A("s_barrier")
    A(f"s_mov_b64 exec, s[{sM0}:{sM0+1}]"); A("s_cbranch_execz L_fpoll_end")
    if p.get("rfirst"): A("s_branch L_fsleep")
    g.lab("L_fpoll")
    A(f"buffer_load_dwordx4 {v4(vK)}, v{vRO}, {srd(SWS)}, s{sBIAS} offen {p.get('fld','sc1')}")
    A(f"s_sub_u32 s{sSPIN}, s{sSPIN}, 1"); A("s_cbranch_scc1 L_fpoll_end")
    A(f"s_cmp_eq_u32 s{sSPIN}, {SW}"); A("s_cbranch_scc0 L_fp1")
    A(f"v_mov_b32 v{vRO}, v{vRB}")
    g.lab("L_fp1")
    A("s_waitcnt vmcnt(0)")
    tagcheck(g, vK, vT+12)
    A(f"v_cmpx_ne_u32 vcc, s{sTAG}, v{vT+12}")
    A(f"s_cmp_eq_u64 exec, s[{sM0}:{sM0+1}]"); A("s_cbranch_scc1 L_fsleep")
    A("s_cbranch_execnz L_fpoll")
    g.lab("L_fpoll_end")
    A("s_mov_b64 exec, -1")
    g.stamp(8)
    A("s_nop 0")
    rowred(g, "v_add_f32", [vK, vK+1, vK+2, vK+3])
    setexec(g, 0x00010001, 0x00010001)
    A(f"ds_write_b128 v{vRL}, {v4(vK)} offset:{L_R}")
    A("s_mov_b64 exec, -1")
    A("s_waitcnt lgkmcnt(0)")
    A("s_barrier")
    A(f"s_or_b32 s{sT0}, s{sU}, s{sW}"); A("s_cbranch_scc1 L_fin")
    A("s_mov_b64 exec, 1")
    A(f"v_mov_b32 v{vT+7}, s{sTAG}")
    A(f"buffer_store_dword v{vT+7}, v{vOV}, {srd(SWS)}, 0 offen offset:{EPOCH}")
    A("s_endpgm" if not p["stamps"] else "s_branch L_fin")
    g.lab("L_fsleep")
    A(f"s_sleep {p['radapt']}")
    A("s_branch L_fpoll")
    g.lab("L_fin8")
    if p.get("lgate"):
        A(f"s_mul_i32 s{sT0}, s{sXCD}, {22*FROW}"); A(f"s_lshl_b32 s{sT1}, s{sC}, 5"); A(f"s_add_u32 s{sT0}, s{sT0}, s{sT1}"); A(f"s_add_u32 s{sT0}, s{sT0}, {FB+AOFF}")
        A(f"s_movk_i32 s{sSPIN}, {p['apolls']}")
        setexec(g, (1 << 22) - 1, 0)
        g.lab("L_lpoll")
        A(f"s_sleep {p.get('lsleep', 2)}")
        A(f"buffer_load_dwordx4 {v4(vK)}, v{vRB}, {srd(SWS)}, s{sT0} offen sc1{' nt' if p.get('ant') else ''}")
        A(f"s_sub_u32 s{sSPIN}, s{sSPIN}, 1"); A("s_cbranch_scc1 L_lpoll_end")
        A("s_waitcnt vmcnt(0)")
        tagcheck(g, vK, vT+12)
        A(f"v_cmpx_ne_u32 vcc, s{sTAG}, v{vT+12}")
        A(f"s_bcnt1_i32_b64 s{sT1}, exec"); A(f"s_cmp_gt_u32 s{sT1}, {22 - p['lgate']}"); A("s_cbranch_scc1 L_lpoll")
        g.lab("L_lpoll_end")
        A("s_mov_b64 exec, -1")
        A("s_barrier")
    A(f"v_mov_b32 v{vT+6}, 0")
    A(f"ds_read_b128 {v4(vA)}, v{vT+6} offset:{L_Z}"); A(f"ds_read_b128 {v4(vA+4)}, v{vT+6} offset:{L_Z+16}"); A(f"ds_read_b32 v{vT+7}, v{vT+6} offset:{L_Z+32}")
    A("s_waitcnt lgkmcnt(0)")
    A(f"v_pk_add_f32 {v2(vA)}, {v2(vA)}, {v2(vA+2)}"); A(f"v_pk_add_f32 {v2(vA+4)}, {v2(vA+4)}, {v2(vA+6)}")
    A(f"v_pk_add_f32 {v2(vA)}, {v2(vA)}, {v2(vA+4)}")
    A(f"v_add_f32 v{vA}, v{vA}, v{vA+1}"); A(f"v_add_f32 v{vA}, v{vA}, v{vT+7}")
    bf16r(g, vA, vA)
    A(f"v_mul_f32 v{vA}, {f2u(-1.4426950408889634):#x}, v{vA}")
    A(f"v_exp_f32 v{vA}, v{vA}"); A("s_nop 0")
    A(f"v_add_f32 v{vA}, 1.0, v{vA}"); A(f"v_rcp_f32 v{vA}, v{vA}"); A("s_nop 0")
    bf16r(g, vA, vA)
    A(f"v_sub_f32 v{vA+1}, 1.0, v{vA}"); bf16r(g, vA+1, vA+1)
    A(f"v_and_b32 v{vT+9}, 7, v{vL}"); A(f"v_lshlrev_b32 v{vT+8}, 2, v{vT+9}"); A(f"v_lshlrev_b32 v{vT+9}, 1, v{vT+9}")
    A(f"v_add_u32 v{vT+8}, {L_R}, v{vT+8}")
    A(f"s_lshl_b32 s{sKO}, s{sC}, 4")
    A("s_barrier")
    g.stamp(8)
    for k in range(8): A(f"ds_read2_b32 {v2(vK+2*k)}, v{vT+8} offset0:{16*k} offset1:{16*k+8}")
    A("s_waitcnt lgkmcnt(0)")
    A(f"v_pk_add_f32 {v2(vK)}, {v2(vK)}, {v2(vK+2)}"); A(f"v_pk_add_f32 {v2(vK+4)}, {v2(vK+4)}, {v2(vK+6)}")
    A(f"v_pk_add_f32 {v2(vK+12)}, {v2(vK+12)}, {v2(vK+14)}")
    A(f"v_pk_add_f32 {v2(vK)}, {v2(vK)}, {v2(vK+8)}")
    A(f"v_add_f32 v{vK+12}, v{vK+12}, v{vK+13}")
    A(f"v_pk_add_f32 {v2(vK)}, {v2(vK)}, {v2(vK+4)}")
    A(f"v_add_f32 v{vK+11}, v{vK+11}, v{vK+12}")
    A(f"v_add_f32 v{vK}, v{vK}, v{vK+1}"); A(f"v_add_f32 v{vK+10}, v{vK}, v{vK+10}")
    A(f"v_cvt_pk_bf16_f32 v{vK}, v{vK+10}, v{vK+11}")
    A(f"v_lshlrev_b32 v{vK+10}, 16, v{vK}"); A(f"v_and_b32 v{vK+11}, 0xffff0000, v{vK}")
    A(f"v_pk_mul_f32 {v2(vK+10)}, {v2(vK+10)}, {v2(vA)}")
    A(f"v_cvt_pk_bf16_f32 v{vK}, v{vK+10}, v{vK+11}")
    A(f"v_lshlrev_b32 v{vK+10}, 16, v{vK}"); A(f"v_and_b32 v{vK+11}, 0xffff0000, v{vK}")
    A(f"v_add_f32 v{vK}, v{vK+10}, v{vK+11}")
    A(f"v_cvt_pk_bf16_f32 v{vK}, v{vK}, v{vK}")
    setexec(g, 0xff, 0)
    A(f"buffer_store_short v{vK}, v{vT+9}, {srd(SOUT)}, s{sKO} offen {p.get('ost','')}")
    if hd or p.get("diag"): A(f"s_cmp_lg_u32 s{sU}, 0"); A("s_cbranch_scc1 L_fin")
    if hd:
        g.stamp(9)
        A("s_waitcnt lgkmcnt(0)")
        if hd[0] == "A":
            A("s_sleep 40")
            A(f"buffer_load_dword v{vT+1}, v{vT+6}, {srd(SWS)}, 0 offen offset:1024 sc1"); A("s_waitcnt vmcnt(0)")
            A(f"v_readfirstlane_b32 s{sT0}, v{vT+1}"); A("s_nop 3")
        else: A(f"s_sub_u32 s{sT0}, s{80+2*hd[3]}, s{80+2*hd[2]}")
        A(f"s_mul_i32 s{sT0}, s{sT0}, {hd[4]}"); A(f"s_add_u32 s{sT0}, s{sT0}, 300"); A(f"s_min_u32 s{sT0}, s{sT0}, 20000")
        g.lab("L_hd2")
        A("s_memrealtime s[80:81]"); A("s_waitcnt lgkmcnt(0)"); A("s_sub_u32 s80, s80, s98"); A(f"s_cmp_lt_u32 s80, s{sT0}"); A("s_cbranch_scc1 L_hd2")
    if p.get("diag"):
        A("s_memrealtime s[92:93]")
        A(f"v_lshlrev_b32 v{vT}, 7, v{vL}")
        A(f"buffer_load_dword v{vT+1}, v{vT}, {srd(SWS)}, 0 offen offset:1024 sc1"); A("s_waitcnt vmcnt(0) lgkmcnt(0)")
        for k in range(8): A(f"v_readlane_b32 s{80+k}, v{vT+1}, {k}")
        A("s_nop 3")
        for k in range(8): A(f"s_sub_u32 s{80+k}, s92, s{80+k}")
        A("s_mov_b32 s88, s80"); A("s_mov_b32 s89, s80")
        for k in range(1, 8): A(f"s_max_u32 s88, s88, s{80+k}"); A(f"s_min_u32 s89, s89, s{80+k}")
        d = p["diag"]
        if d == "skew": A("s_sub_u32 s88, s88, s89"); A("s_mul_i32 s88, s88, 10")
        elif d == "total": A("s_mul_i32 s88, s88, 4")
        elif d == "last": A("s_mul_i32 s88, s89, 4")
        elif d == "zero": A("s_mov_b32 s88, 0")
        elif d == "a0": A("s_sub_u32 s88, s96, s90"); A("s_mul_i32 s88, s88, 20")
        elif d == "touch": A("s_sub_u32 s88, s98, s96"); A("s_mul_i32 s88, s88, 20")
        A("s_min_u32 s88, s88, 20000")
        g.lab("L_dg2")
        A("s_memrealtime s[94:95]"); A("s_waitcnt lgkmcnt(0)"); A("s_sub_u32 s94, s94, s92"); A("s_cmp_lt_u32 s94, s88"); A("s_cbranch_scc1 L_dg2")
    g.lab("L_fin")
    if p["stamps"] and not hd:
        A("s_mov_b64 exec, -1")
        A("s_waitcnt vmcnt(0)")
        g.stamp(9)
        A("s_waitcnt lgkmcnt(0)")
        A("s_sleep 127"); A("s_sleep 127")
        A(f"s_lshl_b32 s{sT0}, s2, 4"); A(f"s_add_u32 s{sT0}, s{sT0}, s{sW}"); A(f"s_lshl_b32 s{sT0}, s{sT0}, 6"); A(f"s_add_u32 s{sT0}, s{sT0}, {STB}")
        for k in range(10): A(f"v_mov_b32 v{vK+k}, s{80+2*k}")
        A(f"v_mov_b32 v{vK+10}, s{sSPIN}"); A(f"v_mov_b32 v{vK+11}, s{sTAG}")
        A(f"v_mov_b32 v{vT}, 0"); A("s_mov_b64 exec, 1")
        for k in range(3): A(f"buffer_store_dwordx4 {v4(vK+4*k)}, v{vT}, {srd(SWS)}, s{sT0} offen offset:{16*k}")
    g.lab("L_end")
    A("s_endpgm")
    out += g.L
    out += ['.section .rodata,"a"', ".p2align 6", f".amdhsa_kernel {NAME}", f"  .amdhsa_next_free_vgpr {NV}",
            f"  .amdhsa_next_free_sgpr {100 if (p['stamps'] or p.get('diag')) else 80}", f"  .amdhsa_accum_offset {NV}", "  .amdhsa_group_segment_fixed_size 0",
            "  .amdhsa_kernarg_size 104", "  .amdhsa_user_sgpr_count 2", "  .amdhsa_user_sgpr_kernarg_segment_ptr 1",
            "  .amdhsa_system_sgpr_workgroup_id_x 1", ".end_amdhsa_kernel"]
    return "\n".join(out) + "\n"

if __name__ == "__main__":
    kw = {}
    for a in sys.argv[2:]:
        k, v = a.split("="); kw[k] = eval(v)
    open(sys.argv[1], "w").write(gen(**kw))
```

```python
import sys, struct
NAME = "gated_mix__sliding_block_cached__swiglu_ffn__decode_kernel"
HDR = open("gated_mix__sliding_block_cached__swiglu_ffn__decode.s.ref").read().split("; Override launch")[0]
def f2u(f): return struct.unpack("<I", struct.pack("<f", f))[0]

EPOCH = 0
HB = 4096
H2 = HB + 72*256
QB = H2 + 72*256
OB = QB + 256*256
FB = OB + 256*2048
AOFF = 2 << 20
FROW = 2304
assert FB + 256*FROW <= AOFF
WS_USED = 2*AOFF
STB = 8 << 20
L_H = 0; L_QP = 0; L_Q = 5376; L_M = 5888; L_L = 5952; L_Z = 6016; L_C = 6080
L_CNT = 6272; L_O = 6400; L_R = L_O + 8*1024
LDS_BYTES = L_R + 640
OOB = 0x40000000

class G:
    def __init__(s, **kw):
        s.L = []; s.p = dict(WA=4, WF=3, N0=2, c2=1, b3=1, olate=1, rfirst=0, lgate=1, lsleep=4, hpos=1, WF1=2, wf1n=8, stamps=False, nt="nt", qsleep=8, spin=200000, apolls=300, bpos=1, rsleep=0, radapt=6, dmix=5,
                             prio=1, align=True, touch=0, pretouch=0, cpf=0, nmid=4, helper=1, hsleep=4)
        s.p.update(kw); s.vm = []
    def A(s, x):
        if s.p.get("pnt") and x.startswith("buffer_load") and x.endswith(" sc1"): x += " nt"
        if s.p.get("xnt") and (x.startswith("buffer_load_dword v") or x.startswith("buffer_load_ushort") or x.startswith("global_load_dword v")) and " nt" not in x: x += " nt"
        if s.p.get("nob") and x.startswith("buffer_store") and x.endswith("sc1 nt"): x = "s_nop 0"
        s.L.append("    " + x)
    def lab(s, x): s.L.append(x + ":")
    def vissue(s, name): s.vm.append(name)
    def vwait(s, name):
        i = s.vm.index(name); s.A(f"s_waitcnt vmcnt({len(s.vm)-1-i})")
    def stamp(s, k, prog=False):
        if s.p.get("prof") and not prog and 3 <= k <= 8 and k != 5: return
        if prog and s.p.get("prof") != int(prog): return
        if s.p["stamps"]: s.A(f"s_memrealtime s[{80+2*k}:{81+2*k}]")

sW=3
SX=8; SWQ=12; SWS=16; S1=20; S2=24; S3=28; SGW=32; SOUT=36
sE=40; sSTEP=41; sTAG=42
sXCD=44; sJ=45; sHK=46; sSLOT=47; sQI=48; sT0=49; sT1=50; sT2=51; sRUN=52; sBIAS=53; sSPIN=54
sKO=55; sOO=56; sSEL0=57; sSEL1=58; sPI=59; sC=60; sU=61
sM0=62; sEX=70; sAM=72; sWE=74; sT3=75; sT4=76; sMODE=77; sFF=78; sNOS=79; sST2=43; sDO=48; sGOT=40; SD=4; sNM=69
def srd(b): return f"s[{b}:{b+3}]"
vL=1; vM=2; vOT=6; vOK=7; vOV=8; vOWQ=9; vLT=10; vX0=11; vOU=12; vOD=13; vTB=14
vXG=16; vGW=17; vT=18
vA=32; vACC=40; vP=48; vOKL=60; vOVL=61; vR3=62; vOFP=63
vK=64; vV=112; NV=160
def v4(b): return f"v[{b}:{b+3}]"
def v2(b): return f"v[{b}:{b+1}]"
DPP = "row_mask:0xf bank_mask:0xf"
MF = "v_mfma_f32_16x16x32_bf16"

def build_A(g, dst, rep):
    for j in range(4): g.A(f"v_and_b32 v{dst+j}, v{rep}, v{vM+j}")
def rowred(g, op, regs):
    need = max(0, 2 - (len(regs) - 1))
    for r in (8, 4, 2, 1):
        if need: g.A(f"s_nop {need-1}")
        for x in regs: g.A(f"{op}_dpp v{x}, v{x}, v{x} row_ror:{r} {DPP}")
def crossrow(g, op, x, t):
    for sw in ("v_permlane16_swap_b32", "v_permlane32_swap_b32"):
        g.A(f"v_mov_b32 v{t}, v{x}"); g.A("s_nop 1"); g.A(f"{sw} v{x}, v{t}"); g.A("s_nop 1"); g.A(f"{op} v{x}, v{x}, v{t}")
def bf16r(g, d, s_):
    g.A(f"v_cvt_pk_bf16_f32 v{d}, v{s_}, v{s_}"); g.A(f"v_and_b32 v{d}, 0xffff0000, v{d}")
def setexec(g, lo, hi):
    g.A(f"s_mov_b32 exec_lo, {lo:#x}"); g.A(f"s_mov_b32 exec_hi, {hi:#x}")

def fpub_consts(g, sblk, ffn=False):
    A = g.A
    A(f"s_mul_i32 s{sPI}, s{sPI}, 9"); A(f"s_add_u32 s{sPI}, s{sPI}, {sblk}"); A(f"s_lshl_b32 s{sPI}, s{sPI}, 8"); A(f"s_add_u32 s{sPI}, s{sPI}, {FB}")
    A(f"v_lshrrev_b32 v{vT}, 5, v{vOFP}")
    A(f"v_cmp_eq_u32 vcc, s{sXCD}, v{vT}")
    A(f"v_lshrrev_b32 v{vT}, 1, v{vL}"); A(f"v_and_b32 v{vT}, 16, v{vT}")
    A(f"v_mov_b32 v{vTB}, s{sTAG}")
    A(f"v_lshrrev_b32 v{vTB}, v{vT}, v{vTB}")
    A(f"s_cmp_eq_u32 {sblk}, 8"); A(f"s_cselect_b64 s[{sAM}:{sAM+1}], vcc, 0")
    A(f"s_cmp_eq_u32 {sblk}, s{sXCD}"); A(f"s_cselect_b64 s[{sAM}:{sAM+1}], -1, s[{sAM}:{sAM+1}]")
    A(f"s_and_b32 s{sAM}, s{sAM}, 0x00ff00ff"); A(f"s_and_b32 s{sAM+1}, s{sAM+1}, 0x00ff00ff")
    A(f"v_lshrrev_b32 v{vTB+1}, 8, v{vTB}")
    A(f"s_movk_i32 s{sFF}, 0xff")
    na = g.p.get("na", 2)
    if not ffn:
        A(f"s_mul_i32 s{sST2}, s{sJ}, {na}"); A(f"s_add_u32 s{sST2}, s{sST2}, s{sW}"); A(f"s_sub_u32 s{sST2}, s{sST2}, 4")
    else:
        nf = {2: 2, 1: 4}[na]; nh = 64 - 22*na - 9*nf
        A(f"s_mul_i32 s{sST2}, s{sJ}, {nf}"); A(f"s_add_u32 s{sST2}, s{sST2}, s{sW}"); A(f"s_sub_u32 s{sST2}, s{sST2}, {22*nf - 22*na}")
        A(f"s_cmp_eq_u32 s{sJ}, 31"); A(f"s_cselect_b32 s{sSLOT}, {nh}, {nf}")
    A(f"s_mul_i32 s{sDO}, s{sST2}, {72*1152}")
    A(f"s_lshl_b32 s{sT0}, s{sXCD}, 7"); A(f"s_add_u32 s{sDO}, s{sDO}, s{sT0}")
    A(f"s_mov_b32 s{SD+2}, 5308416"); A(f"s_mov_b32 s{SD+3}, s{SWQ+3}")

def tagcheck(g, d, t):
    g.A(f"v_perm_b32 v{t}, v{d+1}, v{d}, s{sSEL0}"); g.A(f"v_perm_b32 v{t+1}, v{d+3}, v{d+2}, s{sSEL1}")
    g.A(f"v_or_b32 v{t}, v{t}, v{t+1}")
def untag(g, d, n):
    for r in range(n): g.A(f"v_and_b32 v{d+r}, s{sNM}, v{d+r}")
def tagsel(g):
    g.A(f"s_movk_i32 s{sNM}, 0xff00")
    g.A(f"s_mov_b32 s{sSEL0}, 0x0c0c0400"); g.A(f"s_mov_b32 s{sSEL1}, 0x04000c0c")

PROG = {"K3": 3, "K7": 4, "K11": 6, "V3": 7, "V7": 8}
uid = [0]
def fpublish(g, acc, acopy=True, fb=False):
    g.A(f"s_add_u32 s{sT0}, s{sPI}, {AOFF}")
    g.A("s_nop 6")
    g.A(f"v_permlane32_swap_b32 v{acc}, v{acc+2}")
    g.A(f"v_permlane32_swap_b32 v{acc+1}, v{acc+3}")
    g.A("s_nop 0")
    g.A(f"v_add_f32_dpp v{acc}, v{acc+2}, v{acc} row_ror:8 {DPP}")
    g.A(f"v_add_f32_dpp v{acc+1}, v{acc+3}, v{acc+1} row_ror:8 {DPP}")
    g.A(f"v_bfi_b32 v{acc}, s{sFF}, v{vTB}, v{acc}"); g.A(f"v_bfi_b32 v{acc+1}, s{sFF}, v{vTB+1}, v{acc+1}")
    if acopy:
        uid[0] += 1
        g.A(f"s_mov_b64 exec, s[{sAM}:{sAM+1}]"); g.A(f"s_cbranch_execz L_na{uid[0]}")
        g.A(f"buffer_store_dwordx2 {v2(acc)}, v{vOFP}, {srd(SWS)}, s{sT0} offen")
        g.lab(f"L_na{uid[0]}")
    setexec(g, 0x00ff00ff, 0x00ff00ff)
    g.A(f"buffer_store_dwordx2 {v2(acc)}, v{vOFP}, {srd(SWS)}, s{sPI} offen sc1{' nt' if (fb and g.p.get('bnt')) else ''}")
    g.A("s_mov_b64 exec, -1")

vD = vV + 12
def is45(g, other, ffn=False):
    if ffn: g.A(f"s_cmp_lt_u32 s{sW}, s{sSLOT}")
    else: g.A(f"s_sub_u32 s{sT0}, s{sW}, 4"); g.A(f"s_cmp_lt_u32 s{sT0}, {g.p.get('na', 2)}")
    g.A(f"s_cbranch_scc0 {other}")
def dissue(g):
    for t in range(9):
        g.A(f"buffer_load_dwordx4 {v4(vD+4*t)}, v{vOT}, {srd(SD)}, s{sDO} offen {g.p['nt']}")
        if t < 8: g.A(f"s_add_u32 s{sDO}, s{sDO}, 9216")

vH = vK + 28
def hsetup(g):
    A = g.A
    A(f"s_mul_i32 s{sGOT}, s{sST2}, 288"); A(f"s_add_u32 s{sGOT}, s{sGOT}, {H2}")
    tagsel(g)
    A(f"s_mul_i32 s{sT2}, s{sW}, 288")
    A(f"v_add_u32 v{vT+6}, s{sT2}, v{vOV}"); A(f"v_lshl_add_u32 v{vT+7}, v{vR3}, 2, s{sT2}")
def hload(g): g.A(f"buffer_load_dwordx4 {v4(vH)}, v{vOV}, {srd(SWS)}, s{sGOT} offen sc1")
def hgather(g, sfx, budget, sleep, loaded):
    A = g.A
    A(f"s_mov_b32 s{sSPIN}, {budget}")
    setexec(g, 0x3ffff, 0)
    if loaded: A(f"s_branch L_hc{sfx}")
    g.lab(f"L_hg{sfx}")
    A(f"s_sub_u32 s{sSPIN}, s{sSPIN}, 1"); A(f"s_cbranch_scc1 L_hge{sfx}")
    A(f"s_sleep {sleep}")
    hload(g)
    A("s_waitcnt vmcnt(0)")
    g.lab(f"L_hc{sfx}")
    tagcheck(g, vH, vT+4)
    A(f"v_cmp_ne_u32 vcc, s{sTAG}, v{vT+4}")
    A(f"s_cbranch_vccnz L_hg{sfx}")
    g.lab(f"L_hge{sfx}")
    A(f"s_mov_b32 s{sT1}, 0x03020302")
    for r in range(4): A(f"v_perm_b32 v{vH+r}, v{vH+r}, v{vH+r}, s{sT1}")
    A(f"ds_write_b128 v{vT+6}, {v4(vH)} offset:{L_H}")
    A("s_mov_b64 exec, -1")
    for t in range(0, 8, 2): A(f"ds_read2_b32 {v2(vK+16+t)}, v{vT+7} offset0:{L_H//4+8*t} offset1:{L_H//4+8*t+8}")
    A(f"ds_read_b32 v{vK+24}, v{vT+7} offset:{L_H+256}")

def dshare(g, nyoung):
    A = g.A
    A(f"s_add_u32 s{sPI}, s{sST2}, 176"); A(f"s_mul_i32 s{sPI}, s{sPI}, 9"); A(f"s_add_u32 s{sPI}, s{sPI}, s{sXCD}")
    A(f"s_lshl_b32 s{sPI}, s{sPI}, 8"); A(f"s_add_u32 s{sPI}, s{sPI}, {FB}")
    A(f"s_mov_b32 s{sAM}, 0x00ff00ff"); A(f"s_mov_b32 s{sAM+1}, s{sAM}")
    if g.p.get("dprof"): g.stamp(3)
    A("s_waitcnt lgkmcnt(0)")
    for t in range(9):
        build_A(g, vA+4*(t & 1), vK+16+t)
        A(f"s_waitcnt vmcnt({8-t+nyoung})"); A("s_nop 0")
        if g.p.get("dprof") and t in (0, 8): g.stamp(4 if t == 0 else 6)
        A(f"{MF} {v4(vACC)}, {v4(vA+4*(t&1))}, {v4(vD+4*t)}, {'0' if t == 0 else v4(vACC)}")
    fpublish(g, vACC, fb=True)

def gen(**kw):
    g = G(**kw); A = g.A; p = g.p; nt = p["nt"]; WA = p["WA"]; WF = p["WF"]
    SPIN = p["spin"]; SW = max(SPIN - p["apolls"], 0)
    NPRO = min(WA, WF)
    out = [HDR.rstrip("\n")]
    out.append(f"; @launch grid=(256,1,1) block=({640 if p.get('w9') else 576},1,1) lds={LDS_BYTES}")
    out += ['.amdgcn_target "amdgcn-amd-amdhsa--gfx950"', ".text"]
    if p["align"]: out += [".p2align 12", ".fill 832, 4, 0xbf800000"]
    out += [f".globl {NAME}", ".p2align 8", f".type {NAME},@function", f"{NAME}:"]
    g.stamp(0)
    if p.get("diag"): A("s_memrealtime s[90:91]")
    A("s_cmp_ge_u32 s2, 0x100"); A("s_cbranch_scc1 L_end")
    if p.get("w9"):
        A("v_cmp_gt_u32 vcc, 576, v0"); A("s_cbranch_vccnz L_go")
        A("s_cmp_lt_u32 s2, 176"); A("s_cbranch_scc1 L_warmA"); A("s_branch L_warmF")
        g.lab("L_go")
    A(f"s_load_dwordx2 s[{SWQ}:{SWQ+1}], s[0:1], 24")
    A(f"s_load_dwordx2 s[{SX}:{SX+1}], s[0:1], 0")
    A(f"s_lshr_b32 s{sJ}, s2, 3")
    A(f"s_cmp_lt_u32 s{sJ}, 22")
    A(f"s_cselect_b32 s{sT0}, 8, 48")
    A(f"s_load_dwordx4 s[64:67], s[0:1], s{sT0}")
    A(f"s_load_dwordx2 s[{S3}:{S3+1}], s[0:1], 32")
    A(f"s_load_dwordx2 s[{SD}:{SD+1}], s[0:1], 64")
    A(f"s_load_dwordx2 s[{SGW}:{SGW+1}], s[0:1], 72")
    A(f"s_load_dwordx2 s[{SOUT}:{SOUT+1}], s[0:1], 80")
    A(f"s_load_dwordx2 s[{SWS}:{SWS+1}], s[0:1], 96")
    A(f"v_lshrrev_b32 v{vT}, 6, v0")
    A(f"v_and_b32 v{vL}, 63, v0")
    A(f"v_readfirstlane_b32 s{sW}, v{vT}")
    A(f"s_and_b32 s{sXCD}, s2, 7")
    A(f"v_lshrrev_b32 v{vR3}, 3, v{vL}")
    A(f"v_and_b32 v{vT+1}, 7, v{vL}")
    A(f"v_lshlrev_b32 v{vT+2}, 4, v{vT+1}")
    A(f"v_lshl_add_u32 v{vOWQ}, v{vR3}, 14, v{vT+2}")
    A(f"v_lshlrev_b32 v{vT+3}, 2, v{vR3}")
    A(f"s_bfe_u32 s{sT0}, s{sJ}, 0x20002"); A(f"s_mul_i32 s{sT0}, s{sT0}, 9"); A(f"s_add_u32 s{sT0}, s{sT0}, s{sW}")
    A(f"s_lshr_b32 s{sT1}, s{sJ}, 4"); A(f"s_lshl1_add_u32 s{sT1}, s{sXCD}, s{sT1}")
    A(f"s_and_b32 s{sT2}, s{sJ}, 3"); A(f"s_lshl2_add_u32 s{sT1}, s{sT1}, s{sT2}"); A(f"s_lshl_b32 s{sT1}, s{sT1}, 7")
    A(f"s_lshl_b32 s{sT2}, s{sT0}, 17"); A(f"s_add_u32 s{sT1}, s{sT1}, s{sT2}")
    A(f"s_add_u32 s{sT2}, s{sT1}, 8192")
    A(f"s_lshl_b32 s{sT0}, s{sT0}, 5")
    A(f"s_mov_b32 s{SWQ+2}, 4718592"); A(f"s_mov_b32 s{SWQ+3}, 0x20000")
    A(f"s_movk_i32 s{SX+2}, 1152"); A(f"s_mov_b32 s{SX+3}, s{SWQ+3}")
    vWQ = vV + 40
    A(f"v_mov_b32 v{vT+4}, 0")
    A(f"ds_write_b32 v{vT+3}, v{vT+4} offset:{L_CNT}")
    A("s_waitcnt lgkmcnt(0)")
    g.stamp(1)
    A(f"buffer_load_dwordx4 {v4(vWQ)}, v{vOWQ}, {srd(SWQ)}, s{sT1} offen {nt}"); g.vissue("wq0")
    A(f"buffer_load_dwordx4 {v4(vWQ+4)}, v{vOWQ}, {srd(SWQ)}, s{sT2} offen {nt}"); g.vissue("wq1")
    A(f"buffer_load_dword v{vX0}, v{vT+3}, {srd(SX)}, s{sT0} offen"); g.vissue("x0")
    A(f"s_load_dword s{sE}, s[{SWS}:{SWS+1}], {EPOCH}")
    g.stamp(3, 2)
    A("s_barrier")
    g.stamp(4, 2)
    if p.get("diag"): A("s_memrealtime s[96:97]")
    A(f"s_mov_b64 s[{S1}:{S1+1}], s[64:65]"); A(f"s_mov_b64 s[{S2}:{S2+1}], s[66:67]")
    A(f"s_mov_b32 s{S1+3}, s{SWQ+3}")
    A(f"v_lshlrev_b32 v{vOV}, 4, v{vL}")
    A(f"s_cmp_ge_u32 s{sJ}, 22"); A("s_cbranch_scc1 L_setF")
    A(f"s_mov_b32 s{S1+2}, 0x10000000"); A(f"s_mov_b32 s{S3+2}, s{SWQ+2}")
    A(f"s_cmp_ge_u32 s{sJ}, 11"); A(f"s_cselect_b32 s{sT0}, 1, 0"); A(f"s_cselect_b32 s{sT1}, 8, 0")
    A(f"s_lshl1_add_u32 s{sHK}, s{sXCD}, s{sT0}")
    A(f"s_cmp_ge_u32 s{sJ}, 19"); A(f"s_cselect_b32 s{sT1}, 19, s{sT1}")
    A(f"s_sub_u32 s{sSLOT}, s{sJ}, s{sT1}")
    A(f"s_min_u32 s{sT0}, s{sSLOT}, 2"); A(f"s_mul_i32 s{sT1}, s{sSLOT}, 94"); A(f"s_add_u32 s{sT0}, s{sT0}, s{sT1}")
    A(f"s_lshr_b32 s{sT1}, s{sSLOT}, 2"); A(f"s_mul_i32 s{sT1}, s{sT1}, 6"); A(f"s_sub_u32 s{sT0}, s{sT0}, s{sT1}")
    if p.get("sweep"):
        A(f"s_mul_i32 s{sT1}, s{sSLOT}, 96"); A(f"s_sub_u32 s{sST2}, s{sT0}, s{sT1}"); A(f"s_add_u32 s{sST2}, s{sST2}, 88"); A(f"s_lshl_b32 s{sST2}, s{sST2}, 10")
        A(f"s_lshl_b32 s{sT0}, s{sSLOT}, 3")
    A(f"s_add_u32 s{sT0}, s{sT0}, s{sW}"); A(f"s_lshl_b32 s{sT0}, s{sT0}, 10")
    A(f"s_lshl_b32 s{sKO}, s{sHK}, 24"); A(f"s_add_u32 s{sKO}, s{sKO}, s{sT0}")
    A(f"s_add_u32 s{sKO}, s{sKO}, {61440*256}")
    A(f"s_mov_b32 s{sSTEP}, {88*1024}" if p.get("sweep") else f"s_movk_i32 s{sSTEP}, 8192")
    A(f"v_bfe_u32 v{vT}, v{vL}, 2, 2"); A(f"v_lshrrev_b32 v{vT+1}, 4, v{vL}"); A(f"v_and_b32 v{vT+3}, 3, v{vL}")
    A(f"v_lshlrev_b32 v{vOK}, 8, v{vT}"); A(f"v_lshl_add_u32 v{vOK}, v{vT+1}, 6, v{vOK}"); A(f"v_lshl_add_u32 v{vOK}, v{vT+3}, 4, v{vOK}")
    A(f"s_cmp_eq_u32 s{sW}, 8"); A(f"s_cselect_b32 s{sNOS}, 1, 0")
    A("s_branch L_set_done")
    g.lab("L_setF")
    A(f"s_mov_b32 s{S1+2}, 5308416"); A(f"s_mov_b32 s{S3+2}, s{S1+2}")
    A(f"s_mul_i32 s{sU}, s{sXCD}, 9"); A(f"s_mov_b32 s{sWE}, s{sW}")
    A(f"s_cmp_eq_u32 s{sJ}, 31"); A("s_cbranch_scc0 L_setF1")
    A(f"s_add_u32 s{sHK}, s{sU}, s{sW}")
    A(f"s_and_b32 s{sU}, s{sHK}, 0x78"); A(f"s_sub_u32 s{sU}, s{sU}, {9-3}")
    A(f"s_bfe_u32 s{sWE}, s{sHK}, 0x20001"); A(f"s_add_u32 s{sWE}, s{sWE}, 5")
    A(f"s_bitcmp1_b32 s{sHK}, 0"); A(f"s_cselect_b64 s[{S1}:{S1+1}], s[66:67], s[64:65]")
    g.lab("L_setF1")
    A(f"s_add_u32 s{sU}, s{sU}, s{sJ}"); A(f"s_sub_u32 s{sU}, s{sU}, 22")
    A(f"s_movk_i32 s{sT0}, 9216"); A(f"v_mad_u32_u24 v{vOK}, v{vR3}, s{sT0}, v{vT+2}")
    A(f"s_mul_i32 s{sKO}, s{sWE}, {8*9216}"); A(f"s_lshl_b32 s{sT0}, s{sU}, 7"); A(f"s_add_u32 s{sKO}, s{sKO}, s{sT0}")
    A(f"s_mov_b32 s{sSTEP}, {72*9216}")
    A(f"s_and_b32 s{sT0}, s{sU}, 7"); A(f"s_cmp_eq_u32 s{sT0}, 3"); A(f"s_cselect_b32 s{sT0}, s{sW}, 0")
    A(f"s_cmp_ge_u32 s{sT0}, {5 if p['helper'] else 99}"); A(f"s_cselect_b32 s{sMODE}, 1, 0")
    A(f"s_cmp_eq_u32 s{sJ}, 31"); A(f"s_cselect_b32 s{sMODE}, 2, s{sMODE}")
    A(f"s_cmp_eq_u32 s{sMODE}, {1 if p['helper'] else 2}")
    A(f"s_cselect_b32 s{sT0}, {OOB:#x}, 0")
    A(f"v_add_u32 v{vOK}, s{sT0}, v{vOK}")
    A(f"s_mov_b32 s{sNOS}, 0")
    g.lab("L_set_done")
    A(f"s_mov_b32 s{sRUN}, s{sKO}")
    def s1_issue(i):
        A(f"buffer_load_dwordx4 {v4(vK+4*i)}, v{vOK}, {srd(S1)}, s{sRUN} offen {nt}"); g.vissue(f"K{i}")
        A(f"s_add_u32 s{sRUN}, s{sRUN}, s{sSTEP}")
    N0 = min(p.get("N0", 2), NPRO)
    A(f"s_cmp_eq_u32 s{sNOS}, 1"); A("s_cbranch_scc1 " + "L_touched")
    for i in range(N0): s1_issue(i)
    g.lab("L_touched")
    g.stamp(6, 2)
    if p.get("diag"): A("s_memrealtime s[98:99]")
    A(f"s_mov_b64 s[{S2+2}:{S2+3}], s[{S1+2}:{S1+3}]"); A(f"s_mov_b32 s{S3+3}, s{SWQ+3}")
    A(f"s_mov_b32 s{SWS+2}, {(16<<20) if p['stamps'] else WS_USED}"); A(f"s_mov_b32 s{SWS+3}, s{SWQ+3}")
    A(f"v_and_b32 v{vT}, 1, v{vL}"); A(f"v_lshlrev_b32 v{vT}, 4, v{vT}")
    A(f"v_mov_b32 v{vT+1}, 0xffff"); A(f"v_lshlrev_b32 v{vT}, v{vT}, v{vT+1}")
    A(f"v_bfe_u32 v{vT+1}, v{vL}, 1, 2")
    for j in range(4): A(f"v_cmp_eq_u32 s[{sM0+2*j}:{sM0+2*j+1}], {j}, v{vT+1}")
    A(f"s_mov_b32 s{sSEL0}, 0x01000100"); A(f"s_mov_b32 s{sSEL1}, 0x03020302")
    for j in range(4): A(f"v_cndmask_b32 v{vM+j}, 0, v{vT}, s[{sM0+2*j}:{sM0+2*j+1}]")
    A(f"v_lshrrev_b32 v{vT}, 5, v{vL}"); A(f"v_and_b32 v{vT+3}, 16, v{vL}")
    A(f"v_lshl_add_u32 v{vLT}, v{vT+2}, 1, v{vT+3}")
    A(f"v_lshl_add_u32 v{vOFP}, v{vT}, 3, v{vLT}")
    A(f"v_lshl_add_u32 v{vLT}, v{vT}, 8, v{vLT}")
    A(f"s_movk_i32 s{sT0}, 1152"); A(f"v_mad_u32_u24 v{vOT}, v{vR3}, s{sT0}, v{vT+2}")
    A(f"s_lshl_b32 s{sT0}, s{sW}, 9"); A(f"v_add_u32 v{vT+2}, s{sT0}, v{vLT}")
    g.stamp(7, 2)
    A(f"s_cmp_eq_u32 s{sNOS}, 1"); A("s_cbranch_scc0 L_w1")
    A("s_waitcnt vmcnt(0)")
    g.lab("L_w1")
    g.vwait("x0")
    g.stamp(2)
    A(f"v_perm_b32 v{vT}, v{vX0}, v{vX0}, s{sSEL0}"); A(f"v_perm_b32 v{vT+1}, v{vX0}, v{vX0}, s{sSEL1}")
    build_A(g, vA, vT); build_A(g, vA+4, vT+1)
    A("s_cbranch_scc1 L_w2")
    for i in range(N0, NPRO): s1_issue(i)
    g.lab("L_w2")
    A(f"v_mov_b32 v{vT+5}, 1")
    A(f"{MF} {v4(vACC)}, {v4(vA)}, {v4(vWQ)}, 0")
    A(f"{MF} {v4(vACC)}, {v4(vA+4)}, {v4(vWQ+4)}, {v4(vACC)}")
    setexec(g, 0x00ff00ff, 0xff00ff00)
    A("s_waitcnt lgkmcnt(0)")
    A(f"s_mul_i32 s{sTAG}, s{sE}, 0x9e3779b1"); A(f"s_add_u32 s{sTAG}, s{sTAG}, 0x7f4a7c15")
    A(f"s_lshl_b32 s{sOO}, s{sW}, 7")
    A("s_nop 1")
    A(f"ds_write_b128 v{vT+2}, {v4(vACC)} offset:{L_QP}")
    A("s_mov_b64 exec, 1")
    A(f"ds_add_u32 v{vT+4}, v{vT+5} offset:{L_CNT}")
    A("s_mov_b64 exec, -1")
    A(f"s_cmp_lg_u32 s{sW}, 8"); A("s_cbranch_scc1 L_nopub")
    base = vV
    A(f"v_lshlrev_b32 v{vT}, 2, v{vL}")
    A(f"s_lshl_b32 s{sT0}, s{sXCD}, 5"); A(f"s_add_u32 s{sT0}, s{sT0}, s{sJ}")
    A(f"s_lshl_b32 s{sT0}, s{sT0}, 8"); A(f"s_add_u32 s{sT0}, s{sT0}, {QB}"); A(f"s_add_u32 s{sT1}, s{sT0}, {AOFF}")
    A(f"v_and_b32 v{vT+1}, 3, v{vL}"); A(f"v_lshlrev_b32 v{vT+1}, 3, v{vT+1}"); A(f"v_mov_b32 v{vT+6}, s{sTAG}")
    A(f"v_lshrrev_b32 v{vT+1}, v{vT+1}, v{vT+6}"); A(f"s_movk_i32 s{sFF}, 0xff")
    g.lab("L_cnt")
    A(f"ds_read_b32 v{vT+6}, v{vT+4} offset:{L_CNT}")
    A("s_waitcnt lgkmcnt(0)")
    A(f"v_cmp_ne_u32 vcc, 9, v{vT+6}")
    A("s_cbranch_vccnz L_cnt")
    for k in range(9): A(f"ds_read2st64_b32 {v2(base+2*k)}, v{vT} offset0:{L_QP//256+2*k} offset1:{L_QP//256+2*k+1}")
    A("s_waitcnt lgkmcnt(0)")
    for a, b in ((0,1),(2,3),(4,5),(6,7),(0,2),(4,6),(0,4),(0,8)):
        A(f"v_pk_add_f32 {v2(base+2*a)}, {v2(base+2*a)}, {v2(base+2*b)}")
    A(f"v_add_f32 v{vT+8}, v{base}, v{base+1}")
    A(f"v_bfi_b32 v{vT+8}, s{sFF}, v{vT+1}, v{vT+8}")
    A(f"buffer_store_dword v{vT+8}, v{vT}, {srd(SWS)}, s{sT1} offen")
    A(f"buffer_store_dword v{vT+8}, v{vT}, {srd(SWS)}, s{sT0} offen sc1{' nt' if p.get('bnt') else ''}")
    g.stamp(3)
    A(f"s_cmp_lt_u32 s{sJ}, 22"); A("s_cbranch_scc1 L_attn8")
    g.lab("L_nopub")
    A(f"s_cmp_ge_u32 s{sJ}, 22"); A("s_cbranch_scc1 L_notattn")
    pre = list(g.vm)
    def attn_consts():
        A(f"s_lshl_b32 s{sT0}, s{sHK}, 5"); A(f"s_add_u32 s{sT0}, s{sT0}, s{sSLOT}"); A(f"s_mul_i32 s{sT0}, s{sT0}, 9216")
        A(f"s_add_u32 s{sOO}, s{sOO}, s{sT0}")
        A(f"s_mul_i32 s{sPI}, s{sHK}, 11"); A(f"s_add_u32 s{sPI}, s{sPI}, s{sSLOT}")
        fpub_consts(g, f"s{sW}")
        A(f"s_cmp_lt_u32 s{sSLOT}, 10"); A(f"s_cselect_b32 s{sT0}, 0, {OOB:#x}")
        A(f"v_add_u32 v{vOD}, s{sT0}, v{vOT}")
        A(f"v_and_b32 v{vT}, 15, v{vL}"); A(f"v_lshrrev_b32 v{vT+1}, 4, v{vL}")
        A(f"v_lshlrev_b32 v{vOU}, 11, v{vT}"); A(f"v_lshl_add_u32 v{vOU}, v{vT+1}, 4, v{vOU}")
    for i in range(NPRO, WA): s1_issue(i)
    A(f"s_cmp_lt_u32 s{sSLOT}, 2"); A(f"s_cselect_b32 s{sT0}, 7, 6")
    A(f"s_and_b32 s{sT1}, s{sSLOT}, 3"); A(f"s_cmp_eq_u32 s{sT1}, 3"); A(f"s_cselect_b32 s{sT0}, 0, s{sT0}")
    A(f"s_cmp_lt_u32 s{sW}, s{sT0}"); A(f"s_cselect_b32 s{sT0}, 0, {OOB:#x}"); A(f"s_cselect_b32 s{sBIAS}, 0, {f2u(-1e30):#x}")
    A(f"v_add_u32 v{vOKL}, s{sT0}, v{vOK}"); A(f"v_add_u32 v{vOVL}, s{sT0}, v{vOV}")
    seq = [("K", i) for i in range(12)] + [("V", i) for i in range(12)] + [("O", i) for i in range(3 - p.get("olate", 0))]
    def late_o():
        for i in range(3 - p.get("olate", 0), 3):
            A(f"buffer_load_dwordx4 {v4(vV+4*i)}, v{vOD if i == 2 else vOT}, {srd(S3)}, s{sOO} offen {nt}")
            if i < 2: A(f"s_add_u32 s{sOO}, s{sOO}, {11*9216}")
    pos = [max(NPRO, WA)]; land = [0]; vdone = [-1]
    def can_issue():
        if pos[0] >= len(seq): return False
        kind, i = seq[pos[0]]
        return kind != "O" or i <= vdone[0]
    def issue():
        kind, i = seq[pos[0]]; pos[0] += 1
        if kind == "O":
            A(f"buffer_load_dwordx4 {v4(vV+4*i)}, v{vOD if i == 2 else vOT}, {srd(S3)}, s{sOO} offen {nt}")
            if i < 2: A(f"s_add_u32 s{sOO}, s{sOO}, {11*9216}")
        else:
            off = {("K", True): vOKL, ("K", False): vOK, ("V", True): vOVL, ("V", False): vOV}[(kind, i == 11)]
            A(f"buffer_load_dwordx4 {v4((vK if kind == 'K' else vV)+4*i)}, v{off}, {srd(S1 if kind == 'K' else S2)}, s{sRUN} offen {nt}")
            if i < 11: A(f"s_add_u32 s{sRUN}, s{sRUN}, s{sST2 if (i == 10 and p.get('sweep')) else sSTEP}")
            elif kind == "K": A(f"s_mov_b32 s{sRUN}, s{sKO}")
        g.vissue(f"{kind}{i}")
    def refill():
        while pos[0] - land[0] < WA and can_issue(): issue()
    def step():
        kind, i = seq[land[0]]; land[0] += 1
        g.vwait(f"{kind}{i}")
        if f"{kind}{i}" in PROG: g.stamp(PROG[f"{kind}{i}"], True)
        refill()
        if p.get("gate") == f"{kind}{i}":
            A(f"s_lshl4_add_u32 s{sT0}, s{sJ}, s{sW}"); A(f"s_cmp_lg_u32 s{sT0}, {p.get('gsrc', 5)*16+7}"); A("s_cbranch_scc1 L_nogate")
            A(f"s_lshl_b32 s{sT0}, s{sXCD}, 7"); A(f"v_mov_b32 v{vT+8}, s{sTAG}"); A(f"v_mov_b32 v{vT+9}, 0"); A("s_mov_b64 exec, 1")
            A(f"buffer_store_dword v{vT+8}, v{vT+9}, {srd(SWS)}, s{sT0} offen offset:2048 sc1"); A("s_mov_b64 exec, -1")
            g.lab("L_nogate")
    nmid = [p["nmid"]]
    def mid():
        if nmid[0] > 0 and can_issue(): issue(); nmid[0] -= 1; return True
        return False
    refill()
    g.stamp(8, 2)
    step(); attn_consts()
    while land[0] < 12 + p["bpos"] + 1: step()
    g.stamp(3)
    A(f"v_and_b32 v{vT}, 0xf0, v{vOK}"); A(f"v_and_b32 v{vT+1}, 1, v{vR3}")
    A(f"v_lshl_add_u32 v{vT}, v{vT+1}, 8, v{vT}")
    A("s_barrier")
    A(f"ds_read_b128 {v4(vA)}, v{vT} offset:{L_Q}")
    A(f"s_mov_b32 s{sC}, {f2u(128**-0.5 * 1.4426950408889634):#x}")
    A(f"v_lshlrev_b32 v{vT+1}, 5, v{vT+1}"); A(f"s_lshl_b32 s{sT0}, s{sW}, 2"); A(f"v_add_u32 v{vT+3}, s{sT0}, v{vT+1}")
    A("s_waitcnt lgkmcnt(0)")
    for i in range(12): A(f"{MF} {v4(vK+4*i)}, {v4(vK+4*i)}, {v4(vA)}, 0")
    for i in range(12): A(f"v_mov_b32_dpp v{vP+i}, v{vK+4*i} quad_perm:[0,0,0,0] {DPP}")
    for r in (1, 2, 3):
        if r == 2: mid()
        for i in range(12): A(f"v_add_f32_dpp v{vP+i}, v{vK+4*i+r}, v{vP+i} quad_perm:[{r},{r},{r},{r}] {DPP}")
    A(f"v_add_f32 v{vP+11}, s{sBIAS}, v{vP+11}")
    A(f"v_max3_f32 v{vT}, v{vP}, v{vP+1}, v{vP+2}")
    for i in range(3, 11, 2): A(f"v_max3_f32 v{vT}, v{vT}, v{vP+i}, v{vP+i+1}")
    A(f"v_max_f32 v{vT}, v{vT}, v{vP+11}")
    crossrow(g, "v_max_f32", vT, vT+2)
    setexec(g, 0x101, 0)
    A(f"ds_write_b32 v{vT+3}, v{vT} offset:{L_M}")
    A("s_mov_b64 exec, -1")
    mid()
    A("s_waitcnt lgkmcnt(0)")
    A("s_barrier")
    A(f"ds_read_b128 {v4(vA)}, v{vT+1} offset:{L_M}"); A(f"ds_read_b128 {v4(vA+4)}, v{vT+1} offset:{L_M+16}")
    A(f"v_and_b32 v{vT+5}, 15, v{vL}"); A(f"v_lshlrev_b32 v{vT+5}, 5, v{vT+5}")
    A(f"v_and_b32 v{vT+6}, 16, v{vL}"); A(f"v_add_u32 v{vT+5}, v{vT+5}, v{vT+6}")
    A(f"v_lshrrev_b32 v{vT+6}, 5, v{vL}"); A(f"v_lshl_add_u32 v{vT+5}, v{vT+6}, 9, v{vT+5}")
    A(f"s_lshl_b32 s{sT0}, s{sW}, 10"); A(f"v_add_u32 v{vT+5}, s{sT0}, v{vT+5}")
    A("s_waitcnt lgkmcnt(0)")
    A(f"v_max3_f32 v{vT}, v{vA}, v{vA+1}, v{vA+2}"); A(f"v_max3_f32 v{vT}, v{vT}, v{vA+3}, v{vA+4}")
    A(f"v_max3_f32 v{vT}, v{vT}, v{vA+5}, v{vA+6}"); A(f"v_max_f32 v{vT}, v{vT}, v{vA+7}")
    A(f"v_mul_f32 v{vT}, s{sC}, v{vT}")
    for i in range(12): A(f"v_fma_f32 v{vP+i}, v{vP+i}, s{sC}, -v{vT}")
    for i in range(12): A(f"v_exp_f32 v{vP+i}, v{vP+i}")
    if not mid(): A("s_nop 0")
    A(f"v_add_f32 v{vT+4}, v{vP}, v{vP+1}")
    for i in range(2, 12): A(f"v_add_f32 v{vT+4}, v{vT+4}, v{vP+i}")
    for i in range(12): A(f"v_cvt_pk_bf16_f32 v{vP+i}, v{vP+i}, v{vP+i}")
    crossrow(g, "v_add_f32", vT+4, vT+2)
    setexec(g, 0x101, 0)
    A(f"ds_write_b32 v{vT+3}, v{vT+4} offset:{L_L}")
    A("s_mov_b64 exec, -1")
    mid()
    for i in range(12): build_A(g, vK+4*i, vP+i)
    A("s_waitcnt lgkmcnt(0)")
    A("s_barrier")
    A(f"s_cmp_lt_u32 s{sW}, 6"); A("s_cbranch_scc1 L_nolse")
    A(f"s_sub_u32 s{sT0}, s{sW}, 6")
    A(f"s_lshl_b32 s{sT1}, s{sT0}, 5"); A(f"v_mov_b32 v{vT+1}, s{sT1}")
    A(f"ds_read_b128 {v4(vA)}, v{vT+1} offset:{L_L}"); A(f"ds_read_b128 {v4(vA+4)}, v{vT+1} offset:{L_L+16}")
    A(f"ds_read_b128 {v4(vP)}, v{vT+1} offset:{L_M}"); A(f"ds_read_b128 {v4(vP+4)}, v{vT+1} offset:{L_M+16}")
    A(f"s_lshl_b32 s{sT1}, s{sT0}, 9"); A(f"v_lshl_add_u32 v{vT+2}, v{vL}, 3, s{sT1}")
    A(f"s_lshl4_add_u32 s{sT3}, s{sHK}, s{sSLOT}"); A(f"s_lshl1_add_u32 s{sT3}, s{sT3}, s{sT0}"); A(f"s_lshl_b32 s{sT3}, s{sT3}, 10")
    A(f"s_add_u32 s{sT3}, s{sT3}, {OB}"); A(f"s_add_u32 s{sT4}, s{sT3}, {AOFF}")
    A("s_waitcnt lgkmcnt(0)")
    A(f"v_pk_add_f32 {v2(vA)}, {v2(vA)}, {v2(vA+2)}"); A(f"v_pk_add_f32 {v2(vA+4)}, {v2(vA+4)}, {v2(vA+6)}")
    A(f"v_max3_f32 v{vT}, v{vP}, v{vP+1}, v{vP+2}")
    A(f"v_pk_add_f32 {v2(vA)}, {v2(vA)}, {v2(vA+4)}")
    A(f"v_max3_f32 v{vT}, v{vT}, v{vP+3}, v{vP+4}")
    A(f"v_add_f32 v{vA}, v{vA}, v{vA+1}")
    A(f"v_max3_f32 v{vT}, v{vT}, v{vP+5}, v{vP+6}")
    A(f"v_rcp_f32 v{vA+2}, v{vA}"); A(f"v_log_f32 v{vA+4}, v{vA}")
    A(f"v_max_f32 v{vT}, v{vT}, v{vP+7}")
    A(f"v_mov_b32 v{vP+11}, s{sTAG}")
    A(f"v_fma_f32 v{vP+10}, v{vT}, s{sC}, v{vA+4}")
    g.lab("L_nolse")
    g.stamp(4)
    for i in range(12):
        if land[0] <= 12 + i:
            land[0] += 1; g.vwait(f"V{i}")
            if f"V{i}" in PROG: g.stamp(PROG[f"V{i}"], True)
        A(f"{MF} {v4(vACC)}, {v4(vK+4*i)}, {v4(vV+4*i)}, {'0' if i == 0 else v4(vACC)}")
        vdone[0] = i
        refill()
    assert pos[0] == len(seq)
    g.stamp(5)
    A("s_nop 7")
    A(f"ds_write_b128 v{vT+5}, {v4(vACC)} offset:{L_O}")
    A("s_waitcnt lgkmcnt(0)")
    A("s_branch L_barC")
    g.L.append(".p2align 12")
    if p.get("w9"):
        g.lab("L_warmA"); A("s_endpgm")
    g.lab("L_attn8")
    if p["prio"]: A("s_setprio 3")
    A(f"s_mov_b32 s{sNOS}, 0")
    attn_consts()
    A(f"s_lshl_b32 s{sT2}, s{sHK}, 12"); A(f"s_add_u32 s{sT2}, s{sT2}, {QB}"); A(f"s_add_u32 s{sT0}, s{sT2}, {AOFF}")
    A(f"s_mov_b32 s{sSPIN}, {SPIN}")
    tagsel(g)
    g.lab("L_qpoll")
    A(f"s_sleep {p['qsleep']}")
    for rg in range(4):
        A(f"buffer_load_dwordx4 {v4(vK+4*rg)}, v{vOV}, {srd(SWS)}, s{sT0} offen offset:{rg*1024} sc1{' nt' if p.get('ant') else ''}")
    A(f"s_sub_u32 s{sSPIN}, s{sSPIN}, 1"); A("s_cbranch_scc1 L_qpoll_end")
    A(f"s_cmp_eq_u32 s{sSPIN}, {max(SPIN-p['apolls']//4,0)}"); A(f"s_cselect_b32 s{sT0}, s{sT2}, s{sT0}")
    A("s_waitcnt vmcnt(0)")
    for rg in range(4): tagcheck(g, vK+4*rg, vT+2*rg)
    for rg in range(4): A(f"v_xor_b32 v{vT+2*rg}, s{sTAG}, v{vT+2*rg}")
    A(f"v_or3_b32 v{vT}, v{vT}, v{vT+2}, v{vT+4}"); A(f"v_or_b32 v{vT}, v{vT}, v{vT+6}")
    A(f"v_cmp_ne_u32 vcc, 0, v{vT}")
    A("s_cbranch_vccnz L_qpoll")
    g.lab("L_qpoll_end")
    untag(g, vK, 16)
    for k in (0, 2):
        A(f"v_pk_add_f32 {v2(vK+k)}, {v2(vK+k)}, {v2(vK+4+k)}"); A(f"v_pk_add_f32 {v2(vK+8+k)}, {v2(vK+8+k)}, {v2(vK+12+k)}")
    for k in (0, 2): A(f"v_pk_add_f32 {v2(vK+k)}, {v2(vK+k)}, {v2(vK+8+k)}")
    A(f"v_cvt_pk_bf16_f32 v{vK}, v{vK}, v{vK+1}"); A(f"v_cvt_pk_bf16_f32 v{vK+1}, v{vK+2}, v{vK+3}")
    A(f"v_lshlrev_b32 v{vT}, 3, v{vL}")
    A(f"ds_write_b64 v{vT}, {v2(vK)} offset:{L_Q}")
    A("s_waitcnt lgkmcnt(0)")
    if p.get("gate"):
        A(f"v_lshlrev_b32 v{vT}, 7, v{vL}")
        A(f"s_lshl_b32 s{sT0}, 1, s{sXCD}"); A(f"s_xor_b32 exec_lo, s{sT0}, 0xff"); A("s_mov_b32 exec_hi, 0")
        g.lab("L_gpoll")
        A(f"s_sleep {p.get('gsleep', 2)}")
        A(f"buffer_load_dword v{vT+1}, v{vT}, {srd(SWS)}, 0 offen offset:2048 sc1")
        A(f"s_sub_u32 s{sSPIN}, s{sSPIN}, 1"); A("s_cbranch_scc1 L_gpoll_end")
        A("s_waitcnt vmcnt(0)")
        A(f"v_cmpx_ne_u32 vcc, s{sTAG}, v{vT+1}")
        A("s_cbranch_execnz L_gpoll")
        g.lab("L_gpoll_end")
        A("s_mov_b64 exec, -1")
    g.stamp(4)
    A("s_barrier")
    if p["pretouch"]:
        A(f"s_lshl4_add_u32 s{sT1}, s{sHK}, s{sSLOT}"); A(f"s_lshl_b32 s{sT1}, s{sT1}, 11"); A(f"s_add_u32 s{sT1}, s{sT1}, {OB+AOFF}")
        A(f"v_lshlrev_b32 v{vT}, 7, v{vL}")
        setexec(g, 0xffff, 0)
        A(f"buffer_load_dword v{vT+1}, v{vT}, {srd(SWS)}, s{sT1} offen sc1")
        A("s_mov_b64 exec, -1")
    A("s_barrier")
    for i in range(3 - p.get("olate", 0)):
        A(f"buffer_load_dwordx4 {v4(vV+4*i)}, v{vOD if i == 2 else vOT}, {srd(S3)}, s{sOO} offen {nt}")
        if i < 2: A(f"s_add_u32 s{sOO}, s{sOO}, {11*9216}")
    A("s_barrier")
    if p.get("warm", 1): A("s_branch L_warmT")
    g.lab("L_barC")
    A("s_barrier")
    A(f"s_cmp_lt_u32 s{sW}, 3"); A("s_cbranch_scc1 L_ogather")
    A(f"s_sub_u32 s{sT0}, s{sW}, 6"); A(f"s_cmp_lt_u32 s{sT0}, 2"); A("s_cbranch_scc0 " + ("L_barC2" if p.get("c2") else "L_barD"))
    for w in range(8): A(f"ds_read_b64 {v2(vK+2*w)}, v{vT+2} offset:{L_O+1024*w}")
    A("s_waitcnt lgkmcnt(4)")
    for a, b in ((0,1),(2,3),(0,2)): A(f"v_pk_add_f32 {v2(vK+2*a)}, {v2(vK+2*a)}, {v2(vK+2*b)}")
    A("s_waitcnt lgkmcnt(0)")
    for a, b in ((4,5),(6,7),(0,4),(0,6)): A(f"v_pk_add_f32 {v2(vK+2*a)}, {v2(vK+2*a)}, {v2(vK+2*b)}")
    A(f"v_mul_f32 v{vP+8}, v{vK}, v{vA+2}"); A(f"v_mul_f32 v{vP+9}, v{vK+1}, v{vA+2}")
    A(f"buffer_store_dwordx4 {v4(vP+8)}, v{vOV}, {srd(SWS)}, s{sT4} offen")
    g.stamp(6)
    A("s_barrier")
    late_o()
    if not p.get("obl"):
        A(f"buffer_store_dwordx4 {v4(vP+8)}, v{vOV}, {srd(SWS)}, s{sT3} offen sc1{' nt' if p.get('bnt') else ''}")
    A(f"s_mov_b32 s{sNOS}, 1")
    A("s_branch L_barD0")
    if p.get("c2"):
        g.lab("L_barC2")
        is45(g, "L_barC3")
        hsetup(g)
        A(f"s_mov_b32 s{sNOS}, 2")
        A("s_barrier")
        late_o()
        if p.get("hpos", 0) == 0:
            setexec(g, 0x3ffff, 0); hload(g); A("s_mov_b64 exec, -1")
        A("s_barrier")
        if p.get("hpos", 0) == 1:
            setexec(g, 0x3ffff, 0); hload(g); A("s_mov_b64 exec, -1")
        dissue(g)
        A("s_branch L_barD")
        g.lab("L_barC3"); A("s_barrier"); late_o()
        g.lab("L_barD0"); A("s_barrier"); A("s_branch L_barD")
    g.lab("L_ogather")
    A(f"s_mul_i32 s{sT0}, s{sW}, 11"); A(f"s_add_u32 s{sT0}, s{sT0}, s{sSLOT}")
    A(f"s_lshl_b32 s{sT1}, s{sHK}, 15"); A(f"s_lshl_b32 s{sT2}, s{sT0}, 6"); A(f"s_add_u32 s{sT1}, s{sT1}, s{sT2}"); A(f"s_add_u32 s{sT2}, s{sT1}, {OB}")
    A(f"s_add_u32 s{sT1}, s{sT2}, {AOFF}")
    A(f"v_mov_b32 v{vA}, 0"); A(f"v_mov_b32 v{vA+1}, 0"); A(f"v_mov_b32 v{vA+2}, {f2u(-1e30):#x}")
    A(f"v_lshrrev_b32 v{vT+1}, 4, v{vL}")
    A(f"s_lshl_b32 s{sT3}, s{sW}, 5"); A(f"v_lshl_add_u32 v{vT+3}, v{vT+1}, 3, s{sT3}")
    A(f"s_mov_b32 s{sSPIN}, {SPIN}")
    if p.get("olate"):
        A(f"s_cmp_ge_u32 s{sT0}, 32"); A("s_cbranch_scc0 L_op0")
        A("s_barrier"); late_o(); A("s_barrier"); A("s_branch L_owrite")
        g.lab("L_op0")
        setexec(g, 0x07ff07ff, 0x07ff07ff)
        A("s_setprio 3")
        A("s_barrier")
        A(f"buffer_load_dwordx4 {v4(vA)}, v{vOU}, {srd(SWS)}, s{sT1} offen sc1{' nt' if p.get('ant') else ''}")
        A("s_mov_b64 exec, -1")
        late_o()
        setexec(g, 0x07ff07ff, 0x07ff07ff)
        A(f"s_waitcnt vmcnt({p['olate']})")
        A(f"v_cmpx_ne_u32 vcc, s{sTAG}, v{vA+3}")
        A("s_cbranch_execz L_opoll_end")
    else:
        A("s_barrier")
        A(f"s_cmp_ge_u32 s{sT0}, 32"); A("s_cbranch_scc1 L_owrite")
        setexec(g, 0x07ff07ff, 0x07ff07ff)
    g.lab("L_opoll")
    A(f"buffer_load_dwordx4 {v4(vA)}, v{vOU}, {srd(SWS)}, s{sT1} offen sc1{' nt' if p.get('ant') else ''}")
    A(f"s_sub_u32 s{sSPIN}, s{sSPIN}, 1"); A("s_cbranch_scc1 L_opoll_end")
    A(f"s_cmp_eq_u32 s{sSPIN}, {SW}"); A(f"s_cselect_b32 s{sT1}, s{sT2}, s{sT1}")
    A("s_waitcnt vmcnt(0)")
    A(f"v_cmpx_ne_u32 vcc, s{sTAG}, v{vA+3}")
    A("s_cbranch_execnz L_opoll")
    g.lab("L_opoll_end")
    A("s_barrier")
    A("s_mov_b64 exec, -1")
    g.stamp(6)
    A(f"v_mov_b32 v{vT+4}, v{vA+2}")
    A("s_nop 1")
    rowred(g, "v_max_f32", [vT+4])
    A(f"v_sub_f32 v{vA+2}, v{vA+2}, v{vT+4}")
    A(f"v_exp_f32 v{vA+2}, v{vA+2}")
    A("s_nop 0")
    A(f"v_mul_f32 v{vA}, v{vA}, v{vA+2}"); A(f"v_mul_f32 v{vA+1}, v{vA+1}, v{vA+2}")
    A("s_nop 0")
    rowred(g, "v_add_f32", [vA+2, vA, vA+1])
    A(f"v_rcp_f32 v{vA+2}, v{vA+2}")
    A("s_nop 0")
    A(f"v_mul_f32 v{vA}, v{vA}, v{vA+2}"); A(f"v_mul_f32 v{vA+1}, v{vA+1}, v{vA+2}")
    A(f"v_cvt_pk_bf16_f32 v{vA}, v{vA}, v{vA}"); A(f"v_cvt_pk_bf16_f32 v{vA+1}, v{vA+1}, v{vA+1}")
    if p.get("warm", 1):
        A("s_branch L_owrite")
        g.lab("L_warmT"); A("s_branch L_barC")
    g.lab("L_owrite")
    setexec(g, 0x00010001, 0x00010001)
    A(f"ds_write_b64 v{vT+3}, {v2(vA)} offset:{L_C}")
    A("s_mov_b64 exec, -1")
    g.lab("L_barD")
    A(f"v_lshlrev_b32 v{vT}, 2, v{vR3}")
    A("s_waitcnt lgkmcnt(0)")
    A("s_barrier")
    g.stamp(8)
    for i in range(3): A(f"ds_read_b32 v{vP+i}, v{vT} offset:{L_C+32*i}")
    A(f"s_cmp_eq_u32 s{sNOS}, 2")
    A("s_waitcnt lgkmcnt(0)")
    for i in range(3): build_A(g, vK+4*i, vP+i)
    A("s_waitcnt vmcnt(10)")
    A("s_cbranch_scc1 L_wo")
    if not p.get("obl"):
        A(f"s_cmp_eq_u32 s{sNOS}, 1")
        A("s_waitcnt vmcnt(1)")
        A("s_cbranch_scc1 L_wo")
    A("s_waitcnt vmcnt(0)")
    g.lab("L_wo")
    for i in range(3): A(f"{MF} {v4(vACC+4)}, {v4(vK+4*i)}, {v4(vV+4*i)}, {'0' if i == 0 else v4(vACC+4)}")
    hd = p.get("hd")
    if hd and hd[0] == "A":
        g.stamp(9)
        A(f"s_cmp_eq_u32 s2, {p.get('hdwg', 43)}"); A("s_cbranch_scc0 L_hd1"); A(f"s_cmp_eq_u32 s{sW}, {hd[1]}"); A("s_cbranch_scc0 L_hd1")
        A("s_waitcnt lgkmcnt(0)"); A(f"s_sub_u32 s{sT0}, s{80+2*hd[3]}, s{80+2*hd[2]}")
        A(f"v_mov_b32 v{vT}, s{sT0}"); A(f"v_mov_b32 v{vT+1}, 0"); A("s_mov_b64 exec, 1")
        A(f"buffer_store_dword v{vT}, v{vT+1}, {srd(SWS)}, 0 offen offset:1024 sc1"); A("s_mov_b64 exec, -1")
        g.lab("L_hd1")
    fpublish(g, vACC+4)
    g.stamp(7)
    if p.get("obl"):
        A(f"s_cmp_eq_u32 s{sNOS}, 1"); A("s_cbranch_scc0 L_nob")
        A(f"buffer_store_dwordx4 {v4(vP+8)}, v{vOV}, {srd(SWS)}, s{sT3} offen sc1{' nt' if p.get('bnt') else ''}")
        g.lab("L_nob")
    A(f"s_cmp_eq_u32 s{sNOS}, 2"); A("s_cbranch_scc0 L_aend")
    A("s_waitcnt vmcnt(10)")
    hgather(g, "a", SPIN, p["hsleep"], True)
    dshare(g, 1)
    A(f"s_cmp_lt_u32 s{sJ}, 22"); A("s_cbranch_scc0 L_fds2")
    g.stamp(2)
    g.lab("L_aend")
    A("s_endpgm" if not p["stamps"] else "s_branch L_fin")
    g.L.append(".p2align 12")
    if p.get("w9"):
        g.lab("L_warmF"); A("s_endpgm")
    g.lab("L_notattn")
    if not p["helper"]:
        A(f"s_cmp_eq_u32 s{sJ}, 31"); A("s_cbranch_scc1 L_fin")
    g.vm = list(pre)
    if p.get("diag"):
        A(f"s_cmp_eq_u32 s{sJ}, 22"); A("s_cbranch_scc0 L_dg1"); A(f"s_cmp_eq_u32 s{sW}, 0"); A("s_cbranch_scc0 L_dg1")
        A(f"v_mov_b32 v{vT}, s90"); A(f"v_mov_b32 v{vT+1}, 0"); A(f"s_lshl_b32 s{sT0}, s{sXCD}, 7"); A("s_mov_b64 exec, 1")
        A(f"buffer_store_dword v{vT}, v{vT+1}, {srd(SWS)}, s{sT0} offen offset:1024 sc1"); A("s_mov_b64 exec, -1")
        g.lab("L_dg1")
    A(f"v_and_b32 v{vT+1}, 7, v{vL}"); A(f"v_mad_u32_u24 v{vT}, v{vR3}, 64, v{vT+1}"); A(f"v_lshl_add_u32 v{vT}, v{vR3}, 3, v{vT}")
    A(f"v_lshlrev_b32 v{vT}, 1, v{vT}"); A(f"s_lshl_b32 s{sT0}, s{sWE}, 4")
    A(f"s_mov_b64 s[{SGW+2}:{SGW+3}], s[{SX+2}:{SX+3}]"); A(f"s_mov_b64 s[{SOUT+2}:{SOUT+3}], s[{SX+2}:{SX+3}]")
    A(f"buffer_load_ushort v{vXG}, v{vT}, {srd(SX)}, s{sT0} offen"); g.vissue("xg")
    A(f"buffer_load_ushort v{vGW}, v{vT}, {srd(SGW)}, s{sT0} offen"); g.vissue("gw")
    A(f"s_cmp_eq_u32 s{sMODE}, 2"); A(f"s_cselect_b32 s{sT0}, {OOB:#x}, 0")
    A(f"v_or_b32 v{vOU}, s{sT0}, v{vOK}")
    fseq = [("K", t) for t in range(8)] + [("U", t) for t in range(8)]
    def greg(kind, t): return {"K": vK+4*t, "U": vK+32+4*t, "D": vK+32+4*t}[kind]
    fpos = [NPRO]
    def fissue():
        kind, t = fseq[fpos[0]]; fpos[0] += 1
        if True:
            A(f"buffer_load_dwordx4 {v4(greg(kind,t))}, v{vOK if kind == 'K' else vOU}, {srd(S1 if kind == 'K' else S2)}, s{sRUN} offen {nt}")
            if t < 7: A(f"s_add_u32 s{sRUN}, s{sRUN}, s{sSTEP}")
            elif kind == "K": A(f"s_mov_b32 s{sRUN}, s{sKO}")
        g.vissue(f"{kind}{t}")
    A(f"s_mul_i32 s{sOO}, s{sU}, {64*1152}"); A(f"s_add_u32 s{sOO}, s{sOO}, 1024")
    A(f"s_add_u32 s{sPI}, s{sU}, 176")
    fpub_consts(g, "8", True)
    fl = 0
    while fpos[0] < WF: fissue()
    for idx in range(NPRO):
        g.vwait(f"K{idx}"); fl = idx + 1
        while fpos[0] - fl < WF: fissue()
    g.vwait("gw")
    A(f"v_lshl_or_b32 v{vT+4}, v{vXG}, 16, v{vXG}")
    A(f"v_lshlrev_b32 v{vT+5}, 2, v{vR3}")
    for t in range(8): A(f"ds_bpermute_b32 v{vP+t}, v{vT+5}, v{vT+4} offset:{32*t}")
    A(f"v_lshlrev_b32 v{vXG}, 16, v{vXG}"); A(f"v_lshlrev_b32 v{vGW}, 16, v{vGW}")
    A(f"v_mul_f32 v{vXG}, v{vXG}, v{vGW}")
    bf16r(g, vXG, vXG)
    rowred(g, "v_add_f32", [vXG]); crossrow(g, "v_add_f32", vXG, vT)
    A(f"s_lshl_b32 s{sT0}, s{sW}, 2"); A(f"v_mov_b32 v{vT+3}, s{sT0}")
    A("s_mov_b64 exec, 1")
    A(f"ds_write_b32 v{vT+3}, v{vXG} offset:{L_Z}")
    A("s_mov_b64 exec, -1")
    A("s_waitcnt lgkmcnt(0)")
    vRO, vRB, vRL = vOKL, vOVL, vOWQ
    A(f"v_and_b32 v{vT}, 31, v{vL}"); A(f"v_lshrrev_b32 v{vT+1}, 5, v{vL}")
    A(f"v_mul_u32_u24 v{vRB}, {FROW}, v{vT}"); A(f"v_lshl_add_u32 v{vRB}, v{vT+1}, 4, v{vRB}")
    A(f"s_lshl3_add_u32 s{sC}, s{sXCD}, s{sJ}"); A(f"s_sub_u32 s{sC}, s{sC}, 22"); A(f"s_add_u32 s{sT1}, s{sXCD}, 64")
    A(f"s_cmp_eq_u32 s{sJ}, 30"); A(f"s_cselect_b32 s{sC}, s{sT1}, s{sC}")
    A(f"s_mul_i32 s{sBIAS}, s{sW}, {32*FROW}"); A(f"s_lshl_b32 s{sT1}, s{sC}, 5"); A(f"s_add_u32 s{sBIAS}, s{sBIAS}, s{sT1}")
    A(f"s_add_u32 s{sBIAS}, s{sBIAS}, {FB}")
    A(f"s_lshl_b32 s{sT2}, s{sW}, 5"); A(f"v_add_u32 v{vT+10}, s{sT2}, v{vT}")
    A(f"s_movk_i32 s{sT3}, 240"); A(f"s_cmp_eq_u32 s{sJ}, 30"); A(f"s_cselect_b32 s{sT3}, 248, s{sT3}"); A(f"s_cselect_b32 s{sT4}, 9, 64"); A(f"s_cselect_b32 s{sT1}, s{sXCD}, 0")
    A(f"v_cmp_gt_u32 s[{sM0}:{sM0+1}], s{sT3}, v{vT+10}")
    A(f"v_lshlrev_b32 v{vRL}, 1, v{vT+10}"); A(f"v_lshl_add_u32 v{vRL}, v{vT+1}, 4, v{vRL}")
    A(f"s_mul_i32 s{sT2}, s{sXCD}, 22"); A(f"s_mul_i32 s{sT3}, s{sT1}, 9"); A(f"s_add_u32 s{sT3}, s{sT3}, 176")
    A(f"v_subrev_u32 v{vT+11}, s{sT2}, v{vT+10}"); A(f"v_subrev_u32 v{vT+12}, s{sT3}, v{vT+10}")
    A(f"v_cmp_gt_u32 s[{sM0+2}:{sM0+3}], 22, v{vT+11}")
    A(f"v_cmp_gt_u32 vcc, s{sT4}, v{vT+12}")
    A(f"v_mov_b32 v{vT+4}, {AOFF}")
    A(f"s_or_b64 vcc, s[{sM0+2}:{sM0+3}], vcc")
    tagsel(g)
    A(f"v_cndmask_b32 v{vRO}, 0, v{vT+4}, vcc")
    A(f"v_add_u32 v{vRO}, v{vRO}, v{vRB}")
    A(f"s_cmp_eq_u32 s{sMODE}, 1"); A("s_cbranch_scc0 L_m0")
    if True:
        A(f"s_lshl_b32 s{sT0}, s{sW}, 9")
        A(f"s_and_b32 s{sT1}, s{sU}, 0x78"); A(f"s_lshl1_add_u32 s{sT1}, s{sW}, s{sT1}"); A(f"s_lshl_b32 s{sT1}, s{sT1}, 8")
        A(f"s_add_u32 s{sT1}, s{sT1}, {HB - 10*256}")
        A(f"v_add_u32 v{vT+3}, s{sT0}, v{vOV}")
        A(f"s_mov_b32 s{sSPIN}, {SPIN}")
        tagsel(g)
        A("s_mov_b32 exec_hi, 0")
        g.lab("L_hpoll")
        A(f"s_sleep {p['hsleep']}")
        A(f"buffer_load_dwordx4 {v4(vA)}, v{vOV}, {srd(SWS)}, s{sT1} offen sc1")
        A(f"s_sub_u32 s{sSPIN}, s{sSPIN}, 1"); A("s_cbranch_scc1 L_hpoll_end")
        A("s_waitcnt vmcnt(0)")
        tagcheck(g, vA, vT+4)
        A(f"v_cmp_ne_u32 vcc, s{sTAG}, v{vT+4}")
        A("s_cbranch_vccnz L_hpoll")
        g.lab("L_hpoll_end")
        untag(g, vA, 4)
        A(f"ds_write_b128 v{vT+3}, {v4(vA)} offset:{L_O}")
        A("s_mov_b64 exec, -1")
        A("s_branch L_barE")
    g.lab("L_m0")
    ng = 0
    for idx, (kind, t) in enumerate(fseq):
        if ng == 16: break
        if ng == 8 and kind == "U" and t == 0:
            A(f"s_cmp_eq_u32 s{sMODE}, 2"); A("s_cbranch_scc0 L_nohelp")
            A(f"s_lshl_b32 s{sPI}, s{sHK}, 8"); A(f"s_add_u32 s{sPI}, s{sPI}, {HB}")
            fpublish(g, vACC, acopy=False)
            g.stamp(4)
            A("s_branch L_hw")
            g.lab("L_nohelp")
        if kind != "D": build_A(g, vA+4*(ng & 1), vP+t)
        k = 0
        if idx >= fl:
            g.vwait(f"{kind}{t}"); fl = idx + 1; k = 1
            Wn = p.get("WF1", WF) if idx < p.get("wf1n", 0) else WF
            while fpos[0] - fl < Wn and fpos[0] < len(fseq): fissue(); k += 1
        if kind != "D":
            if k < 2: A(f"s_nop {1-k}")
            acc = vACC if kind == "K" else vACC+4
            A(f"{MF} {v4(acc)}, {v4(vA+4*(ng&1))}, {v4(greg(kind,t))}, {'0' if t == 0 else v4(acc)}")
            ng += 1
    g.stamp(4)
    A("s_nop 1")
    A(f"s_lshl_b32 s{sT0}, s{sW}, 9"); A(f"v_add_u32 v{vT+2}, s{sT0}, v{vOFP}")
    A(f"v_permlane32_swap_b32 v{vACC}, v{vACC+2}"); A(f"v_permlane32_swap_b32 v{vACC+1}, v{vACC+3}")
    A("s_nop 1")
    A(f"v_add_f32_dpp v{vACC}, v{vACC+2}, v{vACC} row_ror:8 {DPP}"); A(f"v_add_f32_dpp v{vACC+1}, v{vACC+3}, v{vACC+1} row_ror:8 {DPP}")
    A(f"v_permlane32_swap_b32 v{vACC+4}, v{vACC+6}"); A(f"v_permlane32_swap_b32 v{vACC+5}, v{vACC+7}")
    A("s_nop 0")
    A(f"v_add_f32_dpp v{vACC+4}, v{vACC+6}, v{vACC+4} row_ror:8 {DPP}"); A(f"v_add_f32_dpp v{vACC+5}, v{vACC+7}, v{vACC+5} row_ror:8 {DPP}")
    setexec(g, 0x00ff00ff, 0x00ff00ff)
    A(f"ds_write_b64 v{vT+2}, {v2(vACC)} offset:{L_O}")
    A(f"ds_write_b64 v{vT+2}, {v2(vACC+4)} offset:{L_O+256}")
    A("s_mov_b64 exec, -1")
    g.lab("L_barE")
    A(f"s_cmp_eq_u32 s{sW}, 7"); A("s_cbranch_scc1 L_h7")
    A("s_waitcnt lgkmcnt(0)")
    A("s_barrier")
    g.lab("L_hw")
    is45(g, "L_fds2", True)
    hsetup(g)
    dissue(g)
    A(f"s_mov_b32 s{sSPIN}, {SPIN}")
    setexec(g, 0x3ffff, 0)
    A("s_branch L_hga")
    g.lab("L_h7")
    for t in range(8):
        A(f"buffer_load_dwordx4 {v4(greg('D',t))}, v{vOT}, {srd(SD)}, s{sOO} offen {nt}")
        if t < 7: A(f"s_add_u32 s{sOO}, s{sOO}, 9216")
    A(f"v_lshlrev_b32 v{vT}, 3, v{vL}")
    A(f"v_lshrrev_b32 v{vT+1}, 1, v{vR3}"); A(f"v_and_b32 v{vT+2}, 1, v{vR3}"); A(f"v_lshlrev_b32 v{vT+1}, 2, v{vT+1}")
    A(f"v_lshl_add_u32 v{vT+1}, v{vT+2}, 7, v{vT+1}")
    A(f"v_and_b32 v{vT+2}, 31, v{vL}"); A(f"v_lshrrev_b32 v{vT+3}, 5, v{vL}"); A(f"v_lshl_add_u32 v{vT+2}, v{vT+2}, 1, v{vT+3}")
    A(f"v_and_b32 v{vT+3}, 3, v{vT+2}"); A(f"v_lshlrev_b32 v{vT+3}, 3, v{vT+3}"); A(f"v_mov_b32 v{vT+4}, s{sTAG}")
    A(f"v_lshrrev_b32 v{vT+3}, v{vT+3}, v{vT+4}"); A(f"v_lshlrev_b32 v{vT+2}, 2, v{vT+2}")
    A(f"s_lshl_b32 s{sT1}, s{sU}, 8"); A(f"s_add_u32 s{sT1}, s{sT1}, {H2}")
    A("s_waitcnt lgkmcnt(0)")
    A("s_barrier")
    for w in range(9): A(f"ds_read_b64 {v2(vK+2*w)}, v{vT} offset:{L_O+512*w}")
    A("s_waitcnt lgkmcnt(0)")
    for a, b in ((0,1),(2,3),(4,5),(6,7),(0,2),(4,6),(0,4),(0,8)):
        A(f"v_pk_add_f32 {v2(vK+2*a)}, {v2(vK+2*a)}, {v2(vK+2*b)}")
    A("s_nop 1")
    A(f"v_permlane32_swap_b32 v{vK}, v{vK+1}")
    A("s_nop 0")
    A(f"v_cvt_pk_bf16_f32 v{vK+2}, v{vK}, v{vK+1}")
    A(f"v_lshlrev_b32 v{vK}, 16, v{vK+2}"); A(f"v_and_b32 v{vK+1}, 0xffff0000, v{vK+2}")
    A(f"v_mul_f32 v{vK+2}, {f2u(-1.4426950408889634):#x}, v{vK}")
    A(f"v_exp_f32 v{vK+2}, v{vK+2}"); A("s_nop 0")
    A(f"v_add_f32 v{vK+2}, 1.0, v{vK+2}")
    A(f"v_rcp_f32 v{vK+2}, v{vK+2}"); A("s_nop 0")
    A(f"v_mul_f32 v{vK}, v{vK}, v{vK+2}")
    bf16r(g, vK, vK)
    A(f"v_mul_f32 v{vK}, v{vK}, v{vK+1}")
    A(f"v_cvt_pk_bf16_f32 v{vK}, v{vK}, v{vK}")
    A(f"v_bfi_b32 v{vK+1}, s{sFF}, v{vT+3}, v{vK}")
    A(f"buffer_store_dword v{vK+1}, v{vT+2}, {srd(SWS)}, s{sT1} offen sc1")
    g.stamp(5)
    for t in range(8): A(f"ds_bpermute_b32 v{vP+t}, v{vT+1}, v{vK} offset:{16*t}")
    A("s_waitcnt lgkmcnt(0)")
    for t in range(8):
        build_A(g, vA+4*(t & 1), vP+t)
        A(f"s_waitcnt vmcnt({8-t})"); A("s_nop 0")
        A(f"{MF} {v4(vACC+4)}, {v4(vA+4*(t&1))}, {v4(greg('D',t))}, {'0' if t == 0 else v4(vACC+4)}")
    fpublish(g, vACC+4)
    g.stamp(6)
    g.lab("L_fds2")
    g.stamp(7)
    A(f"s_cmp_eq_u32 s{sMODE}, 2"); A("s_cbranch_scc1 L_fin")
    tagsel(g)
    A(f"s_cmp_eq_u32 s{sW}, 8"); A("s_cbranch_scc1 L_fin8")
    for r in range(4): A(f"v_mov_b32 v{vK+r}, 0")
    A(f"s_mov_b32 s{sSPIN}, {SPIN}")
    if p.get("lgate"):
        A("s_barrier")
    A(f"s_mov_b64 exec, s[{sM0}:{sM0+1}]"); A("s_cbranch_execz L_fpoll_end")
    if p.get("rfirst"): A("s_branch L_fsleep")
    g.lab("L_fpoll")
    A(f"buffer_load_dwordx4 {v4(vK)}, v{vRO}, {srd(SWS)}, s{sBIAS} offen {p.get('fld','sc1')}")
    A(f"s_sub_u32 s{sSPIN}, s{sSPIN}, 1"); A("s_cbranch_scc1 L_fpoll_end")
    A(f"s_cmp_eq_u32 s{sSPIN}, {SW}"); A("s_cbranch_scc0 L_fp1")
    A(f"v_mov_b32 v{vRO}, v{vRB}")
    g.lab("L_fp1")
    A("s_waitcnt vmcnt(0)")
    tagcheck(g, vK, vT+12)
    A(f"v_cmpx_ne_u32 vcc, s{sTAG}, v{vT+12}")
    A(f"s_cmp_eq_u64 exec, s[{sM0}:{sM0+1}]"); A("s_cbranch_scc1 L_fsleep")
    A("s_cbranch_execnz L_fpoll")
    g.lab("L_fpoll_end")
    A("s_mov_b64 exec, -1")
    g.stamp(8)
    untag(g, vK, 4)
    rowred(g, "v_add_f32", [vK, vK+1, vK+2, vK+3])
    setexec(g, 0x00010001, 0x00010001)
    A(f"ds_write_b128 v{vRL}, {v4(vK)} offset:{L_R}")
    A("s_mov_b64 exec, -1")
    A("s_waitcnt lgkmcnt(0)")
    A("s_barrier")
    A(f"s_or_b32 s{sT0}, s{sU}, s{sW}"); A("s_cbranch_scc1 L_fin")
    A("s_mov_b64 exec, 1")
    A(f"v_mov_b32 v{vT+7}, s{sTAG}")
    A(f"buffer_store_dword v{vT+7}, v{vOV}, {srd(SWS)}, 0 offen offset:{EPOCH}")
    A("s_endpgm" if not p["stamps"] else "s_branch L_fin")
    g.lab("L_fsleep")
    A(f"s_sleep {p['radapt']}")
    A("s_branch L_fpoll")
    g.lab("L_fin8")
    if p.get("lgate"):
        A(f"s_mul_i32 s{sT0}, s{sXCD}, {22*FROW}"); A(f"s_lshl_b32 s{sT1}, s{sC}, 5"); A(f"s_add_u32 s{sT0}, s{sT0}, s{sT1}"); A(f"s_add_u32 s{sT0}, s{sT0}, {FB+AOFF}")
        A(f"s_movk_i32 s{sSPIN}, {p['apolls']}")
        setexec(g, (1 << 22) - 1, 0)
        g.lab("L_lpoll")
        A(f"s_sleep {p.get('lsleep', 2)}")
        A(f"buffer_load_dwordx4 {v4(vK)}, v{vRB}, {srd(SWS)}, s{sT0} offen sc1{' nt' if p.get('ant') else ''}")
        A(f"s_sub_u32 s{sSPIN}, s{sSPIN}, 1"); A("s_cbranch_scc1 L_lpoll_end")
        A("s_waitcnt vmcnt(0)")
        tagcheck(g, vK, vT+12)
        A(f"v_cmpx_ne_u32 vcc, s{sTAG}, v{vT+12}")
        A(f"s_bcnt1_i32_b64 s{sT1}, exec"); A(f"s_cmp_gt_u32 s{sT1}, {22 - p['lgate']}"); A("s_cbranch_scc1 L_lpoll")
        g.lab("L_lpoll_end")
        A("s_mov_b64 exec, -1")
        A("s_barrier")
    A(f"v_mov_b32 v{vT+6}, 0")
    A(f"ds_read_b128 {v4(vA)}, v{vT+6} offset:{L_Z}"); A(f"ds_read_b128 {v4(vA+4)}, v{vT+6} offset:{L_Z+16}"); A(f"ds_read_b32 v{vT+7}, v{vT+6} offset:{L_Z+32}")
    A("s_waitcnt lgkmcnt(0)")
    A(f"v_pk_add_f32 {v2(vA)}, {v2(vA)}, {v2(vA+2)}"); A(f"v_pk_add_f32 {v2(vA+4)}, {v2(vA+4)}, {v2(vA+6)}")
    A(f"v_pk_add_f32 {v2(vA)}, {v2(vA)}, {v2(vA+4)}")
    A(f"v_add_f32 v{vA}, v{vA}, v{vA+1}"); A(f"v_add_f32 v{vA}, v{vA}, v{vT+7}")
    bf16r(g, vA, vA)
    A(f"v_mul_f32 v{vA}, {f2u(-1.4426950408889634):#x}, v{vA}")
    A(f"v_exp_f32 v{vA}, v{vA}"); A("s_nop 0")
    A(f"v_add_f32 v{vA}, 1.0, v{vA}"); A(f"v_rcp_f32 v{vA}, v{vA}"); A("s_nop 0")
    bf16r(g, vA, vA)
    A(f"v_sub_f32 v{vA+1}, 1.0, v{vA}"); bf16r(g, vA+1, vA+1)
    A(f"v_and_b32 v{vT+9}, 7, v{vL}"); A(f"v_lshlrev_b32 v{vT+8}, 2, v{vT+9}"); A(f"v_lshlrev_b32 v{vT+9}, 1, v{vT+9}")
    A(f"v_add_u32 v{vT+8}, {L_R}, v{vT+8}")
    A(f"s_lshl_b32 s{sKO}, s{sC}, 4")
    A("s_barrier")
    g.stamp(8)
    for k in range(8): A(f"ds_read2_b32 {v2(vK+2*k)}, v{vT+8} offset0:{16*k} offset1:{16*k+8}")
    A("s_waitcnt lgkmcnt(0)")
    A(f"v_pk_add_f32 {v2(vK)}, {v2(vK)}, {v2(vK+2)}"); A(f"v_pk_add_f32 {v2(vK+4)}, {v2(vK+4)}, {v2(vK+6)}")
    A(f"v_pk_add_f32 {v2(vK+12)}, {v2(vK+12)}, {v2(vK+14)}")
    A(f"v_pk_add_f32 {v2(vK)}, {v2(vK)}, {v2(vK+8)}")
    A(f"v_add_f32 v{vK+12}, v{vK+12}, v{vK+13}")
    A(f"v_pk_add_f32 {v2(vK)}, {v2(vK)}, {v2(vK+4)}")
    A(f"v_add_f32 v{vK+11}, v{vK+11}, v{vK+12}")
    A(f"v_add_f32 v{vK}, v{vK}, v{vK+1}"); A(f"v_add_f32 v{vK+10}, v{vK}, v{vK+10}")
    A(f"v_cvt_pk_bf16_f32 v{vK}, v{vK+10}, v{vK+11}")
    A(f"v_lshlrev_b32 v{vK+10}, 16, v{vK}"); A(f"v_and_b32 v{vK+11}, 0xffff0000, v{vK}")
    A(f"v_pk_mul_f32 {v2(vK+10)}, {v2(vK+10)}, {v2(vA)}")
    A(f"v_cvt_pk_bf16_f32 v{vK}, v{vK+10}, v{vK+11}")
    A(f"v_lshlrev_b32 v{vK+10}, 16, v{vK}"); A(f"v_and_b32 v{vK+11}, 0xffff0000, v{vK}")
    A(f"v_add_f32 v{vK}, v{vK+10}, v{vK+11}")
    A(f"v_cvt_pk_bf16_f32 v{vK}, v{vK}, v{vK}")
    setexec(g, 0xff, 0)
    A(f"buffer_store_short v{vK}, v{vT+9}, {srd(SOUT)}, s{sKO} offen {p.get('ost','')}")
    if hd or p.get("diag"): A(f"s_cmp_lg_u32 s{sU}, 0"); A("s_cbranch_scc1 L_fin")
    if hd:
        g.stamp(9)
        A("s_waitcnt lgkmcnt(0)")
        if hd[0] == "A":
            A("s_sleep 40")
            A(f"buffer_load_dword v{vT+1}, v{vT+6}, {srd(SWS)}, 0 offen offset:1024 sc1"); A("s_waitcnt vmcnt(0)")
            A(f"v_readfirstlane_b32 s{sT0}, v{vT+1}"); A("s_nop 3")
        else: A(f"s_sub_u32 s{sT0}, s{80+2*hd[3]}, s{80+2*hd[2]}")
        A(f"s_mul_i32 s{sT0}, s{sT0}, {hd[4]}"); A(f"s_add_u32 s{sT0}, s{sT0}, 300"); A(f"s_min_u32 s{sT0}, s{sT0}, 20000")
        g.lab("L_hd2")
        A("s_memrealtime s[80:81]"); A("s_waitcnt lgkmcnt(0)"); A("s_sub_u32 s80, s80, s98"); A(f"s_cmp_lt_u32 s80, s{sT0}"); A("s_cbranch_scc1 L_hd2")
    if p.get("diag"):
        A("s_memrealtime s[92:93]")
        A(f"v_lshlrev_b32 v{vT}, 7, v{vL}")
        A(f"buffer_load_dword v{vT+1}, v{vT}, {srd(SWS)}, 0 offen offset:1024 sc1"); A("s_waitcnt vmcnt(0) lgkmcnt(0)")
        for k in range(8): A(f"v_readlane_b32 s{80+k}, v{vT+1}, {k}")
        A("s_nop 3")
        for k in range(8): A(f"s_sub_u32 s{80+k}, s92, s{80+k}")
        A("s_mov_b32 s88, s80"); A("s_mov_b32 s89, s80")
        for k in range(1, 8): A(f"s_max_u32 s88, s88, s{80+k}"); A(f"s_min_u32 s89, s89, s{80+k}")
        d = p["diag"]
        if d == "skew": A("s_sub_u32 s88, s88, s89"); A("s_mul_i32 s88, s88, 10")
        elif d == "total": A("s_mul_i32 s88, s88, 4")
        elif d == "last": A("s_mul_i32 s88, s89, 4")
        elif d == "zero": A("s_mov_b32 s88, 0")
        elif d == "a0": A("s_sub_u32 s88, s96, s90"); A("s_mul_i32 s88, s88, 20")
        elif d == "touch": A("s_sub_u32 s88, s98, s96"); A("s_mul_i32 s88, s88, 20")
        A("s_min_u32 s88, s88, 20000")
        g.lab("L_dg2")
        A("s_memrealtime s[94:95]"); A("s_waitcnt lgkmcnt(0)"); A("s_sub_u32 s94, s94, s92"); A("s_cmp_lt_u32 s94, s88"); A("s_cbranch_scc1 L_dg2")
    g.lab("L_fin")
    if p["stamps"] and not hd:
        A("s_mov_b64 exec, -1")
        A("s_waitcnt vmcnt(0)")
        g.stamp(9)
        A("s_waitcnt lgkmcnt(0)")
        A("s_sleep 127"); A("s_sleep 127")
        A(f"s_lshl_b32 s{sT0}, s2, 4"); A(f"s_add_u32 s{sT0}, s{sT0}, s{sW}"); A(f"s_lshl_b32 s{sT0}, s{sT0}, 6"); A(f"s_add_u32 s{sT0}, s{sT0}, {STB}")
        for k in range(10): A(f"v_mov_b32 v{vK+k}, s{80+2*k}")
        A(f"v_mov_b32 v{vK+10}, s{sSPIN}"); A(f"v_mov_b32 v{vK+11}, s{sTAG}")
        A(f"v_mov_b32 v{vT}, 0"); A("s_mov_b64 exec, 1")
        for k in range(3): A(f"buffer_store_dwordx4 {v4(vK+4*k)}, v{vT}, {srd(SWS)}, s{sT0} offen offset:{16*k}")
    g.lab("L_end")
    A("s_endpgm")
    out += g.L
    out += ['.section .rodata,"a"', ".p2align 6", f".amdhsa_kernel {NAME}", f"  .amdhsa_next_free_vgpr {NV}",
            f"  .amdhsa_next_free_sgpr {100 if (p['stamps'] or p.get('diag')) else 80}", f"  .amdhsa_accum_offset {NV}", "  .amdhsa_group_segment_fixed_size 0",
            "  .amdhsa_kernarg_size 104", "  .amdhsa_user_sgpr_count 2", "  .amdhsa_user_sgpr_kernarg_segment_ptr 1",
            "  .amdhsa_system_sgpr_workgroup_id_x 1", ".end_amdhsa_kernel"]
    return "\n".join(out) + "\n"

if __name__ == "__main__":
    kw = {}
    for a in sys.argv[2:]:
        k, v = a.split("="); kw[k] = eval(v)
    open(sys.argv[1], "w").write(gen(**kw))
```

```python
import sys, struct
NAME = "gated_mix__sliding_block_cached__swiglu_ffn__decode_kernel"
HDR = open("gated_mix__sliding_block_cached__swiglu_ffn__decode.s.ref").read().split("; Override launch")[0]
def f2u(f): return struct.unpack("<I", struct.pack("<f", f))[0]

EPOCH = 0
HB = 4096
H2 = HB + 72*256
QB = H2 + 72*256
OB = QB + 256*256
FB = OB + 256*2048
AOFF = 2 << 20
FROW = 2304
assert FB + 256*FROW <= AOFF
WS_USED = 2*AOFF
STB = 8 << 20
L_H = 0; L_QP = 0; L_Q = 5376; L_M = 5888; L_L = 5952; L_Z = 6016; L_C = 6080
L_CNT = 6272; L_O = 6400; L_R = L_O + 8*1024
LDS_BYTES = L_R + 640
OOB = 0x40000000

class G:
    def __init__(s, **kw):
        s.L = []; s.p = dict(WA=4, WF=3, N0=2, c2=1, b3=1, olate=1, rfirst=0, lgate=1, lsleep=4, hpos=1, WF1=2, wf1n=8, stamps=False, nt="nt", qsleep=8, spin=200000, apolls=300, bpos=1, rsleep=0, radapt=6, dmix=5,
                             prio=1, align=True, touch=0, pretouch=0, cpf=0, nmid=4, helper=1, hsleep=4)
        s.p.update(kw); s.vm = []
    def A(s, x):
        if s.p.get("pnt") and x.startswith("buffer_load") and x.endswith(" sc1"): x += " nt"
        if s.p.get("xnt") and (x.startswith("buffer_load_dword v") or x.startswith("buffer_load_ushort") or x.startswith("global_load_dword v")) and " nt" not in x: x += " nt"
        if s.p.get("nob") and x.startswith("buffer_store") and x.endswith("sc1 nt"): x = "s_nop 0"
        s.L.append("    " + x)
    def lab(s, x): s.L.append(x + ":")
    def vissue(s, name): s.vm.append(name)
    def vwait(s, name):
        i = s.vm.index(name); s.A(f"s_waitcnt vmcnt({len(s.vm)-1-i})")
    def stamp(s, k, prog=False):
        if s.p.get("prof") and not prog and 3 <= k <= 8 and k != 5: return
        if prog and s.p.get("prof") != int(prog): return
        if s.p["stamps"]: s.A(f"s_memrealtime s[{80+2*k}:{81+2*k}]")

sW=3
SX=8; SWQ=12; SWS=16; S1=20; S2=24; S3=28; SGW=32; SOUT=36
sE=40; sSTEP=41; sTAG=42
sXCD=44; sJ=45; sHK=46; sSLOT=47; sQI=48; sT0=49; sT1=50; sT2=51; sRUN=52; sBIAS=53; sSPIN=54
sKO=55; sOO=56; sSEL0=57; sSEL1=58; sPI=59; sC=60; sU=61
sM0=62; sEX=70; sAM=72; sWE=74; sT3=75; sT4=76; sMODE=77; sFF=78; sNOS=79; sST2=43; sDO=48; sGOT=40; SD=4; sNM=69
def srd(b): return f"s[{b}:{b+3}]"
vL=1; vM=2; vOT=6; vOK=7; vOV=8; vOWQ=9; vLT=10; vX0=11; vOU=12; vOD=13; vTB=14
vXG=16; vGW=17; vT=18
vA=32; vACC=40; vP=48; vOKL=60; vOVL=61; vR3=62; vOFP=63
vK=64; vV=112; NV=160
def v4(b): return f"v[{b}:{b+3}]"
def v2(b): return f"v[{b}:{b+1}]"
DPP = "row_mask:0xf bank_mask:0xf"
MF = "v_mfma_f32_16x16x32_bf16"

def build_A(g, dst, rep):
    for j in range(4): g.A(f"v_and_b32 v{dst+j}, v{rep}, v{vM+j}")
def rowred(g, op, regs):
    need = max(0, 2 - (len(regs) - 1))
    for r in (8, 4, 2, 1):
        if need: g.A(f"s_nop {need-1}")
        for x in regs: g.A(f"{op}_dpp v{x}, v{x}, v{x} row_ror:{r} {DPP}")
def crossrow(g, op, x, t):
    for sw in ("v_permlane16_swap_b32", "v_permlane32_swap_b32"):
        g.A(f"v_mov_b32 v{t}, v{x}"); g.A("s_nop 1"); g.A(f"{sw} v{x}, v{t}"); g.A("s_nop 1"); g.A(f"{op} v{x}, v{x}, v{t}")
def bf16r(g, d, s_):
    g.A(f"v_cvt_pk_bf16_f32 v{d}, v{s_}, v{s_}"); g.A(f"v_and_b32 v{d}, 0xffff0000, v{d}")
def setexec(g, lo, hi):
    g.A(f"s_mov_b32 exec_lo, {lo:#x}"); g.A(f"s_mov_b32 exec_hi, {hi:#x}")

def fpub_consts(g, sblk, ffn=False):
    A = g.A
    A(f"s_mul_i32 s{sPI}, s{sPI}, 9"); A(f"s_add_u32 s{sPI}, s{sPI}, {sblk}"); A(f"s_lshl_b32 s{sPI}, s{sPI}, 8"); A(f"s_add_u32 s{sPI}, s{sPI}, {FB}")
    A(f"v_lshrrev_b32 v{vT}, 5, v{vOFP}")
    A(f"v_cmp_eq_u32 vcc, s{sXCD}, v{vT}")
    A(f"v_lshrrev_b32 v{vT}, 1, v{vL}"); A(f"v_and_b32 v{vT}, 16, v{vT}")
    A(f"v_mov_b32 v{vTB}, s{sTAG}")
    A(f"v_lshrrev_b32 v{vTB}, v{vT}, v{vTB}")
    A(f"s_cmp_eq_u32 {sblk}, 8"); A(f"s_cselect_b64 s[{sAM}:{sAM+1}], vcc, 0")
    A(f"s_cmp_eq_u32 {sblk}, s{sXCD}"); A(f"s_cselect_b64 s[{sAM}:{sAM+1}], -1, s[{sAM}:{sAM+1}]")
    A(f"s_and_b32 s{sAM}, s{sAM}, 0x00ff00ff"); A(f"s_and_b32 s{sAM+1}, s{sAM+1}, 0x00ff00ff")
    A(f"v_lshrrev_b32 v{vTB+1}, 8, v{vTB}")
    A(f"s_movk_i32 s{sFF}, 0xff")
    na = g.p.get("na", 2)
    if not ffn:
        A(f"s_mul_i32 s{sST2}, s{sJ}, {na}"); A(f"s_add_u32 s{sST2}, s{sST2}, s{sW}"); A(f"s_sub_u32 s{sST2}, s{sST2}, 4")
    else:
        nf = {2: 2, 1: 4}[na]; nh = 64 - 22*na - 9*nf
        A(f"s_mul_i32 s{sST2}, s{sJ}, {nf}"); A(f"s_add_u32 s{sST2}, s{sST2}, s{sW}"); A(f"s_sub_u32 s{sST2}, s{sST2}, {22*nf - 22*na}")
        A(f"s_cmp_eq_u32 s{sJ}, 31"); A(f"s_cselect_b32 s{sSLOT}, {nh}, {nf}")
    A(f"s_mul_i32 s{sDO}, s{sST2}, {72*1152}")
    A(f"s_lshl_b32 s{sT0}, s{sXCD}, 7"); A(f"s_add_u32 s{sDO}, s{sDO}, s{sT0}")
    A(f"s_mov_b32 s{SD+2}, 5308416"); A(f"s_mov_b32 s{SD+3}, s{SWQ+3}")

def tagcheck(g, d, t):
    g.A(f"v_perm_b32 v{t}, v{d+1}, v{d}, s{sSEL0}"); g.A(f"v_perm_b32 v{t+1}, v{d+3}, v{d+2}, s{sSEL1}")
    g.A(f"v_or_b32 v{t}, v{t}, v{t+1}")
def untag(g, d, n):
    for r in range(n): g.A(f"v_and_b32 v{d+r}, s{sNM}, v{d+r}")
def tagsel(g):
    g.A(f"s_movk_i32 s{sNM}, 0xff00")
    g.A(f"s_mov_b32 s{sSEL0}, 0x0c0c0400"); g.A(f"s_mov_b32 s{sSEL1}, 0x04000c0c")

PROG = {"K3": 3, "K7": 4, "K11": 6, "V3": 7, "V7": 8}
uid = [0]
def fpublish(g, acc, acopy=True, fb=False):
    g.A(f"s_add_u32 s{sT0}, s{sPI}, {AOFF}")
    g.A("s_nop 6")
    g.A(f"v_permlane32_swap_b32 v{acc}, v{acc+2}")
    g.A(f"v_permlane32_swap_b32 v{acc+1}, v{acc+3}")
    g.A("s_nop 0")
    g.A(f"v_add_f32_dpp v{acc}, v{acc+2}, v{acc} row_ror:8 {DPP}")
    g.A(f"v_add_f32_dpp v{acc+1}, v{acc+3}, v{acc+1} row_ror:8 {DPP}")
    g.A(f"v_bfi_b32 v{acc}, s{sFF}, v{vTB}, v{acc}"); g.A(f"v_bfi_b32 v{acc+1}, s{sFF}, v{vTB+1}, v{acc+1}")
    if acopy:
        uid[0] += 1
        g.A(f"s_mov_b64 exec, s[{sAM}:{sAM+1}]"); g.A(f"s_cbranch_execz L_na{uid[0]}")
        g.A(f"buffer_store_dwordx2 {v2(acc)}, v{vOFP}, {srd(SWS)}, s{sT0} offen")
        g.lab(f"L_na{uid[0]}")
    setexec(g, 0x00ff00ff, 0x00ff00ff)
    g.A(f"buffer_store_dwordx2 {v2(acc)}, v{vOFP}, {srd(SWS)}, s{sPI} offen sc1{' nt' if (fb and g.p.get('bnt')) else ''}")
    g.A("s_mov_b64 exec, -1")

vD = vV + 12
def is45(g, other, ffn=False):
    if ffn: g.A(f"s_cmp_lt_u32 s{sW}, s{sSLOT}")
    else: g.A(f"s_sub_u32 s{sT0}, s{sW}, 4"); g.A(f"s_cmp_lt_u32 s{sT0}, {g.p.get('na', 2)}")
    g.A(f"s_cbranch_scc0 {other}")
def dissue(g):
    for t in range(9):
        g.A(f"buffer_load_dwordx4 {v4(vD+4*t)}, v{vOT}, {srd(SD)}, s{sDO} offen {g.p['nt']}")
        if t < 8: g.A(f"s_add_u32 s{sDO}, s{sDO}, 9216")

vH = vK + 28
def hsetup(g):
    A = g.A
    A(f"s_mul_i32 s{sGOT}, s{sST2}, 288"); A(f"s_add_u32 s{sGOT}, s{sGOT}, {H2}")
    tagsel(g)
    A(f"s_mul_i32 s{sT2}, s{sW}, 288")
    A(f"v_add_u32 v{vT+6}, s{sT2}, v{vOV}"); A(f"v_lshl_add_u32 v{vT+7}, v{vR3}, 2, s{sT2}")
def hload(g): g.A(f"buffer_load_dwordx4 {v4(vH)}, v{vOV}, {srd(SWS)}, s{sGOT} offen sc1")
def hgather(g, sfx, budget, sleep, loaded):
    A = g.A
    A(f"s_mov_b32 s{sSPIN}, {budget}")
    setexec(g, 0x3ffff, 0)
    if loaded: A(f"s_branch L_hc{sfx}")
    g.lab(f"L_hg{sfx}")
    A(f"s_sub_u32 s{sSPIN}, s{sSPIN}, 1"); A(f"s_cbranch_scc1 L_hge{sfx}")
    A(f"s_sleep {sleep}")
    hload(g)
    A("s_waitcnt vmcnt(0)")
    g.lab(f"L_hc{sfx}")
    tagcheck(g, vH, vT+4)
    A(f"v_cmp_ne_u32 vcc, s{sTAG}, v{vT+4}")
    A(f"s_cbranch_vccnz L_hg{sfx}")
    g.lab(f"L_hge{sfx}")
    A(f"s_mov_b32 s{sT1}, 0x03020302")
    for r in range(4): A(f"v_perm_b32 v{vH+r}, v{vH+r}, v{vH+r}, s{sT1}")
    A(f"ds_write_b128 v{vT+6}, {v4(vH)} offset:{L_H}")
    A("s_mov_b64 exec, -1")
    for t in range(0, 8, 2): A(f"ds_read2_b32 {v2(vK+16+t)}, v{vT+7} offset0:{L_H//4+8*t} offset1:{L_H//4+8*t+8}")
    A(f"ds_read_b32 v{vK+24}, v{vT+7} offset:{L_H+256}")

def dshare(g, nyoung):
    A = g.A
    A(f"s_add_u32 s{sPI}, s{sST2}, 176"); A(f"s_mul_i32 s{sPI}, s{sPI}, 9"); A(f"s_add_u32 s{sPI}, s{sPI}, s{sXCD}")
    A(f"s_lshl_b32 s{sPI}, s{sPI}, 8"); A(f"s_add_u32 s{sPI}, s{sPI}, {FB}")
    A(f"s_mov_b32 s{sAM}, 0x00ff00ff"); A(f"s_mov_b32 s{sAM+1}, s{sAM}")
    if g.p.get("dprof"): g.stamp(3)
    A("s_waitcnt lgkmcnt(0)")
    for t in range(9):
        build_A(g, vA+4*(t & 1), vK+16+t)
        A(f"s_waitcnt vmcnt({8-t+nyoung})"); A("s_nop 0")
        if g.p.get("dprof") and t in (0, 8): g.stamp(4 if t == 0 else 6)
        A(f"{MF} {v4(vACC)}, {v4(vA+4*(t&1))}, {v4(vD+4*t)}, {'0' if t == 0 else v4(vACC)}")
    fpublish(g, vACC, fb=True)

DOC = """
; One launch, 256 co-resident workgroups (one per CU) x 9 waves; b = id, x = b&7, j = b>>3.
;   j < 22   : attention, 11 WGs per kv head: flash-decoding split over the 4096-key window (true max per WG,
;   22..30   : one 64-column unit of gate/up -> h, its rows of w_down for columns 512..575, final reduction
;   j = 31   : computes part of the gate/up rows of the nine units whose cache lines load at half rate
; All GEMV/PV products run on MFMA with the coefficient vector laid out as a block diagonal A operand.
; word in d_ws, advanced at the end of the launch).  Data is written write-through (valid for any placement);
"""
def gen(**kw):
    g = G(**kw); A = g.A; p = g.p; nt = p["nt"]; WA = p["WA"]; WF = p["WF"]
    SPIN = p["spin"]; SW = max(SPIN - p["apolls"], 0)
    NPRO = min(WA, WF)
    out = [HDR.rstrip("\n")]
    out.append(f"; @launch grid=(256,1,1) block=({640 if p.get('w9') else 576},1,1) lds={LDS_BYTES}")
    out += DOC.strip("\n").split("\n")
    out += ['.amdgcn_target "amdgcn-amd-amdhsa--gfx950"', ".text"]
    if p["align"]: out += [".p2align 12", ".fill 832, 4, 0xbf800000"]
    out += [f".globl {NAME}", ".p2align 8", f".type {NAME},@function", f"{NAME}:"]
    g.stamp(0)
    if p.get("diag"): A("s_memrealtime s[90:91]")
    A("s_cmp_ge_u32 s2, 0x100"); A("s_cbranch_scc1 L_end")
    if p.get("w9"):
        A("v_cmp_gt_u32 vcc, 576, v0"); A("s_cbranch_vccnz L_go")
        A("s_cmp_lt_u32 s2, 176"); A("s_cbranch_scc1 L_warmA"); A("s_branch L_warmF")
        g.lab("L_go")
    A(f"s_load_dwordx2 s[{SWQ}:{SWQ+1}], s[0:1], 24")
    A(f"s_load_dwordx2 s[{SX}:{SX+1}], s[0:1], 0")
    A(f"s_lshr_b32 s{sJ}, s2, 3")
    A(f"s_cmp_lt_u32 s{sJ}, 22")
    A(f"s_cselect_b32 s{sT0}, 8, 48")
    A(f"s_load_dwordx4 s[64:67], s[0:1], s{sT0}")
    A(f"s_load_dwordx2 s[{S3}:{S3+1}], s[0:1], 32")
    A(f"s_load_dwordx2 s[{SD}:{SD+1}], s[0:1], 64")
    A(f"s_load_dwordx2 s[{SGW}:{SGW+1}], s[0:1], 72")
    A(f"s_load_dwordx2 s[{SOUT}:{SOUT+1}], s[0:1], 80")
    A(f"s_load_dwordx2 s[{SWS}:{SWS+1}], s[0:1], 96")
    A(f"v_lshrrev_b32 v{vT}, 6, v0")
    A(f"v_and_b32 v{vL}, 63, v0")
    A(f"v_readfirstlane_b32 s{sW}, v{vT}")
    A(f"s_and_b32 s{sXCD}, s2, 7")
    A(f"v_lshrrev_b32 v{vR3}, 3, v{vL}")
    A(f"v_and_b32 v{vT+1}, 7, v{vL}")
    A(f"v_lshlrev_b32 v{vT+2}, 4, v{vT+1}")
    A(f"v_lshl_add_u32 v{vOWQ}, v{vR3}, 14, v{vT+2}")
    A(f"v_lshlrev_b32 v{vT+3}, 2, v{vR3}")
    A(f"s_bfe_u32 s{sT0}, s{sJ}, 0x20002"); A(f"s_mul_i32 s{sT0}, s{sT0}, 9"); A(f"s_add_u32 s{sT0}, s{sT0}, s{sW}")
    A(f"s_lshr_b32 s{sT1}, s{sJ}, 4"); A(f"s_lshl1_add_u32 s{sT1}, s{sXCD}, s{sT1}")
    A(f"s_and_b32 s{sT2}, s{sJ}, 3"); A(f"s_lshl2_add_u32 s{sT1}, s{sT1}, s{sT2}"); A(f"s_lshl_b32 s{sT1}, s{sT1}, 7")
    A(f"s_lshl_b32 s{sT2}, s{sT0}, 17"); A(f"s_add_u32 s{sT1}, s{sT1}, s{sT2}")
    A(f"s_add_u32 s{sT2}, s{sT1}, 8192")
    A(f"s_lshl_b32 s{sT0}, s{sT0}, 5")
    A(f"s_mov_b32 s{SWQ+2}, 4718592"); A(f"s_mov_b32 s{SWQ+3}, 0x20000")
    A(f"s_movk_i32 s{SX+2}, 1152"); A(f"s_mov_b32 s{SX+3}, s{SWQ+3}")
    vWQ = vV + 40
    A(f"v_mov_b32 v{vT+4}, 0")
    A(f"ds_write_b32 v{vT+3}, v{vT+4} offset:{L_CNT}")
    A("s_waitcnt lgkmcnt(0)")
    g.stamp(1)
    A(f"buffer_load_dwordx4 {v4(vWQ)}, v{vOWQ}, {srd(SWQ)}, s{sT1} offen {nt}"); g.vissue("wq0")
    A(f"buffer_load_dwordx4 {v4(vWQ+4)}, v{vOWQ}, {srd(SWQ)}, s{sT2} offen {nt}"); g.vissue("wq1")
    A(f"buffer_load_dword v{vX0}, v{vT+3}, {srd(SX)}, s{sT0} offen"); g.vissue("x0")
    A(f"s_load_dword s{sE}, s[{SWS}:{SWS+1}], {EPOCH}")
    A(f"s_load_dwordx2 s[{sEX}:{sEX+1}], s[{SX}:{SX+1}], 0")
    g.stamp(3, 2)
    A("s_barrier")
    g.stamp(4, 2)
    if p.get("diag"): A("s_memrealtime s[96:97]")
    A(f"s_mov_b64 s[{S1}:{S1+1}], s[64:65]"); A(f"s_mov_b64 s[{S2}:{S2+1}], s[66:67]")
    A(f"s_mov_b32 s{S1+3}, s{SWQ+3}")
    A(f"v_lshlrev_b32 v{vOV}, 4, v{vL}")
    A(f"s_cmp_ge_u32 s{sJ}, 22"); A("s_cbranch_scc1 L_setF")
    A(f"s_mov_b32 s{S1+2}, 0x10000000"); A(f"s_mov_b32 s{S3+2}, s{SWQ+2}")
    A(f"s_cmp_ge_u32 s{sJ}, 11"); A(f"s_cselect_b32 s{sT0}, 1, 0"); A(f"s_cselect_b32 s{sT1}, 8, 0")
    A(f"s_lshl1_add_u32 s{sHK}, s{sXCD}, s{sT0}")
    A(f"s_cmp_ge_u32 s{sJ}, 19"); A(f"s_cselect_b32 s{sT1}, 19, s{sT1}")
    A(f"s_sub_u32 s{sSLOT}, s{sJ}, s{sT1}")
    A(f"s_min_u32 s{sT0}, s{sSLOT}, 2"); A(f"s_mul_i32 s{sT1}, s{sSLOT}, 94"); A(f"s_add_u32 s{sT0}, s{sT0}, s{sT1}")
    A(f"s_lshr_b32 s{sT1}, s{sSLOT}, 2"); A(f"s_mul_i32 s{sT1}, s{sT1}, 6"); A(f"s_sub_u32 s{sT0}, s{sT0}, s{sT1}")
    if p.get("sweep"):
        A(f"s_mul_i32 s{sT1}, s{sSLOT}, 96"); A(f"s_sub_u32 s{sST2}, s{sT0}, s{sT1}"); A(f"s_add_u32 s{sST2}, s{sST2}, 88"); A(f"s_lshl_b32 s{sST2}, s{sST2}, 10")
        A(f"s_lshl_b32 s{sT0}, s{sSLOT}, 3")
    A(f"s_add_u32 s{sT0}, s{sT0}, s{sW}"); A(f"s_lshl_b32 s{sT0}, s{sT0}, 10")
    A(f"s_lshl_b32 s{sKO}, s{sHK}, 24"); A(f"s_add_u32 s{sKO}, s{sKO}, s{sT0}")
    A(f"s_add_u32 s{sKO}, s{sKO}, {61440*256}")
    A(f"s_mov_b32 s{sSTEP}, {88*1024}" if p.get("sweep") else f"s_movk_i32 s{sSTEP}, 8192")
    A(f"v_bfe_u32 v{vT}, v{vL}, 2, 2"); A(f"v_lshrrev_b32 v{vT+1}, 4, v{vL}"); A(f"v_and_b32 v{vT+3}, 3, v{vL}")
    A(f"v_lshlrev_b32 v{vOK}, 8, v{vT}"); A(f"v_lshl_add_u32 v{vOK}, v{vT+1}, 6, v{vOK}"); A(f"v_lshl_add_u32 v{vOK}, v{vT+3}, 4, v{vOK}")
    A(f"s_cmp_eq_u32 s{sW}, 8"); A(f"s_cselect_b32 s{sNOS}, 1, 0")
    A("s_branch L_set_done")
    g.lab("L_setF")
    A(f"s_mov_b32 s{S1+2}, 5308416"); A(f"s_mov_b32 s{S3+2}, s{S1+2}")
    A(f"s_mul_i32 s{sU}, s{sXCD}, 9"); A(f"s_mov_b32 s{sWE}, s{sW}")
    A(f"s_cmp_eq_u32 s{sJ}, 31"); A("s_cbranch_scc0 L_setF1")
    A(f"s_add_u32 s{sHK}, s{sU}, s{sW}")
    A(f"s_and_b32 s{sU}, s{sHK}, 0x78"); A(f"s_sub_u32 s{sU}, s{sU}, {9-3}")
    A(f"s_bfe_u32 s{sWE}, s{sHK}, 0x20001"); A(f"s_add_u32 s{sWE}, s{sWE}, 5")
    A(f"s_bitcmp1_b32 s{sHK}, 0"); A(f"s_cselect_b64 s[{S1}:{S1+1}], s[66:67], s[64:65]")
    g.lab("L_setF1")
    A(f"s_add_u32 s{sU}, s{sU}, s{sJ}"); A(f"s_sub_u32 s{sU}, s{sU}, 22")
    A(f"s_movk_i32 s{sT0}, 9216"); A(f"v_mad_u32_u24 v{vOK}, v{vR3}, s{sT0}, v{vT+2}")
    A(f"s_mul_i32 s{sKO}, s{sWE}, {8*9216}"); A(f"s_lshl_b32 s{sT0}, s{sU}, 7"); A(f"s_add_u32 s{sKO}, s{sKO}, s{sT0}")
    A(f"s_mov_b32 s{sSTEP}, {72*9216}")
    A(f"s_and_b32 s{sT0}, s{sU}, 7"); A(f"s_cmp_eq_u32 s{sT0}, 3"); A(f"s_cselect_b32 s{sT0}, s{sW}, 0")
    A(f"s_cmp_ge_u32 s{sT0}, {5 if p['helper'] else 99}"); A(f"s_cselect_b32 s{sMODE}, 1, 0")
    A(f"s_cmp_eq_u32 s{sJ}, 31"); A(f"s_cselect_b32 s{sMODE}, 2, s{sMODE}")
    A(f"s_cmp_eq_u32 s{sMODE}, {1 if p['helper'] else 2}")
    A(f"s_cselect_b32 s{sT0}, {OOB:#x}, 0")
    A(f"v_add_u32 v{vOK}, s{sT0}, v{vOK}")
    A(f"s_mov_b32 s{sNOS}, 0")
    g.lab("L_set_done")
    A(f"s_mov_b32 s{sRUN}, s{sKO}")
    def s1_issue(i):
        A(f"buffer_load_dwordx4 {v4(vK+4*i)}, v{vOK}, {srd(S1)}, s{sRUN} offen {nt}"); g.vissue(f"K{i}")
        A(f"s_add_u32 s{sRUN}, s{sRUN}, s{sSTEP}")
    N0 = min(p.get("N0", 2), NPRO)
    A(f"s_cmp_eq_u32 s{sNOS}, 1"); A("s_cbranch_scc1 " + "L_touched")
    for i in range(N0): s1_issue(i)
    g.lab("L_touched")
    g.stamp(6, 2)
    if p.get("diag"): A("s_memrealtime s[98:99]")
    A(f"s_mov_b64 s[{S2+2}:{S2+3}], s[{S1+2}:{S1+3}]"); A(f"s_mov_b32 s{S3+3}, s{SWQ+3}")
    A(f"s_mov_b32 s{SWS+2}, {(16<<20) if p['stamps'] else WS_USED}"); A(f"s_mov_b32 s{SWS+3}, s{SWQ+3}")
    A(f"v_and_b32 v{vT}, 1, v{vL}"); A(f"v_lshlrev_b32 v{vT}, 4, v{vT}")
    A(f"v_mov_b32 v{vT+1}, 0xffff"); A(f"v_lshlrev_b32 v{vT}, v{vT}, v{vT+1}")
    A(f"v_bfe_u32 v{vT+1}, v{vL}, 1, 2")
    for j in range(4): A(f"v_cmp_eq_u32 s[{sM0+2*j}:{sM0+2*j+1}], {j}, v{vT+1}")
    A(f"s_mov_b32 s{sSEL0}, 0x01000100"); A(f"s_mov_b32 s{sSEL1}, 0x03020302")
    for j in range(4): A(f"v_cndmask_b32 v{vM+j}, 0, v{vT}, s[{sM0+2*j}:{sM0+2*j+1}]")
    A(f"v_lshrrev_b32 v{vT}, 5, v{vL}"); A(f"v_and_b32 v{vT+3}, 16, v{vL}")
    A(f"v_lshl_add_u32 v{vLT}, v{vT+2}, 1, v{vT+3}")
    A(f"v_lshl_add_u32 v{vOFP}, v{vT}, 3, v{vLT}")
    A(f"v_lshl_add_u32 v{vLT}, v{vT}, 8, v{vLT}")
    A(f"s_movk_i32 s{sT0}, 1152"); A(f"v_mad_u32_u24 v{vOT}, v{vR3}, s{sT0}, v{vT+2}")
    A(f"s_lshl_b32 s{sT0}, s{sW}, 9"); A(f"v_add_u32 v{vT+2}, s{sT0}, v{vLT}")
    g.stamp(7, 2)
    A(f"s_cmp_eq_u32 s{sNOS}, 1"); A("s_cbranch_scc0 L_w1")
    A("s_waitcnt vmcnt(0)")
    g.lab("L_w1")
    g.vwait("x0")
    g.stamp(2)
    A(f"v_perm_b32 v{vT}, v{vX0}, v{vX0}, s{sSEL0}"); A(f"v_perm_b32 v{vT+1}, v{vX0}, v{vX0}, s{sSEL1}")
    build_A(g, vA, vT); build_A(g, vA+4, vT+1)
    A("s_cbranch_scc1 L_w2")
    for i in range(N0, NPRO): s1_issue(i)
    g.lab("L_w2")
    A(f"v_mov_b32 v{vT+5}, 1")
    A(f"{MF} {v4(vACC)}, {v4(vA)}, {v4(vWQ)}, 0")
    A(f"{MF} {v4(vACC)}, {v4(vA+4)}, {v4(vWQ+4)}, {v4(vACC)}")
    setexec(g, 0x00ff00ff, 0xff00ff00)
    A("s_waitcnt lgkmcnt(0)")
    A(f"s_mul_i32 s{sTAG}, s{sE}, 0x9e3779b1"); A(f"s_add_u32 s{sTAG}, s{sTAG}, 0x7f4a7c15")
    A(f"s_mul_i32 s{sEX}, s{sEX}, 0x85ebca6b"); A(f"s_add_u32 s{sEX}, s{sEX}, s{sEX+1}"); A(f"s_mul_hi_u32 s{sEX}, s{sEX}, 0xc2b2ae35")
    A(f"s_lshl_b32 s{sEX}, s{sEX}, 8"); A(f"s_xor_b32 s{sTAG}, s{sTAG}, s{sEX}")
    A(f"s_lshl_b32 s{sOO}, s{sW}, 7")
    A("s_nop 1")
    A(f"ds_write_b128 v{vT+2}, {v4(vACC)} offset:{L_QP}")
    A("s_mov_b64 exec, 1")
    A(f"ds_add_u32 v{vT+4}, v{vT+5} offset:{L_CNT}")
    A("s_mov_b64 exec, -1")
    A(f"s_cmp_lg_u32 s{sW}, 8"); A("s_cbranch_scc1 L_nopub")
    base = vV
    A(f"v_lshlrev_b32 v{vT}, 2, v{vL}")
    A(f"s_lshl_b32 s{sT0}, s{sXCD}, 5"); A(f"s_add_u32 s{sT0}, s{sT0}, s{sJ}")
    A(f"s_lshl_b32 s{sT0}, s{sT0}, 8"); A(f"s_add_u32 s{sT0}, s{sT0}, {QB}"); A(f"s_add_u32 s{sT1}, s{sT0}, {AOFF}")
    A(f"v_and_b32 v{vT+1}, 3, v{vL}"); A(f"v_lshlrev_b32 v{vT+1}, 3, v{vT+1}"); A(f"v_mov_b32 v{vT+6}, s{sTAG}")
    A(f"v_lshrrev_b32 v{vT+1}, v{vT+1}, v{vT+6}"); A(f"s_movk_i32 s{sFF}, 0xff")
    g.lab("L_cnt")
    A(f"ds_read_b32 v{vT+6}, v{vT+4} offset:{L_CNT}")
    A("s_waitcnt lgkmcnt(0)")
    A(f"v_cmp_ne_u32 vcc, 9, v{vT+6}")
    A("s_cbranch_vccnz L_cnt")
    for k in range(9): A(f"ds_read2st64_b32 {v2(base+2*k)}, v{vT} offset0:{L_QP//256+2*k} offset1:{L_QP//256+2*k+1}")
    A("s_waitcnt lgkmcnt(0)")
    for a, b in ((0,1),(2,3),(4,5),(6,7),(0,2),(4,6),(0,4),(0,8)):
        A(f"v_pk_add_f32 {v2(base+2*a)}, {v2(base+2*a)}, {v2(base+2*b)}")
    A(f"v_add_f32 v{vT+8}, v{base}, v{base+1}")
    A(f"v_bfi_b32 v{vT+8}, s{sFF}, v{vT+1}, v{vT+8}")
    A(f"buffer_store_dword v{vT+8}, v{vT}, {srd(SWS)}, s{sT1} offen")
    A(f"buffer_store_dword v{vT+8}, v{vT}, {srd(SWS)}, s{sT0} offen sc1{' nt' if p.get('bnt') else ''}")
    g.stamp(3)
    A(f"s_cmp_lt_u32 s{sJ}, 22"); A("s_cbranch_scc1 L_attn8")
    g.lab("L_nopub")
    A(f"s_cmp_ge_u32 s{sJ}, 22"); A("s_cbranch_scc1 L_notattn")
    pre = list(g.vm)
    def attn_consts():
        A(f"s_lshl_b32 s{sT0}, s{sHK}, 5"); A(f"s_add_u32 s{sT0}, s{sT0}, s{sSLOT}"); A(f"s_mul_i32 s{sT0}, s{sT0}, 9216")
        A(f"s_add_u32 s{sOO}, s{sOO}, s{sT0}")
        A(f"s_mul_i32 s{sPI}, s{sHK}, 11"); A(f"s_add_u32 s{sPI}, s{sPI}, s{sSLOT}")
        fpub_consts(g, f"s{sW}")
        A(f"s_cmp_lt_u32 s{sSLOT}, 10"); A(f"s_cselect_b32 s{sT0}, 0, {OOB:#x}")
        A(f"v_add_u32 v{vOD}, s{sT0}, v{vOT}")
        A(f"v_and_b32 v{vT}, 15, v{vL}"); A(f"v_lshrrev_b32 v{vT+1}, 4, v{vL}")
        A(f"v_lshlrev_b32 v{vOU}, 11, v{vT}"); A(f"v_lshl_add_u32 v{vOU}, v{vT+1}, 4, v{vOU}")
    for i in range(NPRO, WA): s1_issue(i)
    A(f"s_cmp_lt_u32 s{sSLOT}, 2"); A(f"s_cselect_b32 s{sT0}, 7, 6")
    A(f"s_and_b32 s{sT1}, s{sSLOT}, 3"); A(f"s_cmp_eq_u32 s{sT1}, 3"); A(f"s_cselect_b32 s{sT0}, 0, s{sT0}")
    A(f"s_cmp_lt_u32 s{sW}, s{sT0}"); A(f"s_cselect_b32 s{sT0}, 0, {OOB:#x}"); A(f"s_cselect_b32 s{sBIAS}, 0, {f2u(-1e30):#x}")
    A(f"v_add_u32 v{vOKL}, s{sT0}, v{vOK}"); A(f"v_add_u32 v{vOVL}, s{sT0}, v{vOV}")
    seq = [("K", i) for i in range(12)] + [("V", i) for i in range(12)] + [("O", i) for i in range(3 - p.get("olate", 0))]
    def late_o():
        for i in range(3 - p.get("olate", 0), 3):
            A(f"buffer_load_dwordx4 {v4(vV+4*i)}, v{vOD if i == 2 else vOT}, {srd(S3)}, s{sOO} offen {nt}")
            if i < 2: A(f"s_add_u32 s{sOO}, s{sOO}, {11*9216}")
    pos = [max(NPRO, WA)]; land = [0]; vdone = [-1]
    def can_issue():
        if pos[0] >= len(seq): return False
        kind, i = seq[pos[0]]
        return kind != "O" or i <= vdone[0]
    def issue():
        kind, i = seq[pos[0]]; pos[0] += 1
        if kind == "O":
            A(f"buffer_load_dwordx4 {v4(vV+4*i)}, v{vOD if i == 2 else vOT}, {srd(S3)}, s{sOO} offen {nt}")
            if i < 2: A(f"s_add_u32 s{sOO}, s{sOO}, {11*9216}")
        else:
            off = {("K", True): vOKL, ("K", False): vOK, ("V", True): vOVL, ("V", False): vOV}[(kind, i == 11)]
            A(f"buffer_load_dwordx4 {v4((vK if kind == 'K' else vV)+4*i)}, v{off}, {srd(S1 if kind == 'K' else S2)}, s{sRUN} offen {nt}")
            if i < 11: A(f"s_add_u32 s{sRUN}, s{sRUN}, s{sST2 if (i == 10 and p.get('sweep')) else sSTEP}")
            elif kind == "K": A(f"s_mov_b32 s{sRUN}, s{sKO}")
        g.vissue(f"{kind}{i}")
    def refill():
        while pos[0] - land[0] < WA and can_issue(): issue()
    def step():
        kind, i = seq[land[0]]; land[0] += 1
        g.vwait(f"{kind}{i}")
        if f"{kind}{i}" in PROG: g.stamp(PROG[f"{kind}{i}"], True)
        refill()
        if p.get("gate") == f"{kind}{i}":
            A(f"s_lshl4_add_u32 s{sT0}, s{sJ}, s{sW}"); A(f"s_cmp_lg_u32 s{sT0}, {p.get('gsrc', 5)*16+7}"); A("s_cbranch_scc1 L_nogate")
            A(f"s_lshl_b32 s{sT0}, s{sXCD}, 7"); A(f"v_mov_b32 v{vT+8}, s{sTAG}"); A(f"v_mov_b32 v{vT+9}, 0"); A("s_mov_b64 exec, 1")
            A(f"buffer_store_dword v{vT+8}, v{vT+9}, {srd(SWS)}, s{sT0} offen offset:2048 sc1"); A("s_mov_b64 exec, -1")
            g.lab("L_nogate")
    nmid = [p["nmid"]]
    def mid():
        if nmid[0] > 0 and can_issue(): issue(); nmid[0] -= 1; return True
        return False
    refill()
    g.stamp(8, 2)
    step(); attn_consts()
    while land[0] < 12 + p["bpos"] + 1: step()
    g.stamp(3)
    A(f"v_and_b32 v{vT}, 0xf0, v{vOK}"); A(f"v_and_b32 v{vT+1}, 1, v{vR3}")
    A(f"v_lshl_add_u32 v{vT}, v{vT+1}, 8, v{vT}")
    A("s_barrier")
    A(f"ds_read_b128 {v4(vA)}, v{vT} offset:{L_Q}")
    A(f"s_mov_b32 s{sC}, {f2u(128**-0.5 * 1.4426950408889634):#x}")
    A(f"v_lshlrev_b32 v{vT+1}, 5, v{vT+1}"); A(f"s_lshl_b32 s{sT0}, s{sW}, 2"); A(f"v_add_u32 v{vT+3}, s{sT0}, v{vT+1}")
    A("s_waitcnt lgkmcnt(0)")
    for i in range(12): A(f"{MF} {v4(vK+4*i)}, {v4(vK+4*i)}, {v4(vA)}, 0")
    for i in range(12): A(f"v_mov_b32_dpp v{vP+i}, v{vK+4*i} quad_perm:[0,0,0,0] {DPP}")
    for r in (1, 2, 3):
        if r == 2: mid()
        for i in range(12): A(f"v_add_f32_dpp v{vP+i}, v{vK+4*i+r}, v{vP+i} quad_perm:[{r},{r},{r},{r}] {DPP}")
    A(f"v_add_f32 v{vP+11}, s{sBIAS}, v{vP+11}")
    A(f"v_max3_f32 v{vT}, v{vP}, v{vP+1}, v{vP+2}")
    for i in range(3, 11, 2): A(f"v_max3_f32 v{vT}, v{vT}, v{vP+i}, v{vP+i+1}")
    A(f"v_max_f32 v{vT}, v{vT}, v{vP+11}")
    crossrow(g, "v_max_f32", vT, vT+2)
    setexec(g, 0x101, 0)
    A(f"ds_write_b32 v{vT+3}, v{vT} offset:{L_M}")
    A("s_mov_b64 exec, -1")
    mid()
    A("s_waitcnt lgkmcnt(0)")
    A("s_barrier")
    A(f"ds_read_b128 {v4(vA)}, v{vT+1} offset:{L_M}"); A(f"ds_read_b128 {v4(vA+4)}, v{vT+1} offset:{L_M+16}")
    A(f"v_and_b32 v{vT+5}, 15, v{vL}"); A(f"v_lshlrev_b32 v{vT+5}, 5, v{vT+5}")
    A(f"v_and_b32 v{vT+6}, 16, v{vL}"); A(f"v_add_u32 v{vT+5}, v{vT+5}, v{vT+6}")
    A(f"v_lshrrev_b32 v{vT+6}, 5, v{vL}"); A(f"v_lshl_add_u32 v{vT+5}, v{vT+6}, 9, v{vT+5}")
    A(f"s_lshl_b32 s{sT0}, s{sW}, 10"); A(f"v_add_u32 v{vT+5}, s{sT0}, v{vT+5}")
    A("s_waitcnt lgkmcnt(0)")
    A(f"v_max3_f32 v{vT}, v{vA}, v{vA+1}, v{vA+2}"); A(f"v_max3_f32 v{vT}, v{vT}, v{vA+3}, v{vA+4}")
    A(f"v_max3_f32 v{vT}, v{vT}, v{vA+5}, v{vA+6}"); A(f"v_max_f32 v{vT}, v{vT}, v{vA+7}")
    A(f"v_mul_f32 v{vT}, s{sC}, v{vT}")
    for i in range(12): A(f"v_fma_f32 v{vP+i}, v{vP+i}, s{sC}, -v{vT}")
    for i in range(12): A(f"v_exp_f32 v{vP+i}, v{vP+i}")
    if not mid(): A("s_nop 0")
    A(f"v_add_f32 v{vT+4}, v{vP}, v{vP+1}")
    for i in range(2, 12): A(f"v_add_f32 v{vT+4}, v{vT+4}, v{vP+i}")
    for i in range(12): A(f"v_cvt_pk_bf16_f32 v{vP+i}, v{vP+i}, v{vP+i}")
    crossrow(g, "v_add_f32", vT+4, vT+2)
    setexec(g, 0x101, 0)
    A(f"ds_write_b32 v{vT+3}, v{vT+4} offset:{L_L}")
    A("s_mov_b64 exec, -1")
    mid()
    for i in range(12): build_A(g, vK+4*i, vP+i)
    A("s_waitcnt lgkmcnt(0)")
    A("s_barrier")
    A(f"s_cmp_lt_u32 s{sW}, 6"); A("s_cbranch_scc1 L_nolse")
    A(f"s_sub_u32 s{sT0}, s{sW}, 6")
    A(f"s_lshl_b32 s{sT1}, s{sT0}, 5"); A(f"v_mov_b32 v{vT+1}, s{sT1}")
    A(f"ds_read_b128 {v4(vA)}, v{vT+1} offset:{L_L}"); A(f"ds_read_b128 {v4(vA+4)}, v{vT+1} offset:{L_L+16}")
    A(f"ds_read_b128 {v4(vP)}, v{vT+1} offset:{L_M}"); A(f"ds_read_b128 {v4(vP+4)}, v{vT+1} offset:{L_M+16}")
    A(f"s_lshl_b32 s{sT1}, s{sT0}, 9"); A(f"v_lshl_add_u32 v{vT+2}, v{vL}, 3, s{sT1}")
    A(f"s_lshl4_add_u32 s{sT3}, s{sHK}, s{sSLOT}"); A(f"s_lshl1_add_u32 s{sT3}, s{sT3}, s{sT0}"); A(f"s_lshl_b32 s{sT3}, s{sT3}, 10")
    A(f"s_add_u32 s{sT3}, s{sT3}, {OB}"); A(f"s_add_u32 s{sT4}, s{sT3}, {AOFF}")
    A("s_waitcnt lgkmcnt(0)")
    A(f"v_pk_add_f32 {v2(vA)}, {v2(vA)}, {v2(vA+2)}"); A(f"v_pk_add_f32 {v2(vA+4)}, {v2(vA+4)}, {v2(vA+6)}")
    A(f"v_max3_f32 v{vT}, v{vP}, v{vP+1}, v{vP+2}")
    A(f"v_pk_add_f32 {v2(vA)}, {v2(vA)}, {v2(vA+4)}")
    A(f"v_max3_f32 v{vT}, v{vT}, v{vP+3}, v{vP+4}")
    A(f"v_add_f32 v{vA}, v{vA}, v{vA+1}")
    A(f"v_max3_f32 v{vT}, v{vT}, v{vP+5}, v{vP+6}")
    A(f"v_rcp_f32 v{vA+2}, v{vA}"); A(f"v_log_f32 v{vA+4}, v{vA}")
    A(f"v_max_f32 v{vT}, v{vT}, v{vP+7}")
    A(f"v_mov_b32 v{vP+11}, s{sTAG}")
    A(f"v_fma_f32 v{vP+10}, v{vT}, s{sC}, v{vA+4}")
    g.lab("L_nolse")
    g.stamp(4)
    for i in range(12):
        if land[0] <= 12 + i:
            land[0] += 1; g.vwait(f"V{i}")
            if f"V{i}" in PROG: g.stamp(PROG[f"V{i}"], True)
        A(f"{MF} {v4(vACC)}, {v4(vK+4*i)}, {v4(vV+4*i)}, {'0' if i == 0 else v4(vACC)}")
        vdone[0] = i
        refill()
    assert pos[0] == len(seq)
    g.stamp(5)
    A("s_nop 7")
    A(f"ds_write_b128 v{vT+5}, {v4(vACC)} offset:{L_O}")
    A("s_waitcnt lgkmcnt(0)")
    A("s_branch L_barC")
    g.L.append(".p2align 12")
    if p.get("w9"):
        g.lab("L_warmA"); A("s_endpgm")
    g.lab("L_attn8")
    if p["prio"]: A("s_setprio 3")
    A(f"s_mov_b32 s{sNOS}, 0")
    attn_consts()
    A(f"s_lshl_b32 s{sT2}, s{sHK}, 12"); A(f"s_add_u32 s{sT2}, s{sT2}, {QB}"); A(f"s_add_u32 s{sT0}, s{sT2}, {AOFF}")
    A(f"s_mov_b32 s{sSPIN}, {SPIN}")
    tagsel(g)
    g.lab("L_qpoll")
    A(f"s_sleep {p['qsleep']}")
    for rg in range(4):
        A(f"buffer_load_dwordx4 {v4(vK+4*rg)}, v{vOV}, {srd(SWS)}, s{sT0} offen offset:{rg*1024} sc1{' nt' if p.get('ant') else ''}")
    A(f"s_sub_u32 s{sSPIN}, s{sSPIN}, 1"); A("s_cbranch_scc1 L_qpoll_end")
    A(f"s_cmp_eq_u32 s{sSPIN}, {max(SPIN-p['apolls']//4,0)}"); A(f"s_cselect_b32 s{sT0}, s{sT2}, s{sT0}")
    A("s_waitcnt vmcnt(0)")
    for rg in range(4): tagcheck(g, vK+4*rg, vT+2*rg)
    for rg in range(4): A(f"v_xor_b32 v{vT+2*rg}, s{sTAG}, v{vT+2*rg}")
    A(f"v_or3_b32 v{vT}, v{vT}, v{vT+2}, v{vT+4}"); A(f"v_or_b32 v{vT}, v{vT}, v{vT+6}")
    A(f"v_cmp_ne_u32 vcc, 0, v{vT}")
    A("s_cbranch_vccnz L_qpoll")
    g.lab("L_qpoll_end")
    untag(g, vK, 16)
    for k in (0, 2):
        A(f"v_pk_add_f32 {v2(vK+k)}, {v2(vK+k)}, {v2(vK+4+k)}"); A(f"v_pk_add_f32 {v2(vK+8+k)}, {v2(vK+8+k)}, {v2(vK+12+k)}")
    for k in (0, 2): A(f"v_pk_add_f32 {v2(vK+k)}, {v2(vK+k)}, {v2(vK+8+k)}")
    A(f"v_cvt_pk_bf16_f32 v{vK}, v{vK}, v{vK+1}"); A(f"v_cvt_pk_bf16_f32 v{vK+1}, v{vK+2}, v{vK+3}")
    A(f"v_lshlrev_b32 v{vT}, 3, v{vL}")
    A(f"ds_write_b64 v{vT}, {v2(vK)} offset:{L_Q}")
    A("s_waitcnt lgkmcnt(0)")
    if p.get("gate"):
        A(f"v_lshlrev_b32 v{vT}, 7, v{vL}")
        A(f"s_lshl_b32 s{sT0}, 1, s{sXCD}"); A(f"s_xor_b32 exec_lo, s{sT0}, 0xff"); A("s_mov_b32 exec_hi, 0")
        g.lab("L_gpoll")
        A(f"s_sleep {p.get('gsleep', 2)}")
        A(f"buffer_load_dword v{vT+1}, v{vT}, {srd(SWS)}, 0 offen offset:2048 sc1")
        A(f"s_sub_u32 s{sSPIN}, s{sSPIN}, 1"); A("s_cbranch_scc1 L_gpoll_end")
        A("s_waitcnt vmcnt(0)")
        A(f"v_cmpx_ne_u32 vcc, s{sTAG}, v{vT+1}")
        A("s_cbranch_execnz L_gpoll")
        g.lab("L_gpoll_end")
        A("s_mov_b64 exec, -1")
    g.stamp(4)
    A("s_barrier")
    if p["pretouch"]:
        A(f"s_lshl4_add_u32 s{sT1}, s{sHK}, s{sSLOT}"); A(f"s_lshl_b32 s{sT1}, s{sT1}, 11"); A(f"s_add_u32 s{sT1}, s{sT1}, {OB+AOFF}")
        A(f"v_lshlrev_b32 v{vT}, 7, v{vL}")
        setexec(g, 0xffff, 0)
        A(f"buffer_load_dword v{vT+1}, v{vT}, {srd(SWS)}, s{sT1} offen sc1")
        A("s_mov_b64 exec, -1")
    A("s_barrier")
    for i in range(3 - p.get("olate", 0)):
        A(f"buffer_load_dwordx4 {v4(vV+4*i)}, v{vOD if i == 2 else vOT}, {srd(S3)}, s{sOO} offen {nt}")
        if i < 2: A(f"s_add_u32 s{sOO}, s{sOO}, {11*9216}")
    A("s_barrier")
    if p.get("warm", 1): A("s_branch L_warmT")
    g.lab("L_barC")
    A("s_barrier")
    A(f"s_cmp_lt_u32 s{sW}, 3"); A("s_cbranch_scc1 L_ogather")
    A(f"s_sub_u32 s{sT0}, s{sW}, 6"); A(f"s_cmp_lt_u32 s{sT0}, 2"); A("s_cbranch_scc0 " + ("L_barC2" if p.get("c2") else "L_barD"))
    for w in range(8): A(f"ds_read_b64 {v2(vK+2*w)}, v{vT+2} offset:{L_O+1024*w}")
    A("s_waitcnt lgkmcnt(4)")
    for a, b in ((0,1),(2,3),(0,2)): A(f"v_pk_add_f32 {v2(vK+2*a)}, {v2(vK+2*a)}, {v2(vK+2*b)}")
    A("s_waitcnt lgkmcnt(0)")
    for a, b in ((4,5),(6,7),(0,4),(0,6)): A(f"v_pk_add_f32 {v2(vK+2*a)}, {v2(vK+2*a)}, {v2(vK+2*b)}")
    A(f"v_mul_f32 v{vP+8}, v{vK}, v{vA+2}"); A(f"v_mul_f32 v{vP+9}, v{vK+1}, v{vA+2}")
    A(f"buffer_store_dwordx4 {v4(vP+8)}, v{vOV}, {srd(SWS)}, s{sT4} offen")
    g.stamp(6)
    A("s_barrier")
    late_o()
    if not p.get("obl"):
        A(f"buffer_store_dwordx4 {v4(vP+8)}, v{vOV}, {srd(SWS)}, s{sT3} offen sc1{' nt' if p.get('bnt') else ''}")
    A(f"s_mov_b32 s{sNOS}, 1")
    A("s_branch L_barD0")
    if p.get("c2"):
        g.lab("L_barC2")
        is45(g, "L_barC3")
        hsetup(g)
        A(f"s_mov_b32 s{sNOS}, 2")
        A("s_barrier")
        late_o()
        if p.get("hpos", 0) == 0:
            setexec(g, 0x3ffff, 0); hload(g); A("s_mov_b64 exec, -1")
        A("s_barrier")
        if p.get("hpos", 0) == 1:
            setexec(g, 0x3ffff, 0); hload(g); A("s_mov_b64 exec, -1")
        dissue(g)
        A("s_branch L_barD")
        g.lab("L_barC3"); A("s_barrier"); late_o()
        g.lab("L_barD0"); A("s_barrier"); A("s_branch L_barD")
    g.lab("L_ogather")
    A(f"s_mul_i32 s{sT0}, s{sW}, 11"); A(f"s_add_u32 s{sT0}, s{sT0}, s{sSLOT}")
    A(f"s_lshl_b32 s{sT1}, s{sHK}, 15"); A(f"s_lshl_b32 s{sT2}, s{sT0}, 6"); A(f"s_add_u32 s{sT1}, s{sT1}, s{sT2}"); A(f"s_add_u32 s{sT2}, s{sT1}, {OB}")
    A(f"s_add_u32 s{sT1}, s{sT2}, {AOFF}")
    A(f"v_mov_b32 v{vA}, 0"); A(f"v_mov_b32 v{vA+1}, 0"); A(f"v_mov_b32 v{vA+2}, {f2u(-1e30):#x}")
    A(f"v_lshrrev_b32 v{vT+1}, 4, v{vL}")
    A(f"s_lshl_b32 s{sT3}, s{sW}, 5"); A(f"v_lshl_add_u32 v{vT+3}, v{vT+1}, 3, s{sT3}")
    A(f"s_mov_b32 s{sSPIN}, {SPIN}")
    if p.get("olate"):
        A(f"s_cmp_ge_u32 s{sT0}, 32"); A("s_cbranch_scc0 L_op0")
        A("s_barrier"); late_o(); A("s_barrier"); A("s_branch L_owrite")
        g.lab("L_op0")
        setexec(g, 0x07ff07ff, 0x07ff07ff)
        A("s_setprio 3")
        A("s_barrier")
        A(f"buffer_load_dwordx4 {v4(vA)}, v{vOU}, {srd(SWS)}, s{sT1} offen sc1{' nt' if p.get('ant') else ''}")
        A("s_mov_b64 exec, -1")
        late_o()
        setexec(g, 0x07ff07ff, 0x07ff07ff)
        A(f"s_waitcnt vmcnt({p['olate']})")
        A(f"v_cmpx_ne_u32 vcc, s{sTAG}, v{vA+3}")
        A("s_cbranch_execz L_opoll_end")
    else:
        A("s_barrier")
        A(f"s_cmp_ge_u32 s{sT0}, 32"); A("s_cbranch_scc1 L_owrite")
        setexec(g, 0x07ff07ff, 0x07ff07ff)
    g.lab("L_opoll")
    A(f"buffer_load_dwordx4 {v4(vA)}, v{vOU}, {srd(SWS)}, s{sT1} offen sc1{' nt' if p.get('ant') else ''}")
    A(f"s_sub_u32 s{sSPIN}, s{sSPIN}, 1"); A("s_cbranch_scc1 L_opoll_end")
    A(f"s_cmp_eq_u32 s{sSPIN}, {SW}"); A(f"s_cselect_b32 s{sT1}, s{sT2}, s{sT1}")
    A("s_waitcnt vmcnt(0)")
    A(f"v_cmpx_ne_u32 vcc, s{sTAG}, v{vA+3}")
    A("s_cbranch_execnz L_opoll")
    g.lab("L_opoll_end")
    A("s_barrier")
    A("s_mov_b64 exec, -1")
    g.stamp(6)
    A(f"v_mov_b32 v{vT+4}, v{vA+2}")
    A("s_nop 1")
    rowred(g, "v_max_f32", [vT+4])
    A(f"v_sub_f32 v{vA+2}, v{vA+2}, v{vT+4}")
    A(f"v_exp_f32 v{vA+2}, v{vA+2}")
    A("s_nop 0")
    A(f"v_mul_f32 v{vA}, v{vA}, v{vA+2}"); A(f"v_mul_f32 v{vA+1}, v{vA+1}, v{vA+2}")
    A("s_nop 0")
    rowred(g, "v_add_f32", [vA+2, vA, vA+1])
    A(f"v_rcp_f32 v{vA+2}, v{vA+2}")
    A("s_nop 0")
    A(f"v_mul_f32 v{vA}, v{vA}, v{vA+2}"); A(f"v_mul_f32 v{vA+1}, v{vA+1}, v{vA+2}")
    A(f"v_cvt_pk_bf16_f32 v{vA}, v{vA}, v{vA}"); A(f"v_cvt_pk_bf16_f32 v{vA+1}, v{vA+1}, v{vA+1}")
    if p.get("warm", 1):
        A("s_branch L_owrite")
        g.lab("L_warmT"); A("s_branch L_barC")
    g.lab("L_owrite")
    setexec(g, 0x00010001, 0x00010001)
    A(f"ds_write_b64 v{vT+3}, {v2(vA)} offset:{L_C}")
    A("s_mov_b64 exec, -1")
    g.lab("L_barD")
    A(f"v_lshlrev_b32 v{vT}, 2, v{vR3}")
    A("s_waitcnt lgkmcnt(0)")
    A("s_barrier")
    g.stamp(8)
    for i in range(3): A(f"ds_read_b32 v{vP+i}, v{vT} offset:{L_C+32*i}")
    A(f"s_cmp_eq_u32 s{sNOS}, 2")
    A("s_waitcnt lgkmcnt(0)")
    for i in range(3): build_A(g, vK+4*i, vP+i)
    A("s_waitcnt vmcnt(10)")
    A("s_cbranch_scc1 L_wo")
    if not p.get("obl"):
        A(f"s_cmp_eq_u32 s{sNOS}, 1")
        A("s_waitcnt vmcnt(1)")
        A("s_cbranch_scc1 L_wo")
    A("s_waitcnt vmcnt(0)")
    g.lab("L_wo")
    for i in range(3): A(f"{MF} {v4(vACC+4)}, {v4(vK+4*i)}, {v4(vV+4*i)}, {'0' if i == 0 else v4(vACC+4)}")
    hd = p.get("hd")
    if hd and hd[0] == "A":
        g.stamp(9)
        A(f"s_cmp_eq_u32 s2, {p.get('hdwg', 43)}"); A("s_cbranch_scc0 L_hd1"); A(f"s_cmp_eq_u32 s{sW}, {hd[1]}"); A("s_cbranch_scc0 L_hd1")
        A("s_waitcnt lgkmcnt(0)"); A(f"s_sub_u32 s{sT0}, s{80+2*hd[3]}, s{80+2*hd[2]}")
        A(f"v_mov_b32 v{vT}, s{sT0}"); A(f"v_mov_b32 v{vT+1}, 0"); A("s_mov_b64 exec, 1")
        A(f"buffer_store_dword v{vT}, v{vT+1}, {srd(SWS)}, 0 offen offset:1024 sc1"); A("s_mov_b64 exec, -1")
        g.lab("L_hd1")
    fpublish(g, vACC+4)
    g.stamp(7)
    if p.get("obl"):
        A(f"s_cmp_eq_u32 s{sNOS}, 1"); A("s_cbranch_scc0 L_nob")
        A(f"buffer_store_dwordx4 {v4(vP+8)}, v{vOV}, {srd(SWS)}, s{sT3} offen sc1{' nt' if p.get('bnt') else ''}")
        g.lab("L_nob")
    A(f"s_cmp_eq_u32 s{sNOS}, 2"); A("s_cbranch_scc0 L_aend")
    A("s_waitcnt vmcnt(10)")
    hgather(g, "a", SPIN, p["hsleep"], True)
    dshare(g, 1)
    A(f"s_cmp_lt_u32 s{sJ}, 22"); A("s_cbranch_scc0 L_fds2")
    g.stamp(2)
    g.lab("L_aend")
    A("s_endpgm" if not p["stamps"] else "s_branch L_fin")
    g.L.append(".p2align 12")
    if p.get("w9"):
        g.lab("L_warmF"); A("s_endpgm")
    g.lab("L_notattn")
    if not p["helper"]:
        A(f"s_cmp_eq_u32 s{sJ}, 31"); A("s_cbranch_scc1 L_fin")
    g.vm = list(pre)
    if p.get("diag"):
        A(f"s_cmp_eq_u32 s{sJ}, 22"); A("s_cbranch_scc0 L_dg1"); A(f"s_cmp_eq_u32 s{sW}, 0"); A("s_cbranch_scc0 L_dg1")
        A(f"v_mov_b32 v{vT}, s90"); A(f"v_mov_b32 v{vT+1}, 0"); A(f"s_lshl_b32 s{sT0}, s{sXCD}, 7"); A("s_mov_b64 exec, 1")
        A(f"buffer_store_dword v{vT}, v{vT+1}, {srd(SWS)}, s{sT0} offen offset:1024 sc1"); A("s_mov_b64 exec, -1")
        g.lab("L_dg1")
    A(f"v_and_b32 v{vT+1}, 7, v{vL}"); A(f"v_mad_u32_u24 v{vT}, v{vR3}, 64, v{vT+1}"); A(f"v_lshl_add_u32 v{vT}, v{vR3}, 3, v{vT}")
    A(f"v_lshlrev_b32 v{vT}, 1, v{vT}"); A(f"s_lshl_b32 s{sT0}, s{sWE}, 4")
    A(f"s_mov_b64 s[{SGW+2}:{SGW+3}], s[{SX+2}:{SX+3}]"); A(f"s_mov_b64 s[{SOUT+2}:{SOUT+3}], s[{SX+2}:{SX+3}]")
    A(f"buffer_load_ushort v{vXG}, v{vT}, {srd(SX)}, s{sT0} offen"); g.vissue("xg")
    A(f"buffer_load_ushort v{vGW}, v{vT}, {srd(SGW)}, s{sT0} offen"); g.vissue("gw")
    A(f"s_cmp_eq_u32 s{sMODE}, 2"); A(f"s_cselect_b32 s{sT0}, {OOB:#x}, 0")
    A(f"v_or_b32 v{vOU}, s{sT0}, v{vOK}")
    fseq = [("K", t) for t in range(8)] + [("U", t) for t in range(8)]
    def greg(kind, t): return {"K": vK+4*t, "U": vK+32+4*t, "D": vK+32+4*t}[kind]
    fpos = [NPRO]
    def fissue():
        kind, t = fseq[fpos[0]]; fpos[0] += 1
        if True:
            A(f"buffer_load_dwordx4 {v4(greg(kind,t))}, v{vOK if kind == 'K' else vOU}, {srd(S1 if kind == 'K' else S2)}, s{sRUN} offen {nt}")
            if t < 7: A(f"s_add_u32 s{sRUN}, s{sRUN}, s{sSTEP}")
            elif kind == "K": A(f"s_mov_b32 s{sRUN}, s{sKO}")
        g.vissue(f"{kind}{t}")
    A(f"s_mul_i32 s{sOO}, s{sU}, {64*1152}"); A(f"s_add_u32 s{sOO}, s{sOO}, 1024")
    A(f"s_add_u32 s{sPI}, s{sU}, 176")
    fpub_consts(g, "8", True)
    fl = 0
    while fpos[0] < WF: fissue()
    for idx in range(NPRO):
        g.vwait(f"K{idx}"); fl = idx + 1
        while fpos[0] - fl < WF: fissue()
    g.vwait("gw")
    A(f"v_lshl_or_b32 v{vT+4}, v{vXG}, 16, v{vXG}")
    A(f"v_lshlrev_b32 v{vT+5}, 2, v{vR3}")
    for t in range(8): A(f"ds_bpermute_b32 v{vP+t}, v{vT+5}, v{vT+4} offset:{32*t}")
    A(f"v_lshlrev_b32 v{vXG}, 16, v{vXG}"); A(f"v_lshlrev_b32 v{vGW}, 16, v{vGW}")
    A(f"v_mul_f32 v{vXG}, v{vXG}, v{vGW}")
    bf16r(g, vXG, vXG)
    rowred(g, "v_add_f32", [vXG]); crossrow(g, "v_add_f32", vXG, vT)
    A(f"s_lshl_b32 s{sT0}, s{sW}, 2"); A(f"v_mov_b32 v{vT+3}, s{sT0}")
    A("s_mov_b64 exec, 1")
    A(f"ds_write_b32 v{vT+3}, v{vXG} offset:{L_Z}")
    A("s_mov_b64 exec, -1")
    A("s_waitcnt lgkmcnt(0)")
    vRO, vRB, vRL = vOKL, vOVL, vOWQ
    A(f"v_and_b32 v{vT}, 31, v{vL}"); A(f"v_lshrrev_b32 v{vT+1}, 5, v{vL}")
    A(f"v_mul_u32_u24 v{vRB}, {FROW}, v{vT}"); A(f"v_lshl_add_u32 v{vRB}, v{vT+1}, 4, v{vRB}")
    A(f"s_lshl3_add_u32 s{sC}, s{sXCD}, s{sJ}"); A(f"s_sub_u32 s{sC}, s{sC}, 22"); A(f"s_add_u32 s{sT1}, s{sXCD}, 64")
    A(f"s_cmp_eq_u32 s{sJ}, 30"); A(f"s_cselect_b32 s{sC}, s{sT1}, s{sC}")
    A(f"s_mul_i32 s{sBIAS}, s{sW}, {32*FROW}"); A(f"s_lshl_b32 s{sT1}, s{sC}, 5"); A(f"s_add_u32 s{sBIAS}, s{sBIAS}, s{sT1}")
    A(f"s_add_u32 s{sBIAS}, s{sBIAS}, {FB}")
    A(f"s_lshl_b32 s{sT2}, s{sW}, 5"); A(f"v_add_u32 v{vT+10}, s{sT2}, v{vT}")
    A(f"s_movk_i32 s{sT3}, 240"); A(f"s_cmp_eq_u32 s{sJ}, 30"); A(f"s_cselect_b32 s{sT3}, 248, s{sT3}"); A(f"s_cselect_b32 s{sT4}, 9, 64"); A(f"s_cselect_b32 s{sT1}, s{sXCD}, 0")
    A(f"v_cmp_gt_u32 s[{sM0}:{sM0+1}], s{sT3}, v{vT+10}")
    A(f"v_lshlrev_b32 v{vRL}, 1, v{vT+10}"); A(f"v_lshl_add_u32 v{vRL}, v{vT+1}, 4, v{vRL}")
    A(f"s_mul_i32 s{sT2}, s{sXCD}, 22"); A(f"s_mul_i32 s{sT3}, s{sT1}, 9"); A(f"s_add_u32 s{sT3}, s{sT3}, 176")
    A(f"v_subrev_u32 v{vT+11}, s{sT2}, v{vT+10}"); A(f"v_subrev_u32 v{vT+12}, s{sT3}, v{vT+10}")
    A(f"v_cmp_gt_u32 s[{sM0+2}:{sM0+3}], 22, v{vT+11}")
    A(f"v_cmp_gt_u32 vcc, s{sT4}, v{vT+12}")
    A(f"v_mov_b32 v{vT+4}, {AOFF}")
    A(f"s_or_b64 vcc, s[{sM0+2}:{sM0+3}], vcc")
    tagsel(g)
    A(f"v_cndmask_b32 v{vRO}, 0, v{vT+4}, vcc")
    A(f"v_add_u32 v{vRO}, v{vRO}, v{vRB}")
    A(f"s_cmp_eq_u32 s{sMODE}, 1"); A("s_cbranch_scc0 L_m0")
    if True:
        A(f"s_lshl_b32 s{sT0}, s{sW}, 9")
        A(f"s_and_b32 s{sT1}, s{sU}, 0x78"); A(f"s_lshl1_add_u32 s{sT1}, s{sW}, s{sT1}"); A(f"s_lshl_b32 s{sT1}, s{sT1}, 8")
        A(f"s_add_u32 s{sT1}, s{sT1}, {HB - 10*256}")
        A(f"v_add_u32 v{vT+3}, s{sT0}, v{vOV}")
        A(f"s_mov_b32 s{sSPIN}, {SPIN}")
        tagsel(g)
        A("s_mov_b32 exec_hi, 0")
        g.lab("L_hpoll")
        A(f"s_sleep {p['hsleep']}")
        A(f"buffer_load_dwordx4 {v4(vA)}, v{vOV}, {srd(SWS)}, s{sT1} offen sc1")
        A(f"s_sub_u32 s{sSPIN}, s{sSPIN}, 1"); A("s_cbranch_scc1 L_hpoll_end")
        A("s_waitcnt vmcnt(0)")
        tagcheck(g, vA, vT+4)
        A(f"v_cmp_ne_u32 vcc, s{sTAG}, v{vT+4}")
        A("s_cbranch_vccnz L_hpoll")
        g.lab("L_hpoll_end")
        untag(g, vA, 4)
        A(f"ds_write_b128 v{vT+3}, {v4(vA)} offset:{L_O}")
        A("s_mov_b64 exec, -1")
        A("s_branch L_barE")
    g.lab("L_m0")
    ng = 0
    for idx, (kind, t) in enumerate(fseq):
        if ng == 16: break
        if ng == 8 and kind == "U" and t == 0:
            A(f"s_cmp_eq_u32 s{sMODE}, 2"); A("s_cbranch_scc0 L_nohelp")
            A(f"s_lshl_b32 s{sPI}, s{sHK}, 8"); A(f"s_add_u32 s{sPI}, s{sPI}, {HB}")
            fpublish(g, vACC, acopy=False)
            g.stamp(4)
            A("s_branch L_hw")
            g.lab("L_nohelp")
        if kind != "D": build_A(g, vA+4*(ng & 1), vP+t)
        k = 0
        if idx >= fl:
            g.vwait(f"{kind}{t}"); fl = idx + 1; k = 1
            Wn = p.get("WF1", WF) if idx < p.get("wf1n", 0) else WF
            while fpos[0] - fl < Wn and fpos[0] < len(fseq): fissue(); k += 1
        if kind != "D":
            if k < 2: A(f"s_nop {1-k}")
            acc = vACC if kind == "K" else vACC+4
            A(f"{MF} {v4(acc)}, {v4(vA+4*(ng&1))}, {v4(greg(kind,t))}, {'0' if t == 0 else v4(acc)}")
            ng += 1
    g.stamp(4)
    A("s_nop 1")
    A(f"s_lshl_b32 s{sT0}, s{sW}, 9"); A(f"v_add_u32 v{vT+2}, s{sT0}, v{vOFP}")
    A(f"v_permlane32_swap_b32 v{vACC}, v{vACC+2}"); A(f"v_permlane32_swap_b32 v{vACC+1}, v{vACC+3}")
    A("s_nop 1")
    A(f"v_add_f32_dpp v{vACC}, v{vACC+2}, v{vACC} row_ror:8 {DPP}"); A(f"v_add_f32_dpp v{vACC+1}, v{vACC+3}, v{vACC+1} row_ror:8 {DPP}")
    A(f"v_permlane32_swap_b32 v{vACC+4}, v{vACC+6}"); A(f"v_permlane32_swap_b32 v{vACC+5}, v{vACC+7}")
    A("s_nop 0")
    A(f"v_add_f32_dpp v{vACC+4}, v{vACC+6}, v{vACC+4} row_ror:8 {DPP}"); A(f"v_add_f32_dpp v{vACC+5}, v{vACC+7}, v{vACC+5} row_ror:8 {DPP}")
    setexec(g, 0x00ff00ff, 0x00ff00ff)
    A(f"ds_write_b64 v{vT+2}, {v2(vACC)} offset:{L_O}")
    A(f"ds_write_b64 v{vT+2}, {v2(vACC+4)} offset:{L_O+256}")
    A("s_mov_b64 exec, -1")
    g.lab("L_barE")
    A(f"s_cmp_eq_u32 s{sW}, 7"); A("s_cbranch_scc1 L_h7")
    A("s_waitcnt lgkmcnt(0)")
    A("s_barrier")
    g.lab("L_hw")
    is45(g, "L_fds2", True)
    hsetup(g)
    dissue(g)
    A(f"s_mov_b32 s{sSPIN}, {SPIN}")
    setexec(g, 0x3ffff, 0)
    A("s_branch L_hga")
    g.lab("L_h7")
    for t in range(8):
        A(f"buffer_load_dwordx4 {v4(greg('D',t))}, v{vOT}, {srd(SD)}, s{sOO} offen {nt}")
        if t < 7: A(f"s_add_u32 s{sOO}, s{sOO}, 9216")
    A(f"v_lshlrev_b32 v{vT}, 3, v{vL}")
    A(f"v_lshrrev_b32 v{vT+1}, 1, v{vR3}"); A(f"v_and_b32 v{vT+2}, 1, v{vR3}"); A(f"v_lshlrev_b32 v{vT+1}, 2, v{vT+1}")
    A(f"v_lshl_add_u32 v{vT+1}, v{vT+2}, 7, v{vT+1}")
    A(f"v_and_b32 v{vT+2}, 31, v{vL}"); A(f"v_lshrrev_b32 v{vT+3}, 5, v{vL}"); A(f"v_lshl_add_u32 v{vT+2}, v{vT+2}, 1, v{vT+3}")
    A(f"v_and_b32 v{vT+3}, 3, v{vT+2}"); A(f"v_lshlrev_b32 v{vT+3}, 3, v{vT+3}"); A(f"v_mov_b32 v{vT+4}, s{sTAG}")
    A(f"v_lshrrev_b32 v{vT+3}, v{vT+3}, v{vT+4}"); A(f"v_lshlrev_b32 v{vT+2}, 2, v{vT+2}")
    A(f"s_lshl_b32 s{sT1}, s{sU}, 8"); A(f"s_add_u32 s{sT1}, s{sT1}, {H2}")
    A("s_waitcnt lgkmcnt(0)")
    A("s_barrier")
    for w in range(9): A(f"ds_read_b64 {v2(vK+2*w)}, v{vT} offset:{L_O+512*w}")
    A("s_waitcnt lgkmcnt(0)")
    for a, b in ((0,1),(2,3),(4,5),(6,7),(0,2),(4,6),(0,4),(0,8)):
        A(f"v_pk_add_f32 {v2(vK+2*a)}, {v2(vK+2*a)}, {v2(vK+2*b)}")
    A("s_nop 1")
    A(f"v_permlane32_swap_b32 v{vK}, v{vK+1}")
    A("s_nop 0")
    A(f"v_cvt_pk_bf16_f32 v{vK+2}, v{vK}, v{vK+1}")
    A(f"v_lshlrev_b32 v{vK}, 16, v{vK+2}"); A(f"v_and_b32 v{vK+1}, 0xffff0000, v{vK+2}")
    A(f"v_mul_f32 v{vK+2}, {f2u(-1.4426950408889634):#x}, v{vK}")
    A(f"v_exp_f32 v{vK+2}, v{vK+2}"); A("s_nop 0")
    A(f"v_add_f32 v{vK+2}, 1.0, v{vK+2}")
    A(f"v_rcp_f32 v{vK+2}, v{vK+2}"); A("s_nop 0")
    A(f"v_mul_f32 v{vK}, v{vK}, v{vK+2}")
    bf16r(g, vK, vK)
    A(f"v_mul_f32 v{vK}, v{vK}, v{vK+1}")
    A(f"v_cvt_pk_bf16_f32 v{vK}, v{vK}, v{vK}")
    A(f"v_bfi_b32 v{vK+1}, s{sFF}, v{vT+3}, v{vK}")
    A(f"buffer_store_dword v{vK+1}, v{vT+2}, {srd(SWS)}, s{sT1} offen sc1")
    g.stamp(5)
    for t in range(8): A(f"ds_bpermute_b32 v{vP+t}, v{vT+1}, v{vK} offset:{16*t}")
    A("s_waitcnt lgkmcnt(0)")
    for t in range(8):
        build_A(g, vA+4*(t & 1), vP+t)
        A(f"s_waitcnt vmcnt({8-t})"); A("s_nop 0")
        A(f"{MF} {v4(vACC+4)}, {v4(vA+4*(t&1))}, {v4(greg('D',t))}, {'0' if t == 0 else v4(vACC+4)}")
    fpublish(g, vACC+4)
    g.stamp(6)
    g.lab("L_fds2")
    g.stamp(7)
    A(f"s_cmp_eq_u32 s{sMODE}, 2"); A("s_cbranch_scc1 L_fin")
    tagsel(g)
    A(f"s_cmp_eq_u32 s{sW}, 8"); A("s_cbranch_scc1 L_fin8")
    for r in range(4): A(f"v_mov_b32 v{vK+r}, 0")
    A(f"s_mov_b32 s{sSPIN}, {SPIN}")
    if p.get("lgate"):
        A("s_barrier")
    A(f"s_mov_b64 exec, s[{sM0}:{sM0+1}]"); A("s_cbranch_execz L_fpoll_end")
    if p.get("rfirst"): A("s_branch L_fsleep")
    g.lab("L_fpoll")
    A(f"buffer_load_dwordx4 {v4(vK)}, v{vRO}, {srd(SWS)}, s{sBIAS} offen {p.get('fld','sc1')}")
    A(f"s_sub_u32 s{sSPIN}, s{sSPIN}, 1"); A("s_cbranch_scc1 L_fpoll_end")
    A(f"s_cmp_eq_u32 s{sSPIN}, {SW}"); A("s_cbranch_scc0 L_fp1")
    A(f"v_mov_b32 v{vRO}, v{vRB}")
    g.lab("L_fp1")
    A("s_waitcnt vmcnt(0)")
    tagcheck(g, vK, vT+12)
    A(f"v_cmpx_ne_u32 vcc, s{sTAG}, v{vT+12}")
    A(f"s_cmp_eq_u64 exec, s[{sM0}:{sM0+1}]"); A("s_cbranch_scc1 L_fsleep")
    A("s_cbranch_execnz L_fpoll")
    g.lab("L_fpoll_end")
    A("s_mov_b64 exec, -1")
    g.stamp(8)
    untag(g, vK, 4)
    rowred(g, "v_add_f32", [vK, vK+1, vK+2, vK+3])
    setexec(g, 0x00010001, 0x00010001)
    A(f"ds_write_b128 v{vRL}, {v4(vK)} offset:{L_R}")
    A("s_mov_b64 exec, -1")
    A("s_waitcnt lgkmcnt(0)")
    A("s_barrier")
    A(f"s_or_b32 s{sT0}, s{sU}, s{sW}"); A("s_cbranch_scc1 L_fin")
    A("s_mov_b64 exec, 1")
    A(f"v_mov_b32 v{vT+7}, s{sTAG}")
    A(f"buffer_store_dword v{vT+7}, v{vOV}, {srd(SWS)}, 0 offen offset:{EPOCH}")
    A("s_endpgm" if not p["stamps"] else "s_branch L_fin")
    g.lab("L_fsleep")
    A(f"s_sleep {p['radapt']}")
    A("s_branch L_fpoll")
    g.lab("L_fin8")
    if p.get("lgate"):
        A(f"s_mul_i32 s{sT0}, s{sXCD}, {22*FROW}"); A(f"s_lshl_b32 s{sT1}, s{sC}, 5"); A(f"s_add_u32 s{sT0}, s{sT0}, s{sT1}"); A(f"s_add_u32 s{sT0}, s{sT0}, {FB+AOFF}")
        A(f"s_movk_i32 s{sSPIN}, {p['apolls']}")
        setexec(g, (1 << 22) - 1, 0)
        g.lab("L_lpoll")
        A(f"s_sleep {p.get('lsleep', 2)}")
        A(f"buffer_load_dwordx4 {v4(vK)}, v{vRB}, {srd(SWS)}, s{sT0} offen sc1{' nt' if p.get('ant') else ''}")
        A(f"s_sub_u32 s{sSPIN}, s{sSPIN}, 1"); A("s_cbranch_scc1 L_lpoll_end")
        A("s_waitcnt vmcnt(0)")
        tagcheck(g, vK, vT+12)
        A(f"v_cmpx_ne_u32 vcc, s{sTAG}, v{vT+12}")
        A(f"s_bcnt1_i32_b64 s{sT1}, exec"); A(f"s_cmp_gt_u32 s{sT1}, {22 - p['lgate']}"); A("s_cbranch_scc1 L_lpoll")
        g.lab("L_lpoll_end")
        A("s_mov_b64 exec, -1")
        A("s_barrier")
    A(f"v_mov_b32 v{vT+6}, 0")
    A(f"ds_read_b128 {v4(vA)}, v{vT+6} offset:{L_Z}"); A(f"ds_read_b128 {v4(vA+4)}, v{vT+6} offset:{L_Z+16}"); A(f"ds_read_b32 v{vT+7}, v{vT+6} offset:{L_Z+32}")
    A("s_waitcnt lgkmcnt(0)")
    A(f"v_pk_add_f32 {v2(vA)}, {v2(vA)}, {v2(vA+2)}"); A(f"v_pk_add_f32 {v2(vA+4)}, {v2(vA+4)}, {v2(vA+6)}")
    A(f"v_pk_add_f32 {v2(vA)}, {v2(vA)}, {v2(vA+4)}")
    A(f"v_add_f32 v{vA}, v{vA}, v{vA+1}"); A(f"v_add_f32 v{vA}, v{vA}, v{vT+7}")
    bf16r(g, vA, vA)
    A(f"v_mul_f32 v{vA}, {f2u(-1.4426950408889634):#x}, v{vA}")
    A(f"v_exp_f32 v{vA}, v{vA}"); A("s_nop 0")
    A(f"v_add_f32 v{vA}, 1.0, v{vA}"); A(f"v_rcp_f32 v{vA}, v{vA}"); A("s_nop 0")
    bf16r(g, vA, vA)
    A(f"v_sub_f32 v{vA+1}, 1.0, v{vA}"); bf16r(g, vA+1, vA+1)
    A(f"v_and_b32 v{vT+9}, 7, v{vL}"); A(f"v_lshlrev_b32 v{vT+8}, 2, v{vT+9}"); A(f"v_lshlrev_b32 v{vT+9}, 1, v{vT+9}")
    A(f"v_add_u32 v{vT+8}, {L_R}, v{vT+8}")
    A(f"s_lshl_b32 s{sKO}, s{sC}, 4")
    A("s_barrier")
    g.stamp(8)
    for k in range(8): A(f"ds_read2_b32 {v2(vK+2*k)}, v{vT+8} offset0:{16*k} offset1:{16*k+8}")
    A("s_waitcnt lgkmcnt(0)")
    A(f"v_pk_add_f32 {v2(vK)}, {v2(vK)}, {v2(vK+2)}"); A(f"v_pk_add_f32 {v2(vK+4)}, {v2(vK+4)}, {v2(vK+6)}")
    A(f"v_pk_add_f32 {v2(vK+12)}, {v2(vK+12)}, {v2(vK+14)}")
    A(f"v_pk_add_f32 {v2(vK)}, {v2(vK)}, {v2(vK+8)}")
    A(f"v_add_f32 v{vK+12}, v{vK+12}, v{vK+13}")
    A(f"v_pk_add_f32 {v2(vK)}, {v2(vK)}, {v2(vK+4)}")
    A(f"v_add_f32 v{vK+11}, v{vK+11}, v{vK+12}")
    A(f"v_add_f32 v{vK}, v{vK}, v{vK+1}"); A(f"v_add_f32 v{vK+10}, v{vK}, v{vK+10}")
    A(f"v_cvt_pk_bf16_f32 v{vK}, v{vK+10}, v{vK+11}")
    A(f"v_lshlrev_b32 v{vK+10}, 16, v{vK}"); A(f"v_and_b32 v{vK+11}, 0xffff0000, v{vK}")
    A(f"v_pk_mul_f32 {v2(vK+10)}, {v2(vK+10)}, {v2(vA)}")
    A(f"v_cvt_pk_bf16_f32 v{vK}, v{vK+10}, v{vK+11}")
    A(f"v_lshlrev_b32 v{vK+10}, 16, v{vK}"); A(f"v_and_b32 v{vK+11}, 0xffff0000, v{vK}")
    A(f"v_add_f32 v{vK}, v{vK+10}, v{vK+11}")
    A(f"v_cvt_pk_bf16_f32 v{vK}, v{vK}, v{vK}")
    setexec(g, 0xff, 0)
    A(f"buffer_store_short v{vK}, v{vT+9}, {srd(SOUT)}, s{sKO} offen {p.get('ost','')}")
    if hd or p.get("diag"): A(f"s_cmp_lg_u32 s{sU}, 0"); A("s_cbranch_scc1 L_fin")
    if hd:
        g.stamp(9)
        A("s_waitcnt lgkmcnt(0)")
        if hd[0] == "A":
            A("s_sleep 40")
            A(f"buffer_load_dword v{vT+1}, v{vT+6}, {srd(SWS)}, 0 offen offset:1024 sc1"); A("s_waitcnt vmcnt(0)")
            A(f"v_readfirstlane_b32 s{sT0}, v{vT+1}"); A("s_nop 3")
        else: A(f"s_sub_u32 s{sT0}, s{80+2*hd[3]}, s{80+2*hd[2]}")
        A(f"s_mul_i32 s{sT0}, s{sT0}, {hd[4]}"); A(f"s_add_u32 s{sT0}, s{sT0}, 300"); A(f"s_min_u32 s{sT0}, s{sT0}, 20000")
        g.lab("L_hd2")
        A("s_memrealtime s[80:81]"); A("s_waitcnt lgkmcnt(0)"); A("s_sub_u32 s80, s80, s98"); A(f"s_cmp_lt_u32 s80, s{sT0}"); A("s_cbranch_scc1 L_hd2")
    if p.get("diag"):
        A("s_memrealtime s[92:93]")
        A(f"v_lshlrev_b32 v{vT}, 7, v{vL}")
        A(f"buffer_load_dword v{vT+1}, v{vT}, {srd(SWS)}, 0 offen offset:1024 sc1"); A("s_waitcnt vmcnt(0) lgkmcnt(0)")
        for k in range(8): A(f"v_readlane_b32 s{80+k}, v{vT+1}, {k}")
        A("s_nop 3")
        for k in range(8): A(f"s_sub_u32 s{80+k}, s92, s{80+k}")
        A("s_mov_b32 s88, s80"); A("s_mov_b32 s89, s80")
        for k in range(1, 8): A(f"s_max_u32 s88, s88, s{80+k}"); A(f"s_min_u32 s89, s89, s{80+k}")
        d = p["diag"]
        if d == "skew": A("s_sub_u32 s88, s88, s89"); A("s_mul_i32 s88, s88, 10")
        elif d == "total": A("s_mul_i32 s88, s88, 4")
        elif d == "last": A("s_mul_i32 s88, s89, 4")
        elif d == "zero": A("s_mov_b32 s88, 0")
        elif d == "a0": A("s_sub_u32 s88, s96, s90"); A("s_mul_i32 s88, s88, 20")
        elif d == "touch": A("s_sub_u32 s88, s98, s96"); A("s_mul_i32 s88, s88, 20")
        A("s_min_u32 s88, s88, 20000")
        g.lab("L_dg2")
        A("s_memrealtime s[94:95]"); A("s_waitcnt lgkmcnt(0)"); A("s_sub_u32 s94, s94, s92"); A("s_cmp_lt_u32 s94, s88"); A("s_cbranch_scc1 L_dg2")
    g.lab("L_fin")
    if p["stamps"] and not hd:
        A("s_mov_b64 exec, -1")
        A("s_waitcnt vmcnt(0)")
        g.stamp(9)
        A("s_waitcnt lgkmcnt(0)")
        A("s_sleep 127"); A("s_sleep 127")
        A(f"s_lshl_b32 s{sT0}, s2, 4"); A(f"s_add_u32 s{sT0}, s{sT0}, s{sW}"); A(f"s_lshl_b32 s{sT0}, s{sT0}, 6"); A(f"s_add_u32 s{sT0}, s{sT0}, {STB}")
        for k in range(10): A(f"v_mov_b32 v{vK+k}, s{80+2*k}")
        A(f"v_mov_b32 v{vK+10}, s{sSPIN}"); A(f"v_mov_b32 v{vK+11}, s{sTAG}")
        A(f"v_mov_b32 v{vT}, 0"); A("s_mov_b64 exec, 1")
        for k in range(3): A(f"buffer_store_dwordx4 {v4(vK+4*k)}, v{vT}, {srd(SWS)}, s{sT0} offen offset:{16*k}")
    g.lab("L_end")
    A("s_endpgm")
    out += g.L
    out += ['.section .rodata,"a"', ".p2align 6", f".amdhsa_kernel {NAME}", f"  .amdhsa_next_free_vgpr {NV}",
            f"  .amdhsa_next_free_sgpr {100 if (p['stamps'] or p.get('diag')) else 80}", f"  .amdhsa_accum_offset {NV}", "  .amdhsa_group_segment_fixed_size 0",
            "  .amdhsa_kernarg_size 104", "  .amdhsa_user_sgpr_count 2", "  .amdhsa_user_sgpr_kernarg_segment_ptr 1",
            "  .amdhsa_system_sgpr_workgroup_id_x 1", ".end_amdhsa_kernel"]
    return "\n".join(out) + "\n"

if __name__ == "__main__":
    kw = {}
    for a in sys.argv[2:]:
        k, v = a.split("="); kw[k] = eval(v)
    open(sys.argv[1], "w").write(gen(**kw))
```
